```python
import torch

def _softmax(x, axis=-1):
    return torch.softmax(x, dim=axis)
def _gelu(x):
    return torch.nn.functional.gelu(x, approximate="tanh")
def _silu(x):
    return torch.nn.functional.silu(x)
def _sigmoid(x):
    return torch.sigmoid(x)
def _layernorm(x, axis=-1, eps=1e-5):
    m = x.mean(dim=axis, keepdim=True)
    v = x.var(dim=axis, keepdim=True, unbiased=False)
    return (x - m) / torch.sqrt(v + eps)
def _scatter_add(tgt, idx, src, axis=0):
    return tgt.clone().index_add_(axis, idx, src)
def _segment_sum(src, seg, n):
    out = torch.zeros((n,) + src.shape[1:], dtype=src.dtype)
    return out.index_add_(0, seg, src)
def _pad(x, pw):
    flat = tuple(v for pair in reversed(pw) for v in pair)
    return torch.nn.functional.pad(x, flat)

kernel_name = 'interleave_layers__sliding_block__swiglu_ffn__prompt'

def setup_inputs():

    _w = (lambda a: (lambda t: t.to(torch.bfloat16) if t.is_floating_point() else t)(torch.as_tensor(a)))
    def _A_setup():
        B, S, D = 1, 2048, 576
        return {
            "x": _w((lambda *s: torch.randn(*s, dtype=torch.bfloat16) * 0.05)(B, S, D)),
            "wqkv": _w((lambda *s: torch.randn(*s, dtype=torch.bfloat16) * 0.05)(D, 3 * D)),
            "wo": _w((lambda *s: torch.randn(*s, dtype=torch.bfloat16) * 0.05)(D, D)),
        }
    _A_in = _A_setup()

    def _B_setup():
        B, S, D, F = 1, 2048, 576, 4608
        return {
            "x": _w((lambda *s: torch.randn(*s, dtype=torch.bfloat16) * 0.05)(B, S, D)),
            "w_gate": _w((lambda *s: torch.randn(*s, dtype=torch.bfloat16) * 0.05)(D, F)),
            "w_up": _w((lambda *s: torch.randn(*s, dtype=torch.bfloat16) * 0.05)(D, F)),
            "w_down": _w((lambda *s: torch.randn(*s, dtype=torch.bfloat16) * 0.05)(F, D)),
        }
    _B_in = _B_setup()

    return {
        "A_x": _A_in["x"],
        "A_wqkv": _A_in["wqkv"],
        "A_wo": _A_in["wo"],
        "B_x": _B_in["x"],
        "B_w_gate": _B_in["w_gate"],
        "B_w_up": _B_in["w_up"],
        "B_w_down": _B_in["w_down"],
    }

def reference(A_x, A_wqkv, A_wo, B_x, B_w_gate, B_w_up, B_w_down):
    def _A_ref(x, wqkv, wo):
        B, S, D = x.shape
        H = 32; Dh = D // H; W = 256
        qkv = (lambda x, *d: x.permute(*d))((x @ wqkv).reshape(B, S, 3, H, Dh), 2, 0, 3, 1, 4)
        q, k, v = qkv[0], qkv[1], qkv[2]
        scores = torch.einsum("bhqd,bhkd->bhqk", q, k) * (Dh ** -0.5)
        idx = torch.arange(S)
        mask = (idx[:, None] - idx[None, :] >= 0) & (idx[:, None] - idx[None, :] < W)
        scores = torch.where(mask[None, None], scores, -1e9)
        p = _softmax(scores, axis=-1)
        o = torch.einsum("bhqk,bhkd->bhqd", p, v)
        return (lambda x, *d: x.permute(*d))(o, 0, 2, 1, 3).reshape(B, S, D) @ wo

    def _B_ref(x, w_gate, w_up, w_down):
        g = _silu(x @ w_gate)
        u = x @ w_up
        return (g * u) @ w_down

    x = A_x
    x = x + _A_ref(_layernorm(x, axis=-1), A_wqkv, A_wo)
    x = x + _B_ref(_layernorm(x, axis=-1), B_w_gate, B_w_up, B_w_down)
    x = x + _A_ref(_layernorm(x, axis=-1), A_wqkv, A_wo)
    x = x + _B_ref(_layernorm(x, axis=-1), B_w_gate, B_w_up, B_w_down)
    return x
```

```python
class KB:
    def __init__(self):
        self.lines = []
        self.vmq = []
        self.vm_done = 0
        self.lgq = []
        self.lg_done = 0
    def __call__(self, s):
        for l in s.split("\n"):
            self.lines.append("    " + l)
    def label(self, n):
        self.lines.append(n + ":")
    def raw(self, s):
        self.lines.append(s)
    def vm(self, s, tag=None):
        self(s); self.vmq.append(tag)
    def lg(self, s, tag=None):
        self(s); self.lgq.append(tag)
    def _need(self, q, done, tag):
        idx = max(i for i, t in enumerate(q) if t == tag)
        if idx < done: return None
        return len(q) - 1 - idx, idx + 1
    def wait_vm(self, tag, force=False):
        r = self._need(self.vmq, 0 if force else self.vm_done, tag)
        if r is None: return
        n, d = r
        assert n <= 63, n
        self(f"s_waitcnt vmcnt({n})"); self.vm_done = max(self.vm_done, d)
    def wait_lg(self, tag, force=False):
        r = self._need(self.lgq, 0 if force else self.lg_done, tag)
        if r is None: return
        n, d = r
        if n > 15:
            n = 15; d = len(self.lgq) - 15
        self(f"s_waitcnt lgkmcnt({n})"); self.lg_done = max(self.lg_done, d)
    def wait_vm_all(self):
        self("s_waitcnt vmcnt(0)"); self.vm_done = len(self.vmq)
    def wait_lg_all(self):
        self("s_waitcnt lgkmcnt(0)"); self.lg_done = len(self.lgq)
    def mark(self):
        return len(self.lines)
    def text(self):
        return "\n".join(self.lines) + "\n"

class F:
    def __init__(self, fn, cost=4, after=0, before=None):
        self.fn, self.cost, self.after, self.before = fn, cost, after, before

def line(s, cost=4, after=0, before=None):
    return F(lambda k: k(s), cost, after, before)
def vml(s, tag=None, cost=4, after=0, before=None):
    return F(lambda k: k.vm(s, tag), cost, after, before)
def lgl(s, tag=None, cost=4, after=0, before=None):
    return F(lambda k: k.lg(s, tag), cost, after, before)

def interleave(k, mfmas, streams, budget=8, pre=None):
    n = len(mfmas)
    pos = [0] * len(streams)
    tot = [sum(f.cost for f in s) for s in streams]
    used = [0] * len(streams)
    for i, m in enumerate(mfmas):
        for si, s in enumerate(streams):
            while pos[si] < len(s) and any(f.before is not None and f.before <= i for f in s[pos[si]:]):
                f = s[pos[si]]; assert f.after <= i, (f.after, i)
                f.fn(k); used[si] += f.cost; pos[si] += 1
        if pre and i in pre: pre[i](k)
        if callable(m): m(k)
        else: k(m)
        left = budget - (4 if pre and (i + 1) in pre else 0)
        while True:
            best = None; bl = None
            for si, s in enumerate(streams):
                if pos[si] >= len(s): continue
                f = s[pos[si]]
                if f.after > i + 1 and False: continue
                if f.after > i: continue
                lag = (i + 1) / n * tot[si] - used[si]
                if lag <= 0 and i < n - 1: continue
                if f.cost > left and i < n - 1: continue
                rel = lag / max(tot[si], 1)
                if best is None or rel > bl: best, bl = si, rel
            if best is None: break
            f = streams[best][pos[best]]
            f.fn(k); used[best] += f.cost; pos[best] += 1; left -= f.cost
    for si, s in enumerate(streams):
        while pos[si] < len(s):
            s[pos[si]].fn(k); pos[si] += 1

def vr(a, n=1): return f"v{a}" if n == 1 else f"v[{a}:{a+n-1}]"
def ar(a, n=1): return f"a{a}" if n == 1 else f"a[{a}:{a+n-1}]"
def sr(a, n=1): return f"s{a}" if n == 1 else f"s[{a}:{a+n-1}]"
```

```python
import re, sys, math
from kb import *
KBY = 1024
OFF_XF, OFF_XN, OFF_OF, OFF_X1 = 0, 2304*KBY, 4608*KBY, 6912*KBY
OFF_QKV = 9216*KBY
OFF_PART = 16128*KBY
OFF_WQ = 34560*KBY
OFF_WO = 36608*KBY
OFF_WF = 37376*KBY
WS_USED = 53248*KBY
BIG = 0x40000000
LOG2E = 1.4426950408889634
import struct
def fbits(x): return "0x%08x" % struct.unpack("<I", struct.pack("<f", x))[0]
ST = " sc1"
MF = "v_mfma_f32_16x16x32_bf16"

def header(k, name, nwg):
    k.raw(f".globl {name}\n.p2align 8\n.type {name},@function")
    k.label(name)
    k(f"s_cmp_ge_u32 s2, {nwg}")
    k(f"s_cbranch_scc1 L_{name}_end")
def footer(k, name):
    k.label(f"L_{name}_end")
    k("s_endpgm")
def srd(k, d, base, nbytes):
    k(f"s_mov_b32 s{d}, s{base}\ns_mov_b32 s{d+1}, s{base+1}\ns_mov_b32 s{d+2}, {nbytes}\ns_mov_b32 s{d+3}, 0x00020000")
def sdiv(k, dst, src, D, tmp):
    k(f"s_mov_b32 s{tmp}, {-(-(1<<32)//D)}")
    k(f"s_mul_hi_u32 s{dst}, s{src}, s{tmp}")
def wave_id(k, sdst, vlane16, vtmp):
    k(f"v_lshrrev_b32 v{vtmp}, 6, v0")
    k(f"v_and_b32 v{vlane16}, 63, v0")
    k(f"v_readfirstlane_b32 s{sdst}, v{vtmp}")
    k(f"v_lshlrev_b32 v{vlane16}, 4, v{vlane16}")

def red_rows(k, v, t, op="v_add_f32"):
    for sw in ("v_permlane16_swap_b32", "v_permlane32_swap_b32"):
        k(f"v_mov_b32 v{t}, v{v}")
        k("s_nop 1")
        k(f"{sw} v{v}, v{t}")
        k(f"{op} v{v}, v{v}, v{t}")

def ln_stats_finish(k, s, q, t, sinv):
    k(f"v_mul_f32 v{s}, s{sinv}, v{s}")
    k(f"v_mul_f32 v{q}, s{sinv}, v{q}")
    k(f"v_fma_f32 v{q}, -v{s}, v{s}, v{q}")
    k(f"v_max_f32 v{q}, 0, v{q}")
    k(f"v_add_f32 v{q}, {fbits(1e-5)}, v{q}")
    k(f"v_rsq_f32 v{q}, v{q}")
    k("s_nop 0")
    k(f"v_mul_f32 v{s}, v{s}, v{q}")
    k(f"v_sub_f32 v{s}, 0, v{s}")

def ln_norm(k, x, dst, s, q, t, smask):
    k(f"v_lshlrev_b32 v{t}, 16, v{x}")
    k(f"v_and_b32 v{t+1}, s{smask}, v{x}")
    k(f"v_fma_f32 v{t}, v{t}, v{q}, v{s}")
    k(f"v_fma_f32 v{t+1}, v{t+1}, v{q}, v{s}")
    k(f"v_cvt_pk_bf16_f32 v{dst}, v{t}, v{t+1}")

def ln_wave(k, X, T, sones, sinv, smask, waitfn=None, after=None):
    for i in range(8): k(f"v_mov_b32 v{T+i}, 0")
    for ks in range(18):
        if waitfn: waitfn(ks)
        for i in range(4):
            k(f"v_dot2c_f32_bf16 v{T+i}, s{sones}, v{X+4*ks+i}")
            k(f"v_dot2c_f32_bf16 v{T+4+i}, v{X+4*ks+i}, v{X+4*ks+i}")
    k("s_nop 2")
    k(f"v_add_f32 v{T}, v{T}, v{T+1}\nv_add_f32 v{T+2}, v{T+2}, v{T+3}\nv_add_f32 v{T+4}, v{T+4}, v{T+5}\nv_add_f32 v{T+6}, v{T+6}, v{T+7}")
    k(f"v_add_f32 v{T}, v{T}, v{T+2}\nv_add_f32 v{T+4}, v{T+4}, v{T+6}")
    red_rows(k, T, T+1); red_rows(k, T+4, T+5)
    ln_stats_finish(k, T, T+4, T+1, sinv)
    for ks in range(18):
        for i in range(4):
            ln_norm(k, X+4*ks+i, X+4*ks+i, T, T+4, T+8+2*(i & 1), smask)
        if after: after(ks)

def ln_consts(k, sones, sinv, smask):
    k(f"s_mov_b32 s{sones}, 0x3f803f80\ns_mov_b32 s{sinv}, {fbits(1/576)}\ns_mov_b32 s{smask}, 0xffff0000")

J_Q, J_O, J_Z, J_G, J_D, J_END = 128, 614, 776, 812, 3404, 4700
def k0():
    k = KB(); name = "pack_kernel"
    header(k, name, J_END // 4)
    k("s_load_dwordx4 s[36:39], s[0:1], 0")
    k("s_load_dwordx2 s[40:41], s[0:1], 16")
    k("s_load_dwordx4 s[44:47], s[0:1], 32")
    k("s_load_dwordx2 s[42:43], s[0:1], 48")
    k("s_load_dwordx2 s[4:5], s[0:1], 72")
    wave_id(k, 20, 1, 2)
    k("v_and_b32 v3, 63, v0")
    k("s_lshl_b32 s21, s2, 2")
    k("s_add_u32 s21, s21, s20")
    k("s_lshl_b32 s22, s20, 12")
    k("v_lshrrev_b32 v4, 3, v3")
    k("v_and_b32 v5, 7, v3")
    k("s_waitcnt lgkmcnt(0)")
    srd(k, 8, 4, WS_USED)
    k(f"s_cmp_lt_u32 s21, {J_Q}\ns_cbranch_scc1 L_k0_ln")
    k(f"s_cmp_lt_u32 s21, {J_O}\ns_cbranch_scc1 L_k0_q")
    k(f"s_cmp_lt_u32 s21, {J_Z}\ns_cbranch_scc1 L_k0_o")
    k(f"s_cmp_lt_u32 s21, {J_G}\ns_cbranch_scc1 L_k0_z")
    k(f"s_cmp_lt_u32 s21, {J_D}\ns_cbranch_scc1 L_k0_g")
    k(f"s_sub_u32 s23, s21, {J_D}")
    sdiv(k, 24, 23, 9, 30)
    k("s_mul_i32 s30, s24, 9\ns_sub_u32 s25, s23, s30")
    sdiv(k, 26, 24, 18, 30)
    k("s_mul_i32 s30, s26, 18\ns_sub_u32 s27, s24, s30")
    k("s_lshr_b32 s30, s27, 2\ns_mul_i32 s30, s30, 144\ns_and_b32 s31, s27, 3\ns_lshl_b32 s31, s31, 5\ns_add_u32 s30, s30, s31")
    k("s_sub_u32 s31, s27, 16\ns_mul_i32 s31, s31, 288\ns_add_u32 s31, s31, 128")
    k("s_cmp_lt_u32 s27, 16\ns_cselect_b32 s30, s30, s31\ns_cselect_b32 s28, 16, 144")
    k("s_mul_i32 s31, s26, 576\ns_add_u32 s30, s30, s31")
    k("s_mul_i32 s32, s30, 1152\ns_lshl_b32 s31, s25, 7\ns_add_u32 s32, s32, s31")
    k("s_mul_i32 s28, s28, 1152\ns_mov_b32 s29, 9216")
    srd(k, 12, 42, 4608*1152)
    k("v_mul_u32_u24 v6, 1152, v4\nv_lshl_add_u32 v6, v5, 4, v6")
    for c in range(4):
        k(f"s_lshl_b32 s30, s25, 2\ns_add_u32 s30, s30, {c}")
        sdiv(k, 31, 30, 9, 33)
        k("s_mul_i32 s33, s31, 9\ns_sub_u32 s30, s30, s33")
        k("s_sub_u32 s33, s30, 1\ns_cmp_eq_u32 s30, 0\ns_cselect_b32 s33, 8, s33")
        k("s_bitcmp1_b32 s31, 0\ns_cselect_b32 s30, s33, s30")
        k("s_lshl_b32 s33, s26, 2\ns_add_u32 s31, s31, s33\ns_mul_i32 s31, s31, 486")
        k(f"s_mul_i32 s30, s30, 18\ns_add_u32 s30, s30, s31\ns_add_u32 s30, s30, s27\ns_add_u32 s30, s30, {324 + OFF_WF//KBY}")
        k(f"s_lshl_b32 s{48+c}, s30, 10")
    k("s_branch L_k0_dma4")
    k.label("L_k0_g")
    k(f"s_sub_u32 s23, s21, {J_G}")
    k("s_cmp_ge_u32 s23, 1296\ns_cselect_b32 s26, 18, 0\ns_cselect_b32 s30, 1296, 0\ns_cselect_b32 s34, s46, s44\ns_cselect_b32 s35, s47, s45")
    k("s_sub_u32 s23, s23, s30")
    sdiv(k, 27, 23, 72, 30)
    k("s_mul_i32 s30, s27, 72\ns_sub_u32 s25, s23, s30")
    k(f"s_mul_i32 s32, s27, {32*9216}\ns_lshl_b32 s31, s25, 7\ns_add_u32 s32, s32, s31")
    k(f"s_mov_b32 s28, {16*9216}\ns_mov_b32 s29, {8*9216}")
    srd(k, 12, 34, 576*9216)
    k("v_mul_u32_u24 v6, 9216, v4\nv_lshl_add_u32 v6, v5, 4, v6")
    for c in range(4):
        k(f"s_lshl_b32 s30, s25, 2\ns_add_u32 s30, s30, {c}")
        sdiv(k, 31, 30, 9, 33)
        k("s_mul_i32 s33, s31, 9\ns_sub_u32 s30, s30, s33")
        k("s_mul_i32 s31, s31, 486\ns_mul_i32 s30, s30, 36\ns_add_u32 s30, s30, s31\ns_add_u32 s30, s30, s26\ns_add_u32 s30, s30, s27")
        k(f"s_add_u32 s30, s30, {OFF_WF//KBY}\ns_lshl_b32 s{48+c}, s30, 10")
    k("s_branch L_k0_dma4")
    k.label("L_k0_o")
    k(f"s_sub_u32 s23, s21, {J_O}")
    sdiv(k, 27, 23, 9, 30)
    k("s_mul_i32 s30, s27, 9\ns_sub_u32 s25, s23, s30")
    k("s_mul_i32 s30, s27, 36\ns_sub_u32 s31, s27, 16\ns_mul_i32 s31, s31, 288\ns_add_u32 s31, s31, 16")
    k(f"s_cmp_lt_u32 s27, 16\ns_cselect_b32 s30, s30, s31\ns_mov_b32 s28, {18*1152}\ns_mov_b32 s29, {8*1152}\ns_cselect_b32 s28, s28, {144*1152}\ns_cselect_b32 s29, s29, {72*1152}")
    k("s_cselect_b64 vcc, -1, 0")
    k("s_mul_i32 s32, s30, 1152\ns_lshl_b32 s31, s25, 7\ns_add_u32 s32, s32, s31")
    srd(k, 12, 40, 576*1152)
    k("v_lshrrev_b32 v7, 4, v3\nv_mul_u32_u24 v7, 18, v7\nv_and_b32 v8, 1, v4\nv_add_u32 v7, v7, v8")
    k("v_cndmask_b32 v7, v7, v4, vcc")
    k("v_mul_u32_u24 v6, 1152, v7\nv_lshl_add_u32 v6, v5, 4, v6")
    for c in range(4):
        k(f"s_lshl_b32 s30, s25, 2\ns_add_u32 s30, s30, {c}")
        sdiv(k, 31, 30, 9, 33)
        k("s_mul_i32 s33, s31, 9\ns_sub_u32 s30, s30, s33")
        k("s_cmp_ge_u32 s30, 5\ns_cselect_b32 s33, 85, 0\ns_add_u32 s30, s30, s33")
        k(f"s_mul_i32 s31, s31, 180\ns_add_u32 s30, s30, s31\ns_mul_i32 s31, s27, 5\ns_add_u32 s30, s30, s31\ns_add_u32 s30, s30, {OFF_WO//KBY}")
        k(f"s_lshl_b32 s{48+c}, s30, 10")
    k.label("L_k0_dma4")
    k("s_mov_b32 m0, s22\ns_add_u32 s33, s32, s29")
    k("buffer_load_dwordx4 v6, s[12:15], s32 offen lds")
    k("s_add_u32 m0, m0, 1024\ns_add_u32 s32, s32, s28")
    k("buffer_load_dwordx4 v6, s[12:15], s33 offen lds")
    k("s_add_u32 m0, m0, 1024\ns_add_u32 s33, s32, s29")
    k("buffer_load_dwordx4 v6, s[12:15], s32 offen lds")
    k("s_add_u32 m0, m0, 1024\ns_nop 0")
    k("buffer_load_dwordx4 v6, s[12:15], s33 offen lds")
    k("s_branch L_k0_tail")
    k.label("L_k0_q")
    k(f"s_sub_u32 s23, s21, {J_Q}")
    sdiv(k, 27, 23, 27, 30)
    k("s_mul_i32 s30, s27, 27\ns_sub_u32 s25, s23, s30")
    sdiv(k, 26, 25, 9, 30)
    k("s_mul_i32 s30, s26, 9\ns_sub_u32 s24, s25, s30")
    k("s_mul_i32 s30, s24, 144\ns_cmp_lt_u32 s24, 8\ns_cselect_b32 s30, s30, 0\ns_cselect_b64 vcc, -1, 0")
    k(f"s_mul_i32 s31, s26, 1152\ns_add_u32 s30, s30, s31\ns_mul_i32 s32, s27, {32*3456}\ns_add_u32 s32, s32, s30")
    srd(k, 12, 38, 576*3456)
    k("v_and_b32 v7, 3, v4")
    k("v_mul_u32_u24 v8, 36, v7\nv_lshl_add_u32 v8, v5, 2, v8")
    k("v_lshl_add_u32 v9, v7, 3, v5\nv_mul_u32_u24 v9, 36, v9\nv_add_u32 v9, 32, v9")
    k("v_cndmask_b32 v8, v9, v8, vcc")
    k("v_lshrrev_b32 v7, 5, v3\nv_mul_u32_u24 v7, 3456, v7\nv_add_u32 v6, v7, v8")
    k("s_mov_b32 m0, s22\ns_nop 0")
    for i in range(16):
        k("buffer_load_dword v6, s[12:15], s32 offen lds")
        if i < 15: k("s_add_u32 m0, m0, 256\ns_add_u32 s32, s32, 6912")
    for c in range(4):
        k(f"s_lshl_b32 s30, s25, 2\ns_add_u32 s30, s30, {c}")
        sdiv(k, 31, 30, 27, 33)
        k("s_mul_i32 s33, s31, 27\ns_sub_u32 s30, s30, s33")
        sdiv(k, 34, 30, 7, 33)
        k("s_min_u32 s34, s34, 3\ns_mul_i32 s34, s34, 119\ns_add_u32 s30, s30, s34")
        k(f"s_mul_i32 s31, s31, 504\ns_add_u32 s30, s30, s31\ns_mul_i32 s31, s27, 7\ns_add_u32 s30, s30, s31\ns_add_u32 s30, s30, {OFF_WQ//KBY}")
        k(f"s_lshl_b32 s{48+c}, s30, 10")
    k.label("L_k0_tail")
    k("v_lshrrev_b32 v7, 2, v3\nv_lshlrev_b32 v7, 7, v7\nv_and_b32 v8, 3, v3\nv_lshl_add_u32 v7, v8, 3, v7\nv_add_u32 v7, s22, v7")
    k("s_waitcnt vmcnt(0)")
    for c in range(4):
        for hf in range(2):
            k(f"ds_read_b64_tr_b16 v[{16+4*c+2*hf}:{17+4*c+2*hf}], v7 offset:{hf*2048 + c*32}")
    k.label("L_k0_store")
    for c in range(4):
        k(f"s_waitcnt lgkmcnt({6-2*c})")
        k(f"buffer_store_dwordx4 v[{16+4*c}:{19+4*c}], v1, s[8:11], s{48+c} offen{ST}")
    k("s_endpgm")
    k.label("L_k0_z")
    k(f"s_sub_u32 s23, s21, {J_Z}\ns_sub_u32 s24, s23, 18\ns_cmp_lt_u32 s23, 18\ns_cselect_b32 s24, s23, s24")
    k(f"s_cselect_b32 s25, 7, 5\ns_mov_b32 s26, {OFF_WQ//KBY + 3*126 + 6}\ns_movk_i32 s27, 504\ns_cselect_b32 s26, s26, {OFF_WO//KBY + 90 + 4}\ns_cselect_b32 s27, s27, 180")
    k("s_mul_i32 s24, s24, s25\ns_add_u32 s24, s24, s26")
    for c in range(4):
        k(f"s_lshl_b32 s{48+c}, s24, 10\ns_add_u32 s24, s24, s27")
    for i in range(16): k(f"v_mov_b32 v{16+i}, 0")
    k("s_branch L_k0_store")
    k.label("L_k0_ln")
    srd(k, 12, 36, 2048*1152)
    ln_consts(k, 24, 25, 26)
    k("v_and_b32 v7, 15, v3\nv_mul_u32_u24 v7, 1152, v7\nv_bfe_u32 v8, v3, 4, 1\nv_lshl_add_u32 v7, v8, 5, v7\nv_lshrrev_b32 v8, 5, v3\nv_lshl_add_u32 v7, v8, 4, v7")
    k("s_mul_i32 s27, s21, 18432")
    X = 16
    for ks in range(18):
        k.vm(f"buffer_load_dwordx4 v[{X+4*ks}:{X+4*ks+3}], v7, s[12:15], s27 offen offset:{64*ks}", ("x", ks))
    k(f"s_add_u32 s28, s27, {OFF_XF}\ns_add_u32 s29, s27, {OFF_XN}")
    def wfn(ks):
        k.wait_vm(("x", ks))
        k(f"v_permlane16_swap_b32 v{X+4*ks}, v{X+4*ks+2}\nv_permlane16_swap_b32 v{X+4*ks+1}, v{X+4*ks+3}")
        k.vm(f"buffer_store_dwordx4 v[{X+4*ks}:{X+4*ks+3}], v1, s[8:11], s28 offen offset:{(ks%4)*1024}{ST}")
        if ks % 4 == 3: k("s_add_u32 s28, s28, 4096")
    def aft(ks):
        k.vm(f"buffer_store_dwordx4 v[{X+4*ks}:{X+4*ks+3}], v1, s[8:11], s29 offen offset:{(ks%4)*1024}{ST}")
        if ks % 4 == 3: k("s_add_u32 s29, s29, 4096")
    ln_wave(k, X, 2, 24, 25, 26, wfn, aft)
    footer(k, name)
    return name, k, dict(grid=J_END // 4, block=256, lds=16384, vgpr=88, accum=88)

def small_gemm(kind):
    qkv = kind == "qkv"
    k = KB(); name = "qkv_kernel" if qkv else "wo_kernel"
    NTB, NS = (2, 7) if qkv else (1, 5)
    nfr = 18 * NS; nch = -(-nfr // 16)
    header(k, name, 256)
    k("s_load_dwordx2 s[4:5], s[0:1], 72")
    wave_id(k, 20, 1, 2)
    if qkv:
        k("s_and_b32 s21, s2, 7\ns_lshl_b32 s21, s21, 1\ns_bfe_u32 s22, s2, 0x10003\ns_add_u32 s21, s21, s22")
        k("s_lshr_b32 s22, s2, 4")
        k("s_lshl_b32 s21, s21, 2\ns_add_u32 s21, s21, s20")
        k(f"s_mul_i32 s23, s21, {36*KBY}\ns_add_u32 s23, s23, {OFF_XN}\ns_add_u32 s24, s23, {18*KBY}")
        k(f"s_mul_i32 s25, s22, {126*KBY}\ns_add_u32 s25, s25, {OFF_WQ}")
    else:
        k("s_and_b32 s21, s2, 7\ns_lshl_b32 s21, s21, 2\ns_bfe_u32 s22, s2, 0x20003\ns_add_u32 s21, s21, s22")
        k("s_lshr_b32 s22, s2, 5")
        k("s_lshl_b32 s21, s21, 2\ns_add_u32 s21, s21, s20")
        k(f"s_mul_i32 s27, s21, {18*KBY}\ns_add_u32 s23, s27, {OFF_OF}")
        k(f"s_mul_i32 s25, s22, {90*KBY}\ns_add_u32 s25, s25, {OFF_WO}")
    k("s_lshl_b32 s26, s20, 12\ns_add_u32 s25, s25, s26\ns_mov_b32 m0, s26")
    k("s_waitcnt lgkmcnt(0)")
    srd(k, 8, 4, WS_USED)
    chunk_of = lambda ks: (NS * (ks + 1) - 1) // 16
    ACC = 16; WB = ACC + 4 * NS * NTB; RES = WB + 8 * NS
    def issue_chunk(q):
        for c in range(4):
            k.vm(f"buffer_load_dwordx4 v1, s[8:11], s25 offen offset:{c*1024} lds", ("w", q))
        k("s_add_u32 m0, m0, 16384\ns_add_u32 s25, s25, 16384")
    def issue_x(ks):
        for tb in range(NTB):
            r = 4 * (ks * NTB + tb)
            k.vm(f"buffer_load_dwordx4 a[{r}:{r+3}], v1, s[8:11], s{23+tb} offen offset:{(ks%4)*1024}", ("x", ks))
        if ks % 4 == 3:
            for tb in range(NTB): k(f"s_add_u32 s{23+tb}, s{23+tb}, 4096")
    order = []
    for ks in range(18):
        if ks == 0 or chunk_of(ks) != chunk_of(ks - 1): order.append(("w", chunk_of(ks)))
        order.append(("x", ks))
    def issue(it):
        (issue_chunk if it[0] == "w" else issue_x)(it[1])
    cost = lambda it: 4 if it[0] == "w" else NTB
    n = 0; pi = 0
    while pi < len(order) and n + cost(order[pi]) <= 58:
        n += cost(order[pi]); issue(order[pi]); pi += 1
    if not qkv:
        k("s_lshr_b32 s28, s22, 1\ns_mul_i32 s28, s28, 9\ns_and_b32 s29, s22, 1\ns_mul_i32 s30, s29, 5\ns_add_u32 s28, s28, s30")
        for sl in range(NS):
            k(f"s_add_u32 s30, s28, {sl}\ns_lshr_b32 s31, s30, 1\ns_lshl_b32 s31, s31, 10\ns_and_b32 s30, s30, 1\ns_lshl_b32 s30, s30, 3")
            k(f"s_add_u32 s30, s30, s31\ns_add_u32 s{40+sl}, s30, s27")
        k(f"s_cmp_eq_u32 s29, 1\ns_cselect_b32 s44, {BIG}, s44")
        for sl in range(NS):
            k(f"s_add_u32 s30, s{40+sl}, {OFF_XF}")
            k.vm(f"buffer_load_dwordx2 v[{RES+2*sl}:{RES+2*sl+1}], v1, s[8:11], s30 offen", "res")
    k("v_add_u32 v2, 0x10000, v1")
    def rd(ks, sl):
        i = ks * NS + sl; r = WB + 4 * ((ks & 1) * NS + sl)
        return (f"ds_read_b128 v[{r}:{r+3}], v{1 if i < 64 else 2} offset:{(i % 64) * 1024}", ("r", ks))
    k.wait_vm(("w", 0)); k("s_barrier")
    for sl in range(NS): k.lg(*rd(0, sl))
    for ks in range(18):
        if ks + 1 < 18 and chunk_of(ks + 1) != chunk_of(ks):
            k.wait_vm(("w", chunk_of(ks + 1))); k("s_barrier")
        while pi < len(order) and len(k.vmq) - k.vm_done + cost(order[pi]) <= 60:
            issue(order[pi]); pi += 1
        k.wait_vm(("x", ks)); k.wait_lg(("r", ks))
        mf = []
        for sl in range(NS):
            for tb in range(NTB):
                a = ACC + 4 * (sl * NTB + tb); w = WB + 4 * ((ks & 1) * NS + sl); x = 4 * (ks * NTB + tb)
                mf.append(f"{MF} v[{a}:{a+3}], v[{w}:{w+3}], a[{x}:{x+3}], " + ("0" if ks == 0 else f"v[{a}:{a+3}]"))
        fill = [lgl(*rd(ks + 1, sl)) for sl in range(NS)] if ks + 1 < 18 else []
        interleave(k, mf, [fill])
    assert pi == len(order)
    if qkv:
        k("s_lshr_b32 s28, s22, 2\ns_mul_i32 s28, s28, 27\ns_and_b32 s29, s22, 3\ns_mul_i32 s30, s29, 7\ns_add_u32 s28, s28, s30")
        k(f"s_lshl_b32 s30, s28, 6\ns_add_u32 s30, s30, s21\ns_lshl_b32 s30, s30, 10\ns_add_u32 s30, s30, {OFF_QKV}")
        k("s_nop 1")
        for sl in range(NS):
            a = ACC + 8 * sl
            k(f"s_cmp_lt_u32 s28, {36 - sl}\ns_cselect_b32 s31, {fbits(18 ** -0.5 * LOG2E)}, 1.0")
            for i in range(8): k(f"v_mul_f32 v{a+i}, s31, v{a+i}")
            for i in range(4): k(f"v_cvt_pk_bf16_f32 v{a+i}, v{a+2*i}, v{a+2*i+1}")
            if sl == 6: k(f"s_cmp_eq_u32 s29, 3\ns_cselect_b32 s30, {BIG}, s30")
            k.vm(f"buffer_store_dwordx4 v[{a}:{a+3}], v1, s[8:11], s30 offen{ST}")
            if sl < 6: k("s_add_u32 s30, s30, 65536")
    else:
        k.wait_vm("res")
        k("s_mov_b32 s31, 0xffff0000\ns_nop 4")
        for sl in range(NS):
            a = ACC + 4 * sl; r = RES + 2 * sl
            for h in range(2):
                k(f"v_lshlrev_b32 v4, 16, v{r+h}\nv_and_b32 v5, s31, v{r+h}")
                k(f"v_add_f32 v4, v4, v{a+2*h}\nv_add_f32 v5, v5, v{a+2*h+1}\nv_cvt_pk_bf16_f32 v{r+h}, v4, v5")
            k(f"s_add_u32 s30, s{40+sl}, {OFF_X1}")
            k.vm(f"buffer_store_dwordx2 v[{r}:{r+1}], v1, s[8:11], s30 offen{ST}")
    footer(k, name)
    nv = (RES + 2 * NS + 3) // 4 * 4
    return name, k, dict(grid=256, block=256, lds=nch * 16384, vgpr=nv + 72 * NTB, accum=nv)

def attn():
    k = KB(); name = "attn_kernel"
    header(k, name, 256)
    k("s_load_dwordx2 s[4:5], s[0:1], 72")
    wave_id(k, 20, 1, 2)
    k("s_and_b32 s21, s2, 7\ns_lshl_b32 s21, s21, 1\ns_bfe_u32 s22, s2, 0x10003\ns_add_u32 s21, s21, s22")
    k("s_lshr_b32 s22, s2, 4")
    k("v_and_b32 v3, 63, v0\nv_lshrrev_b32 v4, 4, v3")
    k("v_and_b32 v5, 1, v4\nv_lshlrev_b32 v5, 7, v5\nv_xor_b32 v5, v5, v1")
    k("s_mul_i32 s23, s20, 3\ns_lshl_b32 s24, s21, 2\ns_add_u32 s24, s24, s23\ns_sub_i32 s24, s24, 8")
    for c in range(3):
        k(f"s_cmp_lt_i32 s24, {-c}\ns_cselect_b32 s25, {BIG}, 0")
        k(f"v_add_u32 v{6+c}, s25, v1\nv_add_u32 v{9+c}, s25, v5")
    k(f"s_lshl_b32 s24, s24, 10\ns_add_u32 s24, s24, {OFF_QKV}")
    k("s_lshl_b32 s25, s22, 17\ns_add_u32 s25, s25, s24")
    k("s_lshr_b32 s26, s22, 2\ns_lshl_b32 s27, s26, 16\ns_add_u32 s27, s27, s24")
    k("s_lshl_b32 s23, s23, 10")
    k("s_waitcnt lgkmcnt(0)")
    srd(k, 8, 4, WS_USED)
    blocks = [(25, 36), (25, 37), (27, 68), (25, 72), (25, 73), (27, 104)]
    for b, (sb, nb) in enumerate(blocks):
        k(f"s_add_u32 m0, s23, {b*12288}\ns_add_u32 s28, s{sb}, {nb*65536}")
        for c in range(3):
            k.vm(f"buffer_load_dwordx4 v{(6 if b < 3 else 9)+c}, s[8:11], s28 offen offset:{c*1024} lds", ("kv", b // 3))
    Q = 16
    k("s_and_b32 s29, s20, 1\ns_lshr_b32 s30, s20, 1")
    k("s_lshl_b32 s31, s22, 1\ns_add_u32 s31, s31, s29")
    k("s_lshl_b32 s32, s21, 2\ns_lshl_b32 s33, s30, 1\ns_add_u32 s32, s32, s33")
    k(f"s_lshl_b32 s33, s31, 6\ns_add_u32 s33, s33, s32\ns_lshl_b32 s33, s33, 10\ns_add_u32 s33, s33, {OFF_QKV}")
    k(f"s_add_u32 s34, s26, 32\ns_lshl_b32 s34, s34, 6\ns_add_u32 s34, s34, s32\ns_lshl_b32 s34, s34, 10\ns_add_u32 s34, s34, {OFF_QKV}")
    for i in range(4):
        off = (i >> 1) * 1024 + (i & 1) * 8
        k.vm(f"buffer_load_dwordx2 v[{Q+4*i}:{Q+4*i+1}], v1, s[8:11], s33 offen offset:{off}", "q")
        k.vm(f"buffer_load_dwordx2 v[{Q+4*i+2}:{Q+4*i+3}], v1, s[8:11], s34 offen offset:{off}", "q")
    M1, M2, ONE = 32, 36, 40
    k(f"v_and_b32 v12, 15, v3\nv_lshlrev_b32 v13, 2, v4\ns_mov_b32 s35, {fbits(-1e30)}\nv_mov_b32 v14, s35")
    for i in range(4):
        k(f"v_add_u32 v15, {i}, v13\nv_cmp_gt_u32 vcc, v15, v12\ns_nop 1")
        k(f"v_cndmask_b32 v{M1+i}, v14, 0, vcc\nv_cndmask_b32 v{M2+i}, 0, v14, vcc\nv_mov_b32 v{ONE+i}, 0x3f803f80")
    k("s_bfe_u32 s36, s31, 0x20001")
    k(f"v_cmp_eq_u32 s[38:39], s36, v4\nv_mov_b32 v45, {BIG}\ns_nop 0\nv_cndmask_b32 v45, v45, v1, s[38:39]")
    k("s_cmp_eq_u32 s29, 1\ns_cselect_b64 s[40:41], -1, 0")
    k("s_andn2_b64 s[42:43], s[38:39], s[40:41]\ns_and_b64 s[44:45], s[38:39], s[40:41]")
    k(f"s_lshl_b32 s46, s32, 1\ns_mul_i32 s46, s46, {18*KBY}\ns_add_u32 s46, s46, {OFF_OF}")
    k("s_lshl_b32 s47, s22, 10\ns_lshl_b32 s36, s29, 3\ns_add_u32 s47, s47, s36\ns_add_u32 s47, s47, s46")
    k("s_lshr_b32 s36, s26, 1\ns_add_u32 s36, s36, 16\ns_lshl_b32 s36, s36, 10\ns_and_b32 s37, s26, 1\ns_lshl_b32 s37, s37, 3\ns_add_u32 s36, s36, s37")
    k("s_lshl_b32 s37, s29, 2\ns_add_u32 s36, s36, s37\ns_add_u32 s46, s46, s36")
    k("s_mul_i32 s36, s29, 12288\ns_lshl_b32 s37, s30, 11\ns_add_u32 s36, s36, s37")
    k("v_add_u32 v6, s36, v1")
    k("s_add_u32 s37, s37, 24576\nv_add_u32 v7, s37, v1")
    k("v_and_b32 v8, 3, v3\nv_lshrrev_b32 v9, 2, v3\nv_and_b32 v10, 1, v3\nv_lshlrev_b32 v10, 3, v10\nv_xor_b32 v9, v9, v10\nv_lshl_add_u32 v9, v8, 4, v9\nv_lshlrev_b32 v9, 4, v9")
    k("s_add_u32 s36, s36, 36864\ns_add_u32 s37, s37, 36864\nv_add_u32 v8, s36, v9\nv_add_u32 v9, s37, v9")
    KR, VR = 0, 80
    k.wait_vm("q")
    for i in range(4):
        k(f"v_cndmask_b32 v{Q+4*i+2}, 0, v{Q+4*i+2}, s[42:43]\nv_cndmask_b32 v{Q+4*i+3}, 0, v{Q+4*i+3}, s[44:45]")
    k("s_barrier")
    for lim in (16, 12, 8, 4):
        k(f"s_cmp_eq_u32 s32, {(16 - lim) // 2}\ns_cbranch_scc1 L_attn_v{lim}")
    S0 = 48; OA = S0 + 144; TM = OA + 24
    for lim in (0, 4, 8, 12, 16):
        k.label(f"L_attn_v{lim}")
        k.lgq = []; k.lg_done = 0
        for kt in range(lim, 20):
            off = (kt >> 1) * 1024 + (kt & 1) * 8
            k.lg(f"ds_read_b64 a[{KR+4*kt}:{KR+4*kt+1}], v6 offset:{off}", ("k", kt))
            k.lg(f"ds_read_b64 a[{KR+4*kt+2}:{KR+4*kt+3}], v7 offset:{off}", ("k", kt))
        vreads = []
        for p in range(lim // 2, 10):
            for b in range(2):
                for hf in range(2):
                    r = VR + 8 * p + 4 * b + 2 * hf
                    vreads.append(lgl(f"ds_read_b64_tr_b16 a[{r}:{r+1}], v{8+b} offset:{p*1024 + hf*8}", ("v", p)))
        tiles = lambda i: list(range(max(i, lim), i + 17))
        sreg = lambda i, kt: S0 + 72 * (i & 1) + 4 * (kt - 2 * (i >> 1))
        def qk(i):
            out = []
            for kt in tiles(i):
                c = f"v[{M2}:{M2+3}]" if kt == i + 16 else f"v[{M1}:{M1+3}]" if kt == i else "0"
                s = sreg(i, kt)
                def f(k, kt=kt, s=s, c=c):
                    k.wait_lg(("k", kt))
                    k(f"{MF} v[{s}:{s+3}], a[{KR+4*kt}:{KR+4*kt+3}], v[{Q+4*i}:{Q+4*i+3}], {c}")
                out.append(f)
            return out
        pairs = lambda i: list(range(max(i, lim) >> 1, ((i + 16) >> 1) + 1))
        def pv(i):
            out = []
            for b in range(3):
                for n, p in enumerate(pairs(i)):
                    o = OA + 12 * (i & 1) + 4 * b; s = sreg(i, 2 * p)
                    A = f"v[{ONE}:{ONE+3}]" if b == 2 else f"a[{VR+8*p+4*b}:{VR+8*p+4*b+3}]"
                    def f(k, p=p, o=o, s=s, A=A, n=n):
                        k.wait_lg(("v", p))
                        k(f"{MF} v[{o}:{o+3}], {A}, v[{s}:{s+3}], " + ("0" if n == 0 else f"v[{o}:{o+3}]"))
                    out.append(f)
            return out
        def softmax(i):
            L = []
            regs = [sreg(i, kt) + j for kt in tiles(i) for j in range(4)]
            m = TM; t = TM + 1
            ch = [regs[0::2], regs[1::2]]
            for c in range(2):
                r = ch[c]
                L.append(line(f"v_max_f32 v{m+c}, v{r[0]}, v{r[1]}"))
            for j in range(2, len(ch[0]), 2):
                for c in range(2):
                    L.append(line(f"v_max3_f32 v{m+c}, v{m+c}, v{ch[c][j]}, v{ch[c][j+1]}"))
            L.append(line(f"v_max_f32 v{m}, v{m}, v{t}"))
            for sw in ("v_permlane16_swap_b32", "v_permlane32_swap_b32"):
                L.append(line(f"v_mov_b32 v{t}, v{m}\ns_nop 1\n{sw} v{m}, v{t}\nv_max_f32 v{m}, v{m}, v{t}", 16))
            for p in pairs(i):
                base = sreg(i, 2 * p)
                for hf in range(2):
                    kt = 2 * p + hf; s = sreg(i, kt)
                    if kt in tiles(i):
                        for j in range(4): L.append(line(f"v_sub_f32 v{s+j}, v{s+j}, v{m}"))
                        for j in range(4): L.append(line(f"v_exp_f32 v{s+j}, v{s+j}", 8))
                for hf in range(2):
                    kt = 2 * p + hf; s = sreg(i, kt)
                    for j in range(2):
                        if kt in tiles(i): L.append(line(f"v_cvt_pk_bf16_f32 v{base+2*hf+j}, v{s+2*j}, v{s+2*j+1}"))
                        else: L.append(line(f"v_mov_b32 v{base+2*hf+j}, 0"))
            return L
        def epi(i):
            o = OA + 12 * (i & 1); t = TM + 2
            L = [line(f"v_rcp_f32 v{t}, v{o+8}", 8),
                 line(f"v_cndmask_b32 v{o+4}, v{o+4}, v{o+6}, s[40:41]"), line(f"v_cndmask_b32 v{o+5}, v{o+5}, v{o+7}, s[40:41]")]
            for j in range(6): L.append(line(f"v_mul_f32 v{o+j}, v{o+j}, v{t}"))
            for j in range(3): L.append(line(f"v_cvt_pk_bf16_f32 v{o+j}, v{o+2*j}, v{o+2*j+1}"))
            L.append(vml(f"buffer_store_dwordx2 v[{o}:{o+1}], v1, s[8:11], s47 offen{ST}"))
            L.append(vml(f"buffer_store_dword v{o+2}, v45, s[8:11], s46 offen{ST}"))
            L.append(line(f"s_add_u32 s47, s47, {18*KBY}\ns_add_u32 s46, s46, {18*KBY}", 8))
            return L
        def run(mf, valu, gap_first=0):
            tot = sum(f.cost for f in valu); acc = 0; mi = 0
            for f in valu:
                while mi < len(mf) and acc >= gap_first + (tot - gap_first) * mi / max(len(mf), 1) * 0.9:
                    mf[mi](k); mi += 1
                f.fn(k); acc += f.cost
            while mi < len(mf): mf[mi](k); mi += 1
        interleave(k, qk(0), [vreads[:len(vreads) // 2]])
        interleave(k, qk(1), [vreads[len(vreads) // 2:]])
        for i in range(4):
            mf = (pv(i - 1) if i >= 1 else []) + (qk(i + 1) if 1 <= i < 3 else [])
            va = softmax(i)
            if i >= 2: va = epi(i - 2) + va
            run(mf, va, 8 if i else 0)
            k("s_nop 1")
        run(pv(3), epi(2))
        k("s_nop 7")
        for f in epi(3): f.fn(k)
        k("s_endpgm")
    footer(k, name)
    nv = (TM + 3 + 3) // 4 * 4
    return name, k, dict(grid=256, block=256, lds=72 * KBY, vgpr=nv + 160, accum=nv)

def fold(iters):
    body = []
    assert len({len(x) for x in iters}) == 1, [len(x) for x in iters]
    for ls in zip(*iters):
        if len(set(ls)) == 1: body.append(ls[0]); continue
        ns = [re.fullmatch(r"\s*s_waitcnt vmcnt\((\d+)\)", l) for l in ls]
        assert all(ns), ls
        body.append(f"    s_waitcnt vmcnt({min(int(m.group(1)) for m in ns)})")
    return body

def ffn(G=3):
    k = KB(); name = "ffn_kernel"
    header(k, name, 256)
    k("s_load_dwordx2 s[4:5], s[0:1], 72")
    wave_id(k, 20, 1, 2)
    AG, AU, T1, T2, XV, RING = 16, 32, 48, 64, 80, 112
    LEAD = 36 - G
    xreg = lambda ks, tb: (ar(4 * (ks * 4 + tb), 4) if ks < 16 else vr(XV + 4 * (ks * 4 + tb - 64), 4))
    k("s_and_b32 s21, s2, 7\ns_lshr_b32 s22, s2, 3")
    k(f"s_lshl_b32 s23, s22, 2\ns_add_u32 s23, s23, s20\ns_mul_i32 s23, s23, {18*KBY}\ns_add_u32 s23, s23, {OFF_X1}")
    k(f"s_lshl_b32 s24, s21, 2\ns_add_u32 s24, s24, s20\ns_mul_i32 s24, s24, {486*KBY}\ns_add_u32 s24, s24, {OFF_WF}")
    ln_consts(k, 30, 31, 32)
    k("s_mov_b32 s25, 0")
    k("s_waitcnt lgkmcnt(0)")
    srd(k, 8, 4, WS_USED)
    k(f"s_add_u32 s12, s4, s24\ns_addc_u32 s13, s5, 0\ns_mov_b32 s14, {486*KBY}\ns_mov_b32 s15, 0x00020000")
    X = 16
    for ks in range(18):
        k.vm(f"buffer_load_dwordx4 v[{X+4*ks}:{X+4*ks+3}], v1, s[8:11], s23 offen offset:{(ks%4)*1024}", ("x", ks))
        if ks % 4 == 3: k("s_add_u32 s23, s23, 4096")
    def wload(p):
        r = RING + 4 * (p % 36)
        s = f"buffer_load_dwordx4 v[{r}:{r+3}], v1, s[12:15], s25 offen offset:{(p%4)*1024}"
        return [vml(s, ("w", p))] + ([line("s_add_u32 s25, s25, 4096")] if p % 4 == 3 else [])
    for p in range(LEAD):
        for f in wload(p): f.fn(k)
    k("s_lshl_b32 s26, s20, 10\nv_add_u32 v2, s26, v1\nv_add_u32 v3, 0x10000, v2")
    def aft(ks):
        k.lg(f"ds_write_b128 v{2 if ks < 16 else 3}, v[{X+4*ks}:{X+4*ks+3}] offset:{(ks % 16) * 4096}")
    ln_wave(k, X, 88, 30, 31, 32, lambda ks: k.wait_vm(("x", ks)), aft)
    k("v_add_u32 v3, 0x10000, v1")
    k.wait_lg_all(); k("s_barrier")
    def xread(base):
        for ks in range(18):
            for tb in range(4):
                i = ks * 4 + tb
                k.lg(f"ds_read_b128 {xreg(ks, tb)}, v{base if i < 64 else base + 1} offset:{(i % 64) * 1024}")
    k("v_mov_b32 v2, v1")
    xread(2)
    HB = 72 * KBY
    k(f"s_mov_b32 s33, {fbits(-LOG2E)}")
    k(f"s_lshl_b32 s27, s20, 14\ns_add_u32 s27, s27, {HB - 4088}\ns_mov_b32 s28, 4088\ns_mov_b32 s29, {144*KBY}")
    k(f"v_add_u32 v2, {HB}, v1\nv_add_u32 v3, {HB + 0x10000}, v1")
    for tb in range(4): k(f"v_add_u32 v{5+tb}, {tb*18*KBY}, v1")
    k("s_mov_b32 s34, 9")
    k.wait_lg_all()
    def phase(p0, acc, nks, streams, extra_pre=None):
        mf = []; pre = {}; loads = []
        for g in range(nks // G):
            pre[len(mf)] = (lambda k, t=("w", p0 + g * G + G - 1): k.wait_vm(t, force=True))
            for j in range(G):
                for f in wload(p0 + g * G + j + LEAD):
                    f.after = len(mf); f.before = len(mf) + 4 * G; loads.append(f)
            for tb in range(4):
                for j in range(G):
                    ks = g * G + j; r = RING + 4 * ((p0 + ks) % 36); a = acc + 4 * tb
                    mf.append(f"{MF} v[{a}:{a+3}], v[{r}:{r+3}], {xreg(ks, tb)}, " + ("0" if ks == 0 else f"v[{a}:{a+3}]"))
        interleave(k, mf, [loads] + streams, pre=pre)
    def finish():
        L = [line("v_add_u32 v4, s29, v1")]
        for tb in range(4):
            for i in range(4): L.append(line(f"v_rcp_f32 v{T2+4*tb+i}, v{T2+4*tb+i}", 8))
            for i in range(4): L.append(line(f"v_mul_f32 v{T1+4*tb+i}, v{T1+4*tb+i}, v{AU+4*tb+i}"))
            for i in range(4): L.append(line(f"v_mul_f32 v{T1+4*tb+i}, v{T1+4*tb+i}, v{T2+4*tb+i}"))
            for i in range(2): L.append(line(f"v_cvt_pk_bf16_f32 v{T2+4*tb+i}, v{T1+4*tb+2*i}, v{T1+4*tb+2*i+1}"))
            L.append(lgl(f"ds_write_b64 v4, v[{T2+4*tb}:{T2+4*tb+1}] offset:{tb*1024}"))
        return L
    def expo():
        L = []
        for tb in range(4):
            for i in range(4): L.append(line(f"v_mul_f32 v{T1+4*tb+i}, s33, v{AG+4*tb+i}", after=2))
            for i in range(4): L.append(line(f"v_exp_f32 v{T2+4*tb+i}, v{T1+4*tb+i}", 8))
            for i in range(4): L.append(line(f"v_fma_f32 v{T2+4*tb+i}, v{T2+4*tb+i}, s33, s33"))
        L.append(line("s_add_u32 s27, s27, s28\ns_sub_u32 s28, 4096, s28\ns_mov_b32 s29, s27\ns_sub_u32 s34, s34, 1", 16))
        return L
    its = []
    for fb in range(9):
        m0 = k.mark()
        phase(36 * fb, AG, 18, [finish()])
        phase(36 * fb + 18, AU, 18, [expo()])
        its.append(k.lines[m0:]); del k.lines[m0:]
    k.label("L_ffn_gu")
    k.lines += fold(its)
    k("s_cmp_lg_u32 s34, 0\ns_cbranch_scc1 L_ffn_gu")
    k(f"s_lshr_b32 s29, s20, 1\ns_lshl_b32 s29, s29, 12\ns_and_b32 s35, s20, 1\ns_lshl_b32 s36, s35, 3\ns_add_u32 s29, s29, s36\ns_add_u32 s29, s29, {HB + 64*KBY}")
    for f in finish(): f.fn(k)
    k.wait_lg_all(); k("s_barrier")
    xread(2)
    k(f"s_lshl_b32 s37, s21, 7\ns_lshl_b32 s38, s22, 2\ns_add_u32 s37, s37, s38\ns_mul_i32 s37, s37, {18*KBY}\ns_add_u32 s37, s37, {OFF_PART}")
    k("s_mul_i32 s38, s20, 9\ns_lshr_b32 s39, s20, 1\ns_mul_i32 s39, s39, 9\ns_add_u32 s39, s39, 4\ns_lshl_b32 s39, s39, 10\ns_add_u32 s39, s39, s36\ns_add_u32 s39, s39, s37")
    k("s_add_u32 s38, s38, s35\ns_lshl_b32 s38, s38, 9\ns_add_u32 s38, s38, s37")
    k(f"s_mov_b32 s40, {BIG}\ns_mov_b32 s34, 4")
    k.wait_lg_all()
    def cv(acc, hi, after=0):
        return [line(f"v_cvt_pk_bf16_f32 v{T1+4*tb+2*hi+i}, v{acc+4*tb+2*i}, v{acc+4*tb+2*i+1}", after=after) for tb in range(4) for i in range(2)]
    def pair_out():
        return cv(AU, 1, 8) + [vml(f"buffer_store_dwordx4 v[{T1+4*tb}:{T1+4*tb+3}], v{5+tb}, s[8:11], s40 offen{ST}") for tb in range(4)]
    its = []
    for p in range(4):
        m0 = k.mark()
        phase(324 + 36 * p, AG, 18, [pair_out()])
        phase(324 + 36 * p + 18, AU, 18, [cv(AG, 0, 8) + [line("s_mov_b32 s40, s38\ns_add_u32 s38, s38, 1024\ns_sub_u32 s34, s34, 1", 12)]])
        its.append(k.lines[m0:]); del k.lines[m0:]
    k.label("L_ffn_dn")
    k.lines += fold(its)
    k("s_cmp_lg_u32 s34, 0\ns_cbranch_scc1 L_ffn_dn")
    phase(468, AG, 18, [pair_out()])
    k("s_nop 7")
    for f in cv(AG, 0): f.fn(k)
    for tb in range(4):
        k(f"buffer_store_dwordx2 v[{T1+4*tb}:{T1+4*tb+1}], v{5+tb}, s[8:11], s39 offen{ST}")
    footer(k, name)
    return name, k, dict(grid=256, block=256, lds=149 * KBY, vgpr=512, accum=256)

def reduce_k(final):
    k = KB(); name = "fin_kernel" if final else "red_kernel"
    header(k, name, 256)
    k("s_load_dwordx2 s[4:5], s[0:1], 72")
    if final: k("s_load_dwordx2 s[6:7], s[0:1], 56")
    wave_id(k, 20, 1, 2)
    k(f"s_cmp_eq_u32 s20, 3\ns_cbranch_scc1 L_{name}_end")
    k("v_and_b32 v3, 63, v0\nv_lshrrev_b32 v4, 4, v3\nv_bfe_u32 v5, v3, 3, 1\nv_and_b32 v6, 7, v3")
    k("s_and_b32 s21, s2, 1\ns_lshr_b32 s22, s2, 1\ns_lshl_b32 s23, s21, 7")
    k("v_lshlrev_b32 v7, 8, v4\nv_lshl_add_u32 v7, v5, 10, v7\nv_lshl_add_u32 v7, v6, 4, v7\nv_add_u32 v7, s23, v7\nv_add_u32 v8, 0x1000, v7")
    k(f"s_mul_i32 s24, s22, 18\ns_mul_i32 s25, s20, 6\ns_add_u32 s24, s24, s25\ns_lshl_b32 s24, s24, 10")
    k("s_waitcnt lgkmcnt(0)")
    srd(k, 8, 4, WS_USED)
    D = 16; ACC = D + 108
    for src in range(9):
        k(f"s_add_u32 s25, s24, {OFF_X1 if src == 0 else OFF_PART + (src - 1) * 2304 * KBY}")
        for i in range(3):
            r = D + 12 * src + 4 * i
            k.vm(f"buffer_load_dwordx4 v[{r}:{r+3}], v{8 if i == 2 else 7}, s[8:11], s25 offen offset:{2048 if i == 1 else 0}", (src, i))
    ln_consts(k, 30, 31, 32)
    k("s_mov_b32 s26, 0x00003f80\ns_mov_b32 s27, 0x3f800000")
    for src in range(9):
        for i in range(3):
            k.wait_vm((src, i))
            for j in range(4):
                r = D + 12 * src + 4 * i + j; a = ACC + 8 * i + 2 * j
                if src == 0: k(f"v_lshlrev_b32 v{a}, 16, v{r}\nv_and_b32 v{a+1}, s32, v{r}")
                else: k(f"v_dot2c_f32_bf16 v{a}, s26, v{r}\nv_dot2c_f32_bf16 v{a+1}, s27, v{r}")
    k("s_nop 2")
    for j in range(12): k(f"v_cvt_pk_bf16_f32 v{D+j}, v{ACC+2*j}, v{ACC+2*j+1}")
    if final:
        srd(k, 12, 6, 2048 * 1152)
        k("v_mul_u32_u24 v7, 1152, v6\nv_lshl_add_u32 v7, v5, 6, v7\nv_and_b32 v9, 1, v4\nv_lshl_add_u32 v7, v9, 5, v7\nv_lshrrev_b32 v9, 1, v4\nv_lshl_add_u32 v7, v9, 4, v7")
        k("s_mul_i32 s24, s2, 9216\ns_mul_i32 s25, s20, 384\ns_add_u32 s24, s24, s25")
        for i in range(3):
            k(f"v_permlane16_swap_b32 v{D+4*i}, v{D+4*i+2}\nv_permlane16_swap_b32 v{D+4*i+1}, v{D+4*i+3}")
            k(f"buffer_store_dwordx4 v[{D+4*i}:{D+4*i+3}], v7, s[12:15], s24 offen offset:{128*i}")
    else:
        k(f"s_add_u32 s25, s24, {OFF_XF}")
        for i in range(3):
            k(f"buffer_store_dwordx4 v[{D+4*i}:{D+4*i+3}], v{8 if i == 2 else 7}, s[8:11], s25 offen offset:{2048 if i == 1 else 0}{ST}")
        T = D + 16
        for i in range(4): k(f"v_mov_b32 v{T+i}, 0")
        for j in range(12):
            k(f"v_dot2c_f32_bf16 v{T+(j&1)}, s30, v{D+j}\nv_dot2c_f32_bf16 v{T+2+(j&1)}, v{D+j}, v{D+j}")
        k(f"s_nop 2\nv_add_f32 v{T}, v{T}, v{T+1}\nv_add_f32 v{T+1}, v{T+2}, v{T+3}\ns_nop 1")
        k(f"v_add_f32_dpp v{T}, v{T}, v{T} row_ror:8 row_mask:0xf bank_mask:0xf\nv_add_f32_dpp v{T+1}, v{T+1}, v{T+1} row_ror:8 row_mask:0xf bank_mask:0xf")
        red_rows(k, T, T + 2); red_rows(k, T + 1, T + 2)
        k(f"v_lshlrev_b32 v9, 3, v6\ns_lshl_b32 s25, s20, 6\nv_add_u32 v10, s25, v9")
        k(f"ds_write_b64 v10, v[{T}:{T+1}]\ns_waitcnt lgkmcnt(0)\ns_barrier")
        for w in range(3): k(f"ds_read_b64 v[{T+2*w}:{T+2*w+1}], v9 offset:{64*w}")
        k("s_waitcnt lgkmcnt(0)")
        k(f"v_add_f32 v{T}, v{T}, v{T+2}\nv_add_f32 v{T+1}, v{T+1}, v{T+3}\nv_add_f32 v{T}, v{T}, v{T+4}\nv_add_f32 v{T+1}, v{T+1}, v{T+5}")
        ln_stats_finish(k, T, T + 1, T + 2, 31)
        k(f"s_add_u32 s25, s24, {OFF_XN}")
        O = T + 8
        for i in range(3):
            for j in range(4): ln_norm(k, D + 4 * i + j, O + 4 * i + j, T, T + 1, T + 2 + 2 * (j & 1), 32)
            k(f"buffer_store_dwordx4 v[{O+4*i}:{O+4*i+3}], v{8 if i == 2 else 7}, s[8:11], s25 offen offset:{2048 if i == 1 else 0}{ST}")
    footer(k, name)
    return name, k, dict(grid=256, block=256, lds=0 if final else 256, vgpr=ACC + 24, accum=(ACC + 24 + 3) // 4 * 4)

def build(order=None):
    ks = [k0(), small_gemm("qkv"), attn(), small_gemm("wo"), ffn(), reduce_k(False), reduce_k(True)]
    info = {n: d for n, _, d in ks}
    order = order or ["pack", "qkv", "attn", "wo", "ffn", "red", "qkv", "attn", "wo", "ffn", "fin"]
    out = ["; x = x + attn(LN(x)); x = x + swiglu(LN(x)); twice.  Generated by work/gen.py (own generator)."]
    for o in order:
        d = info[o + "_kernel"]
        out.append(f"; @launch kernel={o}_kernel grid=({d['grid']},1,1) block=({d['block']},1,1) lds={d['lds']}")
    out.append('.amdgcn_target "amdgcn-amd-amdhsa--gfx950"\n.text')
    for n, k, d in ks: out.append(k.text())
    out.append('.section .rodata,"a"')
    for n, k, d in ks:
        out.append(f""".p2align 6
.amdhsa_kernel {n}
  .amdhsa_next_free_vgpr {d['vgpr']}
  .amdhsa_next_free_sgpr 64
  .amdhsa_accum_offset {d['accum']}
  .amdhsa_group_segment_fixed_size 0
  .amdhsa_kernarg_size 80
  .amdhsa_user_sgpr_count 2
  .amdhsa_user_sgpr_kernarg_segment_ptr 1
  .amdhsa_system_sgpr_workgroup_id_x 1
  .amdhsa_float_denorm_mode_32 3
.end_amdhsa_kernel""")
    return "\n".join(out) + "\n"

if __name__ == "__main__":
    dst = sys.argv[1] if len(sys.argv) > 1 else "k.s"
    open(dst, "w").write(build())
```

```python
import re, sys, math
from kb import *
KBY = 1024
OFF_XF, OFF_XN, OFF_OF, OFF_X1 = 0, 2304*KBY, 4608*KBY, 6912*KBY
OFF_QKV = 9216*KBY
OFF_PART = 16128*KBY
OFF_WQ = 34560*KBY
OFF_WO = 36608*KBY
OFF_WF = 37376*KBY
OFF_STAT = 53248*KBY
OFF_FLAG = 53376*KBY
OFF_QKV2 = 53408*KBY
WS_USED = OFF_QKV2 + 6912*KBY
FA, FB, FC, FD, FE, FT = [OFF_FLAG + o for o in (0, 2048, 10240, 12288, 16384, 20480)]
BIG = 0x40000000
LOG2E = 1.4426950408889634
import struct
def fbits(x): return "0x%08x" % struct.unpack("<I", struct.pack("<f", x))[0]
import os
def envs(n, d): return os.environ.get(n, d)
FL = {"s": " sc1", "p": "", "n": " nt"}
ST = " sc1"
ST_Q, ST_A, ST_O, ST_F, ST_R, ST_OUT = [FL[c] for c in envs("STF", "ssssss")]
MF = "v_mfma_f32_16x16x32_bf16"

STAMP = False
OFF_STAMP = 200 << 20
def header(k, name, nwg):
    k.raw(f".globl {name}\n.p2align 8\n.type {name},@function")
    k.label(name)
    k.fused = name == "main_kernel"
    k(f"s_cmp_ge_u32 s2, {nwg}")
    k(f"s_cbranch_scc1 L_{name}_end")
def stamp(k, i, cyc=False):
    if STAMP and k.fused:
        k(f"{'s_memtime' if cyc else 's_memrealtime'} s[90:91]"); k.wait_lg_all(); k(f"v_writelane_b32 v15, s90, {i}")
def footer(k, name):
    k.label(f"L_{name}_end")
    k("s_endpgm")
def srd(k, d, base, nbytes):
    k(f"s_mov_b32 s{d}, s{base}\ns_mov_b32 s{d+1}, s{base+1}\ns_mov_b32 s{d+2}, {nbytes}\ns_mov_b32 s{d+3}, 0x00020000")
def sdiv(k, dst, src, D, tmp):
    k(f"s_mov_b32 s{tmp}, {-(-(1<<32)//D)}")
    k(f"s_mul_hi_u32 s{dst}, s{src}, s{tmp}")
def wave_id(k, sdst, vlane16, vtmp):
    k(f"v_lshrrev_b32 v{vtmp}, 6, v0")
    k(f"v_and_b32 v{vlane16}, 63, v0")
    k(f"v_readfirstlane_b32 s{sdst}, v{vtmp}")
    k(f"v_lshlrev_b32 v{vlane16}, 4, v{vlane16}")

def red_rows(k, v, t, op="v_add_f32"):
    for sw in ("v_permlane16_swap_b32", "v_permlane32_swap_b32"):
        k(f"v_mov_b32 v{t}, v{v}")
        k("s_nop 1")
        k(f"{sw} v{v}, v{t}")
        k(f"{op} v{v}, v{v}, v{t}")

def ln_stats_finish(k, s, q, t, sinv):
    k(f"v_mul_f32 v{s}, s{sinv}, v{s}")
    k(f"v_mul_f32 v{q}, s{sinv}, v{q}")
    k(f"v_fma_f32 v{q}, -v{s}, v{s}, v{q}")
    k(f"v_max_f32 v{q}, 0, v{q}")
    k(f"v_add_f32 v{q}, {fbits(1e-5)}, v{q}")
    k(f"v_rsq_f32 v{q}, v{q}")
    k("s_nop 0")
    k(f"v_mul_f32 v{s}, v{s}, v{q}")
    k(f"v_sub_f32 v{s}, 0, v{s}")

def ln_norm(k, x, dst, s, q, t, smask):
    k(f"v_lshlrev_b32 v{t}, 16, v{x}")
    k(f"v_and_b32 v{t+1}, s{smask}, v{x}")
    k(f"v_fma_f32 v{t}, v{t}, v{q}, v{s}")
    k(f"v_fma_f32 v{t+1}, v{t+1}, v{q}, v{s}")
    k(f"v_cvt_pk_bf16_f32 v{dst}, v{t}, v{t+1}")

def ln_wave(k, X, T, sones, sinv, smask, waitfn=None, after=None):
    for i in range(8): k(f"v_mov_b32 v{T+i}, 0")
    for ks in range(18):
        if waitfn: waitfn(ks)
        for i in range(4):
            k(f"v_dot2c_f32_bf16 v{T+i}, s{sones}, v{X+4*ks+i}")
            k(f"v_dot2c_f32_bf16 v{T+4+i}, v{X+4*ks+i}, v{X+4*ks+i}")
    k("s_nop 2")
    k(f"v_add_f32 v{T}, v{T}, v{T+1}\nv_add_f32 v{T+2}, v{T+2}, v{T+3}\nv_add_f32 v{T+4}, v{T+4}, v{T+5}\nv_add_f32 v{T+6}, v{T+6}, v{T+7}")
    k(f"v_add_f32 v{T}, v{T}, v{T+2}\nv_add_f32 v{T+4}, v{T+4}, v{T+6}")
    red_rows(k, T, T+1); red_rows(k, T+4, T+5)
    ln_stats_finish(k, T, T+4, T+1, sinv)
    for ks in range(18):
        for i in range(4):
            ln_norm(k, X+4*ks+i, X+4*ks+i, T, T+4, T+8+2*(i & 1), smask)
        if after: after(ks)

def ln_consts(k, sones, sinv, smask):
    k(f"s_mov_b32 s{sones}, 0x3f803f80\ns_mov_b32 s{sinv}, {fbits(1/576)}\ns_mov_b32 s{smask}, 0xffff0000")

J_Q, J_O, J_Z, J_G, J_D, J_END = 128, 614, 776, 812, 3404, 4700
def k0():
    k = KB(); name = "pack_kernel"
    K0L = envs("K0L", " nt")
    header(k, name, J_END // 4)
    k("s_load_dwordx4 s[36:39], s[0:1], 0")
    k("s_load_dwordx2 s[40:41], s[0:1], 16")
    k("s_load_dwordx4 s[44:47], s[0:1], 32")
    k("s_load_dwordx2 s[42:43], s[0:1], 48")
    k("s_load_dwordx2 s[4:5], s[0:1], 72")
    wave_id(k, 20, 1, 2)
    k("v_and_b32 v3, 63, v0")
    k("s_lshl_b32 s21, s2, 2\ns_add_u32 s21, s21, s20")
    k("s_mul_i32 s23, s2, 3\ns_add_u32 s23, s23, s20\ns_add_u32 s23, s23, 127")
    k("s_cmp_eq_u32 s20, 0\ns_cselect_b32 s23, s2, s23\ns_cmp_lt_u32 s2, 128\ns_cselect_b32 s21, s23, s21")
    k("s_lshl_b32 s22, s20, 12")
    k("v_lshrrev_b32 v4, 3, v3")
    k("v_and_b32 v5, 7, v3")
    k("s_waitcnt lgkmcnt(0)")
    srd(k, 8, 4, WS_USED)
    k(f"s_cmp_lt_u32 s21, {J_Q}\ns_cbranch_scc1 L_k0_ln")
    k(f"s_cmp_lt_u32 s21, {J_O}\ns_cbranch_scc1 L_k0_q")
    k(f"s_cmp_lt_u32 s21, {J_Z}\ns_cbranch_scc1 L_k0_o")
    k(f"s_cmp_lt_u32 s21, {J_G}\ns_cbranch_scc1 L_k0_z")
    k(f"s_cmp_lt_u32 s21, {J_D}\ns_cbranch_scc1 L_k0_g")
    k(f"s_sub_u32 s23, s21, {J_D}")
    sdiv(k, 24, 23, 9, 30)
    k("s_mul_i32 s30, s24, 9\ns_sub_u32 s25, s23, s30")
    sdiv(k, 26, 24, 18, 30)
    k("s_mul_i32 s30, s26, 18\ns_sub_u32 s27, s24, s30")
    k("s_lshr_b32 s30, s27, 2\ns_mul_i32 s30, s30, 144\ns_and_b32 s31, s27, 3\ns_lshl_b32 s31, s31, 5\ns_add_u32 s30, s30, s31")
    k("s_sub_u32 s31, s27, 16\ns_mul_i32 s31, s31, 288\ns_add_u32 s31, s31, 128")
    k("s_cmp_lt_u32 s27, 16\ns_cselect_b32 s30, s30, s31\ns_cselect_b32 s28, 16, 144")
    k("s_mul_i32 s31, s26, 576\ns_add_u32 s30, s30, s31")
    k("s_mul_i32 s32, s30, 1152\ns_lshl_b32 s31, s25, 7\ns_add_u32 s32, s32, s31")
    k("s_mul_i32 s28, s28, 1152\ns_mov_b32 s29, 9216")
    srd(k, 12, 42, 4608*1152)
    k("v_mul_u32_u24 v6, 1152, v4\nv_lshl_add_u32 v6, v5, 4, v6")
    for c in range(4):
        k(f"s_lshl_b32 s30, s25, 2\ns_add_u32 s30, s30, {c}")
        sdiv(k, 31, 30, 9, 33)
        k("s_mul_i32 s33, s31, 9\ns_sub_u32 s30, s30, s33")
        k("s_sub_u32 s33, s30, 1\ns_cmp_eq_u32 s30, 0\ns_cselect_b32 s33, 8, s33")
        k("s_bitcmp1_b32 s31, 0\ns_cselect_b32 s30, s33, s30")
        k("s_lshl_b32 s33, s26, 2\ns_add_u32 s31, s31, s33\ns_mul_i32 s31, s31, 486")
        k(f"s_mul_i32 s30, s30, 18\ns_add_u32 s30, s30, s31\ns_add_u32 s30, s30, s27\ns_add_u32 s30, s30, {324 + OFF_WF//KBY}")
        k(f"s_lshl_b32 s{48+c}, s30, 10")
    k("s_branch L_k0_dma4")
    k.label("L_k0_g")
    k(f"s_sub_u32 s23, s21, {J_G}")
    k("s_cmp_ge_u32 s23, 1296\ns_cselect_b32 s26, 18, 0\ns_cselect_b32 s30, 1296, 0\ns_cselect_b32 s34, s46, s44\ns_cselect_b32 s35, s47, s45")
    k("s_sub_u32 s23, s23, s30")
    sdiv(k, 27, 23, 72, 30)
    k("s_mul_i32 s30, s27, 72\ns_sub_u32 s25, s23, s30")
    k(f"s_mul_i32 s32, s27, {32*9216}\ns_lshl_b32 s31, s25, 7\ns_add_u32 s32, s32, s31")
    k(f"s_mov_b32 s28, {16*9216}\ns_mov_b32 s29, {8*9216}")
    srd(k, 12, 34, 576*9216)
    k("v_mul_u32_u24 v6, 9216, v4\nv_lshl_add_u32 v6, v5, 4, v6")
    for c in range(4):
        k(f"s_lshl_b32 s30, s25, 2\ns_add_u32 s30, s30, {c}")
        sdiv(k, 31, 30, 9, 33)
        k("s_mul_i32 s33, s31, 9\ns_sub_u32 s30, s30, s33")
        k("s_mul_i32 s31, s31, 486\ns_mul_i32 s30, s30, 36\ns_add_u32 s30, s30, s31\ns_add_u32 s30, s30, s26\ns_add_u32 s30, s30, s27")
        k(f"s_add_u32 s30, s30, {OFF_WF//KBY}\ns_lshl_b32 s{48+c}, s30, 10")
    k("s_branch L_k0_dma4")
    k.label("L_k0_o")
    k(f"s_sub_u32 s23, s21, {J_O}")
    sdiv(k, 27, 23, 9, 30)
    k("s_mul_i32 s30, s27, 9\ns_sub_u32 s25, s23, s30")
    k("s_mul_i32 s30, s27, 36\ns_sub_u32 s31, s27, 16\ns_mul_i32 s31, s31, 288\ns_add_u32 s31, s31, 16")
    k(f"s_cmp_lt_u32 s27, 16\ns_cselect_b32 s30, s30, s31\ns_mov_b32 s28, {18*1152}\ns_mov_b32 s29, {8*1152}\ns_cselect_b32 s28, s28, {144*1152}\ns_cselect_b32 s29, s29, {72*1152}")
    k("s_cselect_b64 vcc, -1, 0")
    k("s_mul_i32 s32, s30, 1152\ns_lshl_b32 s31, s25, 7\ns_add_u32 s32, s32, s31")
    srd(k, 12, 40, 576*1152)
    k("v_lshrrev_b32 v7, 4, v3\nv_mul_u32_u24 v7, 18, v7\nv_and_b32 v8, 1, v4\nv_add_u32 v7, v7, v8")
    k("v_cndmask_b32 v7, v7, v4, vcc")
    k("v_mul_u32_u24 v6, 1152, v7\nv_lshl_add_u32 v6, v5, 4, v6")
    for c in range(4):
        k(f"s_lshl_b32 s30, s25, 2\ns_add_u32 s30, s30, {c}")
        sdiv(k, 31, 30, 9, 33)
        k("s_mul_i32 s33, s31, 9\ns_sub_u32 s30, s30, s33")
        k("s_cmp_ge_u32 s30, 5\ns_cselect_b32 s33, 85, 0\ns_add_u32 s30, s30, s33")
        k(f"s_mul_i32 s31, s31, 180\ns_add_u32 s30, s30, s31\ns_mul_i32 s31, s27, 5\ns_add_u32 s30, s30, s31\ns_add_u32 s30, s30, {OFF_WO//KBY}")
        k(f"s_lshl_b32 s{48+c}, s30, 10")
    k.label("L_k0_dma4")
    k("s_mov_b32 m0, s22\ns_add_u32 s33, s32, s29")
    k(f"buffer_load_dwordx4 v6, s[12:15], s32 offen{K0L} lds")
    k("s_add_u32 m0, m0, 1024\ns_add_u32 s32, s32, s28")
    k(f"buffer_load_dwordx4 v6, s[12:15], s33 offen{K0L} lds")
    k("s_add_u32 m0, m0, 1024\ns_add_u32 s33, s32, s29")
    k(f"buffer_load_dwordx4 v6, s[12:15], s32 offen{K0L} lds")
    k("s_add_u32 m0, m0, 1024\ns_nop 0")
    k(f"buffer_load_dwordx4 v6, s[12:15], s33 offen{K0L} lds")
    k("s_branch L_k0_tail")
    k.label("L_k0_q")
    k(f"s_sub_u32 s23, s21, {J_Q}")
    sdiv(k, 27, 23, 27, 30)
    k("s_mul_i32 s30, s27, 27\ns_sub_u32 s25, s23, s30")
    sdiv(k, 26, 25, 9, 30)
    k("s_mul_i32 s30, s26, 9\ns_sub_u32 s24, s25, s30")
    k("s_mul_i32 s30, s24, 144\ns_cmp_lt_u32 s24, 8\ns_cselect_b32 s30, s30, 0\ns_cselect_b64 vcc, -1, 0")
    k(f"s_mul_i32 s31, s26, 1152\ns_add_u32 s30, s30, s31\ns_mul_i32 s32, s27, {32*3456}\ns_add_u32 s32, s32, s30")
    srd(k, 12, 38, 576*3456)
    k("v_and_b32 v7, 3, v4")
    k("v_mul_u32_u24 v8, 36, v7\nv_lshl_add_u32 v8, v5, 2, v8")
    k("v_lshl_add_u32 v9, v7, 3, v5\nv_mul_u32_u24 v9, 36, v9\nv_add_u32 v9, 32, v9")
    k("v_cndmask_b32 v8, v9, v8, vcc")
    k("v_lshrrev_b32 v7, 5, v3\nv_mul_u32_u24 v7, 3456, v7\nv_add_u32 v6, v7, v8")
    k("s_mov_b32 m0, s22\ns_nop 0")
    for i in range(16):
        k(f"buffer_load_dword v6, s[12:15], s32 offen{K0L} lds")
        if i < 15: k("s_add_u32 m0, m0, 256\ns_add_u32 s32, s32, 6912")
    for c in range(4):
        k(f"s_lshl_b32 s30, s24, 2\ns_add_u32 s30, s30, {c}\ns_lshr_b32 s31, s30, 3\ns_and_b32 s30, s30, 7")
        k(f"s_cmp_lt_u32 s24, 8\ns_cselect_b32 s31, s31, {c}\ns_cselect_b32 s30, s30, 8")
        k("s_mul_i32 s33, s26, 9\ns_add_u32 s30, s30, s33")
        sdiv(k, 34, 30, 7, 33)
        k("s_min_u32 s34, s34, 3\ns_mul_i32 s34, s34, 119\ns_add_u32 s30, s30, s34")
        k(f"s_mul_i32 s31, s31, 504\ns_add_u32 s30, s30, s31\ns_mul_i32 s31, s27, 7\ns_add_u32 s30, s30, s31\ns_add_u32 s30, s30, {OFF_WQ//KBY}")
        k(f"s_lshl_b32 s{48+c}, s30, 10")
    k.label("L_k0_tail")
    k("v_lshrrev_b32 v7, 2, v3\nv_lshlrev_b32 v7, 7, v7\nv_and_b32 v8, 3, v3\nv_lshl_add_u32 v7, v8, 3, v7\nv_add_u32 v7, s22, v7")
    k("s_waitcnt vmcnt(0)")
    stamp(k, 0)
    for c in range(4):
        for hf in range(2):
            k(f"ds_read_b64_tr_b16 v[{16+4*c+2*hf}:{17+4*c+2*hf}], v7 offset:{hf*2048 + c*32}")
    k.label("L_k0_store")
    for c in range(4):
        k(f"s_waitcnt lgkmcnt({6-2*c})")
        if envs("K0X", "") != "nostore": k(f"buffer_store_dwordx4 v[{16+4*c}:{19+4*c}], v1, s[8:11], s{48+c} offen{FL[envs('K0ST', 's')]}")
    k("s_endpgm")
    k.label("L_k0_z")
    k(f"s_sub_u32 s23, s21, {J_Z}\ns_sub_u32 s24, s23, 18\ns_cmp_lt_u32 s23, 18\ns_cselect_b32 s24, s23, s24")
    k(f"s_cselect_b32 s25, 7, 5\ns_mov_b32 s26, {OFF_WQ//KBY + 3*126 + 6}\ns_movk_i32 s27, 504\ns_cselect_b32 s26, s26, {OFF_WO//KBY + 90 + 4}\ns_cselect_b32 s27, s27, 180")
    k("s_mul_i32 s24, s24, s25\ns_add_u32 s24, s24, s26")
    for c in range(4):
        k(f"s_lshl_b32 s{48+c}, s24, 10\ns_add_u32 s24, s24, s27")
    for i in range(16): k(f"v_mov_b32 v{16+i}, 0")
    k(f"s_lshl_b32 s24, s23, 10\ns_add_u32 s24, s24, {OFF_FLAG}\ns_cmp_lt_u32 s23, 24\ns_cselect_b32 s24, s24, {BIG}")
    k("buffer_store_dwordx4 v[16:19], v1, s[8:11], s24 offen sc1")
    k("s_branch L_k0_store")
    k.label("L_k0_ln")
    srd(k, 12, 36, 2048*1152)
    ln_consts(k, 24, 25, 26)
    k("v_and_b32 v7, 15, v3\nv_mul_u32_u24 v7, 1152, v7\nv_bfe_u32 v8, v3, 4, 1\nv_lshl_add_u32 v7, v8, 5, v7\nv_lshrrev_b32 v8, 5, v3\nv_lshl_add_u32 v7, v8, 4, v7")
    k("s_mul_i32 s27, s21, 18432")
    X = 16
    for ks in range(18):
        k.vm(f"buffer_load_dwordx4 v[{X+4*ks}:{X+4*ks+3}], v7, s[12:15], s27 offen offset:{64*ks}{K0L}", ("x", ks))
    k(f"s_add_u32 s28, s27, {OFF_XF}\ns_add_u32 s29, s27, {OFF_XN}")
    def wfn(ks):
        k.wait_vm(("x", ks))
        k(f"v_permlane16_swap_b32 v{X+4*ks}, v{X+4*ks+2}\nv_permlane16_swap_b32 v{X+4*ks+1}, v{X+4*ks+3}")
        k.vm(f"buffer_store_dwordx4 v[{X+4*ks}:{X+4*ks+3}], v1, s[8:11], s28 offen offset:{(ks%4)*1024}{ST}")
        if ks % 4 == 3: k("s_add_u32 s28, s28, 4096")
    def aft(ks):
        k.vm(f"buffer_store_dwordx4 v[{X+4*ks}:{X+4*ks+3}], v1, s[8:11], s29 offen offset:{(ks%4)*1024}{ST}")
        if ks % 4 == 3: k("s_add_u32 s29, s29, 4096")
    ln_wave(k, X, 2, 24, 25, 26, wfn, aft)
    footer(k, name)
    return name, k, dict(grid=J_END // 4, block=256, lds=16384, vgpr=88, accum=88)

LD = " sc1"
SPIN = 40000
def fold(iters):
    body = []
    assert len({len(x) for x in iters}) == 1, [len(x) for x in iters]
    for ls in zip(*iters):
        if len(set(ls)) == 1: body.append(ls[0]); continue
        ns = [re.fullmatch(r"\s*s_waitcnt vmcnt\((\d+)\)", l) for l in ls]
        assert all(ns), ls
        body.append(f"    s_waitcnt vmcnt({min(int(m.group(1)) for m in ns)})")
    return body

def poll(k, name, target="s51"):
    k(f"s_mov_b32 s57, {SPIN}")
    k.label(f"L_poll_{name}")
    k("buffer_load_dword v3, v2, s[8:11], s56 offen sc1")
    k("s_sub_u32 s57, s57, 1")
    k.wait_vm_all()
    k(f"v_cmp_le_u32 vcc, {target}, v3\ns_cmp_eq_u32 s57, 0\ns_cbranch_scc1 L_pollx_{name}")
    k(f"s_cmp_eq_u64 vcc, -1\ns_cbranch_scc0 L_poll_{name}")
    k.label(f"L_pollx_{name}")

def signal(k):
    k.wait_vm_all(); k("s_barrier")
    k("v_mov_b32 v2, s51")
    k.vm("buffer_store_dword v2, v13, s[8:11], s56 offen sc1")

def gemm_core(k, NTB, NS, loads, AHEAD, st0):
    ACC = 16; WB = ACC + 4 * NS * NTB
    pi = 0
    def take(n):
        nonlocal pi
        r = loads[pi:pi + n]; pi += len(r); return r
    for f in take(AHEAD): f.fn(k)
    k("v_add_u32 v2, 0x10000, v1")
    def rd(ks, sl):
        i = ks * NS + sl; r = WB + 4 * ((ks & 1) * NS + sl)
        return (f"ds_read_b128 v[{r}:{r+3}], v{1 if i < 64 else 2} offset:{(i % 64) * 1024}", ("r", ks))
    for sl in range(NS): k.lg(*rd(0, sl))
    for ks in range(18):
        while k.vmq.count(("x", ks)) < NTB: take(1)[0].fn(k)
        k.wait_vm(("x", ks)); k.wait_lg(("r", ks))
        if ks == 0: stamp(k, st0)
        mf = []
        for sl in range(NS):
            for tb in range(NTB):
                a = ACC + 4 * (sl * NTB + tb); w = WB + 4 * ((ks & 1) * NS + sl); x = 4 * (ks * NTB + tb)
                mf.append(f"{MF} v[{a}:{a+3}], v[{w}:{w+3}], a[{x}:{x+3}], " + ("0" if ks == 0 else f"v[{a}:{a+3}]"))
        fill = [lgl(*rd(ks + 1, sl)) for sl in range(NS)] if ks + 1 < 18 else []
        outstanding = len(k.vmq) - k.vm_done
        interleave(k, mf, [fill, take(max(0, AHEAD + NTB - outstanding))], budget=8 if NTB == 2 else 12)
    assert pi == len(loads), (pi, len(loads))

def xloads(NTB):
    loads = []
    for ks in range(18):
        for tb in range(NTB):
            r = 4 * (ks * NTB + tb)
            loads.append(vml(f"buffer_load_dwordx4 a[{r}:{r+3}], v1, s[8:11], s{23+tb} offen offset:{(ks%4)*1024}{LD}", ("x", ks), cost=8))
        if ks % 4 == 3:
            loads[-1] = F(lambda k, f=loads[-1].fn: (f(k), [k(f"s_add_u32 s{23+tb}, s{23+tb}, 4096") for tb in range(NTB)]), 8)
    return loads

def fresh(k):
    k.vmq = []; k.vm_done = 0; k.lgq = []; k.lg_done = 0

def p1_qkv(k):
    k("s_lshl_b32 s21, s18, 3\ns_and_b32 s22, s17, 7\ns_add_u32 s21, s21, s22")
    k("s_lshr_b32 s29, s17, 3")
    k(f"s_lshl_b32 s56, s21, 7\ns_add_u32 s56, s56, {FA}\nv_and_b32 v2, 15, v0\nv_lshlrev_b32 v2, 2, v2")
    k(f"s_lshl_b32 s26, s21, 2\ns_add_u32 s26, s26, s20")
    k(f"s_mul_i32 s23, s26, {36*KBY}\ns_add_u32 s23, s23, {OFF_XN}\ns_add_u32 s24, s23, {18*KBY}")
    stamp(k, 0)
    k("s_cmp_eq_u32 s50, 0\ns_cbranch_scc1 L_pollx_a")
    poll(k, "a", "s50")
    stamp(k, 1)
    fresh(k)
    gemm_core(k, 2, 7, xloads(2), int(envs("AH1", "10")), 2)
    stamp(k, 3)
    ACC = 16
    k("s_mul_i32 s28, s19, 27\ns_mul_i32 s31, s29, 7\ns_add_u32 s28, s28, s31")
    k("s_lshl_b32 s30, s28, 6\ns_add_u32 s30, s30, s26\ns_lshl_b32 s30, s30, 10\ns_add_u32 s30, s30, s53")
    k("s_mov_b32 s28, s31")
    k(f"s_lshl_b32 s56, s19, 11\ns_lshl_b32 s27, s21, 7\ns_add_u32 s56, s56, s27\ns_lshl_b32 s27, s29, 2\ns_add_u32 s56, s56, s27\ns_add_u32 s56, s56, {FB}")
    k("s_and_b32 s27, s21, 14\ns_cmp_eq_u32 s27, 6\ns_cselect_b32 s27, 0, s52\ns_cmp_eq_u32 s27, 0\ns_cbranch_scc1 L_p1_thru")
    for var, fl in (("plain", ""), ("thru", " sc1")):
        if var == "thru": k.label("L_p1_thru")
        for sl in range(7):
            a = ACC + 8 * sl
            k(f"s_cmp_lt_u32 s28, {9 - sl}\ns_cselect_b32 s31, {fbits(18 ** -0.5 * LOG2E)}, 1.0")
            for i in range(8): k(f"v_mul_f32 v{a+i}, s31, v{a+i}")
            for i in range(4): k(f"v_cvt_pk_bf16_f32 v{a+i}, v{a+2*i}, v{a+2*i+1}")
            if sl == 6: k(f"s_cmp_eq_u32 s29, 3\ns_cselect_b32 s30, {BIG}, s30")
            k.vm(f"buffer_store_dwordx4 v[{a}:{a+3}], v1, s[8:11], s30 offen{fl}")
            if sl < 6: k("s_add_u32 s30, s30, 65536")
        if var == "plain": k("s_branch L_p1_done")
    k.label("L_p1_done")
    stamp(k, 4)
    signal(k)
    stamp(k, 5)

def p2_attn(k):
    k("s_lshl_b32 s21, s18, 3\ns_and_b32 s22, s17, 7\ns_add_u32 s21, s21, s22")
    k("s_lshr_b32 s48, s17, 3\ns_lshl_b32 s22, s19, 2\ns_add_u32 s22, s22, s48")
    k("v_and_b32 v3, 63, v0\nv_lshrrev_b32 v4, 4, v3")
    k("v_and_b32 v5, 1, v4\nv_lshlrev_b32 v5, 7, v5\nv_xor_b32 v5, v5, v1")
    k("s_mul_i32 s23, s20, 3\ns_lshl_b32 s24, s21, 2\ns_add_u32 s24, s24, s23\ns_sub_i32 s24, s24, 8")
    for c in range(3):
        k(f"s_cmp_lt_i32 s24, {-c}\ns_cselect_b32 s25, {BIG}, 0")
        k(f"v_add_u32 v{6+c}, s25, v1\nv_add_u32 v{9+c}, s25, v5")
    k(f"s_mul_i32 s49, s19, {27*65536}\ns_add_u32 s49, s49, s53")
    k("s_lshl_b32 s24, s24, 10\ns_add_u32 s27, s24, s49")
    k("s_lshl_b32 s25, s48, 17\ns_add_u32 s25, s25, s27")
    k("s_lshl_b32 s23, s23, 10")
    Q = 16
    k("s_and_b32 s29, s20, 1\ns_lshr_b32 s30, s20, 1")
    k("s_lshl_b32 s32, s21, 2\ns_lshl_b32 s33, s30, 1\ns_add_u32 s32, s32, s33")
    k("s_lshl_b32 s34, s32, 10\ns_add_u32 s34, s34, s49")
    k(f"s_lshl_b32 s33, s48, 1\ns_add_u32 s33, s33, s29\ns_lshl_b32 s33, s33, 16\ns_add_u32 s33, s33, s34\ns_add_u32 s34, s34, {8*65536}")
    M1, M2, ONE = 32, 36, 40
    k(f"v_and_b32 v12, 15, v3\nv_lshlrev_b32 v46, 2, v4\ns_mov_b32 s35, {fbits(-1e30)}\nv_mov_b32 v47, s35")
    for i in range(4):
        k(f"v_add_u32 v2, {i}, v46\nv_cmp_gt_u32 vcc, v2, v12\nv_mov_b32 v{ONE+i}, 0x3f803f80\ns_nop 0")
        k(f"v_cndmask_b32 v{M1+i}, v47, 0, vcc\nv_cndmask_b32 v{M2+i}, 0, v47, vcc")
    k(f"v_cmp_eq_u32 s[38:39], s48, v4\nv_mov_b32 v45, {BIG}\ns_nop 0\nv_cndmask_b32 v45, v45, v1, s[38:39]")
    k("s_cmp_eq_u32 s29, 1\ns_cselect_b64 s[40:41], -1, 0")
    k("s_andn2_b64 s[42:43], s[38:39], s[40:41]\ns_and_b64 s[44:45], s[38:39], s[40:41]")
    k(f"s_lshl_b32 s46, s32, 1\ns_mul_i32 s46, s46, {18*KBY}\ns_add_u32 s46, s46, {OFF_OF}")
    k("s_lshl_b32 s47, s22, 10\ns_lshl_b32 s36, s29, 3\ns_add_u32 s47, s47, s36\ns_add_u32 s47, s47, s46")
    k("s_lshr_b32 s36, s19, 1\ns_add_u32 s36, s36, 16\ns_lshl_b32 s36, s36, 10\ns_and_b32 s37, s19, 1\ns_lshl_b32 s37, s37, 3\ns_add_u32 s36, s36, s37")
    k("s_lshl_b32 s37, s29, 2\ns_add_u32 s36, s36, s37\ns_add_u32 s46, s46, s36")
    k("s_mul_i32 s36, s29, 12288\ns_lshl_b32 s37, s30, 11\ns_add_u32 s36, s36, s37\ns_add_u32 s37, s37, 24576")
    k("v_and_b32 v46, 3, v3\nv_lshrrev_b32 v47, 2, v3\nv_and_b32 v44, 1, v3\nv_lshlrev_b32 v44, 3, v44\nv_xor_b32 v47, v47, v44\nv_lshl_add_u32 v47, v46, 4, v47\nv_lshlrev_b32 v47, 4, v47")
    k(f"s_lshr_b32 s58, s17, 2\ns_mul_i32 s58, s58, {90*KBY}\ns_add_u32 s58, s58, {OFF_WO}\ns_lshl_b32 s59, s20, 12\ns_add_u32 s58, s58, s59")
    k("v_bfe_u32 v2, v0, 2, 2\nv_min_u32 v2, 2, v2\nv_sub_u32 v2, s21, v2\nv_max_i32 v2, 0, v2\nv_lshlrev_b32 v2, 7, v2\nv_and_b32 v44, 3, v0\nv_lshl_add_u32 v2, v44, 2, v2")
    k(f"s_lshl_b32 s56, s19, 11\ns_add_u32 s56, s56, {FB}")
    poll(k, "b")
    stamp(k, 6)
    fresh(k)
    blocks = [(25, 9), (25, 10), (27, 17), (25, 18), (25, 19), (27, 26)]
    def dma(b):
        sb, nb = blocks[b]
        k(f"s_add_u32 m0, s23, {b*12288}\ns_add_u32 s28, s{sb}, {nb*65536}")
        for c in range(3):
            k.vm(f"buffer_load_dwordx4 v{(6 if b < 3 else 9)+c}, s[8:11], s28 offen offset:{c*1024}{LD} lds", ("kv", b // 3))
    for b in range(3): dma(b)
    for i in range(4):
        off = (i >> 1) * 1024 + (i & 1) * 8
        k.vm(f"buffer_load_dwordx2 v[{Q+4*i}:{Q+4*i+1}], v1, s[8:11], s33 offen offset:{off}{LD}", "q")
        k.vm(f"buffer_load_dwordx2 v[{Q+4*i+2}:{Q+4*i+3}], v1, s[8:11], s34 offen offset:{off}{LD}", "q")
    for b in range(3, 6): dma(b)
    k("v_add_u32 v6, s36, v1\nv_add_u32 v7, s37, v1")
    k("s_add_u32 s36, s36, 36864\ns_add_u32 s37, s37, 36864\nv_add_u32 v8, s36, v47\nv_add_u32 v9, s37, v47")
    k(f"s_lshl_b32 s56, s21, 7\ns_lshl_b32 s27, s22, 2\ns_add_u32 s56, s56, s27\ns_add_u32 s56, s56, {FC}")
    KR, VR = 0, 80
    k.wait_vm("q")
    k("s_barrier")
    stamp(k, 7)
    for i in range(4):
        k(f"v_cndmask_b32 v{Q+4*i+2}, 0, v{Q+4*i+2}, s[42:43]\nv_cndmask_b32 v{Q+4*i+3}, 0, v{Q+4*i+3}, s[44:45]")
    for lim in (16, 12, 8, 4):
        k(f"s_cmp_eq_u32 s32, {(16 - lim) // 2}\ns_cbranch_scc1 L_attn_v{lim}")
    S0 = 48; OA = S0 + 144; TM = OA + 24
    for lim in (0, 4, 8, 12, 16):
        k.label(f"L_attn_v{lim}")
        k.lgq = []; k.lg_done = 0
        def kread(kt):
            off = (kt >> 1) * 1024 + (kt & 1) * 8
            return [lgl(f"ds_read_b64 a[{KR+4*kt}:{KR+4*kt+1}], v6 offset:{off}", ("k", kt)),
                    lgl(f"ds_read_b64 a[{KR+4*kt+2}:{KR+4*kt+3}], v7 offset:{off}", ("k", kt))]
        kreads = [f for kt in range(lim, 20) for f in kread(kt)]
        vreads = [line("s_waitcnt vmcnt(0)\ns_barrier", 8)]
        for p in range(lim // 2, 10):
            for b in range(2):
                for hf in range(2):
                    r = VR + 8 * p + 4 * b + 2 * hf
                    vreads.append(lgl(f"ds_read_b64_tr_b16 a[{r}:{r+1}], v{8+b} offset:{p*1024 + hf*8}", ("v", p)))
        wo = [lambda k: (k.wait_lg_all(), k("s_barrier\ns_mov_b32 m0, s59"))]
        for q in range(6):
            for c in range(4):
                wo.append(lambda k, c=c: k(f"buffer_load_dwordx4 v1, s[8:11], s58 offen offset:{c*1024} lds" + ("\ns_add_u32 m0, m0, 16384\ns_add_u32 s58, s58, 16384" if c == 3 else "")))
        tiles = lambda i: list(range(max(i, lim), i + 17))
        sreg = lambda i, kt: S0 + 72 * (i & 1) + 4 * (kt - 2 * (i >> 1))
        def qk(i):
            out = []
            for kt in tiles(i):
                c = f"v[{M2}:{M2+3}]" if kt == i + 16 else f"v[{M1}:{M1+3}]" if kt == i else "0"
                s = sreg(i, kt)
                def f(k, kt=kt, s=s, c=c):
                    k.wait_lg(("k", kt))
                    k(f"{MF} v[{s}:{s+3}], a[{KR+4*kt}:{KR+4*kt+3}], v[{Q+4*i}:{Q+4*i+3}], {c}")
                out.append(f)
            return out
        pairs = lambda i: list(range(max(i, lim) >> 1, ((i + 16) >> 1) + 1))
        def pv(i):
            out = []
            for b in range(3):
                for n, p in enumerate(pairs(i)):
                    o = OA + 12 * (i & 1) + 4 * b; s = sreg(i, 2 * p)
                    A = f"v[{ONE}:{ONE+3}]" if b == 2 else f"a[{VR+8*p+4*b}:{VR+8*p+4*b+3}]"
                    def f(k, p=p, o=o, s=s, A=A, n=n):
                        k.wait_lg(("v", p))
                        k(f"{MF} v[{o}:{o+3}], {A}, v[{s}:{s+3}], " + ("0" if n == 0 else f"v[{o}:{o+3}]"))
                    out.append(f)
            return out
        def softmax(i):
            L = []
            regs = [sreg(i, kt) + j for kt in tiles(i) for j in range(4)]
            m = TM; t = TM + 1
            ch = [regs[0::2], regs[1::2]]
            for c in range(2):
                r = ch[c]
                L.append(line(f"v_max_f32 v{m+c}, v{r[0]}, v{r[1]}"))
            for j in range(2, len(ch[0]), 2):
                for c in range(2):
                    L.append(line(f"v_max3_f32 v{m+c}, v{m+c}, v{ch[c][j]}, v{ch[c][j+1]}"))
            L.append(line(f"v_max_f32 v{m}, v{m}, v{t}"))
            for sw in ("v_permlane16_swap_b32", "v_permlane32_swap_b32"):
                L.append(line(f"v_mov_b32 v{t}, v{m}\ns_nop 1\n{sw} v{m}, v{t}\nv_max_f32 v{m}, v{m}, v{t}", 16))
            for p in pairs(i):
                base = sreg(i, 2 * p)
                for hf in range(2):
                    kt = 2 * p + hf; s = sreg(i, kt)
                    if kt in tiles(i):
                        for j in range(4): L.append(line(f"v_sub_f32 v{s+j}, v{s+j}, v{m}"))
                        for j in range(4): L.append(line(f"v_exp_f32 v{s+j}, v{s+j}", 8))
                for hf in range(2):
                    kt = 2 * p + hf; s = sreg(i, kt)
                    for j in range(2):
                        if kt in tiles(i): L.append(line(f"v_cvt_pk_bf16_f32 v{base+2*hf+j}, v{s+2*j}, v{s+2*j+1}"))
                        else: L.append(line(f"v_mov_b32 v{base+2*hf+j}, 0"))
            return L
        def epi(i):
            o = OA + 12 * (i & 1); t = TM + 2
            L = [line(f"v_rcp_f32 v{t}, v{o+8}", 8),
                 line(f"v_cndmask_b32 v{o+4}, v{o+4}, v{o+6}, s[40:41]"), line(f"v_cndmask_b32 v{o+5}, v{o+5}, v{o+7}, s[40:41]")]
            for j in range(6): L.append(line(f"v_mul_f32 v{o+j}, v{o+j}, v{t}"))
            for j in range(3): L.append(line(f"v_cvt_pk_bf16_f32 v{o+j}, v{o+2*j}, v{o+2*j+1}"))
            L.append(vml(f"buffer_store_dwordx2 v[{o}:{o+1}], v1, s[8:11], s47 offen sc1"))
            L.append(vml(f"buffer_store_dword v{o+2}, v45, s[8:11], s46 offen sc1"))
            L.append(line(f"s_add_u32 s47, s47, {18*KBY}\ns_add_u32 s46, s46, {18*KBY}", 8))
            return L
        def run(mf, valu, gap_first=0, frac=0.9):
            tot = sum(f.cost for f in valu); acc = 0; mi = 0
            for f in valu:
                while mi < len(mf) and acc >= gap_first + (tot - gap_first) * mi / max(len(mf), 1) * frac:
                    mf[mi](k); mi += 1
                f.fn(k); acc += f.cost
            while mi < len(mf): mf[mi](k); mi += 1
        def merge(a, b):
            out = []; n = len(a) + len(b); ia = ib = 0
            for j in range(n):
                if ib >= len(b) or (ia < len(a) and ia * len(b) <= ib * len(a)): out.append(a[ia]); ia += 1
                else: out.append(b[ib]); ib += 1
            return out
        n0 = min(12, len(kreads))
        for f in kreads[:n0]: f.fn(k)
        rest = kreads[n0:]
        for j, m in enumerate(qk(0)):
            m(k)
            for f in rest[2*j:2*j+2]: f.fn(k)
        for f in rest[2*len(tiles(0)):]: f.fn(k)
        k("s_nop 7")
        for i in range(4):
            stamp(k, 8 + i)
            mf = (pv(i - 1) if i >= 1 else []) + (qk(i + 1) if i < 3 else [])
            if i == 0: mf = mf + [f.fn for f in vreads]
            if i == 1: mf = [wo[0]] + merge(mf, wo[1:13])
            if i == 2: mf = merge(mf, wo[13:])
            va = softmax(i)
            if i >= 2: va = epi(i - 2) + va
            run(mf, va, 8 if i else 0)
            k("s_nop 1")
        run(pv(3), epi(2))
        k("s_nop 7")
        for f in epi(3): f.fn(k)
        if lim != 16: k("s_branch L_attn_done")
    k.label("L_attn_done")
    stamp(k, 12)
    signal(k)
    stamp(k, 13)

AG, AU, T1, T2, XV, RING = 16, 32, 48, 64, 80, 112
G = int(envs("G", "3")); LEAD = 36 - G
def wload(p):
    r = RING + 4 * (p % 36)
    if p >= 486: return []
    s = f"buffer_load_dwordx4 v[{r}:{r+3}], v1, s[12:15], s25 offen offset:{(p%4)*1024}{envs('WL', '')}"
    return [vml(s, ("w", p), cost=int(envs("LC", "8")))] + ([line("s_add_u32 s25, s25, 4096")] if p % 4 == 3 else [])

def p3_wo(k):
    NS = 5; ACC = 16; RES = ACC + 20 + 40
    k("s_lshl_b32 s21, s16, 2\ns_and_b32 s22, s17, 3\ns_add_u32 s26, s21, s22")
    k("s_lshr_b32 s22, s17, 2")
    k("s_lshl_b32 s21, s26, 2\ns_add_u32 s21, s21, s20")
    k(f"s_mul_i32 s27, s21, {18*KBY}\ns_add_u32 s23, s27, {OFF_OF}")
    k("s_lshr_b32 s28, s22, 1\ns_mul_i32 s28, s28, 9\ns_and_b32 s29, s22, 1\ns_mul_i32 s30, s29, 5\ns_add_u32 s28, s28, s30")
    for sl in range(NS):
        k(f"s_add_u32 s30, s28, {sl}\ns_lshr_b32 s31, s30, 1\ns_lshl_b32 s31, s31, 10\ns_and_b32 s30, s30, 1\ns_lshl_b32 s30, s30, 3")
        k(f"s_add_u32 s30, s30, s31\ns_add_u32 s{40+sl}, s30, s27")
    k(f"s_cmp_eq_u32 s29, 1\ns_cselect_b32 s44, {BIG}, s44")
    k(f"s_lshr_b32 s56, s26, 1\ns_lshl_b32 s56, s56, 7\ns_add_u32 s56, s56, {FC}\nv_and_b32 v2, 15, v0\nv_lshlrev_b32 v2, 2, v2")
    poll(k, "c")
    stamp(k, 14)
    fresh(k)
    res = [F(lambda k, sl=sl: (k(f"s_add_u32 s30, s{40+sl}, {OFF_XF}"), k.vm(f"buffer_load_dwordx2 v[{RES+2*sl}:{RES+2*sl+1}], v1, s[8:11], s30 offen{LD}", "res")), 8) for sl in range(NS)]
    gemm_core(k, 1, NS, xloads(1) + res, int(envs("AH3", "11")), 15)
    k.wait_vm("res")
    stamp(k, 16)
    k("s_mov_b32 s31, 0xffff0000\ns_mov_b32 s32, 0x3f803f80\nv_mov_b32 v6, 0\nv_mov_b32 v7, 0\nv_and_b32 v3, 63, v0")
    k(f"v_lshlrev_b32 v8, 6, v3\nv_cmp_gt_u32 vcc, 16, v3\nv_mov_b32 v9, {BIG}")
    for sl in range(NS):
        a = ACC + 4 * sl; r = RES + 2 * sl
        for h in range(2):
            k(f"v_lshlrev_b32 v4, 16, v{r+h}\nv_and_b32 v5, s31, v{r+h}")
            k(f"v_add_f32 v4, v4, v{a+2*h}\nv_add_f32 v5, v5, v{a+2*h+1}\nv_cvt_pk_bf16_f32 v{r+h}, v4, v5")
        k(f"s_add_u32 s30, s{40+sl}, {OFF_X1}")
        k.vm(f"buffer_store_dwordx2 v[{r}:{r+1}], v1, s[8:11], s30 offen sc1")
        for h in range(2): k(f"v_dot2c_f32_bf16 v6, s32, v{r+h}\nv_dot2c_f32_bf16 v7, v{r+h}, v{r+h}")
    k(f"v_cndmask_b32 v8, v9, v8, vcc\ns_lshl_b32 s30, s21, 10\ns_lshl_b32 s31, s22, 3\ns_add_u32 s30, s30, s31\ns_add_u32 s30, s30, {OFF_STAT}")
    red_rows(k, 6, 4); red_rows(k, 7, 4)
    k.vm(f"buffer_store_dwordx2 v[6:7], v8, s[8:11], s30 offen sc1")
    k(f"s_lshl_b32 s56, s26, 7\ns_lshl_b32 s27, s22, 2\ns_add_u32 s56, s56, s27\ns_add_u32 s56, s56, {FD}")
    stamp(k, 17)
    signal(k)
    stamp(k, 18)

def p4_ffn(k):
    xreg = lambda ks, tb: (ar(4 * (ks * 4 + tb), 4) if ks < 16 else vr(XV + 4 * (ks * 4 + tb - 64), 4))
    k("s_lshl_b32 s21, s19, 1\ns_and_b32 s22, s17, 1\ns_add_u32 s21, s21, s22")
    k("s_lshl_b32 s22, s18, 4\ns_lshr_b32 s23, s17, 1\ns_add_u32 s22, s22, s23")
    k(f"s_lshl_b32 s24, s21, 2\ns_add_u32 s24, s24, s20\ns_mul_i32 s24, s24, {486*KBY}\ns_add_u32 s24, s24, {OFF_WF}")
    k(f"s_add_u32 s12, s4, s24\ns_addc_u32 s13, s5, 0\ns_mov_b32 s14, {486*KBY}\ns_mov_b32 s15, 0x00020000\ns_mov_b32 s25, 0")
    PRE = int(envs("PRE", "16"))
    for p in range(PRE):
        for f in wload(p): f.fn(k)
    k(f"s_lshl_b32 s23, s22, 2\ns_add_u32 s23, s23, s20\ns_lshl_b32 s26, s23, 10\ns_add_u32 s26, s26, {OFF_STAT}\ns_mul_i32 s23, s23, {18*KBY}\ns_add_u32 s23, s23, {OFF_X1}")
    ln_consts(k, 30, 31, 32)
    k("v_and_b32 v4, 15, v0\nv_lshlrev_b32 v4, 6, v4\nv_bfe_u32 v5, v0, 4, 2\nv_lshl_add_u32 v4, v5, 4, v4")
    k(f"s_lshl_b32 s56, s22, 7\ns_add_u32 s56, s56, {FD}\nv_and_b32 v2, 7, v0\nv_lshlrev_b32 v2, 2, v2")
    poll(k, "d")
    stamp(k, 19)
    X = 16; T = 88
    k.vm(f"buffer_load_dwordx4 v[{T}:{T+3}], v4, s[8:11], s26 offen{LD}", "st")
    for ks in range(18):
        k.vm(f"buffer_load_dwordx4 v[{X+4*ks}:{X+4*ks+3}], v1, s[8:11], s23 offen offset:{(ks%4)*1024}{LD}", ("x", ks))
        if ks % 4 == 3: k("s_add_u32 s23, s23, 4096")
    k("s_lshl_b32 s26, s20, 10\nv_add_u32 v2, s26, v1\nv_add_u32 v3, 0x10000, v2")
    k.wait_vm("st")
    k(f"v_add_f32 v{T}, v{T}, v{T+2}\nv_add_f32 v{T+1}, v{T+1}, v{T+3}")
    red_rows(k, T, T + 2); red_rows(k, T + 1, T + 2)
    ln_stats_finish(k, T, T + 1, T + 2, 31)
    pw = PRE
    for ks in range(18):
        k.wait_vm(("x", ks))
        for i in range(4): ln_norm(k, X+4*ks+i, X+4*ks+i, T, T + 1, T + 2 + 2 * (i & 1), 32)
        k.lg(f"ds_write_b128 v{2 if ks < 16 else 3}, v[{X+4*ks}:{X+4*ks+3}] offset:{(ks % 16) * 4096}")
        while pw < PRE + (LEAD - PRE) * (ks + 1) // 18:
            for f in wload(pw): f.fn(k)
            pw += 1
    k("v_mov_b32 v2, v1\nv_add_u32 v3, 0x10000, v1")
    HB = 72 * KBY
    k(f"s_mov_b32 s33, {fbits(-LOG2E)}")
    k(f"s_lshl_b32 s29, s20, 14\ns_add_u32 s29, s29, {HB}\ns_mov_b32 s28, 8")
    for tb in range(4): k(f"v_add_u32 v{5+tb}, {tb*18*KBY}, v1")
    k("s_mov_b32 s34, 8")
    stamp(k, 20)
    k.wait_lg_all(); k("s_barrier")
    def xreads(lo, hi):
        return [lgl(f"ds_read_b128 {xreg(ks, tb)}, v{2 if ks < 16 else 3} offset:{((ks * 4 + tb) % 64) * 1024}", ("xr", ks)) for ks in range(lo, hi) for tb in range(4)]
    def phase(p0, acc, streams, xr=None, pre_extra=None, budget=8):
        mf = []; pre = {}; loads = []
        for g in range(18 // G):
            def p(k, g=g):
                if pre_extra and g in pre_extra: pre_extra[g](k)
                k.wait_vm(("w", p0 + g * G + G - 1), force=True)
                if xr is not None: k.wait_lg(("xr", g * G + G - 1))
            pre[len(mf)] = p
            for j in range(G):
                for f in wload(p0 + g * G + j + LEAD):
                    f.after = len(mf); f.before = len(mf) + 4 * G; loads.append(f)
            for tb in range(4):
                for j in range(G):
                    ks = g * G + j; r = RING + 4 * ((p0 + ks) % 36); a = acc + 4 * tb
                    mf.append(f"{MF} v[{a}:{a+3}], v[{r}:{r+3}], {xreg(ks, tb)}, " + ("0" if ks == 0 else f"v[{a}:{a+3}]"))
        st = [loads] + streams
        if xr:
            for j, f in enumerate(xr):
                g = j // (4 * G); f.after = max(f.after, 4 * G * g - 4); f.before = 4 * G * (g + 1) - 3
            st.append(xr)
        interleave(k, mf, st, pre=pre, budget=budget)
    def finish():
        L = [line("v_add_u32 v4, s29, v1")]
        for tb in range(4):
            for i in range(4): L.append(line(f"v_mul_f32 v{T1+4*tb+i}, v{T1+4*tb+i}, v{AU+4*tb+i}", after=3))
            for i in range(4): L.append(line(f"v_mul_f32 v{T1+4*tb+i}, v{T1+4*tb+i}, v{T2+4*tb+i}"))
            for i in range(2): L.append(line(f"v_cvt_pk_bf16_f32 v{T2+4*tb+i}, v{T1+4*tb+2*i}, v{T1+4*tb+2*i+1}"))
            L.append(lgl(f"ds_write_b64 v4, v[{T2+4*tb}:{T2+4*tb+1}] offset:{tb*1024}", "hw"))
        L += [line("s_add_u32 s29, s29, s28"), line("s_sub_u32 s28, 4096, s28"), line("s_sub_u32 s34, s34, 1")]
        return L
    def expo():
        L = []
        for tb in range(4):
            for i in range(4): L.append(line(f"v_mul_f32 v{T1+4*tb+i}, s33, v{AG+4*tb+i}", after=2))
            for i in range(4): L.append(line(f"v_exp_f32 v{T2+4*tb+i}, v{T1+4*tb+i}", 8))
            for i in range(4): L.append(line(f"v_fma_f32 v{T2+4*tb+i}, v{T2+4*tb+i}, s33, s33"))
            for i in range(4): L.append(line(f"v_rcp_f32 v{T2+4*tb+i}, v{T2+4*tb+i}", 8))
        return L
    xr = xreads(0, 18)
    for f in xr[:4 * G]: f.fn(k)
    stamp(k, 21); stamp(k, 30, True)
    phase(0, AG, [], xr=xr[4 * G:])
    phase(18, AU, [expo()])
    k(f"v_add_u32 v2, {HB}, v1\nv_add_u32 v3, {HB + 0x10000}, v1")
    its = []
    for fb in range(1, 9):
        m0 = k.mark()
        phase(36 * fb, AG, [finish()])
        phase(36 * fb + 18, AU, [expo()])
        its.append(k.lines[m0:]); del k.lines[m0:]
    k.label("L_ffn_gu")
    k.lines += fold(its)
    k("s_cmp_lg_u32 s34, 0\ns_cbranch_scc1 L_ffn_gu")
    stamp(k, 22); stamp(k, 31, True)
    k.wait_lg_all(); k("s_barrier")
    xr = xreads(0, 15)
    for f in xr[:4 * G]: f.fn(k)
    k(f"s_lshr_b32 s29, s20, 1\ns_lshl_b32 s29, s29, 12\ns_and_b32 s35, s20, 1\ns_lshl_b32 s36, s35, 3\ns_add_u32 s29, s29, s36\ns_add_u32 s29, s29, {HB + 64*KBY}")
    k(f"s_lshl_b32 s37, s21, 7\ns_lshl_b32 s38, s22, 2\ns_add_u32 s37, s37, s38\ns_mul_i32 s37, s37, {18*KBY}\ns_add_u32 s37, s37, {OFF_PART}")
    k("s_mul_i32 s38, s20, 9\ns_lshr_b32 s39, s20, 1\ns_mul_i32 s39, s39, 9\ns_add_u32 s39, s39, 4\ns_lshl_b32 s39, s39, 10\ns_add_u32 s39, s39, s36\ns_add_u32 s39, s39, s37")
    k("s_add_u32 s38, s38, s35\ns_lshl_b32 s38, s38, 9\ns_add_u32 s38, s38, s37")
    k(f"s_lshl_b32 s56, s22, 7\ns_lshl_b32 s27, s21, 2\ns_add_u32 s56, s56, s27\ns_add_u32 s56, s56, {FE}")
    fin = finish()[:-3]
    NG = 18 // G
    for f in fin: f.before = 4 * G * (NG - 2)
    def late(k):
        k.wait_lg_all(); k("s_barrier")
        for f in xreads(15, 18): f.fn(k)
    assert G == 3
    phase(324, AG, [fin], xr=xr[4 * G:], pre_extra={NG - 2: late}, budget=12)
    def cv(acc, dst, hi, after=0):
        return [line(f"v_cvt_pk_bf16_f32 v{dst+4*tb+2*hi+i}, v{acc+4*tb+2*i}, v{acc+4*tb+2*i+1}", after=after) for tb in range(4) for i in range(2)]
    def st4(src, tb, after):
        return vml(f"buffer_store_dwordx4 v[{src+4*tb}:{src+4*tb+3}], v{5+tb}, s[8:11], s38 offen sc1", after=after, cost=8)
    phase(342, AU, [cv(AG, T1, 0, 8)])
    k("s_mov_b32 s34, 2")
    stamp(k, 23); stamp(k, 32, True)
    def first_half():
        L = []
        for tb in range(4):
            L += [line(f"v_mov_b32 v{T2+4*tb}, v{T1+4*tb}"), line(f"v_mov_b32 v{T2+4*tb+1}, v{T1+4*tb+1}")]
        return L + cv(AU, T2, 1, 8) + [st4(T2, 0, 30), st4(T2, 1, 60)]
    def pair(p):
        phase(324 + 36 * p, AG, [first_half()])
        phase(324 + 36 * p + 18, AU, [cv(AG, T1, 0, 8), [st4(T2, 2, 20), st4(T2, 3, 52), line("s_add_u32 s38, s38, 1024"), line("s_sub_u32 s34, s34, 1")]])
    its = []
    for p in range(1, 3):
        m0 = k.mark(); pair(p); its.append(k.lines[m0:]); del k.lines[m0:]
    k.label("L_ffn_dn")
    k.lines += fold(its)
    k("s_cmp_lg_u32 s34, 0\ns_cbranch_scc1 L_ffn_dn")
    pair(3)
    stamp(k, 24); stamp(k, 33, True)
    phase(468, AG, [cv(AU, T1, 1, 8) + [st4(T1, tb, 0) for tb in range(4)]])
    k("s_nop 7")
    for f in cv(AG, T2, 0): f.fn(k)
    for tb in range(4):
        k.vm(f"buffer_store_dwordx2 v[{T2+4*tb}:{T2+4*tb+1}], v{5+tb}, s[8:11], s39 offen sc1")
    stamp(k, 25); stamp(k, 34, True)
    signal(k)
    stamp(k, 26)

def wq_base(k):
    k(f"s_lshr_b32 s29, s17, 3\ns_lshl_b32 s22, s19, 2\ns_add_u32 s22, s22, s29\ns_mul_i32 s25, s22, {126*KBY}\ns_add_u32 s25, s25, {OFF_WQ}")

def p5_reduce(k, nlayers):
    k(f"s_cmp_eq_u32 s20, 3\ns_cbranch_scc1 L_p5_w3")
    k("v_and_b32 v3, 63, v0\nv_lshrrev_b32 v4, 4, v3\nv_bfe_u32 v5, v3, 3, 1\nv_and_b32 v6, 7, v3")
    k("s_lshl_b32 s28, s16, 5\ns_add_u32 s28, s28, s17")
    k("s_and_b32 s21, s28, 1\ns_lshr_b32 s22, s28, 1\ns_lshl_b32 s23, s21, 7")
    k("v_lshlrev_b32 v7, 8, v4\nv_lshl_add_u32 v7, v5, 10, v7\nv_lshl_add_u32 v7, v6, 4, v7\nv_add_u32 v7, s23, v7\nv_add_u32 v8, 0x1000, v7")
    k(f"s_mul_i32 s24, s22, 18\ns_mul_i32 s25, s20, 6\ns_add_u32 s24, s24, s25\ns_lshl_b32 s24, s24, 10")
    ln_consts(k, 30, 31, 32)
    k("s_mov_b32 s26, 0x00003f80\ns_mov_b32 s27, 0x3f800000")
    k(f"s_lshr_b32 s56, s28, 3\ns_lshl_b32 s56, s56, 7\ns_add_u32 s56, s56, {FE}\nv_lshlrev_b32 v2, 2, v6")
    poll(k, "e")
    stamp(k, 27)
    D = 16; ACC = D + 108
    for src in range(9):
        k(f"s_add_u32 s25, s24, {OFF_X1 if src == 0 else OFF_PART + (src - 1) * 2304 * KBY}")
        for i in range(3):
            r = D + 12 * src + 4 * i
            k.vm(f"buffer_load_dwordx4 v[{r}:{r+3}], v{8 if i == 2 else 7}, s[8:11], s25 offen offset:{2048 if i == 1 else 0}{LD}", (src, i))
    for src in range(9):
        for i in range(3):
            k.wait_vm((src, i))
            for j in range(4):
                r = D + 12 * src + 4 * i + j; a = ACC + 8 * i + 2 * j
                if src == 0: k(f"v_lshlrev_b32 v{a}, 16, v{r}\nv_and_b32 v{a+1}, s32, v{r}")
                else: k(f"v_dot2c_f32_bf16 v{a}, s26, v{r}\nv_dot2c_f32_bf16 v{a+1}, s27, v{r}")
    k("s_nop 2")
    stamp(k, 28)
    for j in range(12): k(f"v_cvt_pk_bf16_f32 v{D+j}, v{ACC+2*j}, v{ACC+2*j+1}")
    k(f"s_cmp_eq_u32 s50, 1\ns_cbranch_scc1 L_p5_final")
    T = D + 16
    for i in range(4): k(f"v_mov_b32 v{T+i}, 0")
    for j in range(12):
        k(f"v_dot2c_f32_bf16 v{T+(j&1)}, s30, v{D+j}\nv_dot2c_f32_bf16 v{T+2+(j&1)}, v{D+j}, v{D+j}")
    k(f"s_add_u32 s25, s24, {OFF_XF}\ns_nop 1\nv_add_f32 v{T}, v{T}, v{T+1}\nv_add_f32 v{T+1}, v{T+2}, v{T+3}\ns_nop 1")
    k(f"v_add_f32_dpp v{T}, v{T}, v{T} row_ror:8 row_mask:0xf bank_mask:0xf\nv_add_f32_dpp v{T+1}, v{T+1}, v{T+1} row_ror:8 row_mask:0xf bank_mask:0xf")
    red_rows(k, T, T + 2); red_rows(k, T + 1, T + 2)
    k(f"v_lshlrev_b32 v9, 3, v6\nv_add_u32 v9, {150*KBY}, v9\ns_lshl_b32 s23, s20, 6\nv_add_u32 v10, s23, v9")
    k(f"ds_write_b64 v10, v[{T}:{T+1}]")
    k("s_cmp_eq_u32 s52, 0\ns_cbranch_scc1 L_p5_thru")
    for var, fl in (("plain", ""), ("thru", " sc1")):
        if var == "thru": k.label("L_p5_thru")
        for i in range(3):
            k(f"buffer_store_dwordx4 v[{D+4*i}:{D+4*i+3}], v{8 if i == 2 else 7}, s[8:11], s25 offen offset:{2048 if i == 1 else 0}{fl}")
        if var == "plain": k("s_branch L_p5_st")
    k.label("L_p5_st")
    k("s_waitcnt lgkmcnt(0)\ns_barrier")
    for w in range(3): k(f"ds_read_b64 v[{T+2*w}:{T+2*w+1}], v9 offset:{64*w}")
    k("s_waitcnt lgkmcnt(0)")
    k(f"v_add_f32 v{T}, v{T}, v{T+2}\nv_add_f32 v{T+1}, v{T+1}, v{T+3}\nv_add_f32 v{T}, v{T}, v{T+4}\nv_add_f32 v{T+1}, v{T+1}, v{T+5}")
    ln_stats_finish(k, T, T + 1, T + 2, 31)
    k(f"s_add_u32 s25, s24, {OFF_XN}")
    O = T + 8
    for i in range(3):
        for j in range(4): ln_norm(k, D + 4 * i + j, O + 4 * i + j, T, T + 1, T + 2 + 2 * (j & 1), 32)
        k(f"buffer_store_dwordx4 v[{O+4*i}:{O+4*i+3}], v{8 if i == 2 else 7}, s[8:11], s25 offen offset:{2048 if i == 1 else 0} sc1")
    k(f"s_lshr_b32 s56, s28, 4\ns_lshl_b32 s56, s56, 7\ns_and_b32 s27, s28, 15\ns_lshl_b32 s27, s27, 2\ns_add_u32 s56, s56, s27\ns_add_u32 s56, s56, {FA}")
    k("s_branch L_p5_join")
    k.label("L_p5_w3")
    k(f"s_cmp_eq_u32 s50, 1\ns_cbranch_scc1 L_main_fin")
    wq_base(k)
    k("s_mov_b32 m0, 0\ns_mov_b32 s26, 32")
    k.label("L_p5_dma")
    for c in range(4): k(f"buffer_load_dwordx4 v1, s[8:11], s25 offen offset:{c*1024} lds")
    k("s_add_u32 m0, m0, 4096\ns_add_u32 s25, s25, 4096\ns_sub_u32 s26, s26, 1\ns_waitcnt vmcnt(40)\ns_cmp_lg_u32 s26, 0\ns_cbranch_scc1 L_p5_dma")
    k(f"s_mov_b32 s56, {BIG}\ns_barrier")
    k.label("L_p5_join")
    stamp(k, 29)
    signal(k)
    k(f"s_add_u32 s50, s50, 1\ns_add_u32 s51, s51, 1\ns_mov_b32 s53, {OFF_QKV2}")
    if STAMP: k("v_mov_b32 v14, v15")
    k("s_branch L_layer" if nlayers == 2 else "s_branch L_main_fin")
    k.label("L_p5_final")
    srd(k, 12, 6, 2048 * 1152)
    k("v_mul_u32_u24 v7, 1152, v6\nv_lshl_add_u32 v7, v5, 6, v7\nv_and_b32 v9, 1, v4\nv_lshl_add_u32 v7, v9, 5, v7\nv_lshrrev_b32 v9, 1, v4\nv_lshl_add_u32 v7, v9, 4, v7")
    k("s_mul_i32 s24, s28, 9216\ns_mul_i32 s25, s20, 384\ns_add_u32 s24, s24, s25")
    for i in range(3):
        k(f"v_permlane16_swap_b32 v{D+4*i}, v{D+4*i+2}\nv_permlane16_swap_b32 v{D+4*i+1}, v{D+4*i+3}")
        k(f"buffer_store_dwordx4 v[{D+4*i}:{D+4*i+3}], v7, s[12:15], s24 offen offset:{128*i}{FL[envs('OUTST', 's')]}")
    k.label("L_main_fin")
    if STAMP:
        k.wait_vm_all(); stamp(k, 29)
        k(f"s_add_u32 s84, s4, {OFF_STAMP}\ns_addc_u32 s85, s5, 0\ns_mov_b32 s86, 0x2000000\ns_mov_b32 s87, 0x00020000")
        k("s_lshl_b32 s88, s2, 2\ns_add_u32 s88, s88, s20\ns_lshl_b32 s88, s88, 9\nv_lshrrev_b32 v2, 2, v1")
        k("buffer_store_dword v14, v2, s[84:87], s88 offen\nbuffer_store_dword v15, v2, s[84:87], s88 offen offset:256")

def main_k(nlayers=2):
    k = KB(); name = "main_kernel"
    header(k, name, 256)
    if STAMP: k("v_mov_b32 v14, 0\nv_mov_b32 v15, 0"); stamp(k, 40)
    k("s_load_dwordx2 s[4:5], s[0:1], 72\ns_load_dwordx2 s[6:7], s[0:1], 56")
    wave_id(k, 20, 1, 2)
    k("s_and_b32 s16, s2, 7\ns_lshr_b32 s17, s2, 3\ns_bfe_u32 s18, s2, 0x10002\ns_and_b32 s19, s2, 3")
    k(f"s_getreg_b32 s55, hwreg(HW_REG_XCC_ID, 0, 4)\ns_add_u32 s55, s55, 1\nv_cmp_eq_u32 vcc, 0, v0\nv_mov_b32 v13, {BIG}\nv_mov_b32 v2, s55")
    k(f"v_cndmask_b32 v13, v13, 0, vcc\ns_mov_b32 s50, 0\ns_mov_b32 s51, 1\ns_mov_b32 s53, {OFF_QKV}")
    wq_base(k)
    k("s_lshl_b32 s26, s20, 12\ns_add_u32 s25, s25, s26\ns_mov_b32 m0, s26")
    k(f"s_lshl_b32 s56, s16, 7\ns_add_u32 s56, s56, {FT}\ns_lshl_b32 s27, s17, 2\ns_add_u32 s27, s27, s56")
    k("s_waitcnt lgkmcnt(0)")
    srd(k, 8, 4, WS_USED)
    k("buffer_store_dword v2, v13, s[8:11], s27 offen sc1")
    for q in range(8):
        for c in range(4): k(f"buffer_load_dwordx4 v1, s[8:11], s25 offen offset:{c*1024} lds")
        k("s_add_u32 m0, m0, 16384\ns_add_u32 s25, s25, 16384")
    k("v_and_b32 v2, 31, v0\nv_lshlrev_b32 v2, 2, v2")
    poll(k, "t", "1")
    k(f"v_cmp_eq_u32 vcc, s55, v3\ns_cmp_eq_u64 vcc, -1\ns_cselect_b32 s52, {0 if envs('NOLOCAL', '') else 1}, 0\ns_barrier")
    k.label("L_layer")
    fresh(k)
    p1_qkv(k); p2_attn(k); p3_wo(k); p4_ffn(k); p5_reduce(k, nlayers)
    footer(k, name)
    return name, k, dict(grid=256, block=256, lds=152 * KBY, vgpr=512, accum=256)

def build(order, nlayers=2):
    ks = [k0(), main_k(nlayers)]
    info = {n: d for n, _, d in ks}
    info["sleep_kernel"] = dict(grid=1, block=64, lds=0, vgpr=8, accum=8)
    out = ["; x = x + attn(LN(x)); x = x + swiglu(LN(x)); twice.  Generated by work/genp.py (own generator)."]
    for o in order:
        d = info[o + "_kernel"]
        out.append(f"; @launch kernel={o}_kernel grid=({d['grid']},1,1) block=({d['block']},1,1) lds={d['lds']}")
    out.append('.amdgcn_target "amdgcn-amd-amdhsa--gfx950"\n.text')
    for n, k, d in ks: out.append(k.text())
    if "sleep" in order:
        out.append(""".globl sleep_kernel
.p2align 8
.type sleep_kernel,@function
sleep_kernel:
    s_mov_b32 s4, 2000
L_sleep:
    s_sleep 8
    s_sub_u32 s4, s4, 1
    s_cmp_lg_u32 s4, 0
    s_cbranch_scc1 L_sleep
    s_load_dwordx2 s[4:5], s[0:1], 72
    s_waitcnt lgkmcnt(0)
    s_add_u32 s8, s4, %d
    s_addc_u32 s9, s5, 0
    s_mov_b32 s10, 64
    s_mov_b32 s11, 0x00020000
    s_memrealtime s[6:7]
    s_waitcnt lgkmcnt(0)
    v_mov_b32 v1, s6
    v_mov_b32 v2, 0
    buffer_store_dword v1, v2, s[8:11], 0 offen
    s_endpgm""" % (OFF_STAMP + (1 << 20)))
        ks.append(("sleep_kernel", None, info["sleep_kernel"]))
    out.append('.section .rodata,"a"')
    for n, k, d in ks:
        out.append(f""".p2align 6
.amdhsa_kernel {n}
  .amdhsa_next_free_vgpr {d['vgpr']}
  .amdhsa_next_free_sgpr {96 if STAMP else 64}
  .amdhsa_accum_offset {d['accum']}
  .amdhsa_group_segment_fixed_size 0
  .amdhsa_kernarg_size 80
  .amdhsa_user_sgpr_count 2
  .amdhsa_user_sgpr_kernarg_segment_ptr 1
  .amdhsa_system_sgpr_workgroup_id_x 1
  .amdhsa_float_denorm_mode_32 3
.end_amdhsa_kernel""")
    return "\n".join(out) + "\n"

if __name__ == "__main__":
    dst = sys.argv[1]
    order = ["pack", "main"]
    if "stamp" in sys.argv[2:]: STAMP = True; order = ["sleep"] + order
    open(dst, "w").write(build(order, 1 if "one" in sys.argv[2:] else 2))
```

```python
import re, sys, os, struct
from kb import *
KBY = 1024
OFF_XF, OFF_XN, OFF_OF, OFF_X1 = 0, 2304*KBY, 4608*KBY, 6912*KBY
OFF_OB = OFF_OF + 2048*KBY
OFF_QKV = 9216*KBY
OFF_PART = 16128*KBY
OFF_WO = 34560*KBY
OFF_WF = 37376*KBY
OFF_STAT = 53248*KBY
OFF_FLAG = 53376*KBY
OFF_QKV2 = 53408*KBY
OFF_WQ = OFF_QKV2 + 6912*KBY
OFF_FLAG = OFF_WQ + 2048*KBY
WS_USED = OFF_FLAG + 64*KBY
FA, FB, FC, FD, FE, FP, FP2, FW, FQ = [OFF_FLAG + o for o in (0, 2048, 10240, 12288, 16384, 20480, 22528, 24576, 25600)]
BIG = 0x40000000
LOG2E = 1.4426950408889634
def fbits(x): return "0x%08x" % struct.unpack("<I", struct.pack("<f", x))[0]
def envs(n, d): return os.environ.get(n, d)
FL = {"s": " sc1", "p": "", "n": " nt"}
MF = "v_mfma_f32_16x16x32_bf16"
LD = " sc1"
SPIN = 40000
STAMP = False
OFF_STAMP = 200 << 20
POLL1 = envs("POLL1", "1") == "1"
FAST = envs("FAST", "1") == "1"
FORCE_EXACT = envs("FORCE_EXACT", "") == "1"

def stamp(k, i, cyc=False):
    if STAMP:
        k(f"{'s_memtime' if cyc else 's_memrealtime'} s[90:91]"); k.wait_lg_all(); k(f"v_writelane_b32 v15, s90, {i}")
def srd(k, d, base, nbytes):
    k(f"s_mov_b32 s{d}, s{base}\ns_mov_b32 s{d+1}, s{base+1}\ns_mov_b32 s{d+2}, {nbytes}\ns_mov_b32 s{d+3}, 0x00020000")
def sdiv(k, dst, src, D, tmp):
    k(f"s_mov_b32 s{tmp}, {-(-(1<<32)//D)}\ns_mul_hi_u32 s{dst}, s{src}, s{tmp}")
def red_rows(k, v, t, op="v_add_f32"):
    for sw in ("v_permlane16_swap_b32", "v_permlane32_swap_b32"):
        k(f"v_mov_b32 v{t}, v{v}\ns_nop 1\n{sw} v{v}, v{t}\n{op} v{v}, v{v}, v{t}")
def ln_stats_finish(k, s, q):
    k(f"v_mul_f32 v{s}, s31, v{s}\nv_mul_f32 v{q}, s31, v{q}\nv_fma_f32 v{q}, -v{s}, v{s}, v{q}\nv_max_f32 v{q}, 0, v{q}")
    k(f"v_add_f32 v{q}, {fbits(1e-5)}, v{q}\nv_rsq_f32 v{q}, v{q}\ns_nop 0\nv_mul_f32 v{s}, v{s}, v{q}\nv_sub_f32 v{s}, 0, v{s}")
def ln_norm(k, x, dst, s, q, t):
    k(f"v_lshlrev_b32 v{t}, 16, v{x}\nv_and_b32 v{t+1}, s32, v{x}\nv_fma_f32 v{t}, v{t}, v{q}, v{s}\nv_fma_f32 v{t+1}, v{t+1}, v{q}, v{s}\nv_cvt_pk_bf16_f32 v{dst}, v{t}, v{t+1}")
def ln_consts(k):
    k(f"s_mov_b32 s30, 0x3f803f80\ns_mov_b32 s31, {fbits(1/576)}\ns_mov_b32 s32, 0xffff0000")
def fold(iters):
    body = []
    assert len({len(x) for x in iters}) == 1, [len(x) for x in iters]
    for ls in zip(*iters):
        if len(set(ls)) == 1: body.append(ls[0]); continue
        ns = [re.fullmatch(r"\s*s_waitcnt vmcnt\((\d+)\)", l) for l in ls]
        assert all(ns), ls
        body.append(f"    s_waitcnt vmcnt({min(int(m.group(1)) for m in ns)})")
    return body
def fresh(k):
    k.vmq = []; k.vm_done = 0; k.lgq = []; k.lg_done = 0

def poll(k, name, wg=True, layer=True):
    if wg: k(f"s_cmp_lg_u32 s20, 0\ns_cbranch_scc1 L_pollx_{name}")
    k(f"s_mov_b32 s57, {SPIN}" + ("\ns_add_u32 s56, s56, s51" if layer else ""))
    k.label(f"L_poll_{name}")
    k(f"buffer_load_dwordx2 v[254:255], v2, s[8:11], s56 offen sc1\ns_sub_u32 s57, s57, 1\ns_waitcnt vmcnt(0)")
    k(f"v_cmp_eq_u64 vcc, s[92:93], v[254:255]\ns_cmp_eq_u32 s57, 0\ns_cbranch_scc1 L_pollx_{name}")
    k(f"s_cmp_eq_u64 vcc, -1\ns_cbranch_scc0 L_poll_{name}")
    k.label(f"L_pollx_{name}")
    if wg: k("s_barrier")
def publish(k, addr="s56"):
    k("v_mov_b32 v254, s92\nv_mov_b32 v255, s93")
    k.vm(f"buffer_store_dwordx2 v[254:255], v13, s[8:11], {addr} offen sc1")
def signal(k):
    k(f"s_add_u32 s56, s56, s51\ns_cmp_eq_u32 s20, 0\ns_cselect_b32 s56, s56, {BIG}")
    k.wait_vm_all(); k("s_barrier")
    publish(k)
def token_load(k):
    k("v_mov_b32 v2, 0\nbuffer_load_dwordx2 v[254:255], v2, s[84:87], 0 offen sc1")
def token_get(k, name):
    k(f"s_mov_b32 s57, {SPIN}")
    k.label(f"L_tok_{name}")
    k("v_readfirstlane_b32 s92, v254\nv_readfirstlane_b32 s93, v255\ns_sub_u32 s57, s57, 1\ns_min_u32 s94, s92, s93\ns_cmp_eq_u32 s57, 0\ns_cselect_b32 s94, 1, s94")
    k(f"s_cmp_lg_u32 s94, 0\ns_cbranch_scc1 L_tokx_{name}")
    token_load(k)
    k(f"s_waitcnt vmcnt(0)\ns_branch L_tok_{name}")
    k.label(f"L_tokx_{name}")

def half_lanes(k, shb):
    k("v_bfe_u32 v4, v0, 4, 2\nv_bfe_u32 v5, v0, 3, 1\nv_and_b32 v6, 7, v0")
    k(f"s_and_b32 s21, s{shb}, 1\ns_lshr_b32 s22, s{shb}, 1\ns_lshl_b32 s23, s21, 7")
    k("v_lshlrev_b32 v7, 8, v4\nv_lshl_add_u32 v7, v5, 10, v7\nv_lshl_add_u32 v7, v6, 4, v7\nv_add_u32 v7, s23, v7")
    k(f"s_mul_i32 s24, s22, {18*KBY}")
def rowmajor(k, shb, v):
    k(f"v_mul_u32_u24 v{v}, 1152, v6\nv_lshl_add_u32 v{v}, v5, 6, v{v}\nv_and_b32 v9, 1, v4\nv_lshl_add_u32 v{v}, v9, 5, v{v}\nv_lshrrev_b32 v9, 1, v4\nv_lshl_add_u32 v{v}, v9, 4, v{v}")
    k(f"s_mul_i32 s33, s{shb}, 9216")
def row_sums(k, D, n, T):
    for i in range(4): k(f"v_mov_b32 v{T+i}, 0")
    for j in range(n): k(f"v_dot2c_f32_bf16 v{T+(j&1)}, s30, v{D+j}\nv_dot2c_f32_bf16 v{T+2+(j&1)}, v{D+j}, v{D+j}")
    k(f"s_nop 2\nv_add_f32 v{T}, v{T}, v{T+1}\nv_add_f32 v{T+1}, v{T+2}, v{T+3}\ns_nop 1")
    k(f"v_add_f32_dpp v{T}, v{T}, v{T} row_ror:8 row_mask:0xf bank_mask:0xf\nv_add_f32_dpp v{T+1}, v{T+1}, v{T+1} row_ror:8 row_mask:0xf bank_mask:0xf")
    red_rows(k, T, T + 2); red_rows(k, T + 1, T + 2)
def flag_a_addr(k):
    k(f"s_lshr_b32 s56, s28, 4\ns_lshl_b32 s56, s56, 7\ns_and_b32 s27, s28, 15\ns_lshl_b32 s27, s27, 3\ns_add_u32 s56, s56, s27\ns_add_u32 s56, s56, {FA}")

DST = 68
park = lambda u, i: (f"v[{128+16*u+4*i}:{131+16*u+4*i}]" if u < 3 else f"a[{160+16*(u-3)+4*i}:{163+16*(u-3)+4*i}]")
PK = 220
def wq_base(k):
    k(f"s_lshr_b32 s29, s17, 3\ns_lshl_b32 s22, s19, 2\ns_add_u32 s22, s22, s29\ns_mul_i32 s25, s22, {126*KBY}\ns_add_u32 s25, s25, {OFF_WQ}")
def wq_fetch(k, name):
    k(f"s_and_b32 s23, s17, {7 if envs('ROT', '1') == '1' else 0}\ns_lshl_b32 s23, s23, 14\ns_mov_b32 s26, 32")
    k.label(f"L_wqf_{name}")
    k("s_mov_b32 m0, s23\ns_add_u32 s27, s25, s23")
    for c in range(4): k(f"buffer_load_dwordx4 v1, s[8:11], s27 offen offset:{c*1024} lds")
    k(f"s_add_u32 s23, s23, 4096\ns_and_b32 s23, s23, 0x1ffff\ns_sub_u32 s26, s26, 1\ns_waitcnt vmcnt({envs('WQF', '40')})\ns_cmp_lg_u32 s26, 0\ns_cbranch_scc1 L_wqf_{name}")
def stage_addr(k):
    k(f"s_lshl_b32 s66, s20, 13\ns_add_u32 s66, s66, {128*KBY}\nv_add_u32 v10, s66, v1")
    k("v_bfe_u32 v11, v0, 2, 4\nv_lshlrev_b32 v11, 7, v11\nv_and_b32 v252, 3, v0\nv_lshl_add_u32 v11, v252, 3, v11\nv_add_u32 v11, s66, v11")
def pack_block(k, n, nu, dst=lambda u, c: (f"s{DST+c}", (u % 4) * 1024), src=park):
    k("s_waitcnt lgkmcnt(0)")
    if 2 <= n < nu + 2:
        u = n - 2
        for c in range(4):
            r, o = dst(u, c)
            k(f"buffer_store_dwordx4 v[{PK+16*(u&1)+4*c}:{PK+16*(u&1)+4*c+3}], v1, s[8:11], {r} offen offset:{o} sc1" + (f"\ns_add_u32 {r}, {r}, 4096" if o == 3072 else ""))
    if 1 <= n <= nu:
        u = n - 1
        for c in range(4):
            for hf in range(2): k(f"ds_read_b64_tr_b16 v[{PK+16*(u&1)+4*c+2*hf}:{PK+16*(u&1)+4*c+2*hf+1}], v11 offset:{(u&1)*4096 + hf*2048 + c*32}")
    if n < nu:
        for i in range(4): k(f"ds_write_b128 v10, {src(n, i)} offset:{(n&1)*4096 + i*1024}")
lpark = lambda u, i: f"a[{208+16*u+4*i}:{211+16*u+4*i}]"
def late_blocks(k):
    k("s_cmp_eq_u32 s67, 0\ns_cbranch_scc1 L_pks")
    stage_addr(k)
    for n in range(5): pack_block(k, n, 3, lambda u, c: (f"s{78+c}", u * 1024), lpark)
    k("s_mov_b32 s67, 0")
    k.label("L_pks")
EARLY = envs("EARLY", "b")
def early_blocks(k):
    k("s_cmp_eq_u32 s67, 0\ns_cbranch_scc1 L_pke")
    stage_addr(k)
    for n in range(8): pack_block(k, n, 6)
    k.label("L_pke")
def publish_fp(k, base):
    k(f"s_mov_b32 s30, {-(-(1<<32)//27)}\ns_mul_hi_u32 s27, s2, s30\ns_mul_i32 s27, s27, 5\ns_add_u32 s27, s27, s2\ns_lshl_b32 s27, s27, 3\ns_add_u32 s27, s27, {base}")
    k(f"s_cmp_lt_u32 s2, 216\ns_cselect_b32 s27, s27, {BIG}\ns_cmp_eq_u32 s20, 0\ns_cselect_b32 s27, s27, {BIG}")
    k.vm("buffer_store_dwordx2 v[254:255], v13, s[8:11], s27 offen sc1")
def poll_fp(k, name, base):
    k(f"s_cmp_lg_u32 s50, 0\ns_cbranch_scc1 L_pollx_{name}\ns_lshl_b32 s56, s21, 8\ns_add_u32 s56, s56, {base}\nv_and_b32 v2, 31, v0\nv_min_u32 v2, 26, v2\nv_lshlrev_b32 v2, 3, v2")
    poll(k, name, wg=False)
def ptrs(k):
    srd(k, 8, 4, WS_USED); k("s_mov_b32 s86, 256\ns_mov_b32 s87, 0x00020000")
def p0(k):
    k("s_cmp_eq_u32 s20, 1\ns_cbranch_scc1 L_p0_wq\ns_cmp_lg_u32 s20, 0\ns_cbranch_scc1 L_p0_23")
    k("s_lshl_b32 s28, s16, 5\ns_add_u32 s28, s28, s17")
    half_lanes(k, 28); rowmajor(k, 28, 11)
    k("s_waitcnt lgkmcnt(0)")
    srd(k, 12, 36, 2048 * 1152)
    D = 16; T = D + 36; O = T + 8
    for i in range(9): k(f"buffer_load_dwordx4 v[{D+4*i}:{D+4*i+3}], v11, s[12:15], s33 offen offset:{128*i} nt")
    if envs("B0", "1") == "1": k("s_barrier")
    ptrs(k); ln_consts(k); flag_a_addr(k)
    stamp(k, 41)
    for i in range(9): k(f"s_waitcnt vmcnt({8-i})\nv_permlane16_swap_b32 v{D+4*i}, v{D+4*i+2}\nv_permlane16_swap_b32 v{D+4*i+1}, v{D+4*i+3}")
    stamp(k, 42)
    token_load(k)
    row_sums(k, D, 36, T); ln_stats_finish(k, T, T + 1)
    k(f"s_add_u32 s23, s24, {OFF_XN}\ns_add_u32 s25, s24, {OFF_XF}")
    for i in range(9):
        for j in range(4): ln_norm(k, D + 4 * i + j, O + 4 * (i & 1) + j, T, T + 1, T + 2 + 2 * (j & 1))
        k(f"buffer_store_dwordx4 v[{O+4*(i&1)}:{O+4*(i&1)+3}], v7, s[8:11], s23 offen offset:{(i&1)*2048} sc1" + ("\ns_add_u32 s23, s23, 4096" if i & 1 else ""))
    for i in range(9):
        k(f"buffer_store_dwordx4 v[{D+4*i}:{D+4*i+3}], v7, s[8:11], s25 offen offset:{(i&1)*2048} sc1" + ("\ns_add_u32 s25, s25, 4096" if i & 1 else ""))
    stamp(k, 43)
    k("s_waitcnt vmcnt(0)")
    token_get(k, "a")
    publish(k)
    k("s_branch L_p0_wait")
    k.label("L_p0_wq")
    k("s_lshl_b32 s21, s18, 3\ns_and_b32 s22, s17, 7\ns_add_u32 s21, s21, s22\ns_lshr_b32 s29, s17, 3\ns_mul_i32 s79, s29, 7\ns_mul_i32 s33, s19, 288")
    k("v_bfe_u32 v10, v0, 1, 5\nv_mul_u32_u24 v10, 3456, v10\nv_and_b32 v11, 1, v0\nv_lshl_add_u32 v10, v11, 4, v10")
    k("v_bfe_u32 v11, v0, 3, 3\nv_mul_u32_u24 v11, 3456, v11\nv_and_b32 v12, 7, v0\nv_mul_u32_u24 v12, 36, v12\nv_add_u32 v11, v11, v12")
    k("s_lshl_b32 s80, s21, 3")
    sdiv(k, 81, 80, 7, 30)
    k(f"s_mul_i32 s30, s81, 7\ns_sub_u32 s80, s80, s30\ns_mul_i32 s81, s81, {32*3456}\ns_add_u32 s81, s81, s33\ns_mov_b32 m0, {128*KBY}\ns_mov_b32 s82, 8")
    k("s_waitcnt lgkmcnt(0)")
    srd(k, 60, 38, 576 * 3456)
    k.label("L_wq")
    k("s_add_u32 s30, s79, s80\ns_cmp_ge_u32 s30, 18\ns_cselect_b32 s31, 18, 0\ns_cselect_b32 s34, 2304, 0\ns_sub_u32 s30, s30, s31")
    k(f"s_cmp_ge_u32 s30, 9\ns_cselect_b32 s31, 9, 0\ns_cselect_b32 s35, 1152, 0\ns_sub_u32 s30, s30, s31\ns_add_u32 s34, s34, s35\ns_cmp_eq_u32 s34, 3456\ns_cselect_b32 s34, {BIG}, s34")
    k("s_add_u32 s34, s34, s81\ns_cmp_eq_u32 s30, 8\ns_cbranch_scc1 L_wqb\ns_mul_i32 s30, s30, 36\ns_add_u32 s34, s34, s30")
    k("buffer_load_dwordx4 v10, s[60:63], s34 offen lds\ns_add_u32 m0, m0, 1024")
    k.label("L_wqj")
    k(f"s_add_u32 s80, s80, 1\ns_cmp_eq_u32 s80, 7\ns_cselect_b32 s80, 0, s80\ns_cselect_b32 s30, {32*3456}, 0\ns_add_u32 s81, s81, s30")
    k("s_sub_u32 s82, s82, 1\ns_cmp_lg_u32 s82, 0\ns_cbranch_scc1 L_wq\ns_branch L_wqx")
    k.label("L_wqb")
    k("s_add_u32 s34, s34, 32")
    for q in range(4): k(f"buffer_load_dword v11, s[60:63], s34 offen lds\ns_add_u32 m0, m0, 256\ns_add_u32 s34, s34, {8*3456}")
    k("s_branch L_wqj")
    k.label("L_wqx")
    if envs("B0", "1") == "1": k("s_barrier")
    ptrs(k)
    wq_base(k)
    k(f"s_lshl_b32 s30, s21, 13\ns_add_u32 s30, s30, s25\ns_add_u32 s31, s30, 4096\nv_lshrrev_b32 v3, 1, v1\nv_add_u32 v3, {128*KBY}, v3")
    k(f"s_cmp_eq_u32 s21, 15\ns_cselect_b32 s32, {BIG}, s31")
    k(f"s_lshl_b32 s24, s22, 7\ns_add_u32 s24, s24, {FQ}\ns_lshl_b32 s27, s21, 3\ns_add_u32 s27, s27, s24\ns_waitcnt vmcnt(0)")
    stamp(k, 41)
    token_load(k)
    for sl in range(8):
        for hf in range(2): k(f"ds_read_b64_tr_b16 v[{16+4*sl+2*hf}:{17+4*sl+2*hf}], v3 offset:{sl*1024 + hf*512}")
    for sl in range(8): k(f"s_waitcnt lgkmcnt({14-2*sl})\nbuffer_store_dwordx4 v[{16+4*sl}:{19+4*sl}], v1, s[8:11], s{30 if sl < 4 else 31 if sl < 6 else 32} offen offset:{(sl%4)*1024} sc1")
    k("s_waitcnt vmcnt(0)")
    token_get(k, "b")
    publish(k, "s27")
    stamp(k, 42)
    k("s_mov_b32 s56, s24\nv_and_b32 v2, 15, v0\nv_lshlrev_b32 v2, 3, v2")
    poll(k, "q", wg=False)
    stamp(k, 43)
    k("s_branch L_p0_fetch")
    k.label("L_p0_23")
    k("s_sub_u32 s21, s20, 2\nv_bfe_u32 v4, v0, 3, 3\nv_and_b32 v5, 7, v0\ns_memrealtime s[94:95]")
    k("s_lshl_b32 s23, s2, 1\ns_add_u32 s23, s23, s21")
    sdiv(k, 25, 23, 3, 30)
    k("s_mul_i32 s30, s25, 3\ns_sub_u32 s28, s23, s30\ns_mul_i32 s28, s28, 6")
    sdiv(k, 26, 25, 18, 30)
    k("s_mul_i32 s30, s26, 18\ns_sub_u32 s25, s25, s30\ns_cmp_ge_u32 s25, 9\ns_cselect_b32 s27, 18, 0\ns_cselect_b32 s30, 9, 0\ns_sub_u32 s25, s25, s30")
    k(f"s_mul_i32 s30, s26, 9\ns_add_u32 s25, s25, s30\ns_lshl_b32 s24, s25, 7\ns_mul_i32 s30, s28, {32*9216}\ns_add_u32 s24, s24, s30")
    k("v_mul_u32_u24 v6, 9216, v4\nv_lshl_add_u32 v6, v5, 4, v6\ns_waitcnt lgkmcnt(0)")
    ptrs(k)
    k(f"s_or_b32 s94, s94, 1\ns_or_b32 s95, s95, 0x80000000\nv_mov_b32 v16, s94\nv_mov_b32 v17, s95\ns_cmp_eq_u32 s23, 0\ns_cselect_b32 s30, 0, {BIG}")
    k("buffer_store_dwordx2 v[16:17], v13, s[84:87], s30 offen sc1")
    if envs("B0", "1") == "1": k("s_barrier")
    k("s_cmp_ge_u32 s2, 216\ns_cbranch_scc1 L_p0_wo")
    k(f"s_cmp_eq_u32 s27, 0\ns_cselect_b32 s60, s40, s42\ns_cselect_b32 s61, s41, s43\ns_mov_b32 s62, {576*9216}\ns_mov_b32 s63, 0x00020000")
    if envs("NOBG", ""): k("s_mov_b32 s62, 0")
    for u in range(6):
        for i in range(4): k(f"buffer_load_dwordx4 {park(u, i)}, v6, s[60:63], s24 offen nt\ns_add_u32 s24, s24, {8*9216}")
    if envs("CODEPF", "1") == "1":
        k("s_getpc_b64 s[12:13]")
        k.label("L_pc")
        k(f"s_mov_b32 s14, L_end-L_pc\ns_mov_b32 s15, 0x00020000\nv_lshlrev_b32 v2, 3, v1\ns_lshl_b32 s30, s17, 13\ns_cmp_eq_u32 s20, 3\ns_cselect_b32 s30, s30, {BIG}")
        k("buffer_load_dword v20, v2, s[12:15], s30 offen")
    token_load(k)
    k("s_add_u32 s29, s27, s28")
    for c in range(4):
        k(f"s_lshl_b32 s30, s25, 2\ns_add_u32 s30, s30, {c}")
        sdiv(k, 31, 30, 9, 33)
        k("s_mul_i32 s33, s31, 9\ns_sub_u32 s30, s30, s33\ns_mul_i32 s31, s31, 486\ns_mul_i32 s30, s30, 36\ns_add_u32 s30, s30, s31\ns_add_u32 s30, s30, s29")
        k(f"s_add_u32 s30, s30, {OFF_WF//KBY}\ns_lshl_b32 s{DST+c}, s30, 10")
    if EARLY == "p0":
        stage_addr(k)
        k("s_waitcnt vmcnt(0)")
        stamp(k, 43)
        for n in range(8): pack_block(k, n, 6)
    sdiv(k, 25, 2, 3, 30)
    k("s_mul_i32 s30, s25, 3\ns_sub_u32 s28, s2, s30\ns_mul_i32 s28, s28, 6\ns_mul_i32 s30, s21, 3\ns_add_u32 s28, s28, s30")
    k("s_mul_i32 s30, s26, 9\ns_sub_u32 s25, s25, s30")
    for c in range(4):
        k(f"s_lshl_b32 s30, s25, 2\ns_add_u32 s30, s30, {c}")
        sdiv(k, 31, 30, 9, 33)
        k("s_mul_i32 s33, s31, 9\ns_sub_u32 s30, s30, s33\ns_sub_u32 s33, s30, 1\ns_cmp_eq_u32 s30, 0\ns_cselect_b32 s33, 8, s33")
        k("s_bitcmp1_b32 s31, 0\ns_cselect_b32 s30, s33, s30\ns_lshl_b32 s33, s26, 2\ns_add_u32 s31, s31, s33\ns_mul_i32 s31, s31, 486")
        k(f"s_mul_i32 s30, s30, 18\ns_add_u32 s30, s30, s31\ns_add_u32 s30, s30, s28\ns_add_u32 s30, s30, {324 + OFF_WF//KBY}\ns_lshl_b32 s{78+c}, s30, 10")
    srd(k, 60, 44, 4608 * 1152)
    k("s_lshl_b32 s24, s25, 7\ns_mul_i32 s35, s26, 576")
    for u in range(3):
        k("s_lshr_b32 s30, s28, 2\ns_mul_i32 s30, s30, 144\ns_and_b32 s31, s28, 3\ns_lshl_b32 s31, s31, 5\ns_add_u32 s30, s30, s31")
        k("s_mul_i32 s31, s28, 288\ns_sub_u32 s31, s31, 4480\ns_cmp_ge_u32 s28, 16\ns_cselect_b32 s30, s31, s30\ns_cselect_b32 s37, 144, 16")
        k(f"s_add_u32 s30, s30, s35\ns_mul_i32 s30, s30, 1152\ns_add_u32 s{72+2*u}, s30, s24\ns_mul_i32 s37, s37, 1152\ns_add_u32 s{73+2*u}, s{72+2*u}, s37\ns_add_u32 s28, s28, 1")
    k("s_mov_b32 s67, 1\ns_waitcnt vmcnt(0)")
    token_get(k, "c")
    k("s_branch L_p0_wait")
    k.label("L_p0_wo")
    token_load(k)
    k("s_sub_u32 s23, s23, 432\ns_cmp_lt_u32 s23, 54\ns_cbranch_scc1 L_p0_wo2\ns_waitcnt vmcnt(0)")
    token_get(k, "d")
    k("s_branch L_p0_wait")
    k.label("L_p0_wo2")
    srd(k, 12, 46, 576 * 1152)
    sdiv(k, 27, 23, 3, 30)
    k("s_mul_i32 s30, s27, 3\ns_sub_u32 s25, s23, s30\ns_mul_i32 s25, s25, 3")
    k("v_lshrrev_b32 v7, 1, v4\nv_mul_u32_u24 v7, 18, v7\nv_and_b32 v8, 1, v4\nv_add_u32 v7, v7, v8")
    k("s_mul_i32 s30, s27, 36\ns_sub_u32 s31, s27, 16\ns_mul_i32 s31, s31, 288\ns_add_u32 s31, s31, 16")
    k(f"s_cmp_lt_u32 s27, 16\ns_cselect_b32 s30, s30, s31\ns_mov_b32 s28, {18*1152}\ns_mov_b32 s29, {8*1152}\ns_cselect_b32 s28, s28, {144*1152}\ns_cselect_b32 s29, s29, {72*1152}\ns_cselect_b64 vcc, -1, 0")
    k("s_mul_i32 s32, s30, 1152\ns_lshl_b32 s31, s25, 7\ns_add_u32 s32, s32, s31")
    k("v_cndmask_b32 v8, v7, v4, vcc\nv_mul_u32_u24 v6, 1152, v8\nv_lshl_add_u32 v6, v5, 4, v6")
    k("s_add_u32 s33, s32, s29\ns_add_u32 s34, s32, s28\ns_add_u32 s35, s34, s29")
    for u in range(3):
        for i in range(4): k(f"buffer_load_dwordx4 {park(u, i)}, v6, s[12:15], s{32+i} offen offset:{128*u} nt")
    for u in range(3):
        for c in range(4):
            k(f"s_lshl_b32 s30, s25, 1\ns_add_u32 s30, s30, {2*u + (c >> 1)}\ns_cmp_ge_u32 s30, 9\ns_cselect_b32 s31, 9, 0\ns_cselect_b32 s33, 432, 0\ns_sub_u32 s30, s30, s31")
            k("s_sub_u32 s31, s30, 1\ns_lshr_b32 s31, s31, 1\ns_cmp_lt_u32 s30, 3\ns_cselect_b32 s31, 0, s31\ns_cselect_b32 s34, 0, 2")
            k(f"s_mul_i32 s31, s31, 104\ns_lshl_b32 s30, s30, 1\ns_add_u32 s30, s30, s31\ns_sub_u32 s30, s30, s34\ns_add_u32 s30, s30, s33")
            k(f"s_mul_i32 s31, s27, 6\ns_add_u32 s30, s30, s31\ns_add_u32 s30, s30, {OFF_WO//KBY + (c & 1)}\ns_lshl_b32 s{72+4*u+c}, s30, 10")
    stage_addr(k)
    k("s_waitcnt vmcnt(0)")
    for n in range(5): pack_block(k, n, 3, lambda u, c: (f"s{72+4*u+c}", 0))
    token_get(k, "e")
    k(f"s_lshl_b32 s56, s23, 3\ns_add_u32 s56, s56, {FW}\ns_waitcnt vmcnt(0)")
    publish(k)
    k.label("L_p0_wait")
    stamp(k, 44)
    k.label("L_p0_fetch")
    wq_base(k)
    k("s_lshl_b32 s26, s20, 12\ns_add_u32 s25, s25, s26\ns_mov_b32 m0, s26\ns_barrier")
    for q in range(8):
        for c in range(4): k(f"buffer_load_dwordx4 v1, s[8:11], s25 offen offset:{c*1024} lds")
        k("s_add_u32 m0, m0, 16384\ns_add_u32 s25, s25, 16384")

def gemm_core(k, NTB, NS, loads, AHEAD, st0, tr, NBUF=2):
    ACC = 16; WB = ACC + 4 * NS * NTB
    pi = 0
    def take(n):
        nonlocal pi
        r = loads[pi:pi + n]; pi += len(r); return r
    nx = {}
    for f in loads: nx[f.tag] = nx.get(f.tag, 0) + 1
    for f in take(AHEAD): f.fn(k)
    if tr: k("v_lshrrev_b32 v3, 1, v1\nv_add_u32 v2, 0x10000, v3")
    else: k("v_mov_b32 v3, v1\nv_add_u32 v2, 0x10000, v1")
    def rd(ks, sl):
        i = ks * NS + sl; r = WB + 4 * ((ks % NBUF) * NS + sl); a = f"v{3 if i < 64 else 2}"; o = (i % 64) * 1024
        if tr: return [lgl(f"ds_read_b64_tr_b16 v[{r}:{r+1}], {a} offset:{o}", ("r", ks)), lgl(f"ds_read_b64_tr_b16 v[{r+2}:{r+3}], {a} offset:{o+512}", ("r", ks))]
        return [lgl(f"ds_read_b128 v[{r}:{r+3}], {a} offset:{o}", ("r", ks))]
    for ks in range(NBUF - 1):
        for sl in range(NS):
            for f in rd(ks, sl): f.fn(k)
    for ks in range(18):
        while k.vmq.count(("x", ks)) < nx[("x", ks)]: take(1)[0].fn(k)
        k.wait_vm(("x", ks)); k.wait_lg(("r", ks))
        if ks == 0: stamp(k, st0)
        mf = []
        for sl in range(NS):
            for tb in range(NTB):
                a = ACC + 4 * (sl * NTB + tb); w = WB + 4 * ((ks % NBUF) * NS + sl); x = 4 * (ks * NTB + tb)
                mf.append(f"{MF} v[{a}:{a+3}], v[{w}:{w+3}], a[{x}:{x+3}], " + ("0" if ks == 0 else f"v[{a}:{a+3}]"))
        fill = [f for sl in range(NS) for f in rd(ks + NBUF - 1, sl)] if ks + NBUF - 1 < 18 else []
        if NBUF == 2 and envs("FRONT", "1") == "1":
            for j, f in enumerate(fill): f.before = j + 1
        outstanding = len(k.vmq) - k.vm_done
        interleave(k, mf, [fill, take(max(0, AHEAD + 2 - outstanding))], budget=8 if NTB == 2 else 12)
    assert pi == len(loads), (pi, len(loads))
def tl(s, tag, post="", cost=8):
    f = F(lambda k: (k.vm(s, tag), k(post) if post else None), cost); f.tag = tag; return f

def p1_qkv(k):
    k("s_lshl_b32 s21, s18, 3\ns_and_b32 s22, s17, 7\ns_add_u32 s21, s21, s22")
    k("s_lshr_b32 s29, s17, 3")
    k(f"s_lshl_b32 s56, s21, 7\ns_add_u32 s56, s56, {FA}\nv_and_b32 v2, 15, v0\nv_lshlrev_b32 v2, 3, v2")
    k(f"s_lshl_b32 s26, s21, 2\ns_add_u32 s26, s26, s20")
    k(f"s_mul_i32 s23, s26, {36*KBY}\ns_add_u32 s23, s23, {OFF_XN}\ns_add_u32 s24, s23, {18*KBY}")
    stamp(k, 0)
    k("s_cmp_lg_u32 s20, 0\ns_cbranch_scc1 L_pollx_a")
    poll(k, "a", wg=False)
    k("s_waitcnt vmcnt(0)\ns_barrier")
    stamp(k, 1)
    fresh(k)
    loads = [tl(f"buffer_load_dwordx4 a[{4*(2*ks+tb)}:{4*(2*ks+tb)+3}], v1, s[8:11], s{23+tb} offen offset:{(ks%4)*1024}{LD}", ("x", ks),
                f"s_add_u32 s{23+tb}, s{23+tb}, 4096" if ks % 4 == 3 else "") for ks in range(18) for tb in range(2)]
    T1K = int(envs("T1", "18"))
    if T1K < 18:
        nl = (18 - T1K) * 2
        k(f"v_lshrrev_b32 v4, 4, v1\nv_cmp_gt_u32 vcc, {nl}, v4\nv_lshlrev_b32 v4, 9, v4\nv_mov_b32 v5, {BIG}\ns_lshl_b32 s30, s29, 7\ns_add_u32 s30, s30, {T1K*1024}\nv_cndmask_b32 v4, v5, v4, vcc")
        k("s_add_u32 s31, s30, s24\ns_add_u32 s30, s30, s23")
        p = int(envs("T1P", "6"))
        loads[p:p] = [tl(f"buffer_load_dword v{5+tb}, v4, s[8:11], s{30+tb} offen{LD}", "touch") for tb in range(2)]
    gemm_core(k, 2, 7, loads, int(envs("AH1", "10")), 2, False)
    stamp(k, 3)
    ACC = 16
    k("s_mul_i32 s28, s19, 27\ns_mul_i32 s31, s29, 7\ns_add_u32 s28, s28, s31")
    k("s_lshl_b32 s30, s28, 6\ns_add_u32 s30, s30, s26\ns_lshl_b32 s30, s30, 10\ns_add_u32 s30, s30, s53")
    k("s_mov_b32 s28, s31")
    k(f"s_lshl_b32 s56, s19, 11\ns_lshl_b32 s27, s21, 7\ns_add_u32 s56, s56, s27\ns_lshl_b32 s27, s29, 3\ns_add_u32 s56, s56, s27\ns_add_u32 s56, s56, {FB}")
    for sl in range(7):
        a = ACC + 8 * sl
        k(f"s_cmp_lt_u32 s28, {9 - sl}\ns_cselect_b32 s31, {fbits(18 ** -0.5 * LOG2E)}, 1.0")
        for i in range(8): k(f"v_mul_f32 v{a+i}, s31, v{a+i}")
        for i in range(4): k(f"v_cvt_pk_bf16_f32 v{a+i}, v{a+2*i}, v{a+2*i+1}")
        if sl == 6: k(f"s_cmp_eq_u32 s29, 3\ns_cselect_b32 s30, {BIG}, s30")
        k.vm(f"buffer_store_dwordx4 v[{a}:{a+3}], v1, s[8:11], s30 offen sc1")
        if sl < 6: k("s_add_u32 s30, s30, 65536")
    stamp(k, 4)
    signal(k)
    if EARLY == "p0": publish_fp(k, FP)
    elif EARLY == "b": early_blocks(k)
    stamp(k, 5)

def p2_attn(k):
    k("s_lshl_b32 s21, s18, 3\ns_and_b32 s22, s17, 7\ns_add_u32 s21, s21, s22")
    k("s_lshr_b32 s48, s17, 3\ns_lshl_b32 s22, s19, 2\ns_add_u32 s22, s22, s48")
    k(f"s_cmp_lg_u32 s20, 0\ns_cbranch_scc1 L_pollx_w0\ns_cmp_lg_u32 s50, 0\ns_cbranch_scc1 L_pollx_w0\ns_mov_b32 s56, {FW}\nv_min_u32 v2, 53, v0\nv_lshlrev_b32 v2, 3, v2")
    poll(k, "w0", wg=False)
    k("v_and_b32 v3, 63, v0\nv_lshrrev_b32 v4, 4, v3")
    k("v_and_b32 v5, 1, v4\nv_lshlrev_b32 v5, 7, v5\nv_xor_b32 v5, v5, v1")
    k("s_mul_i32 s23, s20, 3\ns_lshl_b32 s24, s21, 2\ns_add_u32 s24, s24, s23\ns_sub_i32 s24, s24, 8")
    for c in range(3):
        k(f"s_cmp_lt_i32 s24, {-c}\ns_cselect_b32 s25, {BIG}, 0")
        k(f"v_add_u32 v{6+c}, s25, v1\nv_add_u32 v{9+c}, s25, v5")
    k(f"s_mul_i32 s49, s19, {27*65536}\ns_add_u32 s49, s49, s53")
    k("s_lshl_b32 s24, s24, 10\ns_add_u32 s27, s24, s49")
    k("s_lshl_b32 s25, s48, 17\ns_add_u32 s25, s25, s27")
    k("s_lshl_b32 s23, s23, 10")
    Q, M1, M2, ONE = 16, 32, 36, 40
    L8, LO, HI, BP, OBV, PKA = 44, 45, 46, 47, 12, 5
    k("s_and_b32 s29, s20, 1\ns_lshr_b32 s30, s20, 1")
    k("s_lshl_b32 s32, s21, 2\ns_lshl_b32 s33, s30, 1\ns_add_u32 s32, s32, s33")
    k("s_lshl_b32 s34, s32, 10\ns_add_u32 s34, s34, s49")
    k(f"s_lshl_b32 s33, s48, 1\ns_add_u32 s33, s33, s29\ns_lshl_b32 s33, s33, 16\ns_add_u32 s33, s33, s34\ns_add_u32 s34, s34, {8*65536}")
    k(f"v_and_b32 v12, 15, v3\nv_lshlrev_b32 v46, 2, v4\ns_mov_b32 s35, {fbits(-1e30)}\nv_mov_b32 v47, s35")
    for i in range(4):
        k(f"v_add_u32 v2, {i}, v46\nv_cmp_gt_u32 vcc, v2, v12\nv_mov_b32 v{ONE+i}, 0x3f803f80\ns_nop 0")
        k(f"v_cndmask_b32 v{M1+i}, v47, 0, vcc\nv_cndmask_b32 v{M2+i}, 0, v47, vcc")
    k(f"v_cmp_eq_u32 s[38:39], s48, v4\ns_lshl_b32 s36, s48, 6\nv_lshl_add_u32 v{BP}, v12, 2, s36")
    k("s_cmp_eq_u32 s29, 1\ns_cselect_b64 s[40:41], -1, 0")
    k("s_andn2_b64 s[42:43], s[38:39], s[40:41]\ns_and_b64 s[44:45], s[38:39], s[40:41]")
    k("s_lshl_b32 s36, s22, 1\ns_add_u32 s36, s36, s29")
    k(f"s_lshl_b32 s47, s32, 15\ns_lshl_b32 s37, s36, 9\ns_add_u32 s47, s47, s37\ns_add_u32 s47, s47, {OFF_OF}")
    k(f"s_lshl_b32 s46, s32, 12\ns_lshl_b32 s37, s36, 8\ns_add_u32 s46, s46, s37\ns_add_u32 s46, s46, {OFF_OB}")
    k("s_mul_i32 s36, s29, 12288\ns_lshl_b32 s37, s30, 11\ns_add_u32 s36, s36, s37\ns_add_u32 s37, s37, 24576")
    k("v_and_b32 v44, 3, v3\nv_lshrrev_b32 v48, 2, v3\nv_and_b32 v45, 1, v3\nv_lshlrev_b32 v45, 3, v45\nv_xor_b32 v48, v48, v45\nv_lshl_add_u32 v48, v44, 4, v48\nv_lshlrev_b32 v48, 4, v48")
    k(f"v_lshrrev_b32 v{L8}, 1, v1\nv_mov_b32 v{LO}, {fbits(2.0**-30)}\nv_mov_b32 v{HI}, {fbits(2.0**30)}\ns_mov_b64 s[64:65], {-1 if FORCE_EXACT else 0}")
    k(f"s_lshr_b32 s58, s17, 2\ns_mul_i32 s58, s58, {108*KBY}\ns_add_u32 s58, s58, {OFF_WO}\ns_lshl_b32 s59, s20, 12\ns_add_u32 s58, s58, s59")
    k("v_bfe_u32 v2, v0, 2, 2\nv_min_u32 v2, 2, v2\nv_sub_u32 v2, s21, v2\nv_max_i32 v2, 0, v2\nv_lshlrev_b32 v2, 7, v2\nv_and_b32 v49, 3, v0\nv_lshl_add_u32 v2, v49, 3, v2")
    k(f"s_lshl_b32 s56, s19, 11\ns_add_u32 s56, s56, {FB}")
    poll(k, "b")
    stamp(k, 6)
    fresh(k)
    blocks = [(25, 9), (25, 10), (27, 17), (25, 18), (25, 19), (27, 26)]
    def dma(b):
        sb, nb = blocks[b]
        k(f"s_add_u32 m0, s23, {b*12288}\ns_add_u32 s28, s{sb}, {nb*65536}")
        for c in range(3):
            k.vm(f"buffer_load_dwordx4 v{(6 if b < 3 else 9)+c}, s[8:11], s28 offen offset:{c*1024} lds", ("kv", b // 3))
    for b in range(3): dma(b)
    for i in range(4):
        off = (i >> 1) * 1024 + (i & 1) * 8
        k.vm(f"buffer_load_dwordx2 v[{Q+4*i}:{Q+4*i+1}], v1, s[8:11], s33 offen offset:{off}", "q")
        k.vm(f"buffer_load_dwordx2 v[{Q+4*i+2}:{Q+4*i+3}], v1, s[8:11], s34 offen offset:{off}", "q")
    for b in range(3, 6): dma(b)
    k("v_add_u32 v6, s36, v1\nv_add_u32 v7, s37, v1")
    k("s_add_u32 s36, s36, 36864\ns_add_u32 s37, s37, 36864\nv_add_u32 v8, s36, v48\nv_add_u32 v9, s37, v48")
    k(f"s_lshl_b32 s56, s21, 7\ns_lshl_b32 s27, s22, 3\ns_add_u32 s56, s56, s27\ns_add_u32 s56, s56, {FC}")
    k("v_bfe_u32 v10, v0, 3, 3\nv_mul_u32_u24 v10, 1152, v10\nv_and_b32 v11, 7, v0\nv_lshl_add_u32 v10, v11, 4, v10\nv_add_u32 v11, 9216, v10")
    k("s_mov_b32 s36, s47\nv_lshrrev_b32 v5, 2, v1")
    KR, VR = 0, 80
    k.wait_vm("q")
    k("s_barrier")
    stamp(k, 7)
    for i in range(4):
        k(f"v_cndmask_b32 v{Q+4*i+2}, 0, v{Q+4*i+2}, s[42:43]\nv_cndmask_b32 v{Q+4*i+3}, 0, v{Q+4*i+3}, s[44:45]")
    S0 = 48; OA = S0 + 144; TM = OA + 24
    def run(mf, valu, gap_first=0, frac=0.9):
        tot = sum(f.cost for f in valu); acc = 0; mi = 0
        for f in valu:
            while mi < len(mf) and acc >= gap_first + (tot - gap_first) * mi / max(len(mf), 1) * frac:
                mf[mi](k); mi += 1
            f.fn(k); acc += f.cost
        while mi < len(mf): mf[mi](k); mi += 1
    def epi(i, check):
        o = OA + 12 * (i & 1); t = TM + 2
        L = [line(f"v_rcp_f32 v{t}, v{o+8}", 8),
             line(f"v_cndmask_b32 v{o+4}, v{o+4}, v{o+6}, s[40:41]"), line(f"v_cndmask_b32 v{o+5}, v{o+5}, v{o+7}, s[40:41]")]
        if check:
            L += [line(f"v_med3_f32 v{o+9}, v{o+8}, v{LO}, v{HI}"), line(f"v_sub_f32 v{o+9}, v{o+9}, v{o+8}")]
            L += [line(f"v_fma_f32 v{o+9}, v{o+j}, 0, v{o+9}") for j in range(6)]
            L += [line(f"v_cmp_neq_f32 vcc, 0, v{o+9}")]
        for j in range(6): L.append(line(f"v_mul_f32 v{o+j}, v{o+j}, v{t}"))
        if check: L.append(line("s_or_b64 s[64:65], s[64:65], vcc"))
        for j in (2, 0, 1): L.append(line(f"v_cvt_pk_bf16_f32 v{o+(j if j < 2 else 6)}, v{o+2*j}, v{o+2*j+1}"))
        L.append(lgl(f"ds_bpermute_b32 v{TM+3}, v{BP}, v{o+6}", ("bp", i)))
        L.append(vml(f"buffer_store_dwordx2 v[{o}:{o+1}], v{L8}, s[8:11], s47 offen sc1"))
        L.append(line(f"s_add_u32 s47, s47, 16384"))
        L2 = [line(f"s_mov_b32 vcc_lo, {(0xffff, 0xffff0000, 0, 0)[i]}\ns_mov_b32 vcc_hi, {(0, 0, 0xffff, 0xffff0000)[i]}", 8),
              F(lambda k: (k.wait_lg(("bp", i)), k(f"v_cndmask_b32 v{OBV}, v{OBV}, v{TM+3}, vcc")), 8)]
        if i == 3: L2.append(vml(f"buffer_store_dword v{OBV}, v5, s[8:11], s46 offen sc1"))
        return (L, L2) if check else L + L2
    def variant(lim, fast, first):
        nm = f"{'f' if fast else 'e'}{'' if first else 'r'}{lim}"
        k.label(f"L_attn_{nm}")
        k.lgq = []; k.lg_done = 0
        tiles = lambda i: list(range(max(i, lim), i + 17))
        pairs = lambda i: list(range(max(i, lim) >> 1, ((i + 16) >> 1) + 1))
        kreads, vreads, extra = [], [], []
        if first:
            for kt in range(lim, 20):
                off = (kt >> 1) * 1024 + (kt & 1) * 8
                kreads += [lgl(f"ds_read_b64 a[{KR+4*kt}:{KR+4*kt+1}], v6 offset:{off}", ("k", kt)), lgl(f"ds_read_b64 a[{KR+4*kt+2}:{KR+4*kt+3}], v7 offset:{off}", ("k", kt))]
            vreads = [line("s_waitcnt vmcnt(0)\ns_barrier", 8)]
            for p in range(lim // 2, 10):
                for b in range(2):
                    for hf in range(2):
                        r = VR + 8 * p + 4 * b + 2 * hf
                        vreads.append(lgl(f"ds_read_b64_tr_b16 a[{r}:{r+1}], v{8+b} offset:{p*1024 + hf*8}", ("v", p)))
            wo = [lambda k: (k.wait_lg_all(), k("s_mov_b32 m0, s59\ns_barrier"))]
            for q in range(7):
                for c in range(4):
                    wo.append(lambda k, c=c: k(f"buffer_load_dwordx4 v1, s[8:11], s58 offen offset:{c*1024} lds" + ("\ns_add_u32 m0, m0, 16384\ns_add_u32 s58, s58, 16384" if c == 3 else "")))
            def pkl(u):
                def f(k):
                    k(f"s_cmp_eq_u32 s67, 0\ns_cbranch_scc1 L_pk_{nm}_{u}")
                    for i in range(4): k(f"buffer_load_dwordx4 {lpark(u, i)}, v{10 + (i & 1)}, s[60:63], s{72 + 2*u + (i >> 1)} offen nt")
                    k.label(f"L_pk_{nm}_{u}")
                return f
            extra = [pkl(0), pkl(1), pkl(2)] + wo
            if EARLY == "w":
                def pkb(n):
                    def f(k):
                        k(f"s_cmp_eq_u32 s67, 0\ns_cbranch_scc1 L_pb_{nm}_{n}")
                        if n == 0: stage_addr(k)
                        pack_block(k, n, 6)
                        k.label(f"L_pb_{nm}_{n}")
                    return f
                extra = [pkl(0), pkl(1), pkl(2), pkb(0), pkb(1), wo[0]]
                for n in range(6): extra += [pkb(2 + n)] + wo[1 + 28 * n // 6: 1 + 28 * (n + 1) // 6]
        def qk1(i, kt, s):
            c = f"v[{M2}:{M2+3}]" if kt == i + 16 else f"v[{M1}:{M1+3}]" if kt == i else "0"
            def f(k):
                if first: k.wait_lg(("k", kt))
                k(f"{MF} v[{s}:{s+3}], a[{KR+4*kt}:{KR+4*kt+3}], v[{Q+4*i}:{Q+4*i+3}], {c}")
            return f
        def pv1(i, p, b, s):
            o = OA + 12 * (i & 1) + 4 * b
            A = f"v[{ONE}:{ONE+3}]" if b == 2 else f"a[{VR+8*p+4*b}:{VR+8*p+4*b+3}]"
            def f(k):
                if first: k.wait_lg(("v", p))
                k(f"{MF} v[{o}:{o+3}], {A}, v[{s}:{s+3}], " + ("0" if p == pairs(i)[0] else f"v[{o}:{o+3}]"))
            return f
        if fast:
            steps = [(i, p) for i in range(4) for p in pairs(i)]
            QL, PL = 2, int(envs("PL", "7")); NB = QL + PL + 1; SP = int(envs("SP", "9"))
            buf = lambda s: S0 + 8 * (s % NB)
            def qks(s):
                if s >= len(steps): return []
                i, p = steps[s]
                return [qk1(i, 2 * p + hf, buf(s) + 4 * hf) for hf in range(2) if 2 * p + hf in tiles(i)]
            def pvs(s):
                if not 0 <= s < len(steps): return []
                return [pv1(*steps[s], b, buf(s)) for b in range(3)]
            def exps(s):
                if s >= len(steps): return []
                i, p = steps[s]; b = buf(s); va, vb = 2 * p in tiles(i), 2 * p + 1 in tiles(i)
                E = lambda r: line(f"v_exp_f32 v{r}, v{r}", 8); C = lambda d, r: line(f"v_cvt_pk_bf16_f32 v{d}, v{r}, v{r+1}")
                Z = lambda d: line(f"v_mov_b32 v{d}, 0")
                if va and vb: return [E(b), E(b+1), E(b+2), E(b+3), E(b+4), C(b, b), E(b+5), C(b+1, b+2), E(b+6), E(b+7), C(b+2, b+4), C(b+3, b+6)]
                if va: return [E(b), E(b+1), E(b+2), E(b+3), C(b, b), C(b+1, b+2), Z(b+2), Z(b+3)]
                return [E(b+4), E(b+5), E(b+6), E(b+7), Z(b), Z(b+1), C(b+2, b+4), C(b+3, b+6)]
            n0 = min(12, len(kreads))
            for f in kreads[:n0]: f.fn(k)
            side = [f.fn for f in kreads[n0:]]; nk = len(side)
            side = side + [f.fn for f in vreads]
            for s in range(QL):
                for m in qks(s):
                    m(k)
                    for _ in range(2):
                        if side and nk > 0: side.pop(0)(k); nk -= 1
            k("s_nop 4")
            last = {i: max(s for s, (ii, p) in enumerate(steps) if ii == i) for i in range(4)}
            pend = []; pend2 = []; pvp = 0; s = 0; nsteps = max(len(steps), PL) + 2
            while pvp < len(steps):
                if s in [last[i] + 1 for i in range(3)]: stamp(k, 8 + [last[i] + 1 for i in range(3)].index(s))
                todo = []
                while s >= PL and pvp < min(s, len(steps)) and len(todo) < 2 and not (todo and todo[-1] in last.values()):
                    todo.append(pvp); pvp += 1
                mf = [m for t in todo for m in pvs(t)] + qks(s + QL)
                sd = []
                while side and (len(sd) < SP): sd.append(side.pop(0))
                if not side and not sd and extra:
                    q = -(-len(extra) // max(1, nsteps - 2 - s)); sd = extra[:q]; extra = extra[q:]
                va = exps(s)
                if pend and len(va) < 12: va = va + [line("s_nop 7", 32)]
                va = va + pend2 + pend; pend2 = []
                if pend: pend2 = later
                pend = []
                for i in range(4):
                    if last[i] in todo: pend, later = epi(i, True)
                mix = []
                a, b2 = list(mf), list(sd)
                while a or b2:
                    if b2:
                        for _ in range(-(-len(b2) // max(1, len(a)))): mix.append(b2.pop(0))
                    if a: mix.append(a.pop(0))
                if not va: va = [line("s_nop 1")]
                run(mix, va, 4, 0.85)
                s += 1
            for f in extra: f(k)
            assert not side
            for f in pend2: f.fn(k)
            k("s_nop 7")
            for f in pend + later: f.fn(k)
            k("s_cmp_eq_u64 s[64:65], 0\ns_cbranch_scc1 L_attn_done")
            k(f"s_waitcnt vmcnt(0)\ns_mov_b32 s47, s36\ns_branch L_attn_er{lim}")
            return
        sreg = lambda i, kt: S0 + 72 * (i & 1) + 4 * (kt - 2 * (i >> 1))
        qk = lambda i: [qk1(i, kt, sreg(i, kt)) for kt in tiles(i)]
        pv = lambda i: [pv1(i, p, b, sreg(i, 2 * p)) for b in range(3) for p in pairs(i)]
        def softmax(i):
            L = []
            regs = [sreg(i, kt) + j for kt in tiles(i) for j in range(4)]
            m = TM; t = TM + 1
            ch = [regs[0::2], regs[1::2]]
            for c in range(2): L.append(line(f"v_max_f32 v{m+c}, v{ch[c][0]}, v{ch[c][1]}"))
            for j in range(2, len(ch[0]), 2):
                for c in range(2): L.append(line(f"v_max3_f32 v{m+c}, v{m+c}, v{ch[c][j]}, v{ch[c][j+1]}"))
            L.append(line(f"v_max_f32 v{m}, v{m}, v{t}"))
            for sw in ("v_permlane16_swap_b32", "v_permlane32_swap_b32"):
                L.append(line(f"v_mov_b32 v{t}, v{m}\ns_nop 1\n{sw} v{m}, v{t}\nv_max_f32 v{m}, v{m}, v{t}", 16))
            for p in pairs(i):
                base = sreg(i, 2 * p)
                for hf in range(2):
                    kt = 2 * p + hf; s = sreg(i, kt)
                    if kt in tiles(i):
                        for j in range(4): L.append(line(f"v_sub_f32 v{s+j}, v{s+j}, v{m}"))
                        for j in range(4): L.append(line(f"v_exp_f32 v{s+j}, v{s+j}", 8))
                for hf in range(2):
                    kt = 2 * p + hf; s = sreg(i, kt)
                    for j in range(2):
                        if kt in tiles(i): L.append(line(f"v_cvt_pk_bf16_f32 v{base+2*hf+j}, v{s+2*j}, v{s+2*j+1}"))
                        else: L.append(line(f"v_mov_b32 v{base+2*hf+j}, 0"))
            return L
        for f in kreads: f.fn(k)
        for m in qk(0): m(k)
        k("s_nop 7")
        for i in range(4):
            mf = (pv(i - 1) if i >= 1 else []) + (qk(i + 1) if i < 3 else [])
            if i == 0: mf = mf + [f.fn for f in vreads]
            if i == 1: mf = extra + mf
            va = softmax(i)
            if i >= 2: va = epi(i - 2, False) + va
            run(mf, va, 8 if i else 0)
            k("s_nop 1")
        run(pv(3), epi(2, False))
        k("s_nop 7")
        for f in epi(3, False): f.fn(k)
        k("s_branch L_attn_done")
    v = "f" if FAST else "e"
    for lim in (16, 12, 8, 4): k(f"s_cmp_eq_u32 s32, {(16 - lim) // 2}\ns_cbranch_scc1 L_attn_{v}{lim}")
    for lim in (0, 4, 8, 12, 16): variant(lim, FAST, True)
    if FAST:
        for lim in (0, 4, 8, 12, 16): variant(lim, False, False)
    k.label("L_attn_done")
    stamp(k, 12)
    signal(k)
    if EARLY != "p0": publish_fp(k, FP)
    late_blocks(k)
    stamp(k, 13)

AG, AU, T1, T2, XV, RING = 16, 32, 48, 64, 80, 112
G = 3; LEAD = 36 - G
def wload(p):
    r = RING + 4 * (p % 36)
    if p >= 486: return []
    s = f"buffer_load_dwordx4 v[{r}:{r+3}], v1, s[12:15], s25 offen offset:{(p%4)*1024}"
    return [vml(s, ("w", p), cost=int(envs("LC", "8")))] + ([line("s_add_u32 s25, s25, 4096")] if p % 4 == 3 else [])

def p3_wo(k):
    NS = 6; ACC = 16; NB3 = int(envs('NB3', '3')); RES = ACC + 24 + 24 * NB3
    k("s_lshl_b32 s21, s16, 2\ns_and_b32 s22, s17, 3\ns_add_u32 s26, s21, s22")
    k("s_lshr_b32 s22, s17, 2")
    k("s_lshl_b32 s21, s26, 2\ns_add_u32 s21, s21, s20")
    k(f"s_lshl_b32 s23, s21, 14\ns_add_u32 s23, s23, {OFF_OF}")
    k(f"s_lshl_b32 s24, s26, 13\ns_lshl_b32 s30, s20, 6\ns_add_u32 s24, s24, s30\ns_add_u32 s24, s24, {OFF_OB}")
    k("s_lshr_b32 s28, s22, 2\ns_mul_i32 s28, s28, 9\ns_and_b32 s29, s22, 3\ns_lshl_b32 s30, s29, 1\ns_add_u32 s30, s30, 1\ns_cmp_eq_u32 s29, 0\ns_cselect_b32 s30, 0, s30\ns_add_u32 s28, s28, s30")
    k(f"s_mul_i32 s27, s21, 18\ns_add_u32 s27, s27, s28\ns_lshl_b32 s27, s27, 10\ns_add_u32 s40, s27, {OFF_XF}\ns_add_u32 s41, s27, {OFF_X1}")
    k("v_lshrrev_b32 v10, 1, v1\nv_and_b32 v11, 15, v0\nv_lshlrev_b32 v11, 2, v11\nv_bfe_u32 v12, v0, 4, 2\nv_lshl_add_u32 v11, v12, 9, v11")
    k(f"s_lshr_b32 s56, s26, 1\ns_lshl_b32 s56, s56, 7\ns_add_u32 s56, s56, {FC}\nv_and_b32 v2, 15, v0\nv_lshlrev_b32 v2, 3, v2")
    poll(k, "c")
    stamp(k, 14)
    fresh(k)
    loads = []
    for ks in range(16):
        for h in range(2):
            loads.append(tl(f"buffer_load_dwordx2 a[{4*ks+2*h}:{4*ks+2*h+1}], v10, s[8:11], s23 offen offset:{(ks%4)*1024 + 512*h}{LD}", ("x", ks),
                            "s_add_u32 s23, s23, 4096" if ks % 4 == 3 and h else "", 4))
    for q in range(2):
        for j in range(4):
            loads.append(tl(f"buffer_load_dword a{64+4*q+j}, v11, s[8:11], s24 offen offset:{(j>>1)*2048 + (j&1)*256}{LD}", ("x", 16 + q),
                            "s_add_u32 s24, s24, 4096" if j == 3 else "", 4))
    for pr in range(3): loads.append(tl(f"buffer_load_dwordx4 v[{RES+4*pr}:{RES+4*pr+3}], v1, s[8:11], s40 offen offset:{pr*1024}{LD}", "res"))
    if envs("T3", "0") == "1":
        k(f"v_lshlrev_b32 v4, 3, v1\nv_cmp_gt_u32 vcc, 256, v1\nv_mov_b32 v5, {BIG}\ns_lshl_b32 s30, s22, 11\ns_add_u32 s30, s30, s23\nv_cndmask_b32 v4, v5, v4, vcc")
        k.vm(f"buffer_load_dword v5, v4, s[8:11], s30 offen{LD}", "touch")
    gemm_core(k, 1, NS, loads, int(envs("AH3", "14")), 15, False, NB3)
    k.wait_vm("res")
    stamp(k, 16)
    k("s_mov_b32 s31, 0xffff0000\ns_mov_b32 s32, 0x3f803f80\nv_mov_b32 v6, 0\nv_mov_b32 v7, 0\nv_and_b32 v3, 63, v0")
    k(f"v_cmp_gt_u32 vcc, 16, v3\nv_mov_b32 v9, {BIG}\ns_cmp_lg_u32 s29, 0\ns_cbranch_scc1 L_p3_two")
    for pr in (2, 0, 1):
        for h in range(4):
            a = ACC + 8 * pr + 2 * h; r = RES + 4 * pr + h
            k(f"v_lshlrev_b32 v4, 16, v{r}\nv_and_b32 v5, s31, v{r}\nv_add_f32 v4, v4, v{a}\nv_add_f32 v5, v5, v{a+1}\nv_cvt_pk_bf16_f32 v{r}, v4, v5")
        k(f"buffer_store_dwordx4 v[{RES+4*pr}:{RES+4*pr+3}], v1, s[8:11], s41 offen offset:{pr*1024} sc1")
        for h in range(4): k(f"v_dot2c_f32_bf16 v6, s32, v{RES+4*pr+h}\nv_dot2c_f32_bf16 v7, v{RES+4*pr+h}, v{RES+4*pr+h}")
        if pr == 2: k.label("L_p3_two")
    k(f"v_cndmask_b32 v8, v9, v10, vcc\ns_lshl_b32 s30, s21, 10\ns_lshl_b32 s31, s22, 7\ns_add_u32 s30, s30, s31\ns_add_u32 s30, s30, {OFF_STAT}")
    red_rows(k, 6, 4); red_rows(k, 7, 4)
    k.vm(f"buffer_store_dwordx2 v[6:7], v8, s[8:11], s30 offen sc1")
    k(f"s_lshl_b32 s56, s26, 7\ns_lshl_b32 s27, s22, 3\ns_add_u32 s56, s56, s27\ns_add_u32 s56, s56, {FD}")
    stamp(k, 17)
    signal(k)
    publish_fp(k, FP2)
    stamp(k, 18)

def p4_ffn(k):
    xreg = lambda ks, tb: (ar(4 * (ks * 4 + tb), 4) if ks < 16 else vr(XV + 4 * (ks * 4 + tb - 64), 4))
    k("s_lshl_b32 s21, s19, 1\ns_and_b32 s22, s17, 1\ns_add_u32 s21, s21, s22")
    k("s_lshl_b32 s22, s18, 4\ns_lshr_b32 s23, s17, 1\ns_add_u32 s22, s22, s23")
    k(f"s_lshl_b32 s24, s21, 2\ns_add_u32 s24, s24, s20\ns_mul_i32 s24, s24, {486*KBY}\ns_add_u32 s24, s24, {OFF_WF}")
    k(f"s_add_u32 s12, s4, s24\ns_addc_u32 s13, s5, 0\ns_mov_b32 s14, {486*KBY}\ns_mov_b32 s15, 0x00020000\ns_mov_b32 s25, 0")
    poll_fp(k, "p", FP)
    fresh(k)
    PRE = int(envs("PRE", "16"))
    for p in range(PRE):
        for f in wload(p): f.fn(k)
    k(f"s_lshl_b32 s23, s22, 2\ns_add_u32 s23, s23, s20\ns_lshl_b32 s26, s23, 10\ns_add_u32 s26, s26, {OFF_STAT}\ns_mul_i32 s23, s23, {18*KBY}\ns_add_u32 s23, s23, {OFF_X1}")
    ln_consts(k)
    k("v_and_b32 v4, 15, v0\nv_lshlrev_b32 v4, 3, v4\nv_bfe_u32 v5, v0, 4, 2\nv_lshl_add_u32 v4, v5, 8, v4")
    k(f"s_lshl_b32 s56, s22, 7\ns_add_u32 s56, s56, {FD}\nv_and_b32 v2, 7, v0\nv_lshlrev_b32 v2, 3, v2")
    poll(k, "d")
    stamp(k, 19)
    X = 16; T = 88
    k.vm(f"buffer_load_dwordx2 v[{T}:{T+1}], v4, s[8:11], s26 offen{LD}", "st")
    k.vm(f"buffer_load_dwordx2 v[{T+2}:{T+3}], v4, s[8:11], s26 offen offset:128{LD}", "st")
    for ks in range(18):
        k.vm(f"buffer_load_dwordx4 v[{X+4*ks}:{X+4*ks+3}], v1, s[8:11], s23 offen offset:{(ks%4)*1024}{LD}", ("x", ks))
        if ks % 4 == 3: k("s_add_u32 s23, s23, 4096")
    k("s_lshl_b32 s26, s20, 10\nv_add_u32 v2, s26, v1\nv_add_u32 v3, 0x10000, v2")
    k.wait_vm("st")
    k(f"v_add_f32 v{T}, v{T}, v{T+2}\nv_add_f32 v{T+1}, v{T+1}, v{T+3}")
    red_rows(k, T, T + 2); red_rows(k, T + 1, T + 2)
    ln_stats_finish(k, T, T + 1)
    pw = PRE
    for ks in range(18):
        k.wait_vm(("x", ks))
        for i in range(4): ln_norm(k, X+4*ks+i, X+4*ks+i, T, T + 1, T + 2 + 2 * (i & 1))
        k.lg(f"ds_write_b128 v{2 if ks < 16 else 3}, v[{X+4*ks}:{X+4*ks+3}] offset:{(ks % 16) * 4096}")
        while pw < PRE + (LEAD - PRE) * (ks + 1) // 18:
            for f in wload(pw): f.fn(k)
            pw += 1
    k("v_mov_b32 v2, v1\nv_add_u32 v3, 0x10000, v1")
    HB = 72 * KBY
    k(f"s_mov_b32 s33, {fbits(-LOG2E)}")
    k(f"s_lshl_b32 s29, s20, 14\ns_add_u32 s29, s29, {HB}\ns_mov_b32 s28, 8")
    for tb in range(4): k(f"v_add_u32 v{5+tb}, {tb*18*KBY}, v1")
    k("s_mov_b32 s34, 7\ns_mov_b32 s35, 0")
    stamp(k, 20)
    k.wait_lg_all(); k("s_barrier")
    def xreads(lo, hi):
        return [lgl(f"ds_read_b128 {xreg(ks, tb)}, v{2 if ks < 16 else 3} offset:{((ks * 4 + tb) % 64) * 1024}", ("xr", ks)) for ks in range(lo, hi) for tb in range(4)]
    def phase(p0, acc, streams, xr=None, pre_extra=None, budget=8):
        mf = []; pre = {}; loads = []
        for g in range(18 // G):
            def p(k, g=g):
                if pre_extra and g in pre_extra: pre_extra[g](k)
                k.wait_vm(("w", p0 + g * G + G - 1), force=True)
                if xr is not None: k.wait_lg(("xr", g * G + G - 1))
            pre[len(mf)] = p
            for j in range(G):
                for f in wload(p0 + g * G + j + LEAD):
                    f.after = len(mf); f.before = len(mf) + 4 * G; loads.append(f)
            for tb in range(4):
                for j in range(G):
                    ks = g * G + j; r = RING + 4 * ((p0 + ks) % 36); a = acc + 4 * tb
                    mf.append(f"{MF} v[{a}:{a+3}], v[{r}:{r+3}], {xreg(ks, tb)}, " + ("0" if ks == 0 else f"v[{a}:{a+3}]"))
        st = [loads] + streams
        if xr:
            for j, f in enumerate(xr):
                g = j // (4 * G); f.after = max(f.after, 4 * G * g - 4); f.before = 4 * G * (g + 1) - 3
            st.append(xr)
        interleave(k, mf, st, pre=pre, budget=budget)
    def finish():
        L = [line("v_add_u32 v4, s29, v1")]
        for tb in range(4):
            for i in range(4): L.append(line(f"v_mul_f32 v{T1+4*tb+i}, v{T1+4*tb+i}, v{AU+4*tb+i}", after=3))
            for i in range(4): L.append(line(f"v_mul_f32 v{T1+4*tb+i}, v{T1+4*tb+i}, v{T2+4*tb+i}"))
            for i in range(2): L.append(line(f"v_cvt_pk_bf16_f32 v{T2+4*tb+i}, v{T1+4*tb+2*i}, v{T1+4*tb+2*i+1}"))
            L.append(lgl(f"ds_write_b64 v4, v[{T2+4*tb}:{T2+4*tb+1}] offset:{tb*1024}", "hw"))
        L += [line("s_add_u32 s29, s29, s28"), line("s_sub_u32 s28, 4096, s28"), line("s_sub_u32 s34, s34, 1")]
        return L
    def expo():
        L = []
        for tb in range(4):
            for i in range(4): L.append(line(f"v_mul_f32 v{T1+4*tb+i}, s33, v{AG+4*tb+i}", after=2))
            for i in range(4): L.append(line(f"v_exp_f32 v{T2+4*tb+i}, v{T1+4*tb+i}", 8))
            for i in range(4): L.append(line(f"v_fma_f32 v{T2+4*tb+i}, v{T2+4*tb+i}, s33, s33"))
            for i in range(4): L.append(line(f"v_rcp_f32 v{T2+4*tb+i}, v{T2+4*tb+i}", 8))
        return L
    xr = xreads(0, 18)
    for f in xr[:4 * G]: f.fn(k)
    stamp(k, 21); stamp(k, 30, True)
    phase(0, AG, [], xr=xr[4 * G:])
    phase(18, AU, [expo()])
    k(f"v_add_u32 v2, {HB}, v1\nv_add_u32 v3, {HB + 0x10000}, v1")
    its = []
    for fb in range(1, 9):
        m0 = k.mark()
        phase(36 * fb, AG, [finish()])
        phase(36 * fb + 18, AU, [expo()])
        its.append(k.lines[m0:]); del k.lines[m0:]
    k.label("L_ffn_gu")
    k.lines += fold(its)
    k("s_cmp_lg_u32 s34, 0\ns_cbranch_scc1 L_ffn_gu\ns_cmp_lg_u32 s35, 0\ns_cbranch_scc1 L_ffn_gux")
    k("v_mov_b32 v9, v2")
    poll_fp(k, "p2", FP2)
    k("v_mov_b32 v2, v9\ns_mov_b32 s34, 1\ns_mov_b32 s35, 1\ns_branch L_ffn_gu")
    k.label("L_ffn_gux")
    stamp(k, 22); stamp(k, 31, True)
    k.wait_lg_all(); k("s_barrier")
    xr = xreads(0, 15)
    for f in xr[:4 * G]: f.fn(k)
    k(f"s_lshr_b32 s29, s20, 1\ns_lshl_b32 s29, s29, 12\ns_and_b32 s35, s20, 1\ns_lshl_b32 s36, s35, 3\ns_add_u32 s29, s29, s36")
    k(f"v_add_u32 v9, s29, v1\ns_add_u32 s29, s29, {HB + 64*KBY}\ns_lshl_b32 s41, s20, 11\nv_add_u32 v10, s41, v1")
    k(f"s_lshl_b32 s37, s21, 7\ns_lshl_b32 s38, s22, 2\ns_add_u32 s37, s37, s38\ns_mul_i32 s37, s37, {18*KBY}\ns_add_u32 s37, s37, {OFF_PART}")
    k(f"s_mul_i32 s38, s20, 9\ns_lshr_b32 s39, s20, 1\ns_mul_i32 s39, s39, 9\ns_add_u32 s39, s39, 4\ns_lshl_b32 s39, s39, 10\ns_mul_i32 s40, s35, {36*KBY}\ns_add_u32 s39, s39, s40\ns_add_u32 s39, s39, s37")
    k("s_add_u32 s38, s38, s35\ns_lshl_b32 s38, s38, 9\ns_add_u32 s38, s38, s37")
    k(f"s_lshl_b32 s56, s22, 7\ns_lshl_b32 s27, s21, 3\ns_add_u32 s56, s56, s27\ns_add_u32 s56, s56, {FE}")
    fin = finish()[:-3]
    NG = 18 // G
    for f in fin: f.before = 4 * G * (NG - 2)
    def late(k):
        k.wait_lg_all(); k("s_barrier")
        for f in xreads(15, 18): f.fn(k)
    phase(324, AG, [fin], xr=xr[4 * G:], pre_extra={NG - 2: late}, budget=12)
    def cv(acc, dst, hi, after=0):
        return [line(f"v_cvt_pk_bf16_f32 v{dst+4*tb+2*hi+i}, v{acc+4*tb+2*i}, v{acc+4*tb+2*i+1}", after=after) for tb in range(4) for i in range(2)]
    def st4(src, tb, after):
        return vml(f"buffer_store_dwordx4 v[{src+4*tb}:{src+4*tb+3}], v{5+tb}, s[8:11], s38 offen sc1", after=after, cost=8)
    phase(342, AU, [cv(AG, T1, 0, 8)])
    k("s_mov_b32 s34, 2")
    stamp(k, 23); stamp(k, 32, True)
    def first_half():
        L = []
        for tb in range(4):
            L += [line(f"v_mov_b32 v{T2+4*tb}, v{T1+4*tb}"), line(f"v_mov_b32 v{T2+4*tb+1}, v{T1+4*tb+1}")]
        return L + cv(AU, T2, 1, 8) + [st4(T2, 0, 30), st4(T2, 1, 60)]
    def pair(p):
        phase(324 + 36 * p, AG, [first_half()])
        phase(324 + 36 * p + 18, AU, [cv(AG, T1, 0, 8), [st4(T2, 2, 20), st4(T2, 3, 52), line("s_add_u32 s38, s38, 1024"), line("s_sub_u32 s34, s34, 1")]])
    its = []
    for p in range(1, 3):
        m0 = k.mark(); pair(p); its.append(k.lines[m0:]); del k.lines[m0:]
    k.label("L_ffn_dn")
    k.lines += fold(its)
    k("s_cmp_lg_u32 s34, 0\ns_cbranch_scc1 L_ffn_dn")
    pair(3)
    stamp(k, 24); stamp(k, 33, True)
    phase(468, AG, [cv(AU, T1, 1, 8) + [st4(T1, tb, 0) for tb in range(4)]])
    k("s_nop 7")
    c = cv(AG, T2, 0)
    for tb in range(4):
        c[2 * tb].fn(k); c[2 * tb + 1].fn(k)
        k(f"ds_write_b64 v9, v[{T2+4*tb}:{T2+4*tb+1}] offset:{tb*1024}")
    k(f"s_waitcnt lgkmcnt(0)\ns_barrier\nds_read_b128 v[{AU}:{AU+3}], v10\nds_read_b128 v[{AU+4}:{AU+7}], v10 offset:1024")
    for j in range(2):
        k(f"s_waitcnt lgkmcnt({1-j})")
        k.vm(f"buffer_store_dwordx4 v[{AU+4*j}:{AU+4*j+3}], v{5+j}, s[8:11], s39 offen sc1")
    stamp(k, 25); stamp(k, 34, True)
    signal(k)
    stamp(k, 26)

def p5_reduce(k, nlayers):
    k(f"s_cmp_eq_u32 s20, 3\ns_cbranch_scc1 L_p5_w3")
    k("s_lshl_b32 s28, s16, 5\ns_add_u32 s28, s28, s17")
    half_lanes(k, 28)
    k("s_mul_i32 s25, s20, 6144\ns_add_u32 s24, s24, s25\nv_add_u32 v8, 0x1000, v7")
    ln_consts(k)
    k("s_mov_b32 s26, 0x00003f80\ns_mov_b32 s27, 0x3f800000")
    k(f"s_lshr_b32 s56, s28, 3\ns_lshl_b32 s56, s56, 7\ns_add_u32 s56, s56, {FE}\nv_lshlrev_b32 v2, 3, v6")
    poll(k, "e", wg=False)
    stamp(k, 27)
    fresh(k)
    D = 16; ACC = D + 108
    for src in range(9):
        k(f"s_add_u32 s25, s24, {OFF_X1 if src == 0 else OFF_PART + (src - 1) * 2304 * KBY}")
        for i in range(3):
            r = D + 12 * src + 4 * i
            k.vm(f"buffer_load_dwordx4 v[{r}:{r+3}], v{8 if i == 2 else 7}, s[8:11], s25 offen offset:{2048 if i == 1 else 0}{LD}", (src, i))
    for src in range(9):
        for i in range(3):
            k.wait_vm((src, i))
            for j in range(4):
                r = D + 12 * src + 4 * i + j; a = ACC + 8 * i + 2 * j
                if src == 0: k(f"v_lshlrev_b32 v{a}, 16, v{r}\nv_and_b32 v{a+1}, s32, v{r}")
                else: k(f"v_dot2c_f32_bf16 v{a}, s26, v{r}\nv_dot2c_f32_bf16 v{a+1}, s27, v{r}")
    k("s_nop 2")
    stamp(k, 28)
    for j in range(12): k(f"v_cvt_pk_bf16_f32 v{D+j}, v{ACC+2*j}, v{ACC+2*j+1}")
    k(f"s_cmp_eq_u32 s50, 1\ns_cbranch_scc1 L_p5_final")
    T = D + 16; O = T + 8
    row_sums(k, D, 12, T)
    k(f"v_lshlrev_b32 v9, 3, v6\nv_add_u32 v9, {150*KBY}, v9\ns_lshl_b32 s23, s20, 6\nv_add_u32 v10, s23, v9")
    k(f"ds_write_b64 v10, v[{T}:{T+1}]\ns_waitcnt lgkmcnt(0)\ns_barrier")
    for w in range(3): k(f"ds_read_b64 v[{T+2*w}:{T+2*w+1}], v9 offset:{64*w}")
    k(f"s_add_u32 s23, s24, {OFF_XN}\ns_add_u32 s25, s24, {OFF_XF}\ns_waitcnt lgkmcnt(0)")
    k(f"v_add_f32 v{T}, v{T}, v{T+2}\nv_add_f32 v{T+1}, v{T+1}, v{T+3}\nv_add_f32 v{T}, v{T}, v{T+4}\nv_add_f32 v{T+1}, v{T+1}, v{T+5}")
    ln_stats_finish(k, T, T + 1)
    for i in range(3):
        for j in range(4): ln_norm(k, D + 4 * i + j, O + 4 * i + j, T, T + 1, T + 2 + 2 * (j & 1))
        k(f"buffer_store_dwordx4 v[{O+4*i}:{O+4*i+3}], v{8 if i == 2 else 7}, s[8:11], s23 offen offset:{2048 if i == 1 else 0} sc1")
    for i in range(3):
        k(f"buffer_store_dwordx4 v[{D+4*i}:{D+4*i+3}], v{8 if i == 2 else 7}, s[8:11], s25 offen offset:{2048 if i == 1 else 0} sc1")
    flag_a_addr(k)
    k("s_branch L_p5_join")
    k.label("L_p5_w3")
    k(f"s_cmp_eq_u32 s50, 1\ns_cbranch_scc1 L_main_fin")
    wq_base(k); wq_fetch(k, "c")
    k("s_barrier")
    k.label("L_p5_join")
    stamp(k, 29)
    k(f"s_add_u32 s50, s50, 1\ns_add_u32 s51, s51, 32768\ns_mov_b32 s53, {OFF_QKV2}")
    signal(k)
    if STAMP: k("v_mov_b32 v14, v15")
    k("s_branch L_layer" if nlayers == 2 else "s_branch L_main_fin")
    k.label("L_p5_final")
    srd(k, 12, 6, 2048 * 1152)
    rowmajor(k, 28, 7)
    k("s_mul_i32 s25, s20, 384\ns_add_u32 s33, s33, s25")
    for i in range(3):
        k(f"v_permlane16_swap_b32 v{D+4*i}, v{D+4*i+2}\nv_permlane16_swap_b32 v{D+4*i+1}, v{D+4*i+3}")
        k(f"buffer_store_dwordx4 v[{D+4*i}:{D+4*i+3}], v7, s[12:15], s33 offen offset:{128*i}{FL[envs('OUTST', 's')]}")
    k.label("L_main_fin")
    if STAMP:
        k.wait_vm_all(); stamp(k, 29)
        k(f"s_add_u32 s84, s4, {OFF_STAMP}\ns_addc_u32 s85, s5, 0\ns_mov_b32 s86, 0x2000000\ns_mov_b32 s87, 0x00020000")
        k("s_lshl_b32 s88, s2, 2\ns_add_u32 s88, s88, s20\ns_lshl_b32 s88, s88, 9\nv_lshrrev_b32 v2, 2, v1")
        k("buffer_store_dword v14, v2, s[84:87], s88 offen\nbuffer_store_dword v15, v2, s[84:87], s88 offen offset:256")

def main_k(name, nlayers=2):
    k = KB()
    k.raw(f".globl {name}\n.p2align 8\n.type {name},@function")
    k.label(name)
    k("s_cmp_ge_u32 s2, 256\ns_cbranch_scc1 L_end")
    if STAMP: k("v_mov_b32 v14, 0\nv_mov_b32 v15, 0"); stamp(k, 40)
    k("s_load_dwordx4 s[36:39], s[0:1], 0\ns_load_dwordx2 s[46:47], s[0:1], 16\ns_load_dwordx4 s[40:43], s[0:1], 32")
    k("s_load_dwordx2 s[44:45], s[0:1], 48\ns_load_dwordx2 s[6:7], s[0:1], 56\ns_load_dwordx2 s[84:85], s[0:1], 64\ns_load_dwordx2 s[4:5], s[0:1], 72")
    k("v_lshrrev_b32 v2, 6, v0\nv_and_b32 v1, 63, v0\nv_readfirstlane_b32 s20, v2\nv_cmp_eq_u32 vcc, 0, v1\nv_lshlrev_b32 v1, 4, v1")
    k("s_and_b32 s16, s2, 7\ns_lshr_b32 s17, s2, 3\ns_bfe_u32 s18, s2, 0x10002\ns_and_b32 s19, s2, 3")
    k(f"v_mov_b32 v13, {BIG}\ns_mov_b32 s50, 0\ns_mov_b32 s51, 0\ns_mov_b32 s53, {OFF_QKV}\ns_mov_b32 s67, 0\nv_cndmask_b32 v13, v13, 0, vcc")
    p0(k)
    k.label("L_layer")
    fresh(k)
    p1_qkv(k); p2_attn(k); p3_wo(k); p4_ffn(k); p5_reduce(k, nlayers)
    k.label("L_end")
    k("s_endpgm")
    return k

def desc(n, vgpr, accum):
    return f""".p2align 6
.amdhsa_kernel {n}
  .amdhsa_next_free_vgpr {vgpr}
  .amdhsa_next_free_sgpr 96
  .amdhsa_accum_offset {accum}
  .amdhsa_group_segment_fixed_size 0
  .amdhsa_kernarg_size 80
  .amdhsa_user_sgpr_count 2
  .amdhsa_user_sgpr_kernarg_segment_ptr 1
  .amdhsa_system_sgpr_workgroup_id_x 1
  .amdhsa_float_denorm_mode_32 3
.end_amdhsa_kernel"""
def build(nlayers=2):
    name = "interleave_layers__sliding_block__swiglu_ffn__prompt_kernel"
    out = ["; x += attn(LN x); x += swiglu(LN x); twice. One persistent kernel, 256 workgroups. Generated by my own script (work/genq.py)."]
    if STAMP:
        out.append("; @launch kernel=sleep_kernel grid=(1,1,1) block=(64,1,1) lds=0")
        out.append(f"; @launch kernel={name} grid=(256,1,1) block=(256,1,1) lds=163840")
    else: out.append("; @launch grid=(256,1,1) block=(256,1,1) lds=163840")
    out.append('.amdgcn_target "amdgcn-amd-amdhsa--gfx950"\n.text')
    out.append(main_k(name, nlayers).text())
    if STAMP:
        out.append(""".globl sleep_kernel
.p2align 8
.type sleep_kernel,@function
sleep_kernel:
    s_mov_b32 s4, 2000
L_sleep:
    s_sleep 8
    s_sub_u32 s4, s4, 1
    s_cmp_lg_u32 s4, 0
    s_cbranch_scc1 L_sleep
    s_endpgm""")
    out.append('.section .rodata,"a"')
    out.append(desc(name, 512, 256))
    if STAMP: out.append(desc("sleep_kernel", 8, 8))
    return "\n".join(out) + "\n"

if __name__ == "__main__":
    STAMP = "stamp" in sys.argv[2:]
    open(sys.argv[1], "w").write(build(1 if "one" in sys.argv[2:] else 2))
```

```python
import re, sys, os, struct
from kb import *
KBY = 1024
OFF_XF, OFF_XN, OFF_OF, OFF_X1 = 0, 2304*KBY, 4608*KBY, 6912*KBY
OFF_OB = OFF_OF + 2048*KBY
OFF_QKV = 9216*KBY
OFF_PART = 16128*KBY
OFF_WO = 34560*KBY
OFF_WF = 37376*KBY
OFF_STAT = 53248*KBY
OFF_FLAG = 53376*KBY
OFF_QKV2 = 53408*KBY
OFF_WQ = OFF_QKV2 + 6912*KBY
OFF_FLAG = OFF_WQ + 2048*KBY
WS_USED = OFF_FLAG + 64*KBY
FA, FB, FC, FD, FE, FP, FP2, FW, FQ = [OFF_FLAG + o for o in (0, 2048, 10240, 12288, 16384, 20480, 22528, 24576, 25600)]
BIG = 0x40000000
LOG2E = 1.4426950408889634
def fbits(x): return "0x%08x" % struct.unpack("<I", struct.pack("<f", x))[0]
def envs(n, d): return os.environ.get(n, d)
FL = {"s": " sc1", "p": "", "n": " nt"}
MF = "v_mfma_f32_16x16x32_bf16"
LD = " sc1"
SPIN = 40000
STAMP = False
OFF_STAMP = 200 << 20
POLL1 = envs("POLL1", "1") == "1"
FAST = envs("FAST", "1") == "1"
FORCE_EXACT = envs("FORCE_EXACT", "") == "1"

def stamp(k, i, cyc=False):
    if STAMP:
        k(f"{'s_memtime' if cyc else 's_memrealtime'} s[90:91]"); k.wait_lg_all(); k(f"v_writelane_b32 v15, s90, {i}")
def srd(k, d, base, nbytes):
    k(f"s_mov_b32 s{d}, s{base}\ns_mov_b32 s{d+1}, s{base+1}\ns_mov_b32 s{d+2}, {nbytes}\ns_mov_b32 s{d+3}, 0x00020000")
def sdiv(k, dst, src, D, tmp):
    k(f"s_mov_b32 s{tmp}, {-(-(1<<32)//D)}\ns_mul_hi_u32 s{dst}, s{src}, s{tmp}")
def red_rows(k, v, t, op="v_add_f32"):
    for sw in ("v_permlane16_swap_b32", "v_permlane32_swap_b32"):
        k(f"v_mov_b32 v{t}, v{v}\ns_nop 1\n{sw} v{v}, v{t}\n{op} v{v}, v{v}, v{t}")
def ln_stats_finish(k, s, q):
    k(f"v_mul_f32 v{s}, s31, v{s}\nv_mul_f32 v{q}, s31, v{q}\nv_fma_f32 v{q}, -v{s}, v{s}, v{q}\nv_max_f32 v{q}, 0, v{q}")
    k(f"v_add_f32 v{q}, {fbits(1e-5)}, v{q}\nv_rsq_f32 v{q}, v{q}\ns_nop 0\nv_mul_f32 v{s}, v{s}, v{q}\nv_sub_f32 v{s}, 0, v{s}")
def ln_norm(k, x, dst, s, q, t):
    k(f"v_lshlrev_b32 v{t}, 16, v{x}\nv_and_b32 v{t+1}, s32, v{x}\nv_fma_f32 v{t}, v{t}, v{q}, v{s}\nv_fma_f32 v{t+1}, v{t+1}, v{q}, v{s}\nv_cvt_pk_bf16_f32 v{dst}, v{t}, v{t+1}")
def ln_consts(k):
    k(f"s_mov_b32 s30, 0x3f803f80\ns_mov_b32 s31, {fbits(1/576)}\ns_mov_b32 s32, 0xffff0000")
def fold(iters):
    body = []
    assert len({len(x) for x in iters}) == 1, [len(x) for x in iters]
    for ls in zip(*iters):
        if len(set(ls)) == 1: body.append(ls[0]); continue
        ns = [re.fullmatch(r"\s*s_waitcnt vmcnt\((\d+)\)", l) for l in ls]
        assert all(ns), ls
        body.append(f"    s_waitcnt vmcnt({min(int(m.group(1)) for m in ns)})")
    return body
def fresh(k):
    k.vmq = []; k.vm_done = 0; k.lgq = []; k.lg_done = 0

def poll(k, name, wg=True, layer=True):
    if wg: k(f"s_cmp_lg_u32 s20, 0\ns_cbranch_scc1 L_pollx_{name}")
    k(f"s_mov_b32 s57, {SPIN}" + ("\ns_add_u32 s56, s56, s51" if layer else ""))
    if envs("PP", "") and name in "abcde":
        k("buffer_load_dwordx2 v[252:253], v2, s[8:11], s56 offen sc1\ns_sleep 1")
        k.label(f"L_poll_{name}")
        k(f"buffer_load_dwordx2 v[254:255], v2, s[8:11], s56 offen sc1\ns_waitcnt vmcnt(1)\nv_cmp_eq_u64 vcc, s[92:93], v[252:253]\ns_cmp_eq_u64 vcc, -1\ns_cbranch_scc1 L_pollx_{name}")
        k(f"buffer_load_dwordx2 v[252:253], v2, s[8:11], s56 offen sc1\ns_sub_u32 s57, s57, 1\ns_waitcnt vmcnt(1)")
    else:
        k.label(f"L_poll_{name}")
        k(f"buffer_load_dwordx2 v[254:255], v2, s[8:11], s56 offen sc1\ns_sub_u32 s57, s57, 1\ns_waitcnt vmcnt(0)")
    k(f"v_cmp_eq_u64 vcc, s[92:93], v[254:255]\ns_cmp_eq_u32 s57, 0\ns_cbranch_scc1 L_pollx_{name}")
    k(f"s_cmp_eq_u64 vcc, -1\ns_cbranch_scc0 L_poll_{name}")
    k.label(f"L_pollx_{name}")
    if wg: k("s_barrier")
def publish(k, addr="s56"):
    k("v_mov_b32 v254, s92\nv_mov_b32 v255, s93")
    k.vm(f"buffer_store_dwordx2 v[254:255], v13, s[8:11], {addr} offen sc1")
def signal(k):
    k(f"s_add_u32 s56, s56, s51\ns_cmp_eq_u32 s20, 0\ns_cselect_b32 s56, s56, {BIG}")
    k.wait_vm_all(); k("s_barrier")
    publish(k)
def token_load(k):
    k("v_mov_b32 v2, 0\nbuffer_load_dwordx2 v[254:255], v2, s[84:87], 0 offen sc1")
def token_get(k, name):
    k(f"s_mov_b32 s57, {SPIN}")
    k.label(f"L_tok_{name}")
    k("v_readfirstlane_b32 s92, v254\nv_readfirstlane_b32 s93, v255\ns_sub_u32 s57, s57, 1\ns_min_u32 s94, s92, s93\ns_cmp_eq_u32 s57, 0\ns_cselect_b32 s94, 1, s94")
    k(f"s_cmp_lg_u32 s94, 0\ns_cbranch_scc1 L_tokx_{name}")
    token_load(k)
    k(f"s_waitcnt vmcnt(0)\ns_branch L_tok_{name}")
    k.label(f"L_tokx_{name}")

def half_lanes(k, shb):
    k("v_bfe_u32 v4, v0, 4, 2\nv_bfe_u32 v5, v0, 3, 1\nv_and_b32 v6, 7, v0")
    k(f"s_and_b32 s21, s{shb}, 1\ns_lshr_b32 s22, s{shb}, 1\ns_lshl_b32 s23, s21, 7")
    k("v_lshlrev_b32 v7, 8, v4\nv_lshl_add_u32 v7, v5, 10, v7\nv_lshl_add_u32 v7, v6, 4, v7\nv_add_u32 v7, s23, v7")
    k(f"s_mul_i32 s24, s22, {18*KBY}")
def rowmajor(k, shb, v):
    k(f"v_mul_u32_u24 v{v}, 1152, v6\nv_lshl_add_u32 v{v}, v5, 6, v{v}\nv_and_b32 v9, 1, v4\nv_lshl_add_u32 v{v}, v9, 5, v{v}\nv_lshrrev_b32 v9, 1, v4\nv_lshl_add_u32 v{v}, v9, 4, v{v}")
    k(f"s_mul_i32 s33, s{shb}, 9216")
def row_sums(k, D, n, T):
    for i in range(4): k(f"v_mov_b32 v{T+i}, 0")
    for j in range(n): k(f"v_dot2c_f32_bf16 v{T+(j&1)}, s30, v{D+j}\nv_dot2c_f32_bf16 v{T+2+(j&1)}, v{D+j}, v{D+j}")
    k(f"s_nop 2\nv_add_f32 v{T}, v{T}, v{T+1}\nv_add_f32 v{T+1}, v{T+2}, v{T+3}\ns_nop 1")
    k(f"v_add_f32_dpp v{T}, v{T}, v{T} row_ror:8 row_mask:0xf bank_mask:0xf\nv_add_f32_dpp v{T+1}, v{T+1}, v{T+1} row_ror:8 row_mask:0xf bank_mask:0xf")
    red_rows(k, T, T + 2); red_rows(k, T + 1, T + 2)
def flag_a_addr(k):
    k(f"s_lshr_b32 s56, s28, 4\ns_lshl_b32 s56, s56, 7\ns_and_b32 s27, s28, 15\ns_lshl_b32 s27, s27, 3\ns_add_u32 s56, s56, s27\ns_add_u32 s56, s56, {FA}")

DST = 68
park = lambda u, i: (f"v[{128+16*u+4*i}:{131+16*u+4*i}]" if u < 3 else f"a[{160+16*(u-3)+4*i}:{163+16*(u-3)+4*i}]")
PK = 220
def wq_base(k):
    k(f"s_lshr_b32 s29, s17, 3\ns_lshl_b32 s22, s19, 2\ns_add_u32 s22, s22, s29\ns_mul_i32 s25, s22, {126*KBY}\ns_add_u32 s25, s25, {OFF_WQ}")
def wq_fetch(k, name):
    k(f"s_and_b32 s23, s17, {7 if envs('ROT', '1') == '1' else 0}\ns_lshl_b32 s23, s23, 14\ns_mov_b32 s26, 32")
    k.label(f"L_wqf_{name}")
    k("s_mov_b32 m0, s23\ns_add_u32 s27, s25, s23")
    for c in range(4): k(f"buffer_load_dwordx4 v1, s[8:11], s27 offen offset:{c*1024} lds")
    k(f"s_add_u32 s23, s23, 4096\ns_and_b32 s23, s23, 0x1ffff\ns_sub_u32 s26, s26, 1\ns_waitcnt vmcnt({envs('WQF', '40')})\ns_cmp_lg_u32 s26, 0\ns_cbranch_scc1 L_wqf_{name}")
def stage_addr(k):
    k(f"s_lshl_b32 s66, s20, 13\ns_add_u32 s66, s66, {128*KBY}\nv_add_u32 v10, s66, v1")
    k("v_bfe_u32 v11, v0, 2, 4\nv_lshlrev_b32 v11, 7, v11\nv_and_b32 v252, 3, v0\nv_lshl_add_u32 v11, v252, 3, v11\nv_add_u32 v11, s66, v11")
def pack_block(k, n, nu, dst=lambda u, c: (f"s{DST+c}", (u % 4) * 1024), src=park):
    k("s_waitcnt lgkmcnt(0)")
    if 2 <= n < nu + 2:
        u = n - 2
        for c in range(4):
            r, o = dst(u, c)
            k(f"buffer_store_dwordx4 v[{PK+16*(u&1)+4*c}:{PK+16*(u&1)+4*c+3}], v1, s[8:11], {r} offen offset:{o} sc1" + (f"\ns_add_u32 {r}, {r}, 4096" if o == 3072 else ""))
    if 1 <= n <= nu:
        u = n - 1
        for c in range(4):
            for hf in range(2): k(f"ds_read_b64_tr_b16 v[{PK+16*(u&1)+4*c+2*hf}:{PK+16*(u&1)+4*c+2*hf+1}], v11 offset:{(u&1)*4096 + hf*2048 + c*32}")
    if n < nu:
        for i in range(4): k(f"ds_write_b128 v10, {src(n, i)} offset:{(n&1)*4096 + i*1024}")
lpark = lambda u, i: f"a[{208+16*u+4*i}:{211+16*u+4*i}]"
def late_blocks(k):
    k("s_cmp_eq_u32 s67, 0\ns_cbranch_scc1 L_pks")
    stage_addr(k)
    for n in range(5): pack_block(k, n, 3, lambda u, c: (f"s{78+c}", u * 1024), lpark)
    k("s_mov_b32 s67, 0")
    k.label("L_pks")
EARLY = envs("EARLY", "b")
def early_blocks(k):
    k("s_cmp_eq_u32 s67, 0\ns_cbranch_scc1 L_pke")
    stage_addr(k)
    for n in range(8): pack_block(k, n, 6)
    k.label("L_pke")
def publish_fp(k, base):
    k(f"s_mov_b32 s30, {-(-(1<<32)//27)}\ns_mul_hi_u32 s27, s2, s30\ns_mul_i32 s27, s27, 5\ns_add_u32 s27, s27, s2\ns_lshl_b32 s27, s27, 3\ns_add_u32 s27, s27, {base}")
    k(f"s_cmp_lt_u32 s2, 216\ns_cselect_b32 s27, s27, {BIG}\ns_cmp_eq_u32 s20, 0\ns_cselect_b32 s27, s27, {BIG}")
    k.vm("buffer_store_dwordx2 v[254:255], v13, s[8:11], s27 offen sc1")
def poll_fp(k, name, base):
    k(f"s_cmp_lg_u32 s50, 0\ns_cbranch_scc1 L_pollx_{name}\ns_lshl_b32 s56, s21, 8\ns_add_u32 s56, s56, {base}\nv_and_b32 v2, 31, v0\nv_min_u32 v2, 26, v2\nv_lshlrev_b32 v2, 3, v2")
    poll(k, name, wg=False)
def ptrs(k):
    srd(k, 8, 4, WS_USED); k("s_mov_b32 s86, 256\ns_mov_b32 s87, 0x00020000")
def p0(k):
    k("s_cmp_eq_u32 s20, 1\ns_cbranch_scc1 L_p0_wq\ns_cmp_lg_u32 s20, 0\ns_cbranch_scc1 L_p0_23")
    k("s_lshl_b32 s28, s16, 5\ns_add_u32 s28, s28, s17")
    half_lanes(k, 28); rowmajor(k, 28, 11)
    k("s_waitcnt lgkmcnt(0)")
    srd(k, 12, 36, 2048 * 1152)
    D = 16; T = D + 36; O = T + 8
    for i in range(9): k(f"buffer_load_dwordx4 v[{D+4*i}:{D+4*i+3}], v11, s[12:15], s33 offen offset:{128*i} nt")
    if envs("B0", "1") == "1": k("s_barrier")
    ptrs(k); ln_consts(k); flag_a_addr(k)
    stamp(k, 41)
    for i in range(9): k(f"s_waitcnt vmcnt({8-i})\nv_permlane16_swap_b32 v{D+4*i}, v{D+4*i+2}\nv_permlane16_swap_b32 v{D+4*i+1}, v{D+4*i+3}")
    stamp(k, 42)
    token_load(k)
    row_sums(k, D, 36, T); ln_stats_finish(k, T, T + 1)
    k(f"s_add_u32 s23, s24, {OFF_XN}\ns_add_u32 s25, s24, {OFF_XF}")
    for i in range(9):
        for j in range(4): ln_norm(k, D + 4 * i + j, O + 4 * (i & 1) + j, T, T + 1, T + 2 + 2 * (j & 1))
        k(f"buffer_store_dwordx4 v[{O+4*(i&1)}:{O+4*(i&1)+3}], v7, s[8:11], s23 offen offset:{(i&1)*2048} sc1" + ("\ns_add_u32 s23, s23, 4096" if i & 1 else ""))
    for i in range(9):
        k(f"buffer_store_dwordx4 v[{D+4*i}:{D+4*i+3}], v7, s[8:11], s25 offen offset:{(i&1)*2048} sc1" + ("\ns_add_u32 s25, s25, 4096" if i & 1 else ""))
    stamp(k, 43)
    k("s_waitcnt vmcnt(0)")
    token_get(k, "a")
    publish(k)
    k("s_branch L_p0_wait")
    k.label("L_p0_wq")
    k("s_lshl_b32 s21, s18, 3\ns_and_b32 s22, s17, 7\ns_add_u32 s21, s21, s22\ns_lshr_b32 s29, s17, 3\ns_mul_i32 s79, s29, 7\ns_mul_i32 s33, s19, 288")
    k("v_bfe_u32 v10, v0, 1, 5\nv_mul_u32_u24 v10, 3456, v10\nv_and_b32 v11, 1, v0\nv_lshl_add_u32 v10, v11, 4, v10")
    k("v_bfe_u32 v11, v0, 3, 3\nv_mul_u32_u24 v11, 3456, v11\nv_and_b32 v12, 7, v0\nv_mul_u32_u24 v12, 36, v12\nv_add_u32 v11, v11, v12")
    k("s_lshl_b32 s80, s21, 3")
    sdiv(k, 81, 80, 7, 30)
    k(f"s_mul_i32 s30, s81, 7\ns_sub_u32 s80, s80, s30\ns_mul_i32 s81, s81, {32*3456}\ns_add_u32 s81, s81, s33\ns_mov_b32 m0, {128*KBY}\ns_mov_b32 s82, 8")
    k("s_waitcnt lgkmcnt(0)")
    srd(k, 60, 38, 576 * 3456)
    k.label("L_wq")
    k("s_add_u32 s30, s79, s80\ns_cmp_ge_u32 s30, 18\ns_cselect_b32 s31, 18, 0\ns_cselect_b32 s34, 2304, 0\ns_sub_u32 s30, s30, s31")
    k(f"s_cmp_ge_u32 s30, 9\ns_cselect_b32 s31, 9, 0\ns_cselect_b32 s35, 1152, 0\ns_sub_u32 s30, s30, s31\ns_add_u32 s34, s34, s35\ns_cmp_eq_u32 s34, 3456\ns_cselect_b32 s34, {BIG}, s34")
    k("s_add_u32 s34, s34, s81\ns_cmp_eq_u32 s30, 8\ns_cbranch_scc1 L_wqb\ns_mul_i32 s30, s30, 36\ns_add_u32 s34, s34, s30")
    k("buffer_load_dwordx4 v10, s[60:63], s34 offen lds\ns_add_u32 m0, m0, 1024")
    k.label("L_wqj")
    k(f"s_add_u32 s80, s80, 1\ns_cmp_eq_u32 s80, 7\ns_cselect_b32 s80, 0, s80\ns_cselect_b32 s30, {32*3456}, 0\ns_add_u32 s81, s81, s30")
    k("s_sub_u32 s82, s82, 1\ns_cmp_lg_u32 s82, 0\ns_cbranch_scc1 L_wq\ns_branch L_wqx")
    k.label("L_wqb")
    k("s_add_u32 s34, s34, 32")
    for q in range(4): k(f"buffer_load_dword v11, s[60:63], s34 offen lds\ns_add_u32 m0, m0, 256\ns_add_u32 s34, s34, {8*3456}")
    k("s_branch L_wqj")
    k.label("L_wqx")
    if envs("B0", "1") == "1": k("s_barrier")
    ptrs(k)
    wq_base(k)
    k(f"s_lshl_b32 s30, s21, 13\ns_add_u32 s30, s30, s25\ns_add_u32 s31, s30, 4096\nv_lshrrev_b32 v3, 1, v1\nv_add_u32 v3, {128*KBY}, v3")
    k(f"s_cmp_eq_u32 s21, 15\ns_cselect_b32 s32, {BIG}, s31")
    k(f"s_lshl_b32 s24, s22, 7\ns_add_u32 s24, s24, {FQ}\ns_lshl_b32 s27, s21, 3\ns_add_u32 s27, s27, s24\ns_waitcnt vmcnt(0)")
    stamp(k, 41)
    token_load(k)
    for sl in range(8):
        for hf in range(2): k(f"ds_read_b64_tr_b16 v[{16+4*sl+2*hf}:{17+4*sl+2*hf}], v3 offset:{sl*1024 + hf*512}")
    for sl in range(8): k(f"s_waitcnt lgkmcnt({14-2*sl})\nbuffer_store_dwordx4 v[{16+4*sl}:{19+4*sl}], v1, s[8:11], s{30 if sl < 4 else 31 if sl < 6 else 32} offen offset:{(sl%4)*1024} sc1")
    k("s_waitcnt vmcnt(0)")
    token_get(k, "b")
    publish(k, "s27")
    stamp(k, 42)
    k("s_mov_b32 s56, s24\nv_and_b32 v2, 15, v0\nv_lshlrev_b32 v2, 3, v2")
    poll(k, "q", wg=False)
    stamp(k, 43)
    k("s_branch L_p0_fetch")
    k.label("L_p0_23")
    k("s_sub_u32 s21, s20, 2\nv_bfe_u32 v4, v0, 3, 3\nv_and_b32 v5, 7, v0\ns_memrealtime s[94:95]")
    k("s_lshl_b32 s23, s2, 1\ns_add_u32 s23, s23, s21")
    sdiv(k, 25, 23, 3, 30)
    k("s_mul_i32 s30, s25, 3\ns_sub_u32 s28, s23, s30\ns_mul_i32 s28, s28, 6")
    sdiv(k, 26, 25, 18, 30)
    k("s_mul_i32 s30, s26, 18\ns_sub_u32 s25, s25, s30\ns_cmp_ge_u32 s25, 9\ns_cselect_b32 s27, 18, 0\ns_cselect_b32 s30, 9, 0\ns_sub_u32 s25, s25, s30")
    k(f"s_mul_i32 s30, s26, 9\ns_add_u32 s25, s25, s30\ns_lshl_b32 s24, s25, 7\ns_mul_i32 s30, s28, {32*9216}\ns_add_u32 s24, s24, s30")
    k("v_mul_u32_u24 v6, 9216, v4\nv_lshl_add_u32 v6, v5, 4, v6\ns_waitcnt lgkmcnt(0)")
    ptrs(k)
    k(f"s_or_b32 s94, s94, 1\ns_or_b32 s95, s95, 0x80000000\nv_mov_b32 v16, s94\nv_mov_b32 v17, s95\ns_cmp_eq_u32 s23, 0\ns_cselect_b32 s30, 0, {BIG}")
    k("buffer_store_dwordx2 v[16:17], v13, s[84:87], s30 offen sc1")
    if envs("B0", "1") == "1": k("s_barrier")
    k("s_cmp_ge_u32 s2, 216\ns_cbranch_scc1 L_p0_wo")
    k(f"s_cmp_eq_u32 s27, 0\ns_cselect_b32 s60, s40, s42\ns_cselect_b32 s61, s41, s43\ns_mov_b32 s62, {576*9216}\ns_mov_b32 s63, 0x00020000")
    if envs("NOBG", ""): k("s_mov_b32 s62, 0")
    for u in range(6):
        for i in range(4): k(f"buffer_load_dwordx4 {park(u, i)}, v6, s[60:63], s24 offen nt\ns_add_u32 s24, s24, {8*9216}")
    if envs("CODEPF", "1") == "1":
        k("s_getpc_b64 s[12:13]")
        k.label("L_pc")
        k(f"s_mov_b32 s14, L_end-L_pc\ns_mov_b32 s15, 0x00020000\nv_lshlrev_b32 v2, 3, v1\ns_lshl_b32 s30, s17, 13\ns_cmp_eq_u32 s20, 3\ns_cselect_b32 s30, s30, {BIG}")
        k("buffer_load_dword v20, v2, s[12:15], s30 offen")
    token_load(k)
    k("s_add_u32 s29, s27, s28")
    for c in range(4):
        k(f"s_lshl_b32 s30, s25, 2\ns_add_u32 s30, s30, {c}")
        sdiv(k, 31, 30, 9, 33)
        k("s_mul_i32 s33, s31, 9\ns_sub_u32 s30, s30, s33\ns_mul_i32 s31, s31, 486\ns_mul_i32 s30, s30, 36\ns_add_u32 s30, s30, s31\ns_add_u32 s30, s30, s29")
        k(f"s_add_u32 s30, s30, {OFF_WF//KBY}\ns_lshl_b32 s{DST+c}, s30, 10")
    if EARLY == "p0":
        stage_addr(k)
        k("s_waitcnt vmcnt(0)")
        stamp(k, 43)
        for n in range(8): pack_block(k, n, 6)
    sdiv(k, 25, 2, 3, 30)
    k("s_mul_i32 s30, s25, 3\ns_sub_u32 s28, s2, s30\ns_mul_i32 s28, s28, 6\ns_mul_i32 s30, s21, 3\ns_add_u32 s28, s28, s30")
    k("s_mul_i32 s30, s26, 9\ns_sub_u32 s25, s25, s30")
    for c in range(4):
        k(f"s_lshl_b32 s30, s25, 2\ns_add_u32 s30, s30, {c}")
        sdiv(k, 31, 30, 9, 33)
        k("s_mul_i32 s33, s31, 9\ns_sub_u32 s30, s30, s33\ns_add_u32 s33, s30, 1\ns_cmp_eq_u32 s30, 8\ns_cselect_b32 s33, 0, s33")
        k("s_bitcmp1_b32 s31, 0\ns_cselect_b32 s30, s30, s33\ns_lshl_b32 s33, s26, 2\ns_add_u32 s31, s31, s33\ns_mul_i32 s31, s31, 486")
        k(f"s_mul_i32 s30, s30, 18\ns_add_u32 s30, s30, s31\ns_add_u32 s30, s30, s28\ns_add_u32 s30, s30, {324 + OFF_WF//KBY}\ns_lshl_b32 s{78+c}, s30, 10")
    srd(k, 60, 44, 4608 * 1152)
    k("s_lshl_b32 s24, s25, 7\ns_mul_i32 s35, s26, 576")
    for u in range(3):
        k("s_lshr_b32 s30, s28, 2\ns_mul_i32 s30, s30, 144\ns_and_b32 s31, s28, 3\ns_lshl_b32 s31, s31, 5\ns_add_u32 s30, s30, s31")
        k("s_mul_i32 s31, s28, 288\ns_sub_u32 s31, s31, 4480\ns_cmp_ge_u32 s28, 16\ns_cselect_b32 s30, s31, s30\ns_cselect_b32 s37, 144, 16")
        k(f"s_add_u32 s30, s30, s35\ns_mul_i32 s30, s30, 1152\ns_add_u32 s{72+2*u}, s30, s24\ns_mul_i32 s37, s37, 1152\ns_add_u32 s{73+2*u}, s{72+2*u}, s37\ns_add_u32 s28, s28, 1")
    k("s_mov_b32 s67, 1\ns_waitcnt vmcnt(0)")
    token_get(k, "c")
    k("s_branch L_p0_wait")
    k.label("L_p0_wo")
    token_load(k)
    k("s_sub_u32 s23, s23, 432\ns_cmp_lt_u32 s23, 54\ns_cbranch_scc1 L_p0_wo2\ns_waitcnt vmcnt(0)")
    token_get(k, "d")
    k("s_branch L_p0_wait")
    k.label("L_p0_wo2")
    srd(k, 12, 46, 576 * 1152)
    sdiv(k, 27, 23, 3, 30)
    k("s_mul_i32 s30, s27, 3\ns_sub_u32 s25, s23, s30\ns_mul_i32 s25, s25, 3")
    k("v_lshrrev_b32 v7, 1, v4\nv_mul_u32_u24 v7, 18, v7\nv_and_b32 v8, 1, v4\nv_add_u32 v7, v7, v8")
    k("s_mul_i32 s30, s27, 36\ns_sub_u32 s31, s27, 16\ns_mul_i32 s31, s31, 288\ns_add_u32 s31, s31, 16")
    k(f"s_cmp_lt_u32 s27, 16\ns_cselect_b32 s30, s30, s31\ns_mov_b32 s28, {18*1152}\ns_mov_b32 s29, {8*1152}\ns_cselect_b32 s28, s28, {144*1152}\ns_cselect_b32 s29, s29, {72*1152}\ns_cselect_b64 vcc, -1, 0")
    k("s_mul_i32 s32, s30, 1152\ns_lshl_b32 s31, s25, 7\ns_add_u32 s32, s32, s31")
    k("v_cndmask_b32 v8, v7, v4, vcc\nv_mul_u32_u24 v6, 1152, v8\nv_lshl_add_u32 v6, v5, 4, v6")
    k("s_add_u32 s33, s32, s29\ns_add_u32 s34, s32, s28\ns_add_u32 s35, s34, s29")
    for u in range(3):
        for i in range(4): k(f"buffer_load_dwordx4 {park(u, i)}, v6, s[12:15], s{32+i} offen offset:{128*u} nt")
    for u in range(3):
        for c in range(4):
            k(f"s_lshl_b32 s30, s25, 1\ns_add_u32 s30, s30, {2*u + (c >> 1)}\ns_cmp_ge_u32 s30, 9\ns_cselect_b32 s31, 9, 0\ns_cselect_b32 s33, 432, 0\ns_sub_u32 s30, s30, s31")
            k("s_sub_u32 s31, s30, 1\ns_lshr_b32 s31, s31, 1\ns_cmp_lt_u32 s30, 3\ns_cselect_b32 s31, 0, s31\ns_cselect_b32 s34, 0, 2")
            k(f"s_mul_i32 s31, s31, 104\ns_lshl_b32 s30, s30, 1\ns_add_u32 s30, s30, s31\ns_sub_u32 s30, s30, s34\ns_add_u32 s30, s30, s33")
            k(f"s_mul_i32 s31, s27, 6\ns_add_u32 s30, s30, s31\ns_add_u32 s30, s30, {OFF_WO//KBY + (c & 1)}\ns_lshl_b32 s{72+4*u+c}, s30, 10")
    stage_addr(k)
    k("s_waitcnt vmcnt(0)")
    for n in range(5): pack_block(k, n, 3, lambda u, c: (f"s{72+4*u+c}", 0))
    token_get(k, "e")
    k(f"s_lshl_b32 s56, s23, 3\ns_add_u32 s56, s56, {FW}\ns_waitcnt vmcnt(0)")
    publish(k)
    k.label("L_p0_wait")
    stamp(k, 44)
    k.label("L_p0_fetch")
    wq_base(k)
    k("s_lshl_b32 s26, s20, 12\ns_add_u32 s25, s25, s26\ns_mov_b32 m0, s26\ns_barrier")
    for q in range(8):
        for c in range(4): k(f"buffer_load_dwordx4 v1, s[8:11], s25 offen offset:{c*1024} lds")
        k("s_add_u32 m0, m0, 16384\ns_add_u32 s25, s25, 16384")
    if EARLY == "f":
        k("s_cmp_eq_u32 s67, 0\ns_cbranch_scc1 L_layer")
        stage_addr(k)
        for n in range(8): pack_block(k, n, 6)
        k("s_waitcnt vmcnt(24)\ns_branch L_p1_fetched")

def gemm_core(k, NTB, NS, loads, AHEAD, st0, tr, NBUF=2):
    ACC = 16; WB = ACC + 4 * NS * NTB
    pi = 0
    def take(n):
        nonlocal pi
        r = loads[pi:pi + n]; pi += len(r); return r
    nx = {}
    for f in loads: nx[f.tag] = nx.get(f.tag, 0) + 1
    for f in take(AHEAD): f.fn(k)
    if tr: k("v_lshrrev_b32 v3, 1, v1\nv_add_u32 v2, 0x10000, v3")
    else: k("v_mov_b32 v3, v1\nv_add_u32 v2, 0x10000, v1")
    def rd(ks, sl):
        i = ks * NS + sl; r = WB + 4 * ((ks % NBUF) * NS + sl); a = f"v{3 if i < 64 else 2}"; o = (i % 64) * 1024
        if tr: return [lgl(f"ds_read_b64_tr_b16 v[{r}:{r+1}], {a} offset:{o}", ("r", ks)), lgl(f"ds_read_b64_tr_b16 v[{r+2}:{r+3}], {a} offset:{o+512}", ("r", ks))]
        return [lgl(f"ds_read_b128 v[{r}:{r+3}], {a} offset:{o}", ("r", ks))]
    for ks in range(NBUF - 1):
        for sl in range(NS):
            for f in rd(ks, sl): f.fn(k)
    for ks in range(18):
        while k.vmq.count(("x", ks)) < nx[("x", ks)]: take(1)[0].fn(k)
        k.wait_vm(("x", ks)); k.wait_lg(("r", ks))
        if ks == 0: stamp(k, st0)
        mf = []
        for sl in range(NS):
            for tb in range(NTB):
                a = ACC + 4 * (sl * NTB + tb); w = WB + 4 * ((ks % NBUF) * NS + sl); x = 4 * (ks * NTB + tb)
                mf.append(f"{MF} v[{a}:{a+3}], v[{w}:{w+3}], a[{x}:{x+3}], " + ("0" if ks == 0 else f"v[{a}:{a+3}]"))
        fill = [f for sl in range(NS) for f in rd(ks + NBUF - 1, sl)] if ks + NBUF - 1 < 18 else []
        if NBUF == 2 and envs("FRONT", "1") == "1":
            for j, f in enumerate(fill): f.before = j + 1
        outstanding = len(k.vmq) - k.vm_done
        interleave(k, mf, [fill, take(max(0, AHEAD + 2 - outstanding))], budget=8 if NTB == 2 else 12)
    assert pi == len(loads), (pi, len(loads))
def tl(s, tag, post="", cost=8):
    f = F(lambda k: (k.vm(s, tag), k(post) if post else None), cost); f.tag = tag; return f

def p1_addr(k):
    k("s_lshl_b32 s21, s18, 3\ns_and_b32 s22, s17, 7\ns_add_u32 s21, s21, s22")
    k("s_lshr_b32 s29, s17, 3")
    k(f"s_lshl_b32 s56, s21, 7\ns_add_u32 s56, s56, {FA}\nv_and_b32 v2, 15, v0\nv_lshlrev_b32 v2, 3, v2")
    k(f"s_lshl_b32 s26, s21, 2\ns_add_u32 s26, s26, s20")
    k(f"s_mul_i32 s23, s26, {36*KBY}\ns_add_u32 s23, s23, {OFF_XN}\ns_add_u32 s24, s23, {18*KBY}")
def p1_qkv(k):
    p1_addr(k)
    stamp(k, 0)
    k("s_cmp_lg_u32 s20, 0\ns_cbranch_scc1 L_pollx_a")
    poll(k, "a", wg=False)
    k("s_waitcnt vmcnt(0)")
    if EARLY == "f":
        k("s_branch L_p1_bar")
        k.label("L_p1_fetched")
        p1_addr(k)
        k.label("L_p1_bar")
    k("s_barrier")
    stamp(k, 1)
    fresh(k)
    loads = [tl(f"buffer_load_dwordx4 a[{4*(2*ks+tb)}:{4*(2*ks+tb)+3}], v1, s[8:11], s{23+tb} offen offset:{(ks%4)*1024}{LD}", ("x", ks),
                f"s_add_u32 s{23+tb}, s{23+tb}, 4096" if ks % 4 == 3 else "") for ks in range(18) for tb in range(2)]
    T1K = int(envs("T1", "18"))
    if T1K < 18:
        nl = (18 - T1K) * 2
        k(f"v_lshrrev_b32 v4, 4, v1\nv_cmp_gt_u32 vcc, {nl}, v4\nv_lshlrev_b32 v4, 9, v4\nv_mov_b32 v5, {BIG}\ns_lshl_b32 s30, s29, 7\ns_add_u32 s30, s30, {T1K*1024}\nv_cndmask_b32 v4, v5, v4, vcc")
        k("s_add_u32 s31, s30, s24\ns_add_u32 s30, s30, s23")
        p = int(envs("T1P", "6"))
        loads[p:p] = [tl(f"buffer_load_dword v{5+tb}, v4, s[8:11], s{30+tb} offen{LD}", "touch") for tb in range(2)]
    gemm_core(k, 2, 7, loads, int(envs("AH1", "10")), 2, False)
    stamp(k, 3)
    ACC = 16
    k("s_mul_i32 s28, s19, 27\ns_mul_i32 s31, s29, 7\ns_add_u32 s28, s28, s31")
    k("s_lshl_b32 s30, s28, 6\ns_add_u32 s30, s30, s26\ns_lshl_b32 s30, s30, 10\ns_add_u32 s30, s30, s53")
    k("s_mov_b32 s28, s31")
    k(f"s_lshl_b32 s56, s19, 11\ns_lshl_b32 s27, s21, 7\ns_add_u32 s56, s56, s27\ns_lshl_b32 s27, s29, 3\ns_add_u32 s56, s56, s27\ns_add_u32 s56, s56, {FB}")
    for sl in range(7):
        a = ACC + 8 * sl
        k(f"s_cmp_lt_u32 s28, {9 - sl}\ns_cselect_b32 s31, {fbits(18 ** -0.5 * LOG2E)}, 1.0")
        for i in range(8): k(f"v_mul_f32 v{a+i}, s31, v{a+i}")
        for i in range(4): k(f"v_cvt_pk_bf16_f32 v{a+i}, v{a+2*i}, v{a+2*i+1}")
        if sl == 6: k(f"s_cmp_eq_u32 s29, 3\ns_cselect_b32 s30, {BIG}, s30")
        k.vm(f"buffer_store_dwordx4 v[{a}:{a+3}], v1, s[8:11], s30 offen sc1")
        if sl < 6: k("s_add_u32 s30, s30, 65536")
    stamp(k, 4)
    signal(k)
    if EARLY in ("p0", "f"): publish_fp(k, FP)
    elif EARLY == "b": early_blocks(k)
    stamp(k, 5)

def p2_attn(k):
    k("s_lshl_b32 s21, s18, 3\ns_and_b32 s22, s17, 7\ns_add_u32 s21, s21, s22")
    k("s_lshr_b32 s48, s17, 3\ns_lshl_b32 s22, s19, 2\ns_add_u32 s22, s22, s48")
    k(f"s_cmp_lg_u32 s20, 0\ns_cbranch_scc1 L_pollx_w0\ns_cmp_lg_u32 s50, 0\ns_cbranch_scc1 L_pollx_w0\ns_mov_b32 s56, {FW}\nv_min_u32 v2, 53, v0\nv_lshlrev_b32 v2, 3, v2")
    poll(k, "w0", wg=False)
    k("v_and_b32 v3, 63, v0\nv_lshrrev_b32 v4, 4, v3")
    k("v_and_b32 v5, 1, v4\nv_lshlrev_b32 v5, 7, v5\nv_xor_b32 v5, v5, v1")
    k("s_mul_i32 s23, s20, 3\ns_lshl_b32 s24, s21, 2\ns_add_u32 s24, s24, s23\ns_sub_i32 s24, s24, 8")
    for c in range(3):
        k(f"s_cmp_lt_i32 s24, {-c}\ns_cselect_b32 s25, {BIG}, 0")
        k(f"v_add_u32 v{6+c}, s25, v1\nv_add_u32 v{9+c}, s25, v5")
    k(f"s_mul_i32 s49, s19, {27*65536}\ns_add_u32 s49, s49, s53")
    k("s_lshl_b32 s24, s24, 10\ns_add_u32 s27, s24, s49")
    k("s_lshl_b32 s25, s48, 17\ns_add_u32 s25, s25, s27")
    k("s_lshl_b32 s23, s23, 10")
    Q, M1, M2, ONE = 16, 32, 36, 40
    L8, LO, HI, BP, OBV, PKA = 44, 45, 46, 47, 12, 5
    k("s_and_b32 s29, s20, 1\ns_lshr_b32 s30, s20, 1")
    k("s_lshl_b32 s32, s21, 2\ns_lshl_b32 s33, s30, 1\ns_add_u32 s32, s32, s33")
    k("s_lshl_b32 s34, s32, 10\ns_add_u32 s34, s34, s49")
    k(f"s_lshl_b32 s33, s48, 1\ns_add_u32 s33, s33, s29\ns_lshl_b32 s33, s33, 16\ns_add_u32 s33, s33, s34\ns_add_u32 s34, s34, {8*65536}")
    k(f"v_and_b32 v12, 15, v3\nv_lshlrev_b32 v46, 2, v4\ns_mov_b32 s35, {fbits(-1e30)}\nv_mov_b32 v47, s35")
    for i in range(4):
        k(f"v_add_u32 v2, {i}, v46\nv_cmp_gt_u32 vcc, v2, v12\nv_mov_b32 v{ONE+i}, 0x3f803f80\ns_nop 0")
        k(f"v_cndmask_b32 v{M1+i}, v47, 0, vcc\nv_cndmask_b32 v{M2+i}, 0, v47, vcc")
    k(f"v_cmp_eq_u32 s[38:39], s48, v4\ns_lshl_b32 s36, s48, 6\nv_lshl_add_u32 v{BP}, v12, 2, s36")
    k("s_cmp_eq_u32 s29, 1\ns_cselect_b64 s[40:41], -1, 0")
    k("s_andn2_b64 s[42:43], s[38:39], s[40:41]\ns_and_b64 s[44:45], s[38:39], s[40:41]")
    k("s_lshl_b32 s36, s22, 1\ns_add_u32 s36, s36, s29")
    k(f"s_lshl_b32 s47, s32, 15\ns_lshl_b32 s37, s36, 9\ns_add_u32 s47, s47, s37\ns_add_u32 s47, s47, {OFF_OF}")
    k(f"s_lshl_b32 s46, s32, 12\ns_lshl_b32 s37, s36, 8\ns_add_u32 s46, s46, s37\ns_add_u32 s46, s46, {OFF_OB}")
    k("s_mul_i32 s36, s29, 12288\ns_lshl_b32 s37, s30, 11\ns_add_u32 s36, s36, s37\ns_add_u32 s37, s37, 24576")
    k("v_and_b32 v44, 3, v3\nv_lshrrev_b32 v48, 2, v3\nv_and_b32 v45, 1, v3\nv_lshlrev_b32 v45, 3, v45\nv_xor_b32 v48, v48, v45\nv_lshl_add_u32 v48, v44, 4, v48\nv_lshlrev_b32 v48, 4, v48")
    k(f"v_lshrrev_b32 v{L8}, 1, v1\nv_mov_b32 v{LO}, {fbits(2.0**-30)}\nv_mov_b32 v{HI}, {fbits(2.0**30)}\ns_mov_b64 s[64:65], {-1 if FORCE_EXACT else 0}")
    k(f"s_lshr_b32 s58, s17, 2\ns_mul_i32 s58, s58, {108*KBY}\ns_add_u32 s58, s58, {OFF_WO}\ns_lshl_b32 s59, s20, 12\ns_add_u32 s58, s58, s59")
    k("v_bfe_u32 v2, v0, 2, 2\nv_min_u32 v2, 2, v2\nv_sub_u32 v2, s21, v2\nv_max_i32 v2, 0, v2\nv_lshlrev_b32 v2, 7, v2\nv_and_b32 v49, 3, v0\nv_lshl_add_u32 v2, v49, 3, v2")
    k(f"s_lshl_b32 s56, s19, 11\ns_add_u32 s56, s56, {FB}")
    poll(k, "b")
    stamp(k, 6)
    fresh(k)
    blocks = [(25, 9), (25, 10), (27, 17), (25, 18), (25, 19), (27, 26)]
    def dma(b):
        sb, nb = blocks[b]
        k(f"s_add_u32 m0, s23, {b*12288}\ns_add_u32 s28, s{sb}, {nb*65536}")
        for c in range(3):
            k.vm(f"buffer_load_dwordx4 v{(6 if b < 3 else 9)+c}, s[8:11], s28 offen offset:{c*1024} lds", ("kv", b // 3))
    for b in range(3): dma(b)
    for i in range(4):
        off = (i >> 1) * 1024 + (i & 1) * 8
        k.vm(f"buffer_load_dwordx2 v[{Q+4*i}:{Q+4*i+1}], v1, s[8:11], s33 offen offset:{off}", "q")
        k.vm(f"buffer_load_dwordx2 v[{Q+4*i+2}:{Q+4*i+3}], v1, s[8:11], s34 offen offset:{off}", "q")
    for b in range(3, 6): dma(b)
    k("v_add_u32 v6, s36, v1\nv_add_u32 v7, s37, v1")
    k("s_add_u32 s36, s36, 36864\ns_add_u32 s37, s37, 36864\nv_add_u32 v8, s36, v48\nv_add_u32 v9, s37, v48")
    k(f"s_lshl_b32 s56, s21, 7\ns_lshl_b32 s27, s22, 3\ns_add_u32 s56, s56, s27\ns_add_u32 s56, s56, {FC}")
    k("v_bfe_u32 v10, v0, 3, 3\nv_mul_u32_u24 v10, 1152, v10\nv_and_b32 v11, 7, v0\nv_lshl_add_u32 v10, v11, 4, v10\nv_add_u32 v11, 9216, v10")
    k("s_mov_b32 s36, s47\nv_lshrrev_b32 v5, 2, v1")
    KR, VR = 0, 80
    k.wait_vm("q")
    k("s_barrier")
    stamp(k, 7)
    for i in range(4):
        k(f"v_cndmask_b32 v{Q+4*i+2}, 0, v{Q+4*i+2}, s[42:43]\nv_cndmask_b32 v{Q+4*i+3}, 0, v{Q+4*i+3}, s[44:45]")
    S0 = 48; OA = S0 + 144; TM = OA + 24
    def run(mf, valu, gap_first=0, frac=0.9):
        tot = sum(f.cost for f in valu); acc = 0; mi = 0
        for f in valu:
            while mi < len(mf) and acc >= gap_first + (tot - gap_first) * mi / max(len(mf), 1) * frac:
                mf[mi](k); mi += 1
            f.fn(k); acc += f.cost
        while mi < len(mf): mf[mi](k); mi += 1
    def epi(i, check):
        o = OA + 12 * (i & 1); t = TM + 2
        L = [line(f"v_rcp_f32 v{t}, v{o+8}", 8),
             line(f"v_cndmask_b32 v{o+4}, v{o+4}, v{o+6}, s[40:41]"), line(f"v_cndmask_b32 v{o+5}, v{o+5}, v{o+7}, s[40:41]")]
        if check:
            L += [line(f"v_med3_f32 v{o+9}, v{o+8}, v{LO}, v{HI}"), line(f"v_sub_f32 v{o+9}, v{o+9}, v{o+8}")]
            L += [line(f"v_fma_f32 v{o+9}, v{o+j}, 0, v{o+9}") for j in range(6)]
            L += [line(f"v_cmp_neq_f32 vcc, 0, v{o+9}")]
        for j in range(6): L.append(line(f"v_mul_f32 v{o+j}, v{o+j}, v{t}"))
        if check: L.append(line("s_or_b64 s[64:65], s[64:65], vcc"))
        for j in (2, 0, 1): L.append(line(f"v_cvt_pk_bf16_f32 v{o+(j if j < 2 else 6)}, v{o+2*j}, v{o+2*j+1}"))
        L.append(lgl(f"ds_bpermute_b32 v{TM+3}, v{BP}, v{o+6}", ("bp", i)))
        L.append(vml(f"buffer_store_dwordx2 v[{o}:{o+1}], v{L8}, s[8:11], s47 offen sc1"))
        L.append(line(f"s_add_u32 s47, s47, 16384"))
        L2 = [line(f"s_mov_b32 vcc_lo, {(0xffff, 0xffff0000, 0, 0)[i]}\ns_mov_b32 vcc_hi, {(0, 0, 0xffff, 0xffff0000)[i]}", 8),
              F(lambda k: (k.wait_lg(("bp", i)), k(f"v_cndmask_b32 v{OBV}, v{OBV}, v{TM+3}, vcc")), 8)]
        if i == 3: L2.append(vml(f"buffer_store_dword v{OBV}, v5, s[8:11], s46 offen sc1"))
        return (L, L2) if check else L + L2
    def variant(lim, fast, first):
        nm = f"{'f' if fast else 'e'}{'' if first else 'r'}{lim}"
        k.label(f"L_attn_{nm}")
        k.lgq = []; k.lg_done = 0
        tiles = lambda i: list(range(max(i, lim), i + 17))
        pairs = lambda i: list(range(max(i, lim) >> 1, ((i + 16) >> 1) + 1))
        kreads, vreads, extra = [], [], []
        if first:
            for kt in range(lim, 20):
                off = (kt >> 1) * 1024 + (kt & 1) * 8
                kreads += [lgl(f"ds_read_b64 a[{KR+4*kt}:{KR+4*kt+1}], v6 offset:{off}", ("k", kt)), lgl(f"ds_read_b64 a[{KR+4*kt+2}:{KR+4*kt+3}], v7 offset:{off}", ("k", kt))]
            vreads = [line("s_waitcnt vmcnt(0)\ns_barrier", 8)]
            for p in range(lim // 2, 10):
                for b in range(2):
                    for hf in range(2):
                        r = VR + 8 * p + 4 * b + 2 * hf
                        vreads.append(lgl(f"ds_read_b64_tr_b16 a[{r}:{r+1}], v{8+b} offset:{p*1024 + hf*8}", ("v", p)))
            wo = [lambda k: (k.wait_lg_all(), k("s_mov_b32 m0, s59\ns_barrier"))]
            for q in range(7):
                for c in range(4):
                    wo.append(lambda k, c=c: k(f"buffer_load_dwordx4 v1, s[8:11], s58 offen offset:{c*1024} lds" + ("\ns_add_u32 m0, m0, 16384\ns_add_u32 s58, s58, 16384" if c == 3 else "")))
            def pkl(u):
                def f(k):
                    k(f"s_cmp_eq_u32 s67, 0\ns_cbranch_scc1 L_pk_{nm}_{u}")
                    for i in range(4): k(f"buffer_load_dwordx4 {lpark(u, i)}, v{10 + (i & 1)}, s[60:63], s{72 + 2*u + (i >> 1)} offen nt")
                    k.label(f"L_pk_{nm}_{u}")
                return f
            extra = [pkl(0), pkl(1), pkl(2)] + wo
            if EARLY == "w":
                def pkb(n):
                    def f(k):
                        k(f"s_cmp_eq_u32 s67, 0\ns_cbranch_scc1 L_pb_{nm}_{n}")
                        if n == 0: stage_addr(k)
                        pack_block(k, n, 6)
                        k.label(f"L_pb_{nm}_{n}")
                    return f
                extra = [pkl(0), pkl(1), pkl(2), pkb(0), pkb(1), wo[0]]
                for n in range(6): extra += [pkb(2 + n)] + wo[1 + 28 * n // 6: 1 + 28 * (n + 1) // 6]
        def qk1(i, kt, s):
            c = f"v[{M2}:{M2+3}]" if kt == i + 16 else f"v[{M1}:{M1+3}]" if kt == i else "0"
            def f(k):
                if first: k.wait_lg(("k", kt))
                k(f"{MF} v[{s}:{s+3}], a[{KR+4*kt}:{KR+4*kt+3}], v[{Q+4*i}:{Q+4*i+3}], {c}")
            return f
        def pv1(i, p, b, s):
            o = OA + 12 * (i & 1) + 4 * b
            A = f"v[{ONE}:{ONE+3}]" if b == 2 else f"a[{VR+8*p+4*b}:{VR+8*p+4*b+3}]"
            def f(k):
                if first: k.wait_lg(("v", p))
                k(f"{MF} v[{o}:{o+3}], {A}, v[{s}:{s+3}], " + ("0" if p == pairs(i)[0] else f"v[{o}:{o+3}]"))
            return f
        if fast:
            steps = [(i, p) for i in range(4) for p in pairs(i)]
            QL, PL = 2, int(envs("PL", "7")); NB = QL + PL + 1; SP = int(envs("SP", "9"))
            buf = lambda s: S0 + 8 * (s % NB)
            def qks(s):
                if s >= len(steps): return []
                i, p = steps[s]
                return [qk1(i, 2 * p + hf, buf(s) + 4 * hf) for hf in range(2) if 2 * p + hf in tiles(i)]
            def pvs(s):
                if not 0 <= s < len(steps): return []
                return [pv1(*steps[s], b, buf(s)) for b in range(3)]
            def exps(s):
                if s >= len(steps): return []
                i, p = steps[s]; b = buf(s); va, vb = 2 * p in tiles(i), 2 * p + 1 in tiles(i)
                E = lambda r: line(f"v_exp_f32 v{r}, v{r}", 8); C = lambda d, r: line(f"v_cvt_pk_bf16_f32 v{d}, v{r}, v{r+1}")
                Z = lambda d: line(f"v_mov_b32 v{d}, 0")
                if va and vb: return [E(b), E(b+1), E(b+2), E(b+3), E(b+4), C(b, b), E(b+5), C(b+1, b+2), E(b+6), E(b+7), C(b+2, b+4), C(b+3, b+6)]
                if va: return [E(b), E(b+1), E(b+2), E(b+3), C(b, b), C(b+1, b+2), Z(b+2), Z(b+3)]
                return [E(b+4), E(b+5), E(b+6), E(b+7), Z(b), Z(b+1), C(b+2, b+4), C(b+3, b+6)]
            n0 = min(12, len(kreads))
            for f in kreads[:n0]: f.fn(k)
            side = [f.fn for f in kreads[n0:]]; nk = len(side)
            side = side + [f.fn for f in vreads]
            for s in range(QL):
                for m in qks(s):
                    m(k)
                    for _ in range(2):
                        if side and nk > 0: side.pop(0)(k); nk -= 1
            k("s_nop 4")
            last = {i: max(s for s, (ii, p) in enumerate(steps) if ii == i) for i in range(4)}
            pend = []; pend2 = []; pvp = 0; s = 0; nsteps = max(len(steps), PL) + 2
            while pvp < len(steps):
                if s in [last[i] + 1 for i in range(3)]: stamp(k, 8 + [last[i] + 1 for i in range(3)].index(s))
                todo = []
                while s >= PL and pvp < min(s, len(steps)) and len(todo) < 2 and not (todo and todo[-1] in last.values()):
                    todo.append(pvp); pvp += 1
                mf = [m for t in todo for m in pvs(t)] + qks(s + QL)
                sd = []
                while side and (len(sd) < SP): sd.append(side.pop(0))
                if not side and not sd and extra:
                    q = -(-len(extra) // max(1, nsteps - 2 - s)); sd = extra[:q]; extra = extra[q:]
                va = exps(s)
                if pend and len(va) < 12: va = va + [line("s_nop 7", 32)]
                va = va + pend2 + pend; pend2 = []
                if pend: pend2 = later
                pend = []
                for i in range(4):
                    if last[i] in todo: pend, later = epi(i, True)
                mix = []
                a, b2 = list(mf), list(sd)
                while a or b2:
                    if b2:
                        for _ in range(-(-len(b2) // max(1, len(a)))): mix.append(b2.pop(0))
                    if a: mix.append(a.pop(0))
                if not va: va = [line("s_nop 1")]
                run(mix, va, 4, 0.85)
                s += 1
            for f in extra: f(k)
            assert not side
            for f in pend2: f.fn(k)
            k("s_nop 7")
            for f in pend + later: f.fn(k)
            k("s_cmp_eq_u64 s[64:65], 0\ns_cbranch_scc1 L_attn_done")
            k(f"s_waitcnt vmcnt(0)\ns_mov_b32 s47, s36\ns_branch L_attn_er{lim}")
            return
        sreg = lambda i, kt: S0 + 72 * (i & 1) + 4 * (kt - 2 * (i >> 1))
        qk = lambda i: [qk1(i, kt, sreg(i, kt)) for kt in tiles(i)]
        pv = lambda i: [pv1(i, p, b, sreg(i, 2 * p)) for b in range(3) for p in pairs(i)]
        def softmax(i):
            L = []
            regs = [sreg(i, kt) + j for kt in tiles(i) for j in range(4)]
            m = TM; t = TM + 1
            ch = [regs[0::2], regs[1::2]]
            for c in range(2): L.append(line(f"v_max_f32 v{m+c}, v{ch[c][0]}, v{ch[c][1]}"))
            for j in range(2, len(ch[0]), 2):
                for c in range(2): L.append(line(f"v_max3_f32 v{m+c}, v{m+c}, v{ch[c][j]}, v{ch[c][j+1]}"))
            L.append(line(f"v_max_f32 v{m}, v{m}, v{t}"))
            for sw in ("v_permlane16_swap_b32", "v_permlane32_swap_b32"):
                L.append(line(f"v_mov_b32 v{t}, v{m}\ns_nop 1\n{sw} v{m}, v{t}\nv_max_f32 v{m}, v{m}, v{t}", 16))
            for p in pairs(i):
                base = sreg(i, 2 * p)
                for hf in range(2):
                    kt = 2 * p + hf; s = sreg(i, kt)
                    if kt in tiles(i):
                        for j in range(4): L.append(line(f"v_sub_f32 v{s+j}, v{s+j}, v{m}"))
                        for j in range(4): L.append(line(f"v_exp_f32 v{s+j}, v{s+j}", 8))
                for hf in range(2):
                    kt = 2 * p + hf; s = sreg(i, kt)
                    for j in range(2):
                        if kt in tiles(i): L.append(line(f"v_cvt_pk_bf16_f32 v{base+2*hf+j}, v{s+2*j}, v{s+2*j+1}"))
                        else: L.append(line(f"v_mov_b32 v{base+2*hf+j}, 0"))
            return L
        for f in kreads: f.fn(k)
        for m in qk(0): m(k)
        k("s_nop 7")
        for i in range(4):
            mf = (pv(i - 1) if i >= 1 else []) + (qk(i + 1) if i < 3 else [])
            if i == 0: mf = mf + [f.fn for f in vreads]
            if i == 1: mf = extra + mf
            va = softmax(i)
            if i >= 2: va = epi(i - 2, False) + va
            run(mf, va, 8 if i else 0)
            k("s_nop 1")
        run(pv(3), epi(2, False))
        k("s_nop 7")
        for f in epi(3, False): f.fn(k)
        k("s_branch L_attn_done")
    v = "f" if FAST else "e"
    for lim in (16, 12, 8, 4): k(f"s_cmp_eq_u32 s32, {(16 - lim) // 2}\ns_cbranch_scc1 L_attn_{v}{lim}")
    for lim in (0, 4, 8, 12, 16): variant(lim, FAST, True)
    if FAST:
        for lim in (0, 4, 8, 12, 16): variant(lim, False, False)
    k.label("L_attn_done")
    stamp(k, 12)
    signal(k)
    if EARLY not in ("p0", "f"): publish_fp(k, FP)
    late_blocks(k)
    stamp(k, 13)

AG, AU, T1, T2, XV, RING = 16, 32, 48, 64, 80, 112
RESID = RING + 4 * 18
G = 3; LEAD = 36 - G
def wload(p):
    r = RING + 4 * (p % 36)
    if p >= 486: return []
    s = f"buffer_load_dwordx4 v[{r}:{r+3}], v1, s[12:15], s25 offen offset:{(p%4)*1024}"
    return [vml(s, ("w", p), cost=int(envs("LC", "8")))] + ([line("s_add_u32 s25, s25, 4096")] if p % 4 == 3 else [])

def p3_wo(k):
    NS = 6; ACC = 16; NB3 = int(envs('NB3', '3')); RES = ACC + 24 + 24 * NB3
    k("s_lshl_b32 s21, s16, 2\ns_and_b32 s22, s17, 3\ns_add_u32 s26, s21, s22")
    k("s_lshr_b32 s22, s17, 2")
    k("s_lshl_b32 s21, s26, 2\ns_add_u32 s21, s21, s20")
    k(f"s_lshl_b32 s23, s21, 14\ns_add_u32 s23, s23, {OFF_OF}")
    k(f"s_lshl_b32 s24, s26, 13\ns_lshl_b32 s30, s20, 6\ns_add_u32 s24, s24, s30\ns_add_u32 s24, s24, {OFF_OB}")
    k("s_lshr_b32 s28, s22, 2\ns_mul_i32 s28, s28, 9\ns_and_b32 s29, s22, 3\ns_lshl_b32 s30, s29, 1\ns_add_u32 s30, s30, 1\ns_cmp_eq_u32 s29, 0\ns_cselect_b32 s30, 0, s30\ns_add_u32 s28, s28, s30")
    k(f"s_mul_i32 s27, s21, 18\ns_add_u32 s27, s27, s28\ns_lshl_b32 s27, s27, 10\ns_add_u32 s40, s27, {OFF_XF}\ns_add_u32 s41, s27, {OFF_X1}")
    k("v_lshrrev_b32 v10, 1, v1\nv_and_b32 v11, 15, v0\nv_lshlrev_b32 v11, 2, v11\nv_bfe_u32 v12, v0, 4, 2\nv_lshl_add_u32 v11, v12, 9, v11")
    k(f"s_lshr_b32 s56, s26, 1\ns_lshl_b32 s56, s56, 7\ns_add_u32 s56, s56, {FC}\nv_and_b32 v2, 15, v0\nv_lshlrev_b32 v2, 3, v2")
    poll(k, "c")
    stamp(k, 14)
    fresh(k)
    loads = []
    for ks in range(16):
        for h in range(2):
            loads.append(tl(f"buffer_load_dwordx2 a[{4*ks+2*h}:{4*ks+2*h+1}], v10, s[8:11], s23 offen offset:{(ks%4)*1024 + 512*h}{LD}", ("x", ks),
                            "s_add_u32 s23, s23, 4096" if ks % 4 == 3 and h else "", 4))
    for q in range(2):
        for j in range(4):
            loads.append(tl(f"buffer_load_dword a{64+4*q+j}, v11, s[8:11], s24 offen offset:{(j>>1)*2048 + (j&1)*256}{LD}", ("x", 16 + q),
                            "s_add_u32 s24, s24, 4096" if j == 3 else "", 4))
    for pr in range(3): loads.append(tl(f"buffer_load_dwordx4 v[{RES+4*pr}:{RES+4*pr+3}], v1, s[8:11], s40 offen offset:{pr*1024}{LD}", "res"))
    if envs("T3", "0") == "1":
        k(f"v_lshlrev_b32 v4, 3, v1\nv_cmp_gt_u32 vcc, 256, v1\nv_mov_b32 v5, {BIG}\ns_lshl_b32 s30, s22, 11\ns_add_u32 s30, s30, s23\nv_cndmask_b32 v4, v5, v4, vcc")
        k.vm(f"buffer_load_dword v5, v4, s[8:11], s30 offen{LD}", "touch")
    gemm_core(k, 1, NS, loads, int(envs("AH3", "14")), 15, False, NB3)
    k.wait_vm("res")
    stamp(k, 16)
    k("s_mov_b32 s31, 0xffff0000\ns_mov_b32 s32, 0x3f803f80\nv_mov_b32 v6, 0\nv_mov_b32 v7, 0\nv_and_b32 v3, 63, v0")
    k(f"v_cmp_gt_u32 vcc, 16, v3\nv_mov_b32 v9, {BIG}\ns_cmp_lg_u32 s29, 0\ns_cbranch_scc1 L_p3_two")
    for pr in (2, 0, 1):
        for h in range(4):
            a = ACC + 8 * pr + 2 * h; r = RES + 4 * pr + h
            k(f"v_lshlrev_b32 v4, 16, v{r}\nv_and_b32 v5, s31, v{r}\nv_add_f32 v4, v4, v{a}\nv_add_f32 v5, v5, v{a+1}\nv_cvt_pk_bf16_f32 v{r}, v4, v5")
        k(f"buffer_store_dwordx4 v[{RES+4*pr}:{RES+4*pr+3}], v1, s[8:11], s41 offen offset:{pr*1024} sc1")
        for h in range(4): k(f"v_dot2c_f32_bf16 v6, s32, v{RES+4*pr+h}\nv_dot2c_f32_bf16 v7, v{RES+4*pr+h}, v{RES+4*pr+h}")
        if pr == 2: k.label("L_p3_two")
    k(f"v_cndmask_b32 v8, v9, v10, vcc\ns_lshl_b32 s30, s21, 10\ns_lshl_b32 s31, s22, 7\ns_add_u32 s30, s30, s31\ns_add_u32 s30, s30, {OFF_STAT}")
    red_rows(k, 6, 4); red_rows(k, 7, 4)
    k.vm(f"buffer_store_dwordx2 v[6:7], v8, s[8:11], s30 offen sc1")
    k(f"s_lshl_b32 s56, s26, 7\ns_lshl_b32 s27, s22, 3\ns_add_u32 s56, s56, s27\ns_add_u32 s56, s56, {FD}")
    stamp(k, 17)
    signal(k)
    publish_fp(k, FP2)
    stamp(k, 18)

def p4_ffn(k):
    xreg = lambda ks, tb: (ar(4 * (ks * 4 + tb), 4) if ks < 16 else vr(XV + 4 * (ks * 4 + tb - 64), 4))
    if envs("FMAP", "2") == "2":
        k("s_lshl_b32 s21, s19, 1\ns_and_b32 s22, s17, 1\ns_add_u32 s21, s21, s22")
        k("s_lshl_b32 s22, s18, 4\ns_lshr_b32 s23, s17, 1\ns_add_u32 s22, s22, s23")
    else:
        k("s_and_b32 s21, s16, 1\ns_lshl_b32 s21, s21, 2\ns_and_b32 s22, s17, 3\ns_add_u32 s21, s21, s22")
        k("s_lshr_b32 s22, s16, 1\ns_lshl_b32 s22, s22, 3\ns_lshr_b32 s23, s17, 2\ns_add_u32 s22, s22, s23")
    k(f"s_lshl_b32 s24, s21, 2\ns_add_u32 s24, s24, s20\ns_mul_i32 s24, s24, {486*KBY}\ns_add_u32 s24, s24, {OFF_WF}")
    k(f"s_add_u32 s12, s4, s24\ns_addc_u32 s13, s5, 0\ns_mov_b32 s14, {486*KBY}\ns_mov_b32 s15, 0x00020000\ns_mov_b32 s25, 0")
    poll_fp(k, "p", FP)
    fresh(k)
    PRE = int(envs("PRE", "16")); FILL = int(envs("FILL", "33")); MID = (FILL + LEAD) // 2
    for p in range(PRE):
        for f in wload(p): f.fn(k)
    k(f"s_lshl_b32 s23, s22, 2\ns_add_u32 s23, s23, s20\ns_lshl_b32 s26, s23, 10\ns_add_u32 s26, s26, {OFF_STAT}\ns_mul_i32 s23, s23, {18*KBY}\ns_add_u32 s23, s23, {OFF_X1}")
    ln_consts(k)
    k("v_and_b32 v4, 15, v0\nv_lshlrev_b32 v4, 3, v4\nv_bfe_u32 v5, v0, 4, 2\nv_lshl_add_u32 v4, v5, 8, v4")
    k(f"s_lshl_b32 s56, s22, 7\ns_add_u32 s56, s56, {FD}\nv_and_b32 v2, 7, v0\nv_lshlrev_b32 v2, 3, v2")
    poll(k, "d")
    stamp(k, 19)
    X = 16; T = 88
    k.vm(f"buffer_load_dwordx2 v[{T}:{T+1}], v4, s[8:11], s26 offen{LD}", "st")
    k.vm(f"buffer_load_dwordx2 v[{T+2}:{T+3}], v4, s[8:11], s26 offen offset:128{LD}", "st")
    for ks in range(18):
        k.vm(f"buffer_load_dwordx4 v[{X+4*ks}:{X+4*ks+3}], v1, s[8:11], s23 offen offset:{(ks%4)*1024}{LD}", ("x", ks))
        if ks % 4 == 3: k("s_add_u32 s23, s23, 4096")
    k("s_lshl_b32 s26, s20, 10\nv_add_u32 v2, s26, v1\nv_add_u32 v3, 0x10000, v2")
    k.wait_vm("st")
    k(f"v_add_f32 v{T}, v{T}, v{T+2}\nv_add_f32 v{T+1}, v{T+1}, v{T+3}")
    red_rows(k, T, T + 2)
    k(f"v_mul_f32 v{T}, s31, v{T}\nv_sub_f32 v{T+3}, 0, v{T}\ns_mov_b32 s26, 0x00003f80\ns_mov_b32 s27, 0x3f800000")
    late = []
    kk = KB(); red_rows(kk, T + 1, T + 2)
    kk(f"v_mul_f32 v{T+1}, s31, v{T+1}\nv_fma_f32 v{T+1}, -v{T}, v{T}, v{T+1}\nv_max_f32 v{T+1}, 0, v{T+1}\nv_add_f32 v{T+1}, {fbits(1e-5)}, v{T+1}")
    kk(f"v_and_b32 v4, 15, v0\nv_lshlrev_b32 v4, 2, v4\nv_add_u32 v4, {144*KBY}, v4\ns_lshl_b32 s33, s20, 6\nv_add_u32 v5, s33, v4")
    pw = PRE
    for ks in range(18):
        k.wait_vm(("x", ks))
        for i in range(4): k(f"v_dot2_f32_bf16 v{T+4+2*i}, v{X+4*ks+i}, s26, v{T+3}\nv_dot2_f32_bf16 v{T+5+2*i}, v{X+4*ks+i}, s27, v{T+3}")
        if pw < PRE + (FILL - PRE) * (ks + 1) // 18:
            for f in wload(pw): f.fn(k)
            pw += 1
        for i in range(4): k(f"v_cvt_pk_bf16_f32 v{X+4*ks+i}, v{T+4+2*i}, v{T+5+2*i}")
        k.lg(f"ds_write_b128 v{2 if ks < 16 else 3}, v[{X+4*ks}:{X+4*ks+3}] offset:{(ks % 16) * 4096}")
        while pw < PRE + (FILL - PRE) * (ks + 1) // 18:
            for f in wload(pw): f.fn(k)
            pw += 1
        if ks == 0:
            k.lines += kk.lines
            k.lg(f"ds_write_b32 v5, v{T+1}")
    k("v_mov_b32 v2, v1\nv_add_u32 v3, 0x10000, v1")
    HB = 72 * KBY
    k(f"s_mov_b32 s33, {fbits(-LOG2E)}")
    k(f"s_lshl_b32 s29, s20, 14\ns_add_u32 s29, s29, {HB}\ns_mov_b32 s28, 8")
    k("s_mov_b32 s34, 7")
    stamp(k, 20)
    k.wait_lg_all(); k("s_barrier")
    for tb in range(4): k.lg(f"ds_read_b32 v{9+tb}, v4 offset:{64*tb}", "var")
    consts = [F(lambda k: k.wait_lg("var"), 4, after=4)]
    consts += [line(f"v_rsq_f32 v{5+tb}, v{9+tb}", 8) for tb in range(4)] + [line(f"v_sqrt_f32 v{9+tb}, v{9+tb}", 8) for tb in range(4)]
    consts += [line(f"v_mul_f32 v{5+j}, s33, v{5+j}") for j in range(8)]
    def xreads(lo, hi):
        return [lgl(f"ds_read_b128 {xreg(ks, tb)}, v{2 if ks < 16 else 3} offset:{((ks * 4 + tb) % 64) * 1024}", ("xr", ks)) for ks in range(lo, hi) for tb in range(4)]
    def phase(p0, acc, streams, xr=None, pre_extra=None, budget=8, xwait=None, lead=(LEAD, LEAD)):
        mf = []; pre = {}; loads = []
        for g in range(18 // G):
            def p(k, g=g):
                if pre_extra and g in pre_extra: pre_extra[g](k)
                k.wait_vm(("w", p0 + g * G + G - 1), force=True)
                if xr is not None or xwait: k.wait_lg(("xr", g * G + G - 1))
            pre[len(mf)] = p
            n = 18 + lead[1] - lead[0]
            for q in range(p0 + lead[0] + n * g // 6, p0 + lead[0] + n * (g + 1) // 6):
                assert q < p0 + g * G + 36
                for f in wload(q):
                    f.after = len(mf); f.before = len(mf) + 4 * G; loads.append(f)
            for tb in range(4):
                for j in range(G):
                    ks = g * G + j; r = RING + 4 * ((p0 + ks) % 36); a = acc + 4 * tb
                    mf.append(f"{MF} v[{a}:{a+3}], v[{r}:{r+3}], {xreg(ks, tb)}, " + ("0" if ks == 0 else f"v[{a}:{a+3}]"))
        st = [loads] + streams
        if xr:
            for j, f in enumerate(xr):
                g = j // (4 * G); f.after = max(f.after, 4 * G * g - 4); f.before = 4 * G * (g + 1) - 3
            st.append(xr)
        interleave(k, mf, st, pre=pre, budget=budget)
    def finish():
        L = [line("v_add_u32 v4, s29, v1")]
        for tb in range(4):
            for i in range(4): L.append(line(f"v_mul_f32 v{T1+4*tb+i}, v{T1+4*tb+i}, v{AU+4*tb+i}", after=3))
            for i in range(4): L.append(line(f"v_mul_f32 v{T1+4*tb+i}, v{T1+4*tb+i}, v{T2+4*tb+i}"))
            for i in range(2): L.append(line(f"v_cvt_pk_bf16_f32 v{T2+4*tb+i}, v{T1+4*tb+2*i}, v{T1+4*tb+2*i+1}"))
            L.append(lgl(f"ds_write_b64 v4, v[{T2+4*tb}:{T2+4*tb+1}] offset:{tb*1024}", "hw"))
        L += [line("s_add_u32 s29, s29, s28"), line("s_sub_u32 s28, 4096, s28"), line("s_sub_u32 s34, s34, 1")]
        return L
    def expo():
        L = []
        for tb in range(4):
            for i in range(4): L.append(line(f"v_mul_f32 v{T1+4*tb+i}, v{5+tb}, v{AG+4*tb+i}", after=2))
            for i in range(4): L.append(line(f"v_exp_f32 v{T2+4*tb+i}, v{T1+4*tb+i}", 8))
            for i in range(4): L.append(line(f"v_fma_f32 v{T2+4*tb+i}, v{T2+4*tb+i}, v{9+tb}, v{9+tb}"))
            for i in range(4): L.append(line(f"v_rcp_f32 v{T2+4*tb+i}, v{T2+4*tb+i}", 8))
        return L
    xr = xreads(0, 18)
    for f in xr[:4 * G]: f.fn(k)
    stamp(k, 21); stamp(k, 30, True)
    phase(0, AG, [consts], xr=xr[4 * G:], lead=(FILL, MID), budget=12)
    phase(18, AU, [expo()], lead=(MID, LEAD), budget=12)
    k(f"v_add_u32 v2, {HB}, v1\nv_add_u32 v3, {HB + 0x10000}, v1")
    its = []
    for fb in range(1, 8):
        m0 = k.mark()
        phase(36 * fb, AG, [finish()])
        phase(36 * fb + 18, AU, [expo()])
        its.append(k.lines[m0:]); del k.lines[m0:]
    k.label("L_ffn_gu")
    k.lines += fold(its)
    k("s_cmp_lg_u32 s34, 0\ns_cbranch_scc1 L_ffn_gu")
    k("v_mov_b32 v4, v2")
    poll_fp(k, "p2", FP2)
    k("v_mov_b32 v2, v4")
    phase(288, AG, [finish()[:-3]])
    k.wait_lg_all(); k("s_barrier")
    k.lgq = []; k.lg_done = 0
    hr = xreads(0, 15)
    for j, f in enumerate(hr): f.after = 12 * (j // 12 + 1)
    phase(306, AU, [expo(), hr], budget=int(envs("TB", "12")))
    stamp(k, 22); stamp(k, 31, True)
    k(f"s_lshr_b32 s29, s20, 1\ns_lshl_b32 s29, s29, 12\ns_and_b32 s35, s20, 1\ns_lshl_b32 s36, s35, 3\ns_add_u32 s29, s29, s36")
    k(f"v_add_u32 v9, s29, v1\ns_add_u32 s29, s29, {HB + 64*KBY}\ns_lshl_b32 s41, s20, 11\nv_add_u32 v10, s41, v1")
    k(f"s_lshl_b32 s37, s21, 7\ns_lshl_b32 s38, s22, 2\ns_add_u32 s37, s37, s38\ns_mul_i32 s37, s37, {18*KBY}\ns_add_u32 s37, s37, {OFF_PART}")
    k(f"s_mul_i32 s38, s20, 9\ns_lshr_b32 s39, s20, 1\ns_mul_i32 s39, s39, 9\ns_add_u32 s39, s39, 4\ns_lshl_b32 s39, s39, 10\ns_mul_i32 s40, s35, {36*KBY}\ns_add_u32 s39, s39, s40\ns_add_u32 s39, s39, s37")
    k("s_add_u32 s38, s38, s35\ns_lshl_b32 s38, s38, 9\ns_add_u32 s38, s38, s37")
    k(f"s_lshl_b32 s56, s22, 7\ns_lshl_b32 s27, s21, 3\ns_add_u32 s56, s56, s27\ns_add_u32 s56, s56, {FE}")
    for tb in range(4): k(f"v_add_u32 v{5+tb}, {tb*18*KBY}, v1")
    fin = finish()[:-3]
    NG = 18 // G
    for f in fin: f.before = 4 * G * (NG - 3)
    def late(k):
        k.wait_lg_all(); k("s_barrier")
        for f in xreads(15, 18): f.fn(k)
    phase(324, AG, [fin], pre_extra={NG - 3: late}, xwait=True)
    def cv(acc, dst, hi, after=0):
        return [line(f"v_cvt_pk_bf16_f32 v{dst+4*tb+2*hi+i}, v{acc+4*tb+2*i}, v{acc+4*tb+2*i+1}", after=after) for tb in range(4) for i in range(2)]
    def st4(src, tb, after, addr="s38"):
        if envs("NOST", ""): return line("s_nop 0", after=after)
        return vml(f"buffer_store_dwordx4 v[{src+4*tb}:{src+4*tb+3}], v{5+tb}, s[8:11], {addr} offen{envs('PST', ' sc1').replace('_', ' ')}", after=after, cost=8)
    c = cv(AG, T2, 0, 8); join = []
    for tb in range(4): join += c[2*tb:2*tb+2] + [lgl(f"ds_write_b64 v9, v[{T2+4*tb}:{T2+4*tb+1}] offset:{tb*1024}")]
    for f in join: f.before = 36
    def joined(k):
        k.wait_lg_all(); k("s_barrier")
        k.lg(f"ds_read_b128 v[{T2}:{T2+3}], v10", "j"); k.lg(f"ds_read_b128 v[{T2+4}:{T2+7}], v10 offset:1024", "j")
    phase(342, AU, [join, [F(lambda k: k.wait_lg("j"), 4, after=50), st4(T2, 0, 52, "s39"), st4(T2, 1, 62, "s39")]], pre_extra={3: joined})
    phase(360, AG, [cv(AU, T1, 0, 8)])
    k("s_mov_b32 s34, 2")
    stamp(k, 23); stamp(k, 32, True)
    SCL = int(envs("SCL", "0"))
    def first_half():
        L = []
        for tb in range(4):
            L += [line(f"v_mov_b32 v{T2+4*tb}, v{T1+4*tb}"), line(f"v_mov_b32 v{T2+4*tb+1}, v{T1+4*tb+1}")]
        if SCL: return cv(AG, T1, 1, 8) + [st4(T1, tb, SCL) for tb in range(4)]
        return L + cv(AG, T2, 1, 8) + [st4(T2, 0, 30), st4(T2, 1, 60)]
    def pair(p, x0=[], x1=[]):
        phase(342 + 36 * p, AU, [first_half(), x0])
        phase(342 + 36 * p + 18, AG, [cv(AU, T1, 0, 8), ([] if SCL else [st4(T2, 2, 20), st4(T2, 3, 52)]) + [line("s_add_u32 s38, s38, 1024"), line("s_sub_u32 s34, s34, 1")], x1])
    its = []
    for p in range(1, 3):
        m0 = k.mark(); pair(p); its.append(k.lines[m0:]); del k.lines[m0:]
    k.label("L_ffn_dn")
    k.lines += fold(its)
    k("s_cmp_lg_u32 s34, 0\ns_cbranch_scc1 L_ffn_dn")
    stamp(k, 24); stamp(k, 33, True)
    k("s_lshl_b32 s28, s22, 3\ns_add_u32 s28, s28, s21\ns_mov_b32 s42, s22")
    k("v_bfe_u32 v9, v0, 4, 2\nv_lshlrev_b32 v9, 8, v9\nv_bfe_u32 v10, v0, 3, 1\nv_lshl_add_u32 v9, v10, 10, v9\nv_and_b32 v10, 7, v0\nv_lshl_add_u32 v9, v10, 4, v9")
    k(f"s_lshr_b32 s30, s28, 1\ns_mul_i32 s30, s30, {18*KBY}\ns_and_b32 s31, s28, 1\ns_lshl_b32 s31, s31, 7\ns_add_u32 s30, s30, s31\ns_mul_i32 s31, s20, 6144\ns_add_u32 s30, s30, s31\ns_add_u32 s30, s30, {OFF_X1}\ns_add_u32 s31, s30, 4096")
    k(f"s_lshr_b32 s43, s17, 3\ns_lshl_b32 s26, s19, 2\ns_add_u32 s43, s43, s26\ns_mul_i32 s43, s43, {126*KBY}\ns_add_u32 s43, s43, {OFF_WQ}")
    k(f"s_lshl_b32 s26, s20, 12\ns_add_u32 s43, s43, s26\ns_mov_b32 m0, s26\ns_barrier")
    tail = [vml(f"buffer_load_dwordx4 v[{RESID+4*i}:{RESID+4*i+3}], v9, s[8:11], s{31 if i == 2 else 30} offen offset:{2048 if i == 1 else 0}{LD}", after=14, cost=8) for i in range(3)]
    def wqc(q):
        def f(k):
            k(f"s_cmp_lg_u32 s50, 0\ns_cbranch_scc1 L_wqc{q}")
            for c in range(4): k(f"buffer_load_dwordx4 v1, s[8:11], s43 offen offset:{c*1024} lds")
            k("s_add_u32 m0, m0, 16384\ns_add_u32 s43, s43, 16384")
            k.label(f"L_wqc{q}")
        return F(f, 8, after=16)
    pair(3, tail + [wqc(q) for q in range(4)], [wqc(q) for q in range(4, 8)])
    k("s_nop 5")
    c = cv(AG, T1, 1)
    for tb in range(4):
        c[2 * tb].fn(k); c[2 * tb + 1].fn(k); st4(T1, tb, 0).fn(k)
    stamp(k, 25); stamp(k, 34, True)
    signal(k)
    stamp(k, 26)

def p5_reduce(k, nlayers):
    k(f"s_cmp_eq_u32 s20, 3\ns_cbranch_scc1 L_p5_w3")
    half_lanes(k, 28)
    k("s_mul_i32 s25, s20, 6144\ns_add_u32 s24, s24, s25\nv_add_u32 v8, 0x1000, v7")
    ln_consts(k)
    k("s_mov_b32 s26, 0x00003f80\ns_mov_b32 s27, 0x3f800000")
    D = 16; ACC = D + 96
    for j in range(12): k(f"v_lshlrev_b32 v{ACC+2*j}, 16, v{RESID+j}\nv_and_b32 v{ACC+2*j+1}, s32, v{RESID+j}")
    k(f"s_lshl_b32 s56, s42, 7\ns_add_u32 s56, s56, {FE}\nv_lshlrev_b32 v2, 3, v6")
    poll(k, "e", wg=False)
    stamp(k, 27)
    fresh(k)
    for src in range(8):
        k(f"s_add_u32 s25, s24, {OFF_PART + src * 2304 * KBY}")
        for i in range(3):
            r = D + 12 * src + 4 * i
            k.vm(f"buffer_load_dwordx4 v[{r}:{r+3}], v{8 if i == 2 else 7}, s[8:11], s25 offen offset:{2048 if i == 1 else 0}{LD}", (src, i))
    for src in range(8):
        for i in range(3):
            k.wait_vm((src, i))
            for j in range(4):
                r = D + 12 * src + 4 * i + j; a = ACC + 8 * i + 2 * j
                k(f"v_dot2c_f32_bf16 v{a}, s26, v{r}\nv_dot2c_f32_bf16 v{a+1}, s27, v{r}")
    k("s_nop 2")
    stamp(k, 28)
    for j in range(12): k(f"v_cvt_pk_bf16_f32 v{D+j}, v{ACC+2*j}, v{ACC+2*j+1}")
    k(f"s_cmp_eq_u32 s50, 1\ns_cbranch_scc1 L_p5_final")
    T = D + 16; O = T + 8
    row_sums(k, D, 12, T)
    k(f"v_lshlrev_b32 v9, 3, v6\nv_add_u32 v9, {150*KBY}, v9\ns_lshl_b32 s23, s20, 6\nv_add_u32 v10, s23, v9")
    k(f"ds_write_b64 v10, v[{T}:{T+1}]\ns_waitcnt lgkmcnt(0)\ns_barrier")
    for w in range(3): k(f"ds_read_b64 v[{T+2*w}:{T+2*w+1}], v9 offset:{64*w}")
    k(f"s_add_u32 s23, s24, {OFF_XN}\ns_add_u32 s25, s24, {OFF_XF}\ns_waitcnt lgkmcnt(0)")
    k(f"v_add_f32 v{T}, v{T}, v{T+2}\nv_add_f32 v{T+1}, v{T+1}, v{T+3}\nv_add_f32 v{T}, v{T}, v{T+4}\nv_add_f32 v{T+1}, v{T+1}, v{T+5}")
    ln_stats_finish(k, T, T + 1)
    for i in range(3):
        for j in range(4): ln_norm(k, D + 4 * i + j, O + 4 * i + j, T, T + 1, T + 2 + 2 * (j & 1))
        k(f"buffer_store_dwordx4 v[{O+4*i}:{O+4*i+3}], v{8 if i == 2 else 7}, s[8:11], s23 offen offset:{2048 if i == 1 else 0} sc1")
    for i in range(3):
        k(f"buffer_store_dwordx4 v[{D+4*i}:{D+4*i+3}], v{8 if i == 2 else 7}, s[8:11], s25 offen offset:{2048 if i == 1 else 0} sc1")
    flag_a_addr(k)
    k("s_branch L_p5_join")
    k.label("L_p5_w3")
    k(f"s_cmp_eq_u32 s50, 1\ns_cbranch_scc1 L_main_fin\ns_barrier")
    k.label("L_p5_join")
    stamp(k, 29)
    k(f"s_add_u32 s50, s50, 1\ns_add_u32 s51, s51, 32768\ns_mov_b32 s53, {OFF_QKV2}")
    signal(k)
    if STAMP: k("v_mov_b32 v14, v15")
    k("s_branch L_layer" if nlayers == 2 else "s_branch L_main_fin")
    k.label("L_p5_final")
    srd(k, 12, 6, 2048 * 1152)
    rowmajor(k, 28, 7)
    k("s_mul_i32 s25, s20, 384\ns_add_u32 s33, s33, s25")
    for i in range(3):
        k(f"v_permlane16_swap_b32 v{D+4*i}, v{D+4*i+2}\nv_permlane16_swap_b32 v{D+4*i+1}, v{D+4*i+3}")
        k(f"buffer_store_dwordx4 v[{D+4*i}:{D+4*i+3}], v7, s[12:15], s33 offen offset:{128*i}{FL[envs('OUTST', 's')]}")
    k.label("L_main_fin")
    if STAMP:
        k.wait_vm_all(); stamp(k, 29)
        k(f"s_add_u32 s84, s4, {OFF_STAMP}\ns_addc_u32 s85, s5, 0\ns_mov_b32 s86, 0x2000000\ns_mov_b32 s87, 0x00020000")
        k("s_lshl_b32 s88, s2, 2\ns_add_u32 s88, s88, s20\ns_lshl_b32 s88, s88, 9\nv_lshrrev_b32 v2, 2, v1")
        k("buffer_store_dword v14, v2, s[84:87], s88 offen\nbuffer_store_dword v15, v2, s[84:87], s88 offen offset:256")

def main_k(name, nlayers=2):
    k = KB()
    k.raw(f".globl {name}\n.p2align 8\n.type {name},@function")
    k.label(name)
    k("s_cmp_ge_u32 s2, 256\ns_cbranch_scc1 L_end")
    if STAMP: k("v_mov_b32 v14, 0\nv_mov_b32 v15, 0"); stamp(k, 40)
    k("s_load_dwordx4 s[36:39], s[0:1], 0\ns_load_dwordx2 s[46:47], s[0:1], 16\ns_load_dwordx4 s[40:43], s[0:1], 32")
    k("s_load_dwordx2 s[44:45], s[0:1], 48\ns_load_dwordx2 s[6:7], s[0:1], 56\ns_load_dwordx2 s[84:85], s[0:1], 64\ns_load_dwordx2 s[4:5], s[0:1], 72")
    k("v_lshrrev_b32 v2, 6, v0\nv_and_b32 v1, 63, v0\nv_readfirstlane_b32 s20, v2\nv_cmp_eq_u32 vcc, 0, v1\nv_lshlrev_b32 v1, 4, v1")
    k("s_and_b32 s16, s2, 7\ns_lshr_b32 s17, s2, 3\ns_bfe_u32 s18, s2, 0x10002\ns_and_b32 s19, s2, 3")
    k(f"v_mov_b32 v13, {BIG}\ns_mov_b32 s50, 0\ns_mov_b32 s51, 0\ns_mov_b32 s53, {OFF_QKV}\ns_mov_b32 s67, 0\nv_cndmask_b32 v13, v13, 0, vcc")
    p0(k)
    k.label("L_layer")
    fresh(k)
    p1_qkv(k); p2_attn(k); p3_wo(k); p4_ffn(k); p5_reduce(k, nlayers)
    k.label("L_end")
    k("s_endpgm")
    return k

def desc(n, vgpr, accum):
    return f""".p2align 6
.amdhsa_kernel {n}
  .amdhsa_next_free_vgpr {vgpr}
  .amdhsa_next_free_sgpr 96
  .amdhsa_accum_offset {accum}
  .amdhsa_group_segment_fixed_size 0
  .amdhsa_kernarg_size 80
  .amdhsa_user_sgpr_count 2
  .amdhsa_user_sgpr_kernarg_segment_ptr 1
  .amdhsa_system_sgpr_workgroup_id_x 1
  .amdhsa_float_denorm_mode_32 3
.end_amdhsa_kernel"""
def build(nlayers=2):
    name = "interleave_layers__sliding_block__swiglu_ffn__prompt_kernel"
    out = ["; x += attn(LN x); x += swiglu(LN x); twice. One persistent kernel, 256 workgroups. Generated by my own script (work/genq.py)."]
    if STAMP:
        if not envs("NOSLEEP", ""): out.append("; @launch kernel=sleep_kernel grid=(1,1,1) block=(64,1,1) lds=0")
        out.append(f"; @launch kernel={name} grid=(256,1,1) block=(256,1,1) lds=163840")
    else: out.append("; @launch grid=(256,1,1) block=(256,1,1) lds=163840")
    out.append('.amdgcn_target "amdgcn-amd-amdhsa--gfx950"\n.text')
    out.append(main_k(name, nlayers).text())
    if STAMP:
        out.append(""".globl sleep_kernel
.p2align 8
.type sleep_kernel,@function
sleep_kernel:
    s_mov_b32 s4, 2000
L_sleep:
    s_sleep 8
    s_sub_u32 s4, s4, 1
    s_cmp_lg_u32 s4, 0
    s_cbranch_scc1 L_sleep
    s_endpgm""")
    out.append('.section .rodata,"a"')
    out.append(desc(name, 512, 256))
    if STAMP: out.append(desc("sleep_kernel", 8, 8))
    return "\n".join(out) + "\n"

if __name__ == "__main__":
    STAMP = "stamp" in sys.argv[2:]
    open(sys.argv[1], "w").write(build(1 if "one" in sys.argv[2:] else 2))
```

```python
import re, sys, os, struct
from kb import *
KBY = 1024
OFF_XF, OFF_XN, OFF_OF, OFF_X1 = 0, 2304*KBY, 4608*KBY, 6912*KBY
OFF_OB = OFF_OF + 2048*KBY
OFF_QKV = 9216*KBY
OFF_PART = 16128*KBY
OFF_WO = 34560*KBY
OFF_WF = 37376*KBY
OFF_STAT = 53248*KBY
OFF_FLAG = 53376*KBY
OFF_QKV2 = 53408*KBY
OFF_WQ = OFF_QKV2 + 6912*KBY
OFF_FLAG = OFF_WQ + 2048*KBY
WS_USED = OFF_FLAG + 64*KBY
FA, FB, FC, FD, FE, FP, FP2, FW, FQ = [OFF_FLAG + o for o in (0, 2048, 10240, 12288, 16384, 20480, 22528, 24576, 25600)]
BIG = 0x40000000
LOG2E = 1.4426950408889634
def fbits(x): return "0x%08x" % struct.unpack("<I", struct.pack("<f", x))[0]
def envs(n, d): return os.environ.get(n, d)
FL = {"s": " sc1", "p": "", "n": " nt"}
MF = "v_mfma_f32_16x16x32_bf16"
LD = " sc1"
SPIN = 40000
STAMP = False
OFF_STAMP = 200 << 20
POLL1 = envs("POLL1", "1") == "1"
FAST = envs("FAST", "1") == "1"
FORCE_EXACT = envs("FORCE_EXACT", "") == "1"

DIAG = envs("DIAG", "")
def stamp(k, i, cyc=False):
    if DIAG and not cyc and i == int(DIAG.split(",")[1]):
        n = len(k.lines)
        k(f"s_cmp_lg_u32 s50, {DIAG.split(',')[0]}\ns_cbranch_scc1 L_dg{n}\ns_memrealtime s[90:91]"); k("s_waitcnt lgkmcnt(0)"); k.label(f"L_dg{n}")
    if STAMP:
        k(f"{'s_memtime' if cyc else 's_memrealtime'} s[90:91]"); k.wait_lg_all(); k(f"v_writelane_b32 v15, s90, {i}")
def srd(k, d, base, nbytes):
    k(f"s_mov_b32 s{d}, s{base}\ns_mov_b32 s{d+1}, s{base+1}\ns_mov_b32 s{d+2}, {nbytes}\ns_mov_b32 s{d+3}, 0x00020000")
def sdiv(k, dst, src, D, tmp):
    k(f"s_mov_b32 s{tmp}, {-(-(1<<32)//D)}\ns_mul_hi_u32 s{dst}, s{src}, s{tmp}")
def red_rows(k, v, t, op="v_add_f32"):
    for sw in ("v_permlane16_swap_b32", "v_permlane32_swap_b32"):
        k(f"v_mov_b32 v{t}, v{v}\ns_nop 1\n{sw} v{v}, v{t}\n{op} v{v}, v{v}, v{t}")
def ln_stats_finish(k, s, q):
    k(f"v_mul_f32 v{s}, s31, v{s}\nv_mul_f32 v{q}, s31, v{q}\nv_fma_f32 v{q}, -v{s}, v{s}, v{q}\nv_max_f32 v{q}, 0, v{q}")
    k(f"v_add_f32 v{q}, {fbits(1e-5)}, v{q}\nv_rsq_f32 v{q}, v{q}\ns_nop 0\nv_mul_f32 v{s}, v{s}, v{q}\nv_sub_f32 v{s}, 0, v{s}")
def ln_norm(k, x, dst, s, q, t):
    k(f"v_lshlrev_b32 v{t}, 16, v{x}\nv_and_b32 v{t+1}, s32, v{x}\nv_fma_f32 v{t}, v{t}, v{q}, v{s}\nv_fma_f32 v{t+1}, v{t+1}, v{q}, v{s}\nv_cvt_pk_bf16_f32 v{dst}, v{t}, v{t+1}")
def ln_consts(k):
    k(f"s_mov_b32 s30, 0x3f803f80\ns_mov_b32 s31, {fbits(1/576)}\ns_mov_b32 s32, 0xffff0000")
def fold(iters):
    body = []
    assert len({len(x) for x in iters}) == 1, [len(x) for x in iters]
    for ls in zip(*iters):
        if len(set(ls)) == 1: body.append(ls[0]); continue
        ns = [re.fullmatch(r"\s*s_waitcnt vmcnt\((\d+)\)", l) for l in ls]
        assert all(ns), ls
        body.append(f"    s_waitcnt vmcnt({min(int(m.group(1)) for m in ns)})")
    return body
def fresh(k):
    k.vmq = []; k.vm_done = 0; k.lgq = []; k.lg_done = 0

def poll(k, name, wg=True, layer=True):
    if wg: k(f"s_cmp_lg_u32 s20, 0\ns_cbranch_scc1 L_pollx_{name}")
    k(f"s_mov_b32 s57, {SPIN}" + ("\ns_add_u32 s56, s56, s51" if layer else ""))
    if envs("PP", "") and name in "abcde":
        k("buffer_load_dwordx2 v[252:253], v2, s[8:11], s56 offen sc1\ns_sleep 1")
        k.label(f"L_poll_{name}")
        k(f"buffer_load_dwordx2 v[254:255], v2, s[8:11], s56 offen sc1\ns_waitcnt vmcnt(1)\nv_cmp_eq_u64 vcc, s[92:93], v[252:253]\ns_cmp_eq_u64 vcc, -1\ns_cbranch_scc1 L_pollx_{name}")
        k(f"buffer_load_dwordx2 v[252:253], v2, s[8:11], s56 offen sc1\ns_sub_u32 s57, s57, 1\ns_waitcnt vmcnt(1)")
    else:
        k.label(f"L_poll_{name}")
        k(f"buffer_load_dwordx2 v[254:255], v2, s[8:11], s56 offen sc1\ns_sub_u32 s57, s57, 1\ns_waitcnt vmcnt(0)")
    k(f"v_cmp_eq_u64 vcc, s[92:93], v[254:255]\ns_cmp_eq_u32 s57, 0\ns_cbranch_scc1 L_pollx_{name}")
    k(f"s_cmp_eq_u64 vcc, -1\ns_cbranch_scc0 L_poll_{name}")
    k.label(f"L_pollx_{name}")
    if wg: k("s_barrier")
def publish(k, addr="s56"):
    k("v_mov_b32 v254, s92\nv_mov_b32 v255, s93")
    k.vm(f"buffer_store_dwordx2 v[254:255], v13, s[8:11], {addr} offen sc1")
def signal(k):
    k(f"s_add_u32 s56, s56, s51\ns_cmp_eq_u32 s20, 0\ns_cselect_b32 s56, s56, {BIG}")
    k.wait_vm_all(); k("s_barrier")
    publish(k)
def token_load(k):
    k("v_mov_b32 v2, 0\nbuffer_load_dwordx2 v[254:255], v2, s[84:87], 0 offen sc1")
def token_get(k, name):
    k(f"s_mov_b32 s57, {SPIN}")
    k.label(f"L_tok_{name}")
    k("v_readfirstlane_b32 s92, v254\nv_readfirstlane_b32 s93, v255\ns_sub_u32 s57, s57, 1\ns_min_u32 s94, s92, s93\ns_cmp_eq_u32 s57, 0\ns_cselect_b32 s94, 1, s94")
    k(f"s_cmp_lg_u32 s94, 0\ns_cbranch_scc1 L_tokx_{name}")
    token_load(k)
    k(f"s_waitcnt vmcnt(0)\ns_branch L_tok_{name}")
    k.label(f"L_tokx_{name}")

def half_lanes(k, shb):
    k("v_bfe_u32 v4, v0, 4, 2\nv_bfe_u32 v5, v0, 3, 1\nv_and_b32 v6, 7, v0")
    k(f"s_and_b32 s21, s{shb}, 1\ns_lshr_b32 s22, s{shb}, 1\ns_lshl_b32 s23, s21, 7")
    k("v_lshlrev_b32 v7, 8, v4\nv_lshl_add_u32 v7, v5, 10, v7\nv_lshl_add_u32 v7, v6, 4, v7\nv_add_u32 v7, s23, v7")
    k(f"s_mul_i32 s24, s22, {18*KBY}")
def rowmajor(k, shb, v):
    k(f"v_mul_u32_u24 v{v}, 1152, v6\nv_lshl_add_u32 v{v}, v5, 6, v{v}\nv_and_b32 v9, 1, v4\nv_lshl_add_u32 v{v}, v9, 5, v{v}\nv_lshrrev_b32 v9, 1, v4\nv_lshl_add_u32 v{v}, v9, 4, v{v}")
    k(f"s_mul_i32 s33, s{shb}, 9216")
def row_sums(k, D, n, T):
    for i in range(4): k(f"v_mov_b32 v{T+i}, 0")
    for j in range(n): k(f"v_dot2c_f32_bf16 v{T+(j&1)}, s30, v{D+j}\nv_dot2c_f32_bf16 v{T+2+(j&1)}, v{D+j}, v{D+j}")
    k(f"s_nop 2\nv_add_f32 v{T}, v{T}, v{T+1}\nv_add_f32 v{T+1}, v{T+2}, v{T+3}\ns_nop 1")
    k(f"v_add_f32_dpp v{T}, v{T}, v{T} row_ror:8 row_mask:0xf bank_mask:0xf\nv_add_f32_dpp v{T+1}, v{T+1}, v{T+1} row_ror:8 row_mask:0xf bank_mask:0xf")
    red_rows(k, T, T + 2); red_rows(k, T + 1, T + 2)
def flag_a_addr(k):
    k(f"s_lshr_b32 s56, s28, 4\ns_lshl_b32 s56, s56, 7\ns_and_b32 s27, s28, 15\ns_lshl_b32 s27, s27, 3\ns_add_u32 s56, s56, s27\ns_add_u32 s56, s56, {FA}")

DST = 68
park = lambda u, i: (f"v[{128+16*u+4*i}:{131+16*u+4*i}]" if u < 3 else f"a[{160+16*(u-3)+4*i}:{163+16*(u-3)+4*i}]")
PK = 220
def wq_base(k):
    k(f"s_lshr_b32 s29, s17, 3\ns_lshl_b32 s22, s19, 2\ns_add_u32 s22, s22, s29\ns_mul_i32 s25, s22, {126*KBY}\ns_add_u32 s25, s25, {OFF_WQ}")
def wq_fetch(k, name):
    k(f"s_and_b32 s23, s17, {7 if envs('ROT', '1') == '1' else 0}\ns_lshl_b32 s23, s23, 14\ns_mov_b32 s26, 32")
    k.label(f"L_wqf_{name}")
    k("s_mov_b32 m0, s23\ns_add_u32 s27, s25, s23")
    for c in range(4): k(f"buffer_load_dwordx4 v1, s[8:11], s27 offen offset:{c*1024} lds")
    k(f"s_add_u32 s23, s23, 4096\ns_and_b32 s23, s23, 0x1ffff\ns_sub_u32 s26, s26, 1\ns_waitcnt vmcnt({envs('WQF', '40')})\ns_cmp_lg_u32 s26, 0\ns_cbranch_scc1 L_wqf_{name}")
def stage_addr(k):
    k(f"s_lshl_b32 s66, s20, 13\ns_add_u32 s66, s66, {128*KBY}\nv_add_u32 v10, s66, v1")
    k("v_bfe_u32 v11, v0, 2, 4\nv_lshlrev_b32 v11, 7, v11\nv_and_b32 v252, 3, v0\nv_lshl_add_u32 v11, v252, 3, v11\nv_add_u32 v11, s66, v11")
def pack_block(k, n, nu, dst=lambda u, c: (f"s{DST+c}", (u % 4) * 1024), src=park):
    k("s_waitcnt lgkmcnt(0)")
    if 2 <= n < nu + 2:
        u = n - 2
        for c in range(4):
            r, o = dst(u, c)
            k(f"buffer_store_dwordx4 v[{PK+16*(u&1)+4*c}:{PK+16*(u&1)+4*c+3}], v1, s[8:11], {r} offen offset:{o} sc1" + (f"\ns_add_u32 {r}, {r}, 4096" if o == 3072 else ""))
    if 1 <= n <= nu:
        u = n - 1
        for c in range(4):
            for hf in range(2): k(f"ds_read_b64_tr_b16 v[{PK+16*(u&1)+4*c+2*hf}:{PK+16*(u&1)+4*c+2*hf+1}], v11 offset:{(u&1)*4096 + hf*2048 + c*32}")
    if n < nu:
        for i in range(4): k(f"ds_write_b128 v10, {src(n, i)} offset:{(n&1)*4096 + i*1024}")
lpark = lambda u, i: f"a[{208+16*u+4*i}:{211+16*u+4*i}]"
def late_blocks(k):
    k("s_cmp_eq_u32 s67, 0\ns_cbranch_scc1 L_pks")
    stage_addr(k)
    for n in range(5): pack_block(k, n, 3, lambda u, c: (f"s{78+c}", u * 1024), lpark)
    k("s_mov_b32 s67, 0")
    k.label("L_pks")
EARLY = envs("EARLY", "b")
def early_blocks(k):
    k("s_cmp_eq_u32 s67, 0\ns_cbranch_scc1 L_pke")
    stage_addr(k)
    for n in range(8): pack_block(k, n, 6)
    k.label("L_pke")
def publish_fp(k, base):
    k(f"s_mov_b32 s30, {-(-(1<<32)//27)}\ns_mul_hi_u32 s27, s2, s30\ns_mul_i32 s27, s27, 5\ns_add_u32 s27, s27, s2\ns_lshl_b32 s27, s27, 3\ns_add_u32 s27, s27, {base}")
    k(f"s_cmp_lt_u32 s2, 216\ns_cselect_b32 s27, s27, {BIG}\ns_cmp_eq_u32 s20, 0\ns_cselect_b32 s27, s27, {BIG}")
    k.vm("buffer_store_dwordx2 v[254:255], v13, s[8:11], s27 offen sc1")
def poll_fp(k, name, base):
    k(f"s_cmp_lg_u32 s50, 0\ns_cbranch_scc1 L_pollx_{name}\ns_lshl_b32 s56, s21, 8\ns_add_u32 s56, s56, {base}\nv_and_b32 v2, 31, v0\nv_min_u32 v2, 26, v2\nv_lshlrev_b32 v2, 3, v2")
    poll(k, name, wg=False)
def ptrs(k):
    srd(k, 8, 4, WS_USED); k("s_mov_b32 s86, 256\ns_mov_b32 s87, 0x00020000")
def p0(k):
    k("s_cmp_eq_u32 s20, 1\ns_cbranch_scc1 L_p0_wq\ns_cmp_lg_u32 s20, 0\ns_cbranch_scc1 L_p0_23")
    k("s_lshl_b32 s28, s16, 5\ns_add_u32 s28, s28, s17")
    half_lanes(k, 28); rowmajor(k, 28, 11)
    k("s_waitcnt lgkmcnt(0)")
    srd(k, 12, 36, 2048 * 1152)
    D = 16; T = D + 36; O = T + 8
    for i in range(9): k(f"buffer_load_dwordx4 v[{D+4*i}:{D+4*i+3}], v11, s[12:15], s33 offen offset:{128*i} nt")
    if envs("B0", "1") == "1": k("s_barrier")
    ptrs(k); ln_consts(k); flag_a_addr(k)
    stamp(k, 41)
    for i in range(9): k(f"s_waitcnt vmcnt({8-i})\nv_permlane16_swap_b32 v{D+4*i}, v{D+4*i+2}\nv_permlane16_swap_b32 v{D+4*i+1}, v{D+4*i+3}")
    stamp(k, 42)
    token_load(k)
    row_sums(k, D, 36, T); ln_stats_finish(k, T, T + 1)
    k(f"s_add_u32 s23, s24, {OFF_XN}\ns_add_u32 s25, s24, {OFF_XF}")
    for i in range(9):
        for j in range(4): ln_norm(k, D + 4 * i + j, O + 4 * (i & 1) + j, T, T + 1, T + 2 + 2 * (j & 1))
        k(f"buffer_store_dwordx4 v[{O+4*(i&1)}:{O+4*(i&1)+3}], v7, s[8:11], s23 offen offset:{(i&1)*2048} sc1" + ("\ns_add_u32 s23, s23, 4096" if i & 1 else ""))
    for i in range(9):
        k(f"buffer_store_dwordx4 v[{D+4*i}:{D+4*i+3}], v7, s[8:11], s25 offen offset:{(i&1)*2048} sc1" + ("\ns_add_u32 s25, s25, 4096" if i & 1 else ""))
    stamp(k, 43)
    k("s_waitcnt vmcnt(0)")
    token_get(k, "a")
    publish(k)
    k("s_branch L_p0_wait")
    k.label("L_p0_wq")
    k("s_lshl_b32 s21, s18, 3\ns_and_b32 s22, s17, 7\ns_add_u32 s21, s21, s22\ns_lshr_b32 s29, s17, 3\ns_mul_i32 s79, s29, 7\ns_mul_i32 s33, s19, 288")
    k("v_bfe_u32 v10, v0, 1, 5\nv_mul_u32_u24 v10, 3456, v10\nv_and_b32 v11, 1, v0\nv_lshl_add_u32 v10, v11, 4, v10")
    k("v_bfe_u32 v11, v0, 3, 3\nv_mul_u32_u24 v11, 3456, v11\nv_and_b32 v12, 7, v0\nv_mul_u32_u24 v12, 36, v12\nv_add_u32 v11, v11, v12")
    k("s_lshl_b32 s80, s21, 3")
    sdiv(k, 81, 80, 7, 30)
    k(f"s_mul_i32 s30, s81, 7\ns_sub_u32 s80, s80, s30\ns_mul_i32 s81, s81, {32*3456}\ns_add_u32 s81, s81, s33\ns_mov_b32 m0, {128*KBY}\ns_mov_b32 s82, 8")
    k("s_waitcnt lgkmcnt(0)")
    srd(k, 60, 38, 576 * 3456)
    k.label("L_wq")
    k("s_add_u32 s30, s79, s80\ns_cmp_ge_u32 s30, 18\ns_cselect_b32 s31, 18, 0\ns_cselect_b32 s34, 2304, 0\ns_sub_u32 s30, s30, s31")
    k(f"s_cmp_ge_u32 s30, 9\ns_cselect_b32 s31, 9, 0\ns_cselect_b32 s35, 1152, 0\ns_sub_u32 s30, s30, s31\ns_add_u32 s34, s34, s35\ns_cmp_eq_u32 s34, 3456\ns_cselect_b32 s34, {BIG}, s34")
    k("s_add_u32 s34, s34, s81\ns_cmp_eq_u32 s30, 8\ns_cbranch_scc1 L_wqb\ns_mul_i32 s30, s30, 36\ns_add_u32 s34, s34, s30")
    k("buffer_load_dwordx4 v10, s[60:63], s34 offen lds\ns_add_u32 m0, m0, 1024")
    k.label("L_wqj")
    k(f"s_add_u32 s80, s80, 1\ns_cmp_eq_u32 s80, 7\ns_cselect_b32 s80, 0, s80\ns_cselect_b32 s30, {32*3456}, 0\ns_add_u32 s81, s81, s30")
    k("s_sub_u32 s82, s82, 1\ns_cmp_lg_u32 s82, 0\ns_cbranch_scc1 L_wq\ns_branch L_wqx")
    k.label("L_wqb")
    k("s_add_u32 s34, s34, 32")
    for q in range(4): k(f"buffer_load_dword v11, s[60:63], s34 offen lds\ns_add_u32 m0, m0, 256\ns_add_u32 s34, s34, {8*3456}")
    k("s_branch L_wqj")
    k.label("L_wqx")
    if envs("B0", "1") == "1": k("s_barrier")
    ptrs(k)
    wq_base(k)
    k(f"s_lshl_b32 s30, s21, 13\ns_add_u32 s30, s30, s25\ns_add_u32 s31, s30, 4096\nv_lshrrev_b32 v3, 1, v1\nv_add_u32 v3, {128*KBY}, v3")
    k(f"s_cmp_eq_u32 s21, 15\ns_cselect_b32 s32, {BIG}, s31")
    k(f"s_lshl_b32 s24, s22, 7\ns_add_u32 s24, s24, {FQ}\ns_lshl_b32 s27, s21, 3\ns_add_u32 s27, s27, s24\ns_waitcnt vmcnt(0)")
    stamp(k, 41)
    token_load(k)
    for sl in range(8):
        for hf in range(2): k(f"ds_read_b64_tr_b16 v[{16+4*sl+2*hf}:{17+4*sl+2*hf}], v3 offset:{sl*1024 + hf*512}")
    for sl in range(8): k(f"s_waitcnt lgkmcnt({14-2*sl})\nbuffer_store_dwordx4 v[{16+4*sl}:{19+4*sl}], v1, s[8:11], s{30 if sl < 4 else 31 if sl < 6 else 32} offen offset:{(sl%4)*1024} sc1")
    k("s_waitcnt vmcnt(0)")
    token_get(k, "b")
    publish(k, "s27")
    stamp(k, 42)
    k("s_mov_b32 s56, s24\nv_and_b32 v2, 15, v0\nv_lshlrev_b32 v2, 3, v2")
    poll(k, "q", wg=False)
    stamp(k, 43)
    k("s_branch L_p0_fetch")
    k.label("L_p0_23")
    k("s_sub_u32 s21, s20, 2\nv_bfe_u32 v4, v0, 3, 3\nv_and_b32 v5, 7, v0\ns_memrealtime s[94:95]")
    k("s_lshl_b32 s23, s2, 1\ns_add_u32 s23, s23, s21")
    sdiv(k, 25, 23, 3, 30)
    k("s_mul_i32 s30, s25, 3\ns_sub_u32 s28, s23, s30\ns_mul_i32 s28, s28, 6")
    sdiv(k, 26, 25, 18, 30)
    k("s_mul_i32 s30, s26, 18\ns_sub_u32 s25, s25, s30\ns_cmp_ge_u32 s25, 9\ns_cselect_b32 s27, 18, 0\ns_cselect_b32 s30, 9, 0\ns_sub_u32 s25, s25, s30")
    k(f"s_mul_i32 s30, s26, 9\ns_add_u32 s25, s25, s30\ns_lshl_b32 s24, s25, 7\ns_mul_i32 s30, s28, {32*9216}\ns_add_u32 s24, s24, s30")
    k("v_mul_u32_u24 v6, 9216, v4\nv_lshl_add_u32 v6, v5, 4, v6\ns_waitcnt lgkmcnt(0)")
    ptrs(k)
    k(f"s_or_b32 s94, s94, 1\ns_or_b32 s95, s95, 0x80000000\nv_mov_b32 v16, s94\nv_mov_b32 v17, s95\ns_cmp_eq_u32 s23, 0\ns_cselect_b32 s30, 0, {BIG}")
    k("buffer_store_dwordx2 v[16:17], v13, s[84:87], s30 offen sc1")
    if envs("B0", "1") == "1": k("s_barrier")
    k("s_cmp_ge_u32 s2, 216\ns_cbranch_scc1 L_p0_wo")
    k(f"s_cmp_eq_u32 s27, 0\ns_cselect_b32 s60, s40, s42\ns_cselect_b32 s61, s41, s43\ns_mov_b32 s62, {576*9216}\ns_mov_b32 s63, 0x00020000")
    if envs("NOBG", ""): k("s_mov_b32 s62, 0")
    for u in range(6):
        for i in range(4): k(f"buffer_load_dwordx4 {park(u, i)}, v6, s[60:63], s24 offen nt\ns_add_u32 s24, s24, {8*9216}")
    if envs("CODEPF", "1") == "1":
        k("s_getpc_b64 s[12:13]")
        k.label("L_pc")
        k(f"s_mov_b32 s14, L_end-L_pc\ns_mov_b32 s15, 0x00020000\nv_lshlrev_b32 v2, 3, v1\ns_lshl_b32 s30, s17, 13\ns_cmp_eq_u32 s20, 3\ns_cselect_b32 s30, s30, {BIG}")
        k("buffer_load_dword v20, v2, s[12:15], s30 offen")
    token_load(k)
    k("s_add_u32 s29, s27, s28")
    for c in range(4):
        k(f"s_lshl_b32 s30, s25, 2\ns_add_u32 s30, s30, {c}")
        sdiv(k, 31, 30, 9, 33)
        k("s_mul_i32 s33, s31, 9\ns_sub_u32 s30, s30, s33\ns_mul_i32 s31, s31, 486\ns_mul_i32 s30, s30, 36\ns_add_u32 s30, s30, s31\ns_add_u32 s30, s30, s29")
        k(f"s_add_u32 s30, s30, {OFF_WF//KBY}\ns_lshl_b32 s{DST+c}, s30, 10")
    if EARLY == "p0":
        stage_addr(k)
        k("s_waitcnt vmcnt(0)")
        stamp(k, 43)
        for n in range(8): pack_block(k, n, 6)
    sdiv(k, 25, 2, 3, 30)
    k("s_mul_i32 s30, s25, 3\ns_sub_u32 s28, s2, s30\ns_mul_i32 s28, s28, 6\ns_mul_i32 s30, s21, 3\ns_add_u32 s28, s28, s30")
    k("s_mul_i32 s30, s26, 9\ns_sub_u32 s25, s25, s30")
    for c in range(4):
        k(f"s_lshl_b32 s30, s25, 2\ns_add_u32 s30, s30, {c}")
        sdiv(k, 31, 30, 9, 33)
        k("s_mul_i32 s33, s31, 9\ns_sub_u32 s30, s30, s33\ns_add_u32 s33, s30, 1\ns_cmp_eq_u32 s30, 8\ns_cselect_b32 s33, 0, s33")
        k("s_bitcmp1_b32 s31, 0\ns_cselect_b32 s30, s30, s33\ns_lshl_b32 s33, s26, 2\ns_add_u32 s31, s31, s33\ns_mul_i32 s31, s31, 486")
        k(f"s_mul_i32 s30, s30, 18\ns_add_u32 s30, s30, s31\ns_add_u32 s30, s30, s28\ns_add_u32 s30, s30, {324 + OFF_WF//KBY}\ns_lshl_b32 s{78+c}, s30, 10")
    srd(k, 60, 44, 4608 * 1152)
    k("s_lshl_b32 s24, s25, 7\ns_mul_i32 s35, s26, 576")
    for u in range(3):
        k("s_lshr_b32 s30, s28, 2\ns_mul_i32 s30, s30, 144\ns_and_b32 s31, s28, 3\ns_lshl_b32 s31, s31, 5\ns_add_u32 s30, s30, s31")
        k("s_mul_i32 s31, s28, 288\ns_sub_u32 s31, s31, 4480\ns_cmp_ge_u32 s28, 16\ns_cselect_b32 s30, s31, s30\ns_cselect_b32 s37, 144, 16")
        k(f"s_add_u32 s30, s30, s35\ns_mul_i32 s30, s30, 1152\ns_add_u32 s{72+2*u}, s30, s24\ns_mul_i32 s37, s37, 1152\ns_add_u32 s{73+2*u}, s{72+2*u}, s37\ns_add_u32 s28, s28, 1")
    k("s_mov_b32 s67, 1\ns_waitcnt vmcnt(0)")
    token_get(k, "c")
    k("s_branch L_p0_wait")
    k.label("L_p0_wo")
    token_load(k)
    k("s_sub_u32 s23, s23, 432\ns_cmp_lt_u32 s23, 54\ns_cbranch_scc1 L_p0_wo2\ns_waitcnt vmcnt(0)")
    token_get(k, "d")
    k("s_branch L_p0_wait")
    k.label("L_p0_wo2")
    srd(k, 12, 46, 576 * 1152)
    sdiv(k, 27, 23, 3, 30)
    k("s_mul_i32 s30, s27, 3\ns_sub_u32 s25, s23, s30\ns_mul_i32 s25, s25, 3")
    k("v_lshrrev_b32 v7, 1, v4\nv_mul_u32_u24 v7, 18, v7\nv_and_b32 v8, 1, v4\nv_add_u32 v7, v7, v8")
    k("s_mul_i32 s30, s27, 36\ns_sub_u32 s31, s27, 16\ns_mul_i32 s31, s31, 288\ns_add_u32 s31, s31, 16")
    k(f"s_cmp_lt_u32 s27, 16\ns_cselect_b32 s30, s30, s31\ns_mov_b32 s28, {18*1152}\ns_mov_b32 s29, {8*1152}\ns_cselect_b32 s28, s28, {144*1152}\ns_cselect_b32 s29, s29, {72*1152}\ns_cselect_b64 vcc, -1, 0")
    k("s_mul_i32 s32, s30, 1152\ns_lshl_b32 s31, s25, 7\ns_add_u32 s32, s32, s31")
    k("v_cndmask_b32 v8, v7, v4, vcc\nv_mul_u32_u24 v6, 1152, v8\nv_lshl_add_u32 v6, v5, 4, v6")
    k("s_add_u32 s33, s32, s29\ns_add_u32 s34, s32, s28\ns_add_u32 s35, s34, s29")
    for u in range(3):
        for i in range(4): k(f"buffer_load_dwordx4 {park(u, i)}, v6, s[12:15], s{32+i} offen offset:{128*u} nt")
    for u in range(3):
        for c in range(4):
            k(f"s_lshl_b32 s30, s25, 1\ns_add_u32 s30, s30, {2*u + (c >> 1)}\ns_cmp_ge_u32 s30, 9\ns_cselect_b32 s31, 9, 0\ns_cselect_b32 s33, 432, 0\ns_sub_u32 s30, s30, s31")
            k("s_sub_u32 s31, s30, 1\ns_lshr_b32 s31, s31, 1\ns_cmp_lt_u32 s30, 3\ns_cselect_b32 s31, 0, s31\ns_cselect_b32 s34, 0, 2")
            k(f"s_mul_i32 s31, s31, 104\ns_lshl_b32 s30, s30, 1\ns_add_u32 s30, s30, s31\ns_sub_u32 s30, s30, s34\ns_add_u32 s30, s30, s33")
            k(f"s_mul_i32 s31, s27, 6\ns_add_u32 s30, s30, s31\ns_add_u32 s30, s30, {OFF_WO//KBY + (c & 1)}\ns_lshl_b32 s{72+4*u+c}, s30, 10")
    stage_addr(k)
    k("s_waitcnt vmcnt(0)")
    for n in range(5): pack_block(k, n, 3, lambda u, c: (f"s{72+4*u+c}", 0))
    token_get(k, "e")
    k(f"s_lshl_b32 s56, s23, 3\ns_add_u32 s56, s56, {FW}\ns_waitcnt vmcnt(0)")
    publish(k)
    k.label("L_p0_wait")
    stamp(k, 44)
    k.label("L_p0_fetch")
    wq_base(k)
    k("s_lshl_b32 s26, s20, 12\ns_add_u32 s25, s25, s26\ns_mov_b32 m0, s26\ns_barrier")
    for q in range(8):
        for c in range(4): k(f"buffer_load_dwordx4 v1, s[8:11], s25 offen offset:{c*1024} lds")
        k("s_add_u32 m0, m0, 16384\ns_add_u32 s25, s25, 16384")
    if EARLY == "f":
        k("s_cmp_eq_u32 s67, 0\ns_cbranch_scc1 L_layer")
        stage_addr(k)
        for n in range(8): pack_block(k, n, 6)
        k("s_waitcnt vmcnt(24)\ns_branch L_p1_fetched")

def gemm_core(k, NTB, NS, loads, AHEAD, st0, tr, NBUF=2):
    ACC = 16; WB = ACC + 4 * NS * NTB
    pi = 0
    def take(n):
        nonlocal pi
        r = loads[pi:pi + n]; pi += len(r); return r
    nx = {}
    for f in loads: nx[f.tag] = nx.get(f.tag, 0) + 1
    for f in take(AHEAD): f.fn(k)
    if tr: k("v_lshrrev_b32 v3, 1, v1\nv_add_u32 v2, 0x10000, v3")
    else: k("v_mov_b32 v3, v1\nv_add_u32 v2, 0x10000, v1")
    def rd(ks, sl):
        i = ks * NS + sl; r = WB + 4 * ((ks % NBUF) * NS + sl); a = f"v{3 if i < 64 else 2}"; o = (i % 64) * 1024
        if tr: return [lgl(f"ds_read_b64_tr_b16 v[{r}:{r+1}], {a} offset:{o}", ("r", ks)), lgl(f"ds_read_b64_tr_b16 v[{r+2}:{r+3}], {a} offset:{o+512}", ("r", ks))]
        return [lgl(f"ds_read_b128 v[{r}:{r+3}], {a} offset:{o}", ("r", ks))]
    for ks in range(NBUF - 1):
        for sl in range(NS):
            for f in rd(ks, sl): f.fn(k)
    for ks in range(18):
        while k.vmq.count(("x", ks)) < nx[("x", ks)]: take(1)[0].fn(k)
        k.wait_vm(("x", ks)); k.wait_lg(("r", ks))
        if ks == 0: stamp(k, st0)
        mf = []
        for sl in range(NS):
            for tb in range(NTB):
                a = ACC + 4 * (sl * NTB + tb); w = WB + 4 * ((ks % NBUF) * NS + sl); x = 4 * (ks * NTB + tb)
                mf.append(f"{MF} v[{a}:{a+3}], v[{w}:{w+3}], a[{x}:{x+3}], " + ("0" if ks == 0 else f"v[{a}:{a+3}]"))
        fill = [f for sl in range(NS) for f in rd(ks + NBUF - 1, sl)] if ks + NBUF - 1 < 18 else []
        if NBUF == 2 and envs("FRONT", "1") == "1":
            for j, f in enumerate(fill): f.before = j + 1
        outstanding = len(k.vmq) - k.vm_done
        interleave(k, mf, [fill, take(max(0, AHEAD + 2 - outstanding))], budget=8 if NTB == 2 else 12)
    assert pi == len(loads), (pi, len(loads))
def tl(s, tag, post="", cost=8):
    f = F(lambda k: (k.vm(s, tag), k(post) if post else None), cost); f.tag = tag; return f

def p1_addr(k):
    k("s_lshl_b32 s21, s18, 3\ns_and_b32 s22, s17, 7\ns_add_u32 s21, s21, s22")
    k("s_lshr_b32 s29, s17, 3")
    k(f"s_lshl_b32 s56, s21, 7\ns_add_u32 s56, s56, {FA}\nv_and_b32 v2, 15, v0\nv_lshlrev_b32 v2, 3, v2")
    k(f"s_lshl_b32 s26, s21, 2\ns_add_u32 s26, s26, s20")
    k(f"s_mul_i32 s23, s26, {36*KBY}\ns_add_u32 s23, s23, {OFF_XN}\ns_add_u32 s24, s23, {18*KBY}")
def p1_qkv(k):
    p1_addr(k)
    stamp(k, 0)
    k("s_cmp_lg_u32 s20, 0\ns_cbranch_scc1 L_pollx_a")
    poll(k, "a", wg=False)
    k("s_waitcnt vmcnt(0)")
    if EARLY == "f":
        k("s_branch L_p1_bar")
        k.label("L_p1_fetched")
        p1_addr(k)
        k.label("L_p1_bar")
    k("s_barrier")
    stamp(k, 1)
    fresh(k)
    loads = [tl(f"buffer_load_dwordx4 a[{4*(2*ks+tb)}:{4*(2*ks+tb)+3}], v1, s[8:11], s{23+tb} offen offset:{(ks%4)*1024}{LD}", ("x", ks),
                f"s_add_u32 s{23+tb}, s{23+tb}, 4096" if ks % 4 == 3 else "") for ks in range(18) for tb in range(2)]
    T1K = int(envs("T1", "18"))
    if T1K < 18:
        nl = (18 - T1K) * 2
        k(f"v_lshrrev_b32 v4, 4, v1\nv_cmp_gt_u32 vcc, {nl}, v4\nv_lshlrev_b32 v4, 9, v4\nv_mov_b32 v5, {BIG}\ns_lshl_b32 s30, s29, 7\ns_add_u32 s30, s30, {T1K*1024}\nv_cndmask_b32 v4, v5, v4, vcc")
        k("s_add_u32 s31, s30, s24\ns_add_u32 s30, s30, s23")
        p = int(envs("T1P", "6"))
        loads[p:p] = [tl(f"buffer_load_dword v{5+tb}, v4, s[8:11], s{30+tb} offen{LD}", "touch") for tb in range(2)]
    gemm_core(k, 2, 7, loads, int(envs("AH1", "10")), 2, False)
    stamp(k, 3)
    ACC = 16
    k("s_mul_i32 s28, s19, 27\ns_mul_i32 s31, s29, 7\ns_add_u32 s28, s28, s31")
    k("s_lshl_b32 s30, s28, 6\ns_add_u32 s30, s30, s26\ns_lshl_b32 s30, s30, 10\ns_add_u32 s30, s30, s53")
    k("s_mov_b32 s28, s31")
    k(f"s_lshl_b32 s56, s19, 11\ns_lshl_b32 s27, s21, 7\ns_add_u32 s56, s56, s27\ns_lshl_b32 s27, s29, 3\ns_add_u32 s56, s56, s27\ns_add_u32 s56, s56, {FB}")
    for sl in range(7):
        a = ACC + 8 * sl
        k(f"s_cmp_lt_u32 s28, {9 - sl}\ns_cselect_b32 s31, {fbits(18 ** -0.5 * LOG2E)}, 1.0")
        for i in range(8): k(f"v_mul_f32 v{a+i}, s31, v{a+i}")
        for i in range(4): k(f"v_cvt_pk_bf16_f32 v{a+i}, v{a+2*i}, v{a+2*i+1}")
        if sl == 6: k(f"s_cmp_eq_u32 s29, 3\ns_cselect_b32 s30, {BIG}, s30")
        k.vm(f"buffer_store_dwordx4 v[{a}:{a+3}], v1, s[8:11], s30 offen sc1")
        if sl < 6: k("s_add_u32 s30, s30, 65536")
    stamp(k, 4)
    signal(k)
    if EARLY in ("p0", "f"): publish_fp(k, FP)
    elif EARLY == "b": early_blocks(k)
    stamp(k, 5)

def p2_attn(k):
    k("s_lshl_b32 s21, s18, 3\ns_and_b32 s22, s17, 7\ns_add_u32 s21, s21, s22")
    k("s_lshr_b32 s48, s17, 3\ns_lshl_b32 s22, s19, 2\ns_add_u32 s22, s22, s48")
    k(f"s_cmp_lg_u32 s20, 0\ns_cbranch_scc1 L_pollx_w0\ns_cmp_lg_u32 s50, 0\ns_cbranch_scc1 L_pollx_w0\ns_mov_b32 s56, {FW}\nv_min_u32 v2, 53, v0\nv_lshlrev_b32 v2, 3, v2")
    poll(k, "w0", wg=False)
    k("v_and_b32 v3, 63, v0\nv_lshrrev_b32 v4, 4, v3")
    k("v_and_b32 v5, 1, v4\nv_lshlrev_b32 v5, 7, v5\nv_xor_b32 v5, v5, v1")
    k("s_mul_i32 s23, s20, 3\ns_lshl_b32 s24, s21, 2\ns_add_u32 s24, s24, s23\ns_sub_i32 s24, s24, 8")
    for c in range(3):
        k(f"s_cmp_lt_i32 s24, {-c}\ns_cselect_b32 s25, {BIG}, 0")
        k(f"v_add_u32 v{6+c}, s25, v1\nv_add_u32 v{9+c}, s25, v5")
    k(f"s_mul_i32 s49, s19, {27*65536}\ns_add_u32 s49, s49, s53")
    k("s_lshl_b32 s24, s24, 10\ns_add_u32 s27, s24, s49")
    k("s_lshl_b32 s25, s48, 17\ns_add_u32 s25, s25, s27")
    k("s_lshl_b32 s23, s23, 10")
    Q, M1, M2, ONE = 16, 32, 36, 40
    L8, LO, HI, BP, OBV, PKA = 44, 45, 46, 47, 12, 5
    k("s_and_b32 s29, s20, 1\ns_lshr_b32 s30, s20, 1")
    k("s_lshl_b32 s32, s21, 2\ns_lshl_b32 s33, s30, 1\ns_add_u32 s32, s32, s33")
    k("s_lshl_b32 s34, s32, 10\ns_add_u32 s34, s34, s49")
    k(f"s_lshl_b32 s33, s48, 1\ns_add_u32 s33, s33, s29\ns_lshl_b32 s33, s33, 16\ns_add_u32 s33, s33, s34\ns_add_u32 s34, s34, {8*65536}")
    k(f"v_and_b32 v12, 15, v3\nv_lshlrev_b32 v46, 2, v4\ns_mov_b32 s35, {fbits(-1e30)}\nv_mov_b32 v47, s35")
    for i in range(4):
        k(f"v_add_u32 v2, {i}, v46\nv_cmp_gt_u32 vcc, v2, v12\nv_mov_b32 v{ONE+i}, 0x3f803f80\ns_nop 0")
        k(f"v_cndmask_b32 v{M1+i}, v47, 0, vcc\nv_cndmask_b32 v{M2+i}, 0, v47, vcc")
    k(f"v_cmp_eq_u32 s[38:39], s48, v4\ns_lshl_b32 s36, s48, 6\nv_lshl_add_u32 v{BP}, v12, 2, s36")
    k("s_cmp_eq_u32 s29, 1\ns_cselect_b64 s[40:41], -1, 0")
    k("s_andn2_b64 s[42:43], s[38:39], s[40:41]\ns_and_b64 s[44:45], s[38:39], s[40:41]")
    k("s_lshl_b32 s36, s22, 1\ns_add_u32 s36, s36, s29")
    k(f"s_lshl_b32 s47, s32, 15\ns_lshl_b32 s37, s36, 9\ns_add_u32 s47, s47, s37\ns_add_u32 s47, s47, {OFF_OF}")
    k(f"s_lshl_b32 s46, s32, 12\ns_lshl_b32 s37, s36, 8\ns_add_u32 s46, s46, s37\ns_add_u32 s46, s46, {OFF_OB}")
    k("s_mul_i32 s36, s29, 12288\ns_lshl_b32 s37, s30, 11\ns_add_u32 s36, s36, s37\ns_add_u32 s37, s37, 24576")
    k("v_and_b32 v44, 3, v3\nv_lshrrev_b32 v48, 2, v3\nv_and_b32 v45, 1, v3\nv_lshlrev_b32 v45, 3, v45\nv_xor_b32 v48, v48, v45\nv_lshl_add_u32 v48, v44, 4, v48\nv_lshlrev_b32 v48, 4, v48")
    k(f"v_lshrrev_b32 v{L8}, 1, v1\nv_mov_b32 v{LO}, {fbits(2.0**-30)}\nv_mov_b32 v{HI}, {fbits(2.0**30)}\ns_mov_b64 s[64:65], {-1 if FORCE_EXACT else 0}")
    k(f"s_lshr_b32 s58, s17, 2\ns_mul_i32 s58, s58, {108*KBY}\ns_add_u32 s58, s58, {OFF_WO}\ns_lshl_b32 s59, s20, 12\ns_add_u32 s58, s58, s59")
    k("v_bfe_u32 v2, v0, 2, 2\nv_min_u32 v2, 2, v2\nv_sub_u32 v2, s21, v2\nv_max_i32 v2, 0, v2\nv_lshlrev_b32 v2, 7, v2\nv_and_b32 v49, 3, v0\nv_lshl_add_u32 v2, v49, 3, v2")
    k(f"s_lshl_b32 s56, s19, 11\ns_add_u32 s56, s56, {FB}")
    poll(k, "b")
    stamp(k, 6)
    fresh(k)
    blocks = [(25, 9), (25, 10), (27, 17), (25, 18), (25, 19), (27, 26)]
    def dma(b):
        sb, nb = blocks[b]
        k(f"s_add_u32 m0, s23, {b*12288}\ns_add_u32 s28, s{sb}, {nb*65536}")
        for c in range(3):
            k.vm(f"buffer_load_dwordx4 v{(6 if b < 3 else 9)+c}, s[8:11], s28 offen offset:{c*1024} lds", ("kv", b // 3))
    for b in range(3): dma(b)
    for i in range(4):
        off = (i >> 1) * 1024 + (i & 1) * 8
        k.vm(f"buffer_load_dwordx2 v[{Q+4*i}:{Q+4*i+1}], v1, s[8:11], s33 offen offset:{off}", "q")
        k.vm(f"buffer_load_dwordx2 v[{Q+4*i+2}:{Q+4*i+3}], v1, s[8:11], s34 offen offset:{off}", "q")
    for b in range(3, 6): dma(b)
    k("v_add_u32 v6, s36, v1\nv_add_u32 v7, s37, v1")
    k("s_add_u32 s36, s36, 36864\ns_add_u32 s37, s37, 36864\nv_add_u32 v8, s36, v48\nv_add_u32 v9, s37, v48")
    k(f"s_lshl_b32 s56, s21, 7\ns_lshl_b32 s27, s22, 3\ns_add_u32 s56, s56, s27\ns_add_u32 s56, s56, {FC}")
    k("v_bfe_u32 v10, v0, 3, 3\nv_mul_u32_u24 v10, 1152, v10\nv_and_b32 v11, 7, v0\nv_lshl_add_u32 v10, v11, 4, v10\nv_add_u32 v11, 9216, v10")
    k("s_mov_b32 s36, s47\nv_lshrrev_b32 v5, 2, v1")
    KR, VR = 0, 80
    k.wait_vm("q")
    k("s_barrier")
    stamp(k, 7)
    for i in range(4):
        k(f"v_cndmask_b32 v{Q+4*i+2}, 0, v{Q+4*i+2}, s[42:43]\nv_cndmask_b32 v{Q+4*i+3}, 0, v{Q+4*i+3}, s[44:45]")
    S0 = 48; OA = S0 + 144; TM = OA + 24
    def run(mf, valu, gap_first=0, frac=0.9):
        tot = sum(f.cost for f in valu); acc = 0; mi = 0
        for f in valu:
            while mi < len(mf) and acc >= gap_first + (tot - gap_first) * mi / max(len(mf), 1) * frac:
                mf[mi](k); mi += 1
            f.fn(k); acc += f.cost
        while mi < len(mf): mf[mi](k); mi += 1
    def epi(i, check):
        o = OA + 12 * (i & 1); t = TM + 2
        L = [line(f"v_rcp_f32 v{t}, v{o+8}", 8),
             line(f"v_cndmask_b32 v{o+4}, v{o+4}, v{o+6}, s[40:41]"), line(f"v_cndmask_b32 v{o+5}, v{o+5}, v{o+7}, s[40:41]")]
        if check:
            L += [line(f"v_med3_f32 v{o+9}, v{o+8}, v{LO}, v{HI}"), line(f"v_sub_f32 v{o+9}, v{o+9}, v{o+8}")]
            L += [line(f"v_fma_f32 v{o+9}, v{o+j}, 0, v{o+9}") for j in range(6)]
            L += [line(f"v_cmp_neq_f32 vcc, 0, v{o+9}")]
        for j in range(6): L.append(line(f"v_mul_f32 v{o+j}, v{o+j}, v{t}"))
        if check: L.append(line("s_or_b64 s[64:65], s[64:65], vcc"))
        for j in (2, 0, 1): L.append(line(f"v_cvt_pk_bf16_f32 v{o+(j if j < 2 else 6)}, v{o+2*j}, v{o+2*j+1}"))
        L.append(lgl(f"ds_bpermute_b32 v{TM+3}, v{BP}, v{o+6}", ("bp", i)))
        L.append(vml(f"buffer_store_dwordx2 v[{o}:{o+1}], v{L8}, s[8:11], s47 offen sc1"))
        L.append(line(f"s_add_u32 s47, s47, 16384"))
        L2 = [line(f"s_mov_b32 vcc_lo, {(0xffff, 0xffff0000, 0, 0)[i]}\ns_mov_b32 vcc_hi, {(0, 0, 0xffff, 0xffff0000)[i]}", 8),
              F(lambda k: (k.wait_lg(("bp", i)), k(f"v_cndmask_b32 v{OBV}, v{OBV}, v{TM+3}, vcc")), 8)]
        if i == 3: L2.append(vml(f"buffer_store_dword v{OBV}, v5, s[8:11], s46 offen sc1"))
        return (L, L2) if check else L + L2
    def variant(lim, fast, first):
        nm = f"{'f' if fast else 'e'}{'' if first else 'r'}{lim}"
        k.label(f"L_attn_{nm}")
        k.lgq = []; k.lg_done = 0
        tiles = lambda i: list(range(max(i, lim), i + 17))
        pairs = lambda i: list(range(max(i, lim) >> 1, ((i + 16) >> 1) + 1))
        kreads, vreads, extra = [], [], []
        if first:
            for kt in range(lim, 20):
                off = (kt >> 1) * 1024 + (kt & 1) * 8
                kreads += [lgl(f"ds_read_b64 a[{KR+4*kt}:{KR+4*kt+1}], v6 offset:{off}", ("k", kt)), lgl(f"ds_read_b64 a[{KR+4*kt+2}:{KR+4*kt+3}], v7 offset:{off}", ("k", kt))]
            vreads = [line("s_waitcnt vmcnt(0)\ns_barrier", 8)]
            for p in range(lim // 2, 10):
                for b in range(2):
                    for hf in range(2):
                        r = VR + 8 * p + 4 * b + 2 * hf
                        vreads.append(lgl(f"ds_read_b64_tr_b16 a[{r}:{r+1}], v{8+b} offset:{p*1024 + hf*8}", ("v", p)))
            wo = [lambda k: (k.wait_lg_all(), k("s_mov_b32 m0, s59\ns_barrier"))]
            for q in range(7):
                for c in range(4):
                    wo.append(lambda k, c=c: k(f"buffer_load_dwordx4 v1, s[8:11], s58 offen offset:{c*1024} lds" + ("\ns_add_u32 m0, m0, 16384\ns_add_u32 s58, s58, 16384" if c == 3 else "")))
            def pkl(u):
                def f(k):
                    k(f"s_cmp_eq_u32 s67, 0\ns_cbranch_scc1 L_pk_{nm}_{u}")
                    for i in range(4): k(f"buffer_load_dwordx4 {lpark(u, i)}, v{10 + (i & 1)}, s[60:63], s{72 + 2*u + (i >> 1)} offen nt")
                    k.label(f"L_pk_{nm}_{u}")
                return f
            extra = [pkl(0), pkl(1), pkl(2)] + wo
            if EARLY == "w":
                def pkb(n):
                    def f(k):
                        k(f"s_cmp_eq_u32 s67, 0\ns_cbranch_scc1 L_pb_{nm}_{n}")
                        if n == 0: stage_addr(k)
                        pack_block(k, n, 6)
                        k.label(f"L_pb_{nm}_{n}")
                    return f
                extra = [pkl(0), pkl(1), pkl(2), pkb(0), pkb(1), wo[0]]
                for n in range(6): extra += [pkb(2 + n)] + wo[1 + 28 * n // 6: 1 + 28 * (n + 1) // 6]
        def qk1(i, kt, s):
            c = f"v[{M2}:{M2+3}]" if kt == i + 16 else f"v[{M1}:{M1+3}]" if kt == i else "0"
            def f(k):
                if first: k.wait_lg(("k", kt))
                k(f"{MF} v[{s}:{s+3}], a[{KR+4*kt}:{KR+4*kt+3}], v[{Q+4*i}:{Q+4*i+3}], {c}")
            return f
        def pv1(i, p, b, s):
            o = OA + 12 * (i & 1) + 4 * b
            A = f"v[{ONE}:{ONE+3}]" if b == 2 else f"a[{VR+8*p+4*b}:{VR+8*p+4*b+3}]"
            def f(k):
                if first: k.wait_lg(("v", p))
                k(f"{MF} v[{o}:{o+3}], {A}, v[{s}:{s+3}], " + ("0" if p == pairs(i)[0] else f"v[{o}:{o+3}]"))
            return f
        if fast:
            steps = [(i, p) for i in range(4) for p in pairs(i)]
            QL, PL = 2, int(envs("PL", "7")); NB = QL + PL + 1; SP = int(envs("SP", "9"))
            buf = lambda s: S0 + 8 * (s % NB)
            def qks(s):
                if s >= len(steps): return []
                i, p = steps[s]
                return [qk1(i, 2 * p + hf, buf(s) + 4 * hf) for hf in range(2) if 2 * p + hf in tiles(i)]
            def pvs(s):
                if not 0 <= s < len(steps): return []
                return [pv1(*steps[s], b, buf(s)) for b in range(3)]
            def exps(s):
                if s >= len(steps): return []
                i, p = steps[s]; b = buf(s); va, vb = 2 * p in tiles(i), 2 * p + 1 in tiles(i)
                E = lambda r: line(f"v_exp_f32 v{r}, v{r}", 8); C = lambda d, r: line(f"v_cvt_pk_bf16_f32 v{d}, v{r}, v{r+1}")
                Z = lambda d: line(f"v_mov_b32 v{d}, 0")
                if va and vb: return [E(b), E(b+1), E(b+2), E(b+3), E(b+4), C(b, b), E(b+5), C(b+1, b+2), E(b+6), E(b+7), C(b+2, b+4), C(b+3, b+6)]
                if va: return [E(b), E(b+1), E(b+2), E(b+3), C(b, b), C(b+1, b+2), Z(b+2), Z(b+3)]
                return [E(b+4), E(b+5), E(b+6), E(b+7), Z(b), Z(b+1), C(b+2, b+4), C(b+3, b+6)]
            n0 = min(12, len(kreads))
            for f in kreads[:n0]: f.fn(k)
            side = [f.fn for f in kreads[n0:]]; nk = len(side)
            side = side + [f.fn for f in vreads]
            for s in range(QL):
                for m in qks(s):
                    m(k)
                    for _ in range(2):
                        if side and nk > 0: side.pop(0)(k); nk -= 1
            k("s_nop 4")
            last = {i: max(s for s, (ii, p) in enumerate(steps) if ii == i) for i in range(4)}
            pend = []; pend2 = []; pvp = 0; s = 0; nsteps = max(len(steps), PL) + 2
            while pvp < len(steps):
                if s in [last[i] + 1 for i in range(3)]: stamp(k, 8 + [last[i] + 1 for i in range(3)].index(s))
                todo = []
                while s >= PL and pvp < min(s, len(steps)) and len(todo) < 2 and not (todo and todo[-1] in last.values()):
                    todo.append(pvp); pvp += 1
                mf = [m for t in todo for m in pvs(t)] + qks(s + QL)
                sd = []
                while side and (len(sd) < SP): sd.append(side.pop(0))
                if not side and not sd and extra:
                    q = -(-len(extra) // max(1, nsteps - 2 - s)); sd = extra[:q]; extra = extra[q:]
                va = exps(s)
                if pend and len(va) < 12: va = va + [line("s_nop 7", 32)]
                va = va + pend2 + pend; pend2 = []
                if pend: pend2 = later
                pend = []
                for i in range(4):
                    if last[i] in todo: pend, later = epi(i, True)
                mix = []
                a, b2 = list(mf), list(sd)
                while a or b2:
                    if b2:
                        for _ in range(-(-len(b2) // max(1, len(a)))): mix.append(b2.pop(0))
                    if a: mix.append(a.pop(0))
                if not va: va = [line("s_nop 1")]
                run(mix, va, 4, 0.85)
                s += 1
            for f in extra: f(k)
            assert not side
            for f in pend2: f.fn(k)
            k("s_nop 7")
            for f in pend + later: f.fn(k)
            k("s_cmp_eq_u64 s[64:65], 0\ns_cbranch_scc1 L_attn_done")
            k(f"s_waitcnt vmcnt(0)\ns_mov_b32 s47, s36\ns_branch L_attn_er{lim}")
            return
        sreg = lambda i, kt: S0 + 72 * (i & 1) + 4 * (kt - 2 * (i >> 1))
        qk = lambda i: [qk1(i, kt, sreg(i, kt)) for kt in tiles(i)]
        pv = lambda i: [pv1(i, p, b, sreg(i, 2 * p)) for b in range(3) for p in pairs(i)]
        def softmax(i):
            L = []
            regs = [sreg(i, kt) + j for kt in tiles(i) for j in range(4)]
            m = TM; t = TM + 1
            ch = [regs[0::2], regs[1::2]]
            for c in range(2): L.append(line(f"v_max_f32 v{m+c}, v{ch[c][0]}, v{ch[c][1]}"))
            for j in range(2, len(ch[0]), 2):
                for c in range(2): L.append(line(f"v_max3_f32 v{m+c}, v{m+c}, v{ch[c][j]}, v{ch[c][j+1]}"))
            L.append(line(f"v_max_f32 v{m}, v{m}, v{t}"))
            for sw in ("v_permlane16_swap_b32", "v_permlane32_swap_b32"):
                L.append(line(f"v_mov_b32 v{t}, v{m}\ns_nop 1\n{sw} v{m}, v{t}\nv_max_f32 v{m}, v{m}, v{t}", 16))
            for p in pairs(i):
                base = sreg(i, 2 * p)
                for hf in range(2):
                    kt = 2 * p + hf; s = sreg(i, kt)
                    if kt in tiles(i):
                        for j in range(4): L.append(line(f"v_sub_f32 v{s+j}, v{s+j}, v{m}"))
                        for j in range(4): L.append(line(f"v_exp_f32 v{s+j}, v{s+j}", 8))
                for hf in range(2):
                    kt = 2 * p + hf; s = sreg(i, kt)
                    for j in range(2):
                        if kt in tiles(i): L.append(line(f"v_cvt_pk_bf16_f32 v{base+2*hf+j}, v{s+2*j}, v{s+2*j+1}"))
                        else: L.append(line(f"v_mov_b32 v{base+2*hf+j}, 0"))
            return L
        for f in kreads: f.fn(k)
        for m in qk(0): m(k)
        k("s_nop 7")
        for i in range(4):
            mf = (pv(i - 1) if i >= 1 else []) + (qk(i + 1) if i < 3 else [])
            if i == 0: mf = mf + [f.fn for f in vreads]
            if i == 1: mf = extra + mf
            va = softmax(i)
            if i >= 2: va = epi(i - 2, False) + va
            run(mf, va, 8 if i else 0)
            k("s_nop 1")
        run(pv(3), epi(2, False))
        k("s_nop 7")
        for f in epi(3, False): f.fn(k)
        k("s_branch L_attn_done")
    v = "f" if FAST else "e"
    for lim in (16, 12, 8, 4): k(f"s_cmp_eq_u32 s32, {(16 - lim) // 2}\ns_cbranch_scc1 L_attn_{v}{lim}")
    for lim in (0, 4, 8, 12, 16): variant(lim, FAST, True)
    if FAST:
        for lim in (0, 4, 8, 12, 16): variant(lim, False, False)
    k.label("L_attn_done")
    stamp(k, 12)
    signal(k)
    if EARLY not in ("p0", "f"): publish_fp(k, FP)
    late_blocks(k)
    stamp(k, 13)

AG, AU, T1, T2, XV, RING = 16, 32, 48, 64, 80, 112
RESID = RING + 4 * 18
G = 3; LEAD = 36 - G
def wload(p):
    r = RING + 4 * (p % 36)
    if p >= 486: return []
    s = f"buffer_load_dwordx4 v[{r}:{r+3}], v1, s[12:15], s25 offen offset:{(p%4)*1024}"
    return [vml(s, ("w", p), cost=int(envs("LC", "8")))] + ([line("s_add_u32 s25, s25, 4096")] if p % 4 == 3 else [])

def p3_wo(k):
    NS = 6; ACC = 16; NB3 = int(envs('NB3', '3')); RES = ACC + 24 + 24 * NB3
    k("s_lshl_b32 s21, s16, 2\ns_and_b32 s22, s17, 3\ns_add_u32 s26, s21, s22")
    k("s_lshr_b32 s22, s17, 2")
    k("s_lshl_b32 s21, s26, 2\ns_add_u32 s21, s21, s20")
    k(f"s_lshl_b32 s23, s21, 14\ns_add_u32 s23, s23, {OFF_OF}")
    k(f"s_lshl_b32 s24, s26, 13\ns_lshl_b32 s30, s20, 6\ns_add_u32 s24, s24, s30\ns_add_u32 s24, s24, {OFF_OB}")
    k("s_lshr_b32 s28, s22, 2\ns_mul_i32 s28, s28, 9\ns_and_b32 s29, s22, 3\ns_lshl_b32 s30, s29, 1\ns_add_u32 s30, s30, 1\ns_cmp_eq_u32 s29, 0\ns_cselect_b32 s30, 0, s30\ns_add_u32 s28, s28, s30")
    k(f"s_mul_i32 s27, s21, 18\ns_add_u32 s27, s27, s28\ns_lshl_b32 s27, s27, 10\ns_add_u32 s40, s27, {OFF_XF}\ns_add_u32 s41, s27, {OFF_X1}")
    k("v_lshrrev_b32 v10, 1, v1\nv_and_b32 v11, 15, v0\nv_lshlrev_b32 v11, 2, v11\nv_bfe_u32 v12, v0, 4, 2\nv_lshl_add_u32 v11, v12, 9, v11")
    k(f"s_lshr_b32 s56, s26, 1\ns_lshl_b32 s56, s56, 7\ns_add_u32 s56, s56, {FC}\nv_and_b32 v2, 15, v0\nv_lshlrev_b32 v2, 3, v2")
    poll(k, "c")
    stamp(k, 14)
    fresh(k)
    loads = []
    for ks in range(16):
        for h in range(2):
            loads.append(tl(f"buffer_load_dwordx2 a[{4*ks+2*h}:{4*ks+2*h+1}], v10, s[8:11], s23 offen offset:{(ks%4)*1024 + 512*h}{LD}", ("x", ks),
                            "s_add_u32 s23, s23, 4096" if ks % 4 == 3 and h else "", 4))
    for q in range(2):
        for j in range(4):
            loads.append(tl(f"buffer_load_dword a{64+4*q+j}, v11, s[8:11], s24 offen offset:{(j>>1)*2048 + (j&1)*256}{LD}", ("x", 16 + q),
                            "s_add_u32 s24, s24, 4096" if j == 3 else "", 4))
    for pr in range(3): loads.append(tl(f"buffer_load_dwordx4 v[{RES+4*pr}:{RES+4*pr+3}], v1, s[8:11], s40 offen offset:{pr*1024}{LD}", "res"))
    if envs("T3", "0") == "1":
        k(f"v_lshlrev_b32 v4, 3, v1\nv_cmp_gt_u32 vcc, 256, v1\nv_mov_b32 v5, {BIG}\ns_lshl_b32 s30, s22, 11\ns_add_u32 s30, s30, s23\nv_cndmask_b32 v4, v5, v4, vcc")
        k.vm(f"buffer_load_dword v5, v4, s[8:11], s30 offen{LD}", "touch")
    gemm_core(k, 1, NS, loads, int(envs("AH3", "14")), 15, False, NB3)
    k.wait_vm("res")
    stamp(k, 16)
    k("s_mov_b32 s31, 0xffff0000\ns_mov_b32 s32, 0x3f803f80\nv_mov_b32 v6, 0\nv_mov_b32 v7, 0\nv_and_b32 v3, 63, v0")
    k(f"v_cmp_gt_u32 vcc, 16, v3\nv_mov_b32 v9, {BIG}\ns_cmp_lg_u32 s29, 0\ns_cbranch_scc1 L_p3_two")
    for pr in (2, 0, 1):
        for h in range(4):
            a = ACC + 8 * pr + 2 * h; r = RES + 4 * pr + h
            k(f"v_lshlrev_b32 v4, 16, v{r}\nv_and_b32 v5, s31, v{r}\nv_add_f32 v4, v4, v{a}\nv_add_f32 v5, v5, v{a+1}\nv_cvt_pk_bf16_f32 v{r}, v4, v5")
        k(f"buffer_store_dwordx4 v[{RES+4*pr}:{RES+4*pr+3}], v1, s[8:11], s41 offen offset:{pr*1024} sc1")
        for h in range(4): k(f"v_dot2c_f32_bf16 v6, s32, v{RES+4*pr+h}\nv_dot2c_f32_bf16 v7, v{RES+4*pr+h}, v{RES+4*pr+h}")
        if pr == 2: k.label("L_p3_two")
    k(f"v_cndmask_b32 v8, v9, v10, vcc\ns_lshl_b32 s30, s21, 10\ns_lshl_b32 s31, s22, 7\ns_add_u32 s30, s30, s31\ns_add_u32 s30, s30, {OFF_STAT}")
    red_rows(k, 6, 4); red_rows(k, 7, 4)
    k.vm(f"buffer_store_dwordx2 v[6:7], v8, s[8:11], s30 offen sc1")
    k(f"s_lshl_b32 s56, s26, 7\ns_lshl_b32 s27, s22, 3\ns_add_u32 s56, s56, s27\ns_add_u32 s56, s56, {FD}")
    stamp(k, 17)
    signal(k)
    publish_fp(k, FP2)
    stamp(k, 18)

def p4_ffn(k):
    xreg = lambda ks, tb: (ar(4 * (ks * 4 + tb), 4) if ks < 16 else vr(XV + 4 * (ks * 4 + tb - 64), 4))
    if envs("FMAP", "2") == "2":
        k("s_lshl_b32 s21, s19, 1\ns_and_b32 s22, s17, 1\ns_add_u32 s21, s21, s22")
        k("s_lshl_b32 s22, s18, 4\ns_lshr_b32 s23, s17, 1\ns_add_u32 s22, s22, s23")
    else:
        k("s_and_b32 s21, s16, 1\ns_lshl_b32 s21, s21, 2\ns_and_b32 s22, s17, 3\ns_add_u32 s21, s21, s22")
        k("s_lshr_b32 s22, s16, 1\ns_lshl_b32 s22, s22, 3\ns_lshr_b32 s23, s17, 2\ns_add_u32 s22, s22, s23")
    k(f"s_lshl_b32 s24, s21, 2\ns_add_u32 s24, s24, s20\ns_mul_i32 s24, s24, {486*KBY}\ns_add_u32 s24, s24, {OFF_WF}")
    k(f"s_add_u32 s12, s4, s24\ns_addc_u32 s13, s5, 0\ns_mov_b32 s14, {486*KBY}\ns_mov_b32 s15, 0x00020000\ns_mov_b32 s25, 0")
    poll_fp(k, "p", FP)
    fresh(k)
    PRE = int(envs("PRE", "16")); FILL = int(envs("FILL", "33")); MID = (FILL + LEAD) // 2
    for p in range(PRE):
        for f in wload(p): f.fn(k)
    k(f"s_lshl_b32 s23, s22, 2\ns_add_u32 s23, s23, s20\ns_lshl_b32 s26, s23, 10\ns_add_u32 s26, s26, {OFF_STAT}\ns_mul_i32 s23, s23, {18*KBY}\ns_add_u32 s23, s23, {OFF_X1}")
    ln_consts(k)
    k("v_and_b32 v4, 15, v0\nv_lshlrev_b32 v4, 3, v4\nv_bfe_u32 v5, v0, 4, 2\nv_lshl_add_u32 v4, v5, 8, v4")
    k(f"s_lshl_b32 s56, s22, 7\ns_add_u32 s56, s56, {FD}\nv_and_b32 v2, 7, v0\nv_lshlrev_b32 v2, 3, v2")
    poll(k, "d")
    stamp(k, 19)
    X = 16; T = 88
    k.vm(f"buffer_load_dwordx2 v[{T}:{T+1}], v4, s[8:11], s26 offen{LD}", "st")
    k.vm(f"buffer_load_dwordx2 v[{T+2}:{T+3}], v4, s[8:11], s26 offen offset:128{LD}", "st")
    for ks in range(18):
        k.vm(f"buffer_load_dwordx4 v[{X+4*ks}:{X+4*ks+3}], v1, s[8:11], s23 offen offset:{(ks%4)*1024}{LD}", ("x", ks))
        if ks % 4 == 3: k("s_add_u32 s23, s23, 4096")
    k("s_lshl_b32 s26, s20, 10\nv_add_u32 v2, s26, v1\nv_add_u32 v3, 0x10000, v2")
    k.wait_vm("st")
    k(f"v_add_f32 v{T}, v{T}, v{T+2}\nv_add_f32 v{T+1}, v{T+1}, v{T+3}")
    red_rows(k, T, T + 2)
    k(f"v_mul_f32 v{T}, s31, v{T}\nv_sub_f32 v{T+3}, 0, v{T}\ns_mov_b32 s26, 0x00003f80\ns_mov_b32 s27, 0x3f800000")
    late = []
    kk = KB(); red_rows(kk, T + 1, T + 2)
    kk(f"v_mul_f32 v{T+1}, s31, v{T+1}\nv_fma_f32 v{T+1}, -v{T}, v{T}, v{T+1}\nv_max_f32 v{T+1}, 0, v{T+1}\nv_add_f32 v{T+1}, {fbits(1e-5)}, v{T+1}")
    kk(f"v_and_b32 v4, 15, v0\nv_lshlrev_b32 v4, 2, v4\nv_add_u32 v4, {144*KBY}, v4\ns_lshl_b32 s33, s20, 6\nv_add_u32 v5, s33, v4")
    pw = PRE
    for ks in range(18):
        k.wait_vm(("x", ks))
        for i in range(4): k(f"v_dot2_f32_bf16 v{T+4+2*i}, v{X+4*ks+i}, s26, v{T+3}\nv_dot2_f32_bf16 v{T+5+2*i}, v{X+4*ks+i}, s27, v{T+3}")
        if pw < PRE + (FILL - PRE) * (ks + 1) // 18:
            for f in wload(pw): f.fn(k)
            pw += 1
        for i in range(4): k(f"v_cvt_pk_bf16_f32 v{X+4*ks+i}, v{T+4+2*i}, v{T+5+2*i}")
        k.lg(f"ds_write_b128 v{2 if ks < 16 else 3}, v[{X+4*ks}:{X+4*ks+3}] offset:{(ks % 16) * 4096}")
        while pw < PRE + (FILL - PRE) * (ks + 1) // 18:
            for f in wload(pw): f.fn(k)
            pw += 1
        if ks == 0:
            k.lines += kk.lines
            k.lg(f"ds_write_b32 v5, v{T+1}")
    k("v_mov_b32 v2, v1\nv_add_u32 v3, 0x10000, v1")
    HB = 72 * KBY
    k(f"s_mov_b32 s33, {fbits(-LOG2E)}")
    k(f"s_lshl_b32 s29, s20, 14\ns_add_u32 s29, s29, {HB}\ns_mov_b32 s28, 8")
    k("s_mov_b32 s34, 7")
    stamp(k, 20)
    k.wait_lg_all(); k("s_barrier")
    for tb in range(4): k.lg(f"ds_read_b32 v{9+tb}, v4 offset:{64*tb}", "var")
    consts = [F(lambda k: k.wait_lg("var"), 4, after=4)]
    consts += [line(f"v_rsq_f32 v{5+tb}, v{9+tb}", 8) for tb in range(4)] + [line(f"v_sqrt_f32 v{9+tb}, v{9+tb}", 8) for tb in range(4)]
    consts += [line(f"v_mul_f32 v{5+j}, s33, v{5+j}") for j in range(8)]
    def xreads(lo, hi):
        return [lgl(f"ds_read_b128 {xreg(ks, tb)}, v{2 if ks < 16 else 3} offset:{((ks * 4 + tb) % 64) * 1024}", ("xr", ks)) for ks in range(lo, hi) for tb in range(4)]
    def phase(p0, acc, streams, xr=None, pre_extra=None, budget=8, xwait=None, lead=(LEAD, LEAD)):
        mf = []; pre = {}; loads = []
        for g in range(18 // G):
            def p(k, g=g):
                if pre_extra and g in pre_extra: pre_extra[g](k)
                k.wait_vm(("w", p0 + g * G + G - 1), force=True)
                if xr is not None or xwait: k.wait_lg(("xr", g * G + G - 1))
            pre[len(mf)] = p
            n = 18 + lead[1] - lead[0]
            for q in range(p0 + lead[0] + n * g // 6, p0 + lead[0] + n * (g + 1) // 6):
                assert q < p0 + g * G + 36
                for f in wload(q):
                    f.after = len(mf); f.before = len(mf) + 4 * G; loads.append(f)
            for tb in range(4):
                for j in range(G):
                    ks = g * G + j; r = RING + 4 * ((p0 + ks) % 36); a = acc + 4 * tb
                    mf.append(f"{MF} v[{a}:{a+3}], v[{r}:{r+3}], {xreg(ks, tb)}, " + ("0" if ks == 0 else f"v[{a}:{a+3}]"))
        st = [loads] + streams
        if xr:
            for j, f in enumerate(xr):
                g = j // (4 * G); f.after = max(f.after, 4 * G * g - 4); f.before = 4 * G * (g + 1) - 3
            st.append(xr)
        interleave(k, mf, st, pre=pre, budget=budget)
    def finish():
        L = [line("v_add_u32 v4, s29, v1")]
        for tb in range(4):
            for i in range(4): L.append(line(f"v_mul_f32 v{T1+4*tb+i}, v{T1+4*tb+i}, v{AU+4*tb+i}", after=3))
            for i in range(4): L.append(line(f"v_mul_f32 v{T1+4*tb+i}, v{T1+4*tb+i}, v{T2+4*tb+i}"))
            for i in range(2): L.append(line(f"v_cvt_pk_bf16_f32 v{T2+4*tb+i}, v{T1+4*tb+2*i}, v{T1+4*tb+2*i+1}"))
            L.append(lgl(f"ds_write_b64 v4, v[{T2+4*tb}:{T2+4*tb+1}] offset:{tb*1024}", "hw"))
        L += [line("s_add_u32 s29, s29, s28"), line("s_sub_u32 s28, 4096, s28"), line("s_sub_u32 s34, s34, 1")]
        return L
    def expo():
        L = []
        for tb in range(4):
            for i in range(4): L.append(line(f"v_mul_f32 v{T1+4*tb+i}, v{5+tb}, v{AG+4*tb+i}", after=2))
            for i in range(4): L.append(line(f"v_exp_f32 v{T2+4*tb+i}, v{T1+4*tb+i}", 8))
            for i in range(4): L.append(line(f"v_fma_f32 v{T2+4*tb+i}, v{T2+4*tb+i}, v{9+tb}, v{9+tb}"))
            for i in range(4): L.append(line(f"v_rcp_f32 v{T2+4*tb+i}, v{T2+4*tb+i}", 8))
        return L
    xr = xreads(0, 18)
    for f in xr[:4 * G]: f.fn(k)
    stamp(k, 21); stamp(k, 30, True)
    phase(0, AG, [consts], xr=xr[4 * G:], lead=(FILL, MID), budget=12)
    phase(18, AU, [expo()], lead=(MID, LEAD), budget=12)
    k(f"v_add_u32 v2, {HB}, v1\nv_add_u32 v3, {HB + 0x10000}, v1")
    its = []
    for fb in range(1, 8):
        m0 = k.mark()
        phase(36 * fb, AG, [finish()])
        phase(36 * fb + 18, AU, [expo()])
        its.append(k.lines[m0:]); del k.lines[m0:]
    k.label("L_ffn_gu")
    k.lines += fold(its)
    k("s_cmp_lg_u32 s34, 0\ns_cbranch_scc1 L_ffn_gu")
    k("v_mov_b32 v4, v2")
    poll_fp(k, "p2", FP2)
    k("v_mov_b32 v2, v4")
    phase(288, AG, [finish()[:-3]])
    k.wait_lg_all(); k("s_barrier")
    k.lgq = []; k.lg_done = 0
    hr = xreads(0, 15)
    for j, f in enumerate(hr): f.after = 12 * (j // 12 + 1)
    phase(306, AU, [expo(), hr], budget=int(envs("TB", "12")))
    stamp(k, 22); stamp(k, 31, True)
    k(f"s_lshr_b32 s29, s20, 1\ns_lshl_b32 s29, s29, 12\ns_and_b32 s35, s20, 1\ns_lshl_b32 s36, s35, 3\ns_add_u32 s29, s29, s36")
    k(f"v_add_u32 v9, s29, v1\ns_add_u32 s29, s29, {HB + 64*KBY}\ns_lshl_b32 s41, s20, 11\nv_add_u32 v10, s41, v1")
    k(f"s_lshl_b32 s37, s21, 7\ns_lshl_b32 s38, s22, 2\ns_add_u32 s37, s37, s38\ns_mul_i32 s37, s37, {18*KBY}\ns_add_u32 s37, s37, {OFF_PART}")
    k(f"s_mul_i32 s38, s20, 9\ns_lshr_b32 s39, s20, 1\ns_mul_i32 s39, s39, 9\ns_add_u32 s39, s39, 4\ns_lshl_b32 s39, s39, 10\ns_mul_i32 s40, s35, {36*KBY}\ns_add_u32 s39, s39, s40\ns_add_u32 s39, s39, s37")
    k("s_add_u32 s38, s38, s35\ns_lshl_b32 s38, s38, 9\ns_add_u32 s38, s38, s37")
    k(f"s_lshl_b32 s56, s22, 7\ns_lshl_b32 s27, s21, 3\ns_add_u32 s56, s56, s27\ns_add_u32 s56, s56, {FE}")
    for tb in range(4): k(f"v_add_u32 v{5+tb}, {tb*18*KBY}, v1")
    fin = finish()[:-3]
    NG = 18 // G
    for f in fin: f.before = 4 * G * (NG - 3)
    def late(k):
        k.wait_lg_all(); k("s_barrier")
        for f in xreads(15, 18): f.fn(k)
    phase(324, AG, [fin], pre_extra={NG - 3: late}, xwait=True)
    def cv(acc, dst, hi, after=0):
        return [line(f"v_cvt_pk_bf16_f32 v{dst+4*tb+2*hi+i}, v{acc+4*tb+2*i}, v{acc+4*tb+2*i+1}", after=after) for tb in range(4) for i in range(2)]
    def st4(src, tb, after, addr="s38"):
        if envs("NOST", ""): return line("s_nop 0", after=after)
        return vml(f"buffer_store_dwordx4 v[{src+4*tb}:{src+4*tb+3}], v{5+tb}, s[8:11], {addr} offen{envs('PST', ' sc1').replace('_', ' ')}", after=after, cost=8)
    c = cv(AG, T2, 0, 8); join = []
    for tb in range(4): join += c[2*tb:2*tb+2] + [lgl(f"ds_write_b64 v9, v[{T2+4*tb}:{T2+4*tb+1}] offset:{tb*1024}")]
    for f in join: f.before = 36
    def joined(k):
        k.wait_lg_all(); k("s_barrier")
        k.lg(f"ds_read_b128 v[{T2}:{T2+3}], v10", "j"); k.lg(f"ds_read_b128 v[{T2+4}:{T2+7}], v10 offset:1024", "j")
    phase(342, AU, [join, [F(lambda k: k.wait_lg("j"), 4, after=50), st4(T2, 0, 52, "s39"), st4(T2, 1, 62, "s39")]], pre_extra={3: joined})
    phase(360, AG, [cv(AU, T1, 0, 8)])
    k("s_mov_b32 s34, 2")
    stamp(k, 23); stamp(k, 32, True)
    SCL = int(envs("SCL", "0"))
    def first_half():
        L = []
        for tb in range(4):
            L += [line(f"v_mov_b32 v{T2+4*tb}, v{T1+4*tb}"), line(f"v_mov_b32 v{T2+4*tb+1}, v{T1+4*tb+1}")]
        if SCL: return cv(AG, T1, 1, 8) + [st4(T1, tb, SCL) for tb in range(4)]
        return L + cv(AG, T2, 1, 8) + [st4(T2, 0, 30), st4(T2, 1, 60)]
    def pair(p, x0=[], x1=[]):
        phase(342 + 36 * p, AU, [first_half(), x0])
        phase(342 + 36 * p + 18, AG, [cv(AU, T1, 0, 8), ([] if SCL else [st4(T2, 2, 20), st4(T2, 3, 52)]) + [line("s_add_u32 s38, s38, 1024"), line("s_sub_u32 s34, s34, 1")], x1])
    its = []
    for p in range(1, 3):
        m0 = k.mark(); pair(p); its.append(k.lines[m0:]); del k.lines[m0:]
    k.label("L_ffn_dn")
    k.lines += fold(its)
    k("s_cmp_lg_u32 s34, 0\ns_cbranch_scc1 L_ffn_dn")
    stamp(k, 24); stamp(k, 33, True)
    k("s_lshl_b32 s28, s22, 3\ns_add_u32 s28, s28, s21\ns_mov_b32 s42, s22")
    k("v_bfe_u32 v9, v0, 4, 2\nv_lshlrev_b32 v9, 8, v9\nv_bfe_u32 v10, v0, 3, 1\nv_lshl_add_u32 v9, v10, 10, v9\nv_and_b32 v10, 7, v0\nv_lshl_add_u32 v9, v10, 4, v9")
    k(f"s_lshr_b32 s30, s28, 1\ns_mul_i32 s30, s30, {18*KBY}\ns_and_b32 s31, s28, 1\ns_lshl_b32 s31, s31, 7\ns_add_u32 s30, s30, s31\ns_mul_i32 s31, s20, 6144\ns_add_u32 s30, s30, s31\ns_add_u32 s30, s30, {OFF_X1}\ns_add_u32 s31, s30, 4096")
    k(f"s_lshr_b32 s43, s17, 3\ns_lshl_b32 s26, s19, 2\ns_add_u32 s43, s43, s26\ns_mul_i32 s43, s43, {126*KBY}\ns_add_u32 s43, s43, {OFF_WQ}")
    k(f"s_lshl_b32 s26, s20, 12\ns_add_u32 s43, s43, s26\ns_mov_b32 m0, s26\ns_barrier")
    tail = [vml(f"buffer_load_dwordx4 v[{RESID+4*i}:{RESID+4*i+3}], v9, s[8:11], s{31 if i == 2 else 30} offen offset:{2048 if i == 1 else 0}{LD}", after=14, cost=8) for i in range(3)]
    def wqc(q):
        def f(k):
            k(f"s_cmp_lg_u32 s50, 0\ns_cbranch_scc1 L_wqc{q}")
            for c in range(4): k(f"buffer_load_dwordx4 v1, s[8:11], s43 offen offset:{c*1024} lds")
            k("s_add_u32 m0, m0, 16384\ns_add_u32 s43, s43, 16384")
            k.label(f"L_wqc{q}")
        return F(f, 8, after=16)
    pair(3, tail + [wqc(q) for q in range(4)], [wqc(q) for q in range(4, 8)])
    k("s_nop 5")
    c = cv(AG, T1, 1)
    for tb in range(4):
        c[2 * tb].fn(k); c[2 * tb + 1].fn(k); st4(T1, tb, 0).fn(k)
    stamp(k, 25); stamp(k, 34, True)
    signal(k)
    stamp(k, 26)

def p5_reduce(k, nlayers):
    k(f"s_cmp_eq_u32 s20, 3\ns_cbranch_scc1 L_p5_w3")
    half_lanes(k, 28)
    k("s_mul_i32 s25, s20, 6144\ns_add_u32 s24, s24, s25\nv_add_u32 v8, 0x1000, v7")
    ln_consts(k)
    k("s_mov_b32 s26, 0x00003f80\ns_mov_b32 s27, 0x3f800000")
    D = 16; ACC = D + 96
    for j in range(12): k(f"v_lshlrev_b32 v{ACC+2*j}, 16, v{RESID+j}\nv_and_b32 v{ACC+2*j+1}, s32, v{RESID+j}")
    k(f"s_lshl_b32 s56, s42, 7\ns_add_u32 s56, s56, {FE}\nv_lshlrev_b32 v2, 3, v6")
    poll(k, "e", wg=False)
    stamp(k, 27)
    fresh(k)
    for src in range(8):
        k(f"s_add_u32 s25, s24, {OFF_PART + src * 2304 * KBY}")
        for i in range(3):
            r = D + 12 * src + 4 * i
            k.vm(f"buffer_load_dwordx4 v[{r}:{r+3}], v{8 if i == 2 else 7}, s[8:11], s25 offen offset:{2048 if i == 1 else 0}{LD}", (src, i))
    for src in range(8):
        for i in range(3):
            k.wait_vm((src, i))
            for j in range(4):
                r = D + 12 * src + 4 * i + j; a = ACC + 8 * i + 2 * j
                k(f"v_dot2c_f32_bf16 v{a}, s26, v{r}\nv_dot2c_f32_bf16 v{a+1}, s27, v{r}")
    k("s_nop 2")
    stamp(k, 28)
    for j in range(12): k(f"v_cvt_pk_bf16_f32 v{D+j}, v{ACC+2*j}, v{ACC+2*j+1}")
    k(f"s_cmp_eq_u32 s50, 1\ns_cbranch_scc1 L_p5_final")
    T = D + 16; O = T + 8
    row_sums(k, D, 12, T)
    k(f"v_lshlrev_b32 v9, 3, v6\nv_add_u32 v9, {150*KBY}, v9\ns_lshl_b32 s23, s20, 6\nv_add_u32 v10, s23, v9")
    k(f"ds_write_b64 v10, v[{T}:{T+1}]\ns_waitcnt lgkmcnt(0)\ns_barrier")
    for w in range(3): k(f"ds_read_b64 v[{T+2*w}:{T+2*w+1}], v9 offset:{64*w}")
    k(f"s_add_u32 s23, s24, {OFF_XN}\ns_add_u32 s25, s24, {OFF_XF}\ns_waitcnt lgkmcnt(0)")
    k(f"v_add_f32 v{T}, v{T}, v{T+2}\nv_add_f32 v{T+1}, v{T+1}, v{T+3}\nv_add_f32 v{T}, v{T}, v{T+4}\nv_add_f32 v{T+1}, v{T+1}, v{T+5}")
    ln_stats_finish(k, T, T + 1)
    for i in range(3):
        for j in range(4): ln_norm(k, D + 4 * i + j, O + 4 * i + j, T, T + 1, T + 2 + 2 * (j & 1))
        k(f"buffer_store_dwordx4 v[{O+4*i}:{O+4*i+3}], v{8 if i == 2 else 7}, s[8:11], s23 offen offset:{2048 if i == 1 else 0} sc1")
    for i in range(3):
        k(f"buffer_store_dwordx4 v[{D+4*i}:{D+4*i+3}], v{8 if i == 2 else 7}, s[8:11], s25 offen offset:{2048 if i == 1 else 0} sc1")
    flag_a_addr(k)
    k("s_branch L_p5_join")
    k.label("L_p5_w3")
    k(f"s_cmp_eq_u32 s50, 1\ns_cbranch_scc1 L_main_fin\ns_barrier")
    k.label("L_p5_join")
    stamp(k, 29)
    k(f"s_add_u32 s50, s50, 1\ns_add_u32 s51, s51, 32768\ns_mov_b32 s53, {OFF_QKV2}")
    signal(k)
    if STAMP: k("v_mov_b32 v14, v15")
    k("s_branch L_layer" if nlayers == 2 else "s_branch L_main_fin")
    k.label("L_p5_final")
    srd(k, 12, 6, 2048 * 1152)
    rowmajor(k, 28, 7)
    k("s_mul_i32 s25, s20, 384\ns_add_u32 s33, s33, s25")
    for i in range(3):
        k(f"v_permlane16_swap_b32 v{D+4*i}, v{D+4*i+2}\nv_permlane16_swap_b32 v{D+4*i+1}, v{D+4*i+3}")
        k(f"buffer_store_dwordx4 v[{D+4*i}:{D+4*i+3}], v7, s[12:15], s33 offen offset:{128*i}{FL[envs('OUTST', 's')]}")
    k.label("L_main_fin")
    if DIAG:
        k("s_waitcnt vmcnt(0)"); stamp(k, 50)
        k("s_cmp_lg_u32 s20, 0\ns_cbranch_scc1 L_end\ns_cmp_lg_u32 s2, 100\ns_cbranch_scc1 L_end\ns_sub_u32 s90, s90, s88\ns_mul_i32 s90, s90, 3\ns_min_u32 s90, s90, 100000\ns_memrealtime s[88:89]\ns_waitcnt lgkmcnt(0)")
        k.label("L_dgs")
        k("s_memrealtime s[94:95]\ns_waitcnt lgkmcnt(0)\ns_sub_u32 s94, s94, s88\ns_cmp_lt_u32 s94, s90\ns_cbranch_scc1 L_dgs")
    if STAMP:
        k.wait_vm_all(); stamp(k, 29)
        k(f"s_add_u32 s84, s4, {OFF_STAMP}\ns_addc_u32 s85, s5, 0\ns_mov_b32 s86, 0x2000000\ns_mov_b32 s87, 0x00020000")
        k("s_lshl_b32 s88, s2, 2\ns_add_u32 s88, s88, s20\ns_lshl_b32 s88, s88, 9\nv_lshrrev_b32 v2, 2, v1")
        k("buffer_store_dword v14, v2, s[84:87], s88 offen\nbuffer_store_dword v15, v2, s[84:87], s88 offen offset:256")

def main_k(name, nlayers=2):
    k = KB()
    k.raw(f".globl {name}\n.p2align 8\n.type {name},@function")
    k.label(name)
    k("s_cmp_ge_u32 s2, 256\ns_cbranch_scc1 L_end")
    if STAMP: k("v_mov_b32 v14, 0\nv_mov_b32 v15, 0"); stamp(k, 40)
    if DIAG: k("s_memrealtime s[88:89]\ns_waitcnt lgkmcnt(0)\ns_mov_b32 s90, s88")
    k("s_load_dwordx4 s[36:39], s[0:1], 0\ns_load_dwordx2 s[46:47], s[0:1], 16\ns_load_dwordx4 s[40:43], s[0:1], 32")
    k("s_load_dwordx2 s[44:45], s[0:1], 48\ns_load_dwordx2 s[6:7], s[0:1], 56\ns_load_dwordx2 s[84:85], s[0:1], 64\ns_load_dwordx2 s[4:5], s[0:1], 72")
    k("v_lshrrev_b32 v2, 6, v0\nv_and_b32 v1, 63, v0\nv_readfirstlane_b32 s20, v2\nv_cmp_eq_u32 vcc, 0, v1\nv_lshlrev_b32 v1, 4, v1")
    k("s_and_b32 s16, s2, 7\ns_lshr_b32 s17, s2, 3\ns_bfe_u32 s18, s2, 0x10002\ns_and_b32 s19, s2, 3")
    k(f"v_mov_b32 v13, {BIG}\ns_mov_b32 s50, 0\ns_mov_b32 s51, 0\ns_mov_b32 s53, {OFF_QKV}\ns_mov_b32 s67, 0\nv_cndmask_b32 v13, v13, 0, vcc")
    p0(k)
    k.label("L_layer")
    fresh(k)
    p1_qkv(k); p2_attn(k); p3_wo(k); p4_ffn(k); p5_reduce(k, nlayers)
    k.label("L_end")
    k("s_endpgm")
    return k

def desc(n, vgpr, accum):
    return f""".p2align 6
.amdhsa_kernel {n}
  .amdhsa_next_free_vgpr {vgpr}
  .amdhsa_next_free_sgpr 96
  .amdhsa_accum_offset {accum}
  .amdhsa_group_segment_fixed_size 0
  .amdhsa_kernarg_size 80
  .amdhsa_user_sgpr_count 2
  .amdhsa_user_sgpr_kernarg_segment_ptr 1
  .amdhsa_system_sgpr_workgroup_id_x 1
  .amdhsa_float_denorm_mode_32 3
.end_amdhsa_kernel"""
def build(nlayers=2):
    name = "interleave_layers__sliding_block__swiglu_ffn__prompt_kernel"
    out = ["; x += attn(LN x); x += swiglu(LN x); twice. One persistent kernel, 256 workgroups. Generated by my own script (work/genq.py)."]
    if STAMP:
        if not envs("NOSLEEP", ""): out.append("; @launch kernel=sleep_kernel grid=(1,1,1) block=(64,1,1) lds=0")
        out.append(f"; @launch kernel={name} grid=(256,1,1) block=(256,1,1) lds=163840")
    else: out.append("; @launch grid=(256,1,1) block=(256,1,1) lds=163840")
    out.append('.amdgcn_target "amdgcn-amd-amdhsa--gfx950"\n.text')
    out.append(main_k(name, nlayers).text())
    if STAMP:
        out.append(""".globl sleep_kernel
.p2align 8
.type sleep_kernel,@function
sleep_kernel:
    s_mov_b32 s4, 2000
L_sleep:
    s_sleep 8
    s_sub_u32 s4, s4, 1
    s_cmp_lg_u32 s4, 0
    s_cbranch_scc1 L_sleep
    s_endpgm""")
    out.append('.section .rodata,"a"')
    out.append(desc(name, 512, 256))
    if STAMP: out.append(desc("sleep_kernel", 8, 8))
    return "\n".join(out) + "\n"

if __name__ == "__main__":
    STAMP = "stamp" in sys.argv[2:]
    open(sys.argv[1], "w").write(build(1 if "one" in sys.argv[2:] else 2))
```

```python
import re, sys, os, struct
from kb import *
KBY = 1024
OFF_XF, OFF_XN, OFF_OF, OFF_X1 = 0, 2304*KBY, 4608*KBY, 6912*KBY
OFF_OB = OFF_OF + 2048*KBY
OFF_QKV = 9216*KBY
OFF_PART = 16128*KBY
OFF_WO = 34560*KBY
OFF_WF = 37376*KBY
OFF_STAT = 53248*KBY
OFF_FLAG = 53376*KBY
OFF_QKV2 = 53408*KBY
OFF_WQ = OFF_QKV2 + 6912*KBY
OFF_FLAG = OFF_WQ + 2048*KBY
OFF_STAT = OFF_FLAG + 64*KBY
WS_USED = OFF_STAT + 256*KBY
FA, FB, FC, FD, FE, FP, FP2, FW, FQ = [OFF_FLAG + o for o in (0, 2048, 10240, 12288, 16384, 20480, 22528, 24576, 25600)]
BIG = 0x40000000
LOG2E = 1.4426950408889634
def fbits(x): return "0x%08x" % struct.unpack("<I", struct.pack("<f", x))[0]
def envs(n, d): return os.environ.get(n, d)
FL = {"s": " sc1", "p": "", "n": " nt"}
MF = "v_mfma_f32_16x16x32_bf16"
LD = " sc1"
SPIN = 40000
STAMP = False
OFF_STAMP = 200 << 20
POLL1 = envs("POLL1", "1") == "1"
CKD = envs("CKD", "1") == "1"
FORCE_RETRY = envs("FORCE_RETRY", "") == "1"
FAST = envs("FAST", "1") == "1"
FORCE_EXACT = envs("FORCE_EXACT", "") == "1"

DIAG = envs("DIAG", "")
def stamp(k, i, cyc=False):
    if DIAG and not cyc and i == int(DIAG.split(",")[1]):
        n = len(k.lines)
        k(f"s_cmp_lg_u32 s50, {DIAG.split(',')[0]}\ns_cbranch_scc1 L_dg{n}\ns_memrealtime s[90:91]"); k("s_waitcnt lgkmcnt(0)"); k.label(f"L_dg{n}")
    if STAMP:
        k(f"{'s_memtime' if cyc else 's_memrealtime'} s[90:91]"); k.wait_lg_all(); k(f"v_writelane_b32 v15, s90, {i}")
def srd(k, d, base, nbytes):
    k(f"s_mov_b32 s{d}, s{base}\ns_mov_b32 s{d+1}, s{base+1}\ns_mov_b32 s{d+2}, {nbytes}\ns_mov_b32 s{d+3}, 0x00020000")
def sdiv(k, dst, src, D, tmp):
    k(f"s_mov_b32 s{tmp}, {-(-(1<<32)//D)}\ns_mul_hi_u32 s{dst}, s{src}, s{tmp}")
def red_rows(k, v, t, op="v_add_f32"):
    for sw in ("v_permlane16_swap_b32", "v_permlane32_swap_b32"):
        k(f"v_mov_b32 v{t}, v{v}\ns_nop 1\n{sw} v{v}, v{t}\n{op} v{v}, v{v}, v{t}")
def ln_stats_finish(k, s, q):
    k(f"v_mul_f32 v{s}, s31, v{s}\nv_mul_f32 v{q}, s31, v{q}\nv_fma_f32 v{q}, -v{s}, v{s}, v{q}\nv_max_f32 v{q}, 0, v{q}")
    k(f"v_add_f32 v{q}, {fbits(1e-5)}, v{q}\nv_rsq_f32 v{q}, v{q}\ns_nop 0\nv_mul_f32 v{s}, v{s}, v{q}\nv_sub_f32 v{s}, 0, v{s}")
def ln_norm(k, x, dst, s, q, t):
    k(f"v_lshlrev_b32 v{t}, 16, v{x}\nv_and_b32 v{t+1}, s32, v{x}\nv_fma_f32 v{t}, v{t}, v{q}, v{s}\nv_fma_f32 v{t+1}, v{t+1}, v{q}, v{s}\nv_cvt_pk_bf16_f32 v{dst}, v{t}, v{t+1}")
def ln_consts(k):
    k(f"s_mov_b32 s30, 0x3f803f80\ns_mov_b32 s31, {fbits(1/576)}\ns_mov_b32 s32, 0xffff0000")
def fold(iters):
    body = []
    assert len({len(x) for x in iters}) == 1, [len(x) for x in iters]
    for ls in zip(*iters):
        if len(set(ls)) == 1: body.append(ls[0]); continue
        ns = [re.fullmatch(r"\s*s_waitcnt vmcnt\((\d+)\)", l) for l in ls]
        assert all(ns), ls
        body.append(f"    s_waitcnt vmcnt({min(int(m.group(1)) for m in ns)})")
    return body
def fresh(k):
    k.vmq = []; k.vm_done = 0; k.lgq = []; k.lg_done = 0

def poll(k, name, wg=True, layer=True):
    if wg: k(f"s_cmp_lg_u32 s20, 0\ns_cbranch_scc1 L_pollx_{name}")
    k(f"s_mov_b32 s57, {SPIN}" + ("\ns_add_u32 s56, s56, s51" if layer else ""))
    if envs("PP", "") and name in "abcde":
        k("buffer_load_dwordx2 v[252:253], v2, s[8:11], s56 offen sc1\ns_sleep 1")
        k.label(f"L_poll_{name}")
        k(f"buffer_load_dwordx2 v[254:255], v2, s[8:11], s56 offen sc1\ns_waitcnt vmcnt(1)\nv_cmp_eq_u64 vcc, s[92:93], v[252:253]\ns_cmp_eq_u64 vcc, -1\ns_cbranch_scc1 L_pollx_{name}")
        k(f"buffer_load_dwordx2 v[252:253], v2, s[8:11], s56 offen sc1\ns_sub_u32 s57, s57, 1\ns_waitcnt vmcnt(1)")
    else:
        k.label(f"L_poll_{name}")
        k(f"buffer_load_dwordx2 v[254:255], v2, s[8:11], s56 offen sc1\ns_sub_u32 s57, s57, 1\ns_waitcnt vmcnt(0)")
    k(f"v_cmp_eq_u64 vcc, s[92:93], v[254:255]\ns_cmp_eq_u32 s57, 0\ns_cbranch_scc1 L_pollx_{name}")
    k(f"s_cmp_eq_u64 vcc, -1\ns_cbranch_scc0 L_poll_{name}")
    k.label(f"L_pollx_{name}")
    if wg: k("s_barrier")
def publish(k, addr="s56"):
    k("v_mov_b32 v254, s92\nv_mov_b32 v255, s93")
    k.vm(f"buffer_store_dwordx2 v[254:255], v13, s[8:11], {addr} offen sc1")
def signal(k):
    k(f"s_add_u32 s56, s56, s51\ns_cmp_eq_u32 s20, 0\ns_cselect_b32 s56, s56, {BIG}")
    k.wait_vm_all(); k("s_barrier")
    publish(k)
def token_load(k):
    k("v_mov_b32 v2, 0\nbuffer_load_dwordx2 v[254:255], v2, s[84:87], 0 offen sc1")
def token_get(k, name):
    k(f"s_mov_b32 s57, {SPIN}")
    k.label(f"L_tok_{name}")
    k("v_readfirstlane_b32 s92, v254\nv_readfirstlane_b32 s93, v255\ns_sub_u32 s57, s57, 1\ns_min_u32 s94, s92, s93\ns_cmp_eq_u32 s57, 0\ns_cselect_b32 s94, 1, s94")
    k(f"s_cmp_lg_u32 s94, 0\ns_cbranch_scc1 L_tokx_{name}")
    token_load(k)
    k(f"s_waitcnt vmcnt(0)\ns_branch L_tok_{name}")
    k.label(f"L_tokx_{name}")

def half_lanes(k, shb):
    k("v_bfe_u32 v4, v0, 4, 2\nv_bfe_u32 v5, v0, 3, 1\nv_and_b32 v6, 7, v0")
    k(f"s_and_b32 s21, s{shb}, 1\ns_lshr_b32 s22, s{shb}, 1\ns_lshl_b32 s23, s21, 7")
    k("v_lshlrev_b32 v7, 8, v4\nv_lshl_add_u32 v7, v5, 10, v7\nv_lshl_add_u32 v7, v6, 4, v7\nv_add_u32 v7, s23, v7")
    k(f"s_mul_i32 s24, s22, {18*KBY}")
def rowmajor(k, shb, v):
    k(f"v_mul_u32_u24 v{v}, 1152, v6\nv_lshl_add_u32 v{v}, v5, 6, v{v}\nv_and_b32 v9, 1, v4\nv_lshl_add_u32 v{v}, v9, 5, v{v}\nv_lshrrev_b32 v9, 1, v4\nv_lshl_add_u32 v{v}, v9, 4, v{v}")
    k(f"s_mul_i32 s33, s{shb}, 9216")
def row_sums(k, D, n, T):
    for i in range(4): k(f"v_mov_b32 v{T+i}, 0")
    for j in range(n): k(f"v_dot2c_f32_bf16 v{T+(j&1)}, s30, v{D+j}\nv_dot2c_f32_bf16 v{T+2+(j&1)}, v{D+j}, v{D+j}")
    k(f"s_nop 2\nv_add_f32 v{T}, v{T}, v{T+1}\nv_add_f32 v{T+1}, v{T+2}, v{T+3}\ns_nop 1")
    k(f"v_add_f32_dpp v{T}, v{T}, v{T} row_ror:8 row_mask:0xf bank_mask:0xf\nv_add_f32_dpp v{T+1}, v{T+1}, v{T+1} row_ror:8 row_mask:0xf bank_mask:0xf")
    red_rows(k, T, T + 2); red_rows(k, T + 1, T + 2)
def flag_a_addr(k):
    k(f"s_lshr_b32 s56, s28, 4\ns_lshl_b32 s56, s56, 7\ns_and_b32 s27, s28, 15\ns_lshl_b32 s27, s27, 3\ns_add_u32 s56, s56, s27\ns_add_u32 s56, s56, {FA}")

DST = 68
park = lambda u, i: (f"v[{128+16*u+4*i}:{131+16*u+4*i}]" if u < 3 else f"a[{160+16*(u-3)+4*i}:{163+16*(u-3)+4*i}]")
PK = 220
def wq_base(k):
    k(f"s_lshr_b32 s29, s17, 3\ns_lshl_b32 s22, s19, 2\ns_add_u32 s22, s22, s29\ns_mul_i32 s25, s22, {126*KBY}\ns_add_u32 s25, s25, {OFF_WQ}")
def wq_fetch(k, name):
    k(f"s_and_b32 s23, s17, {7 if envs('ROT', '1') == '1' else 0}\ns_lshl_b32 s23, s23, 14\ns_mov_b32 s26, 32")
    k.label(f"L_wqf_{name}")
    k("s_mov_b32 m0, s23\ns_add_u32 s27, s25, s23")
    for c in range(4): k(f"buffer_load_dwordx4 v1, s[8:11], s27 offen offset:{c*1024} lds")
    k(f"s_add_u32 s23, s23, 4096\ns_and_b32 s23, s23, 0x1ffff\ns_sub_u32 s26, s26, 1\ns_waitcnt vmcnt({envs('WQF', '40')})\ns_cmp_lg_u32 s26, 0\ns_cbranch_scc1 L_wqf_{name}")
def stage_addr(k):
    k(f"s_lshl_b32 s66, s20, 13\ns_add_u32 s66, s66, {128*KBY}\nv_add_u32 v10, s66, v1")
    k("v_bfe_u32 v11, v0, 2, 4\nv_lshlrev_b32 v11, 7, v11\nv_and_b32 v252, 3, v0\nv_lshl_add_u32 v11, v252, 3, v11\nv_add_u32 v11, s66, v11")
def pack_block(k, n, nu, dst=lambda u, c: (f"s{DST+c}", (u % 4) * 1024), src=park):
    k("s_waitcnt lgkmcnt(0)")
    if 2 <= n < nu + 2:
        u = n - 2
        for c in range(4):
            r, o = dst(u, c)
            k(f"buffer_store_dwordx4 v[{PK+16*(u&1)+4*c}:{PK+16*(u&1)+4*c+3}], v1, s[8:11], {r} offen offset:{o} sc1" + (f"\ns_add_u32 {r}, {r}, 4096" if o == 3072 else ""))
    if 1 <= n <= nu:
        u = n - 1
        for c in range(4):
            for hf in range(2): k(f"ds_read_b64_tr_b16 v[{PK+16*(u&1)+4*c+2*hf}:{PK+16*(u&1)+4*c+2*hf+1}], v11 offset:{(u&1)*4096 + hf*2048 + c*32}")
    if n < nu:
        for i in range(4): k(f"ds_write_b128 v10, {src(n, i)} offset:{(n&1)*4096 + i*1024}")
lpark = lambda u, i: f"a[{208+16*u+4*i}:{211+16*u+4*i}]"
def late_blocks(k):
    k("s_cmp_eq_u32 s67, 0\ns_cbranch_scc1 L_pks")
    stage_addr(k)
    for n in range(5): pack_block(k, n, 3, lambda u, c: (f"s{78+c}", u * 1024), lpark)
    k("s_mov_b32 s67, 0")
    k.label("L_pks")
EARLY = envs("EARLY", "f")
def early_blocks(k):
    k("s_cmp_eq_u32 s67, 0\ns_cbranch_scc1 L_pke")
    stage_addr(k)
    for n in range(8): pack_block(k, n, 6)
    k.label("L_pke")
def publish_fp(k, base):
    k(f"s_mov_b32 s30, {-(-(1<<32)//27)}\ns_mul_hi_u32 s27, s2, s30\ns_mul_i32 s27, s27, 5\ns_add_u32 s27, s27, s2\ns_lshl_b32 s27, s27, 3\ns_add_u32 s27, s27, {base}")
    k(f"s_cmp_lt_u32 s2, 216\ns_cselect_b32 s27, s27, {BIG}\ns_cmp_eq_u32 s20, 0\ns_cselect_b32 s27, s27, {BIG}")
    k.vm("buffer_store_dwordx2 v[254:255], v13, s[8:11], s27 offen sc1")
def poll_fp(k, name, base):
    k(f"s_cmp_lg_u32 s50, 0\ns_cbranch_scc1 L_pollx_{name}\ns_lshl_b32 s56, s21, 8\ns_add_u32 s56, s56, {base}\nv_and_b32 v2, 31, v0\nv_min_u32 v2, 26, v2\nv_lshlrev_b32 v2, 3, v2")
    poll(k, name, wg=False)
def ptrs(k):
    srd(k, 8, 4, WS_USED); k("s_mov_b32 s86, 256\ns_mov_b32 s87, 0x00020000")
def p0(k):
    k("s_cmp_eq_u32 s20, 1\ns_cbranch_scc1 L_p0_wq\ns_cmp_lg_u32 s20, 0\ns_cbranch_scc1 L_p0_23")
    k("s_lshl_b32 s28, s16, 5\ns_add_u32 s28, s28, s17")
    half_lanes(k, 28); rowmajor(k, 28, 11)
    k("s_waitcnt lgkmcnt(0)")
    srd(k, 12, 36, 2048 * 1152)
    D = 16; T = D + 36; O = T + 8
    for i in range(9): k(f"buffer_load_dwordx4 v[{D+4*i}:{D+4*i+3}], v11, s[12:15], s33 offen offset:{128*i} nt")
    if envs("B0", "2") == "1": k("s_barrier")
    ptrs(k); ln_consts(k); flag_a_addr(k)
    stamp(k, 41)
    for i in range(9): k(f"s_waitcnt vmcnt({8-i})\nv_permlane16_swap_b32 v{D+4*i}, v{D+4*i+2}\nv_permlane16_swap_b32 v{D+4*i+1}, v{D+4*i+3}")
    stamp(k, 42)
    token_load(k)
    row_sums(k, D, 36, T); ln_stats_finish(k, T, T + 1)
    k(f"s_add_u32 s23, s24, {OFF_XN}\ns_add_u32 s25, s24, {OFF_XF}")
    for i in range(9):
        for j in range(4): ln_norm(k, D + 4 * i + j, O + 4 * (i & 1) + j, T, T + 1, T + 2 + 2 * (j & 1))
        k(f"buffer_store_dwordx4 v[{O+4*(i&1)}:{O+4*(i&1)+3}], v7, s[8:11], s23 offen offset:{(i&1)*2048} sc1" + ("\ns_add_u32 s23, s23, 4096" if i & 1 else ""))
    for i in range(9):
        k(f"buffer_store_dwordx4 v[{D+4*i}:{D+4*i+3}], v7, s[8:11], s25 offen offset:{(i&1)*2048} sc1" + ("\ns_add_u32 s25, s25, 4096" if i & 1 else ""))
    stamp(k, 43)
    if envs("B0", "2") == "2": k("s_barrier")
    k("s_waitcnt vmcnt(0)")
    token_get(k, "a")
    publish(k)
    k("s_branch L_p0_wait")
    k.label("L_p0_wq")
    k("s_lshl_b32 s21, s18, 3\ns_and_b32 s22, s17, 7\ns_add_u32 s21, s21, s22\ns_lshr_b32 s29, s17, 3\ns_mul_i32 s79, s29, 7\ns_mul_i32 s33, s19, 288")
    k("v_bfe_u32 v10, v0, 1, 5\nv_mul_u32_u24 v10, 3456, v10\nv_and_b32 v11, 1, v0\nv_lshl_add_u32 v10, v11, 4, v10")
    k("v_bfe_u32 v11, v0, 3, 3\nv_mul_u32_u24 v11, 3456, v11\nv_and_b32 v12, 7, v0\nv_mul_u32_u24 v12, 36, v12\nv_add_u32 v11, v11, v12")
    k("s_lshl_b32 s80, s21, 3")
    sdiv(k, 81, 80, 7, 30)
    k(f"s_mul_i32 s30, s81, 7\ns_sub_u32 s80, s80, s30\ns_mul_i32 s81, s81, {32*3456}\ns_add_u32 s81, s81, s33\ns_mov_b32 m0, {128*KBY}\ns_mov_b32 s82, 8")
    k("s_waitcnt lgkmcnt(0)")
    srd(k, 60, 38, 576 * 3456)
    k.label("L_wq")
    k("s_add_u32 s30, s79, s80\ns_cmp_ge_u32 s30, 18\ns_cselect_b32 s31, 18, 0\ns_cselect_b32 s34, 2304, 0\ns_sub_u32 s30, s30, s31")
    k(f"s_cmp_ge_u32 s30, 9\ns_cselect_b32 s31, 9, 0\ns_cselect_b32 s35, 1152, 0\ns_sub_u32 s30, s30, s31\ns_add_u32 s34, s34, s35\ns_cmp_eq_u32 s34, 3456\ns_cselect_b32 s34, {BIG}, s34")
    k("s_add_u32 s34, s34, s81\ns_cmp_eq_u32 s30, 8\ns_cbranch_scc1 L_wqb\ns_mul_i32 s30, s30, 36\ns_add_u32 s34, s34, s30")
    k("buffer_load_dwordx4 v10, s[60:63], s34 offen lds\ns_add_u32 m0, m0, 1024")
    k.label("L_wqj")
    k(f"s_add_u32 s80, s80, 1\ns_cmp_eq_u32 s80, 7\ns_cselect_b32 s80, 0, s80\ns_cselect_b32 s30, {32*3456}, 0\ns_add_u32 s81, s81, s30")
    k("s_sub_u32 s82, s82, 1\ns_cmp_lg_u32 s82, 0\ns_cbranch_scc1 L_wq\ns_branch L_wqx")
    k.label("L_wqb")
    k("s_add_u32 s34, s34, 32")
    for q in range(4): k(f"buffer_load_dword v11, s[60:63], s34 offen lds\ns_add_u32 m0, m0, 256\ns_add_u32 s34, s34, {8*3456}")
    k("s_branch L_wqj")
    k.label("L_wqx")
    if envs("B0", "2") == "1": k("s_barrier")
    ptrs(k)
    wq_base(k)
    k(f"s_lshl_b32 s30, s21, 13\ns_add_u32 s30, s30, s25\ns_add_u32 s31, s30, 4096\nv_lshrrev_b32 v3, 1, v1\nv_add_u32 v3, {128*KBY}, v3")
    k(f"s_cmp_eq_u32 s21, 15\ns_cselect_b32 s32, {BIG}, s31")
    k(f"s_lshl_b32 s24, s22, 7\ns_add_u32 s24, s24, {FQ}\ns_lshl_b32 s27, s21, 3\ns_add_u32 s27, s27, s24\ns_waitcnt vmcnt(0)")
    stamp(k, 41)
    token_load(k)
    for sl in range(8):
        for hf in range(2): k(f"ds_read_b64_tr_b16 v[{16+4*sl+2*hf}:{17+4*sl+2*hf}], v3 offset:{sl*1024 + hf*512}")
    for sl in range(8): k(f"s_waitcnt lgkmcnt({14-2*sl})\nbuffer_store_dwordx4 v[{16+4*sl}:{19+4*sl}], v1, s[8:11], s{30 if sl < 4 else 31 if sl < 6 else 32} offen offset:{(sl%4)*1024} sc1")
    if envs("B0", "2") == "2": k("s_barrier")
    k("s_waitcnt vmcnt(0)")
    token_get(k, "b")
    publish(k, "s27")
    stamp(k, 42)
    k("s_mov_b32 s56, s24\nv_and_b32 v2, 15, v0\nv_lshlrev_b32 v2, 3, v2")
    poll(k, "q", wg=False)
    stamp(k, 43)
    k("s_branch L_p0_fetch")
    k.label("L_p0_23")
    k("s_sub_u32 s21, s20, 2\nv_bfe_u32 v4, v0, 3, 3\nv_and_b32 v5, 7, v0\ns_memrealtime s[94:95]")
    k("s_lshl_b32 s23, s2, 1\ns_add_u32 s23, s23, s21")
    sdiv(k, 25, 23, 3, 30)
    k("s_mul_i32 s30, s25, 3\ns_sub_u32 s28, s23, s30\ns_mul_i32 s28, s28, 6")
    sdiv(k, 26, 25, 18, 30)
    k("s_mul_i32 s30, s26, 18\ns_sub_u32 s25, s25, s30\ns_cmp_ge_u32 s25, 9\ns_cselect_b32 s27, 18, 0\ns_cselect_b32 s30, 9, 0\ns_sub_u32 s25, s25, s30")
    k(f"s_mul_i32 s30, s26, 9\ns_add_u32 s25, s25, s30\ns_lshl_b32 s24, s25, 7\ns_mul_i32 s30, s28, {32*9216}\ns_add_u32 s24, s24, s30")
    k("v_mul_u32_u24 v6, 9216, v4\nv_lshl_add_u32 v6, v5, 4, v6\ns_waitcnt lgkmcnt(0)")
    ptrs(k)
    k(f"s_or_b32 s94, s94, 1\ns_or_b32 s95, s95, 0x80000000\nv_mov_b32 v16, s94\nv_mov_b32 v17, s95\ns_cmp_eq_u32 s23, 0\ns_cselect_b32 s30, 0, {BIG}")
    k("buffer_store_dwordx2 v[16:17], v13, s[84:87], s30 offen sc1")
    if envs("B0", "2") in "12": k("s_barrier")
    k("s_cmp_ge_u32 s2, 216\ns_cbranch_scc1 L_p0_wo")
    k(f"s_cmp_eq_u32 s27, 0\ns_cselect_b32 s60, s40, s42\ns_cselect_b32 s61, s41, s43\ns_mov_b32 s62, {576*9216}\ns_mov_b32 s63, 0x00020000")
    if envs("NOBG", ""): k("s_mov_b32 s62, 0")
    for u in range(6):
        for i in range(4): k(f"buffer_load_dwordx4 {park(u, i)}, v6, s[60:63], s24 offen nt\ns_add_u32 s24, s24, {8*9216}")
    if envs("CODEPF", "1") == "1":
        k("s_getpc_b64 s[12:13]")
        k.label("L_pc")
        k(f"s_mov_b32 s14, L_end-L_pc\ns_mov_b32 s15, 0x00020000\nv_lshlrev_b32 v2, 3, v1\ns_lshl_b32 s30, s17, 13\ns_cmp_eq_u32 s20, 3\ns_cselect_b32 s30, s30, {BIG}")
        k("buffer_load_dword v20, v2, s[12:15], s30 offen")
    token_load(k)
    k("s_add_u32 s29, s27, s28")
    for c in range(4):
        k(f"s_lshl_b32 s30, s25, 2\ns_add_u32 s30, s30, {c}")
        sdiv(k, 31, 30, 9, 33)
        k("s_mul_i32 s33, s31, 9\ns_sub_u32 s30, s30, s33\ns_mul_i32 s31, s31, 486\ns_mul_i32 s30, s30, 36\ns_add_u32 s30, s30, s31\ns_add_u32 s30, s30, s29")
        k(f"s_add_u32 s30, s30, {OFF_WF//KBY}\ns_lshl_b32 s{DST+c}, s30, 10")
    if EARLY == "p0":
        stage_addr(k)
        k("s_waitcnt vmcnt(0)")
        stamp(k, 43)
        for n in range(8): pack_block(k, n, 6)
    sdiv(k, 25, 2, 3, 30)
    k("s_mul_i32 s30, s25, 3\ns_sub_u32 s28, s2, s30\ns_mul_i32 s28, s28, 6\ns_mul_i32 s30, s21, 3\ns_add_u32 s28, s28, s30")
    k("s_mul_i32 s30, s26, 9\ns_sub_u32 s25, s25, s30")
    for c in range(4):
        k(f"s_lshl_b32 s30, s25, 2\ns_add_u32 s30, s30, {c}")
        sdiv(k, 31, 30, 9, 33)
        k("s_mul_i32 s33, s31, 9\ns_sub_u32 s30, s30, s33\ns_add_u32 s33, s30, 1\ns_cmp_eq_u32 s30, 8\ns_cselect_b32 s33, 0, s33")
        k("s_bitcmp1_b32 s31, 0\ns_cselect_b32 s30, s30, s33\ns_lshl_b32 s33, s26, 2\ns_add_u32 s31, s31, s33\ns_mul_i32 s31, s31, 486")
        k(f"s_mul_i32 s30, s30, 18\ns_add_u32 s30, s30, s31\ns_add_u32 s30, s30, s28\ns_add_u32 s30, s30, {324 + OFF_WF//KBY}\ns_lshl_b32 s{78+c}, s30, 10")
    srd(k, 60, 44, 4608 * 1152)
    k("s_lshl_b32 s24, s25, 7\ns_mul_i32 s35, s26, 576")
    for u in range(3):
        k("s_lshr_b32 s30, s28, 2\ns_mul_i32 s30, s30, 144\ns_and_b32 s31, s28, 3\ns_lshl_b32 s31, s31, 5\ns_add_u32 s30, s30, s31")
        k("s_mul_i32 s31, s28, 288\ns_sub_u32 s31, s31, 4480\ns_cmp_ge_u32 s28, 16\ns_cselect_b32 s30, s31, s30\ns_cselect_b32 s37, 144, 16")
        k(f"s_add_u32 s30, s30, s35\ns_mul_i32 s30, s30, 1152\ns_add_u32 s{72+2*u}, s30, s24\ns_mul_i32 s37, s37, 1152\ns_add_u32 s{73+2*u}, s{72+2*u}, s37\ns_add_u32 s28, s28, 1")
    k("s_mov_b32 s67, 1\ns_waitcnt vmcnt(0)")
    token_get(k, "c")
    k("s_branch L_p0_wait")
    k.label("L_p0_wo")
    token_load(k)
    k("s_sub_u32 s23, s23, 432\ns_cmp_lt_u32 s23, 54\ns_cbranch_scc1 L_p0_wo2\ns_waitcnt vmcnt(0)")
    token_get(k, "d")
    k("s_branch L_p0_wait")
    k.label("L_p0_wo2")
    srd(k, 12, 46, 576 * 1152)
    sdiv(k, 27, 23, 3, 30)
    k("s_mul_i32 s30, s27, 3\ns_sub_u32 s25, s23, s30\ns_mul_i32 s25, s25, 3")
    k("v_lshrrev_b32 v7, 1, v4\nv_mul_u32_u24 v7, 18, v7\nv_and_b32 v8, 1, v4\nv_add_u32 v7, v7, v8")
    k("s_mul_i32 s30, s27, 36\ns_sub_u32 s31, s27, 16\ns_mul_i32 s31, s31, 288\ns_add_u32 s31, s31, 16")
    k(f"s_cmp_lt_u32 s27, 16\ns_cselect_b32 s30, s30, s31\ns_mov_b32 s28, {18*1152}\ns_mov_b32 s29, {8*1152}\ns_cselect_b32 s28, s28, {144*1152}\ns_cselect_b32 s29, s29, {72*1152}\ns_cselect_b64 vcc, -1, 0")
    k("s_mul_i32 s32, s30, 1152\ns_lshl_b32 s31, s25, 7\ns_add_u32 s32, s32, s31")
    k("v_cndmask_b32 v8, v7, v4, vcc\nv_mul_u32_u24 v6, 1152, v8\nv_lshl_add_u32 v6, v5, 4, v6")
    k("s_add_u32 s33, s32, s29\ns_add_u32 s34, s32, s28\ns_add_u32 s35, s34, s29")
    for u in range(3):
        for i in range(4): k(f"buffer_load_dwordx4 {park(u, i)}, v6, s[12:15], s{32+i} offen offset:{128*u} nt")
    for u in range(3):
        for c in range(4):
            k(f"s_lshl_b32 s30, s25, 1\ns_add_u32 s30, s30, {2*u + (c >> 1)}\ns_cmp_ge_u32 s30, 9\ns_cselect_b32 s31, 9, 0\ns_cselect_b32 s33, 432, 0\ns_sub_u32 s30, s30, s31")
            k("s_sub_u32 s31, s30, 1\ns_lshr_b32 s31, s31, 1\ns_cmp_lt_u32 s30, 3\ns_cselect_b32 s31, 0, s31\ns_cselect_b32 s34, 0, 2")
            k(f"s_mul_i32 s31, s31, 104\ns_lshl_b32 s30, s30, 1\ns_add_u32 s30, s30, s31\ns_sub_u32 s30, s30, s34\ns_add_u32 s30, s30, s33")
            k(f"s_mul_i32 s31, s27, 6\ns_add_u32 s30, s30, s31\ns_add_u32 s30, s30, {OFF_WO//KBY + (c & 1)}\ns_lshl_b32 s{72+4*u+c}, s30, 10")
    stage_addr(k)
    k("s_waitcnt vmcnt(0)")
    for n in range(5): pack_block(k, n, 3, lambda u, c: (f"s{72+4*u+c}", 0))
    token_get(k, "e")
    k(f"s_lshl_b32 s56, s23, 3\ns_add_u32 s56, s56, {FW}\ns_waitcnt vmcnt(0)")
    publish(k)
    k.label("L_p0_wait")
    stamp(k, 44)
    k.label("L_p0_fetch")
    wq_base(k)
    k("s_lshl_b32 s26, s20, 12\ns_add_u32 s25, s25, s26\ns_mov_b32 m0, s26\ns_barrier")
    for q in range(8):
        for c in range(4): k(f"buffer_load_dwordx4 v1, s[8:11], s25 offen offset:{c*1024} lds")
        k("s_add_u32 m0, m0, 16384\ns_add_u32 s25, s25, 16384")
    if EARLY == "f":
        k("s_cmp_eq_u32 s67, 0\ns_cbranch_scc1 L_layer")
        stage_addr(k)
        for n in range(8): pack_block(k, n, 6)
        k("s_waitcnt vmcnt(24)\ns_branch L_p1_fetched")

def gemm_core(k, NTB, NS, loads, AHEAD, st0, tr, NBUF=2):
    ACC = 16; WB = ACC + 4 * NS * NTB
    pi = 0
    def take(n):
        nonlocal pi
        r = loads[pi:pi + n]; pi += len(r); return r
    nx = {}
    for f in loads: nx[f.tag] = nx.get(f.tag, 0) + 1
    for f in take(AHEAD): f.fn(k)
    if tr: k("v_lshrrev_b32 v3, 1, v1\nv_add_u32 v2, 0x10000, v3")
    else: k("v_mov_b32 v3, v1\nv_add_u32 v2, 0x10000, v1")
    def rd(ks, sl):
        i = ks * NS + sl; r = WB + 4 * ((ks % NBUF) * NS + sl); a = f"v{3 if i < 64 else 2}"; o = (i % 64) * 1024
        if tr: return [lgl(f"ds_read_b64_tr_b16 v[{r}:{r+1}], {a} offset:{o}", ("r", ks)), lgl(f"ds_read_b64_tr_b16 v[{r+2}:{r+3}], {a} offset:{o+512}", ("r", ks))]
        return [lgl(f"ds_read_b128 v[{r}:{r+3}], {a} offset:{o}", ("r", ks))]
    for ks in range(NBUF - 1):
        for sl in range(NS):
            for f in rd(ks, sl): f.fn(k)
    for ks in range(18):
        while k.vmq.count(("x", ks)) < nx[("x", ks)]: take(1)[0].fn(k)
        k.wait_vm(("x", ks)); k.wait_lg(("r", ks))
        if ks == 0: stamp(k, st0)
        mf = []
        for sl in range(NS):
            for tb in range(NTB):
                a = ACC + 4 * (sl * NTB + tb); w = WB + 4 * ((ks % NBUF) * NS + sl); x = 4 * (ks * NTB + tb)
                mf.append(f"{MF} v[{a}:{a+3}], v[{w}:{w+3}], a[{x}:{x+3}], " + ("0" if ks == 0 else f"v[{a}:{a+3}]"))
        fill = [f for sl in range(NS) for f in rd(ks + NBUF - 1, sl)] if ks + NBUF - 1 < 18 else []
        if NBUF == 2 and envs("FRONT", "1") == "1":
            for j, f in enumerate(fill): f.before = j + 1
        outstanding = len(k.vmq) - k.vm_done
        interleave(k, mf, [fill, take(max(0, AHEAD + 2 - outstanding))], budget=8 if NTB == 2 else 12)
    assert pi == len(loads), (pi, len(loads))
def tl(s, tag, post="", cost=8):
    f = F(lambda k: (k.vm(s, tag), k(post) if post else None), cost); f.tag = tag; return f

def p1_addr(k):
    k("s_lshl_b32 s21, s18, 3\ns_and_b32 s22, s17, 7\ns_add_u32 s21, s21, s22")
    k("s_lshr_b32 s29, s17, 3")
    k(f"s_lshl_b32 s56, s21, 7\ns_add_u32 s56, s56, {FA}\nv_and_b32 v2, 15, v0\nv_lshlrev_b32 v2, 3, v2")
    k(f"s_lshl_b32 s26, s21, 2\ns_add_u32 s26, s26, s20")
    k(f"s_mul_i32 s23, s26, {36*KBY}\ns_add_u32 s23, s23, {OFF_XN}\ns_add_u32 s24, s23, {18*KBY}")
def p1_qkv(k):
    p1_addr(k)
    stamp(k, 0)
    k("s_cmp_lg_u32 s20, 0\ns_cbranch_scc1 L_pollx_a")
    poll(k, "a", wg=False)
    k("s_waitcnt vmcnt(0)")
    if EARLY == "f":
        k("s_branch L_p1_bar")
        k.label("L_p1_fetched")
        p1_addr(k)
        k.label("L_p1_bar")
    k("s_barrier")
    stamp(k, 1)
    fresh(k)
    loads = [tl(f"buffer_load_dwordx4 a[{4*(2*ks+tb)}:{4*(2*ks+tb)+3}], v1, s[8:11], s{23+tb} offen offset:{(ks%4)*1024}{LD}", ("x", ks),
                f"s_add_u32 s{23+tb}, s{23+tb}, 4096" if ks % 4 == 3 else "") for ks in range(18) for tb in range(2)]
    T1K = int(envs("T1", "18"))
    if T1K < 18:
        nl = (18 - T1K) * 2
        k(f"v_lshrrev_b32 v4, 4, v1\nv_cmp_gt_u32 vcc, {nl}, v4\nv_lshlrev_b32 v4, 9, v4\nv_mov_b32 v5, {BIG}\ns_lshl_b32 s30, s29, 7\ns_add_u32 s30, s30, {T1K*1024}\nv_cndmask_b32 v4, v5, v4, vcc")
        k("s_add_u32 s31, s30, s24\ns_add_u32 s30, s30, s23")
        p = int(envs("T1P", "6"))
        loads[p:p] = [tl(f"buffer_load_dword v{5+tb}, v4, s[8:11], s{30+tb} offen{LD}", "touch") for tb in range(2)]
    gemm_core(k, 2, 7, loads, int(envs("AH1", "10")), 2, False)
    stamp(k, 3)
    ACC = 16
    k("s_mul_i32 s28, s19, 27\ns_mul_i32 s31, s29, 7\ns_add_u32 s28, s28, s31")
    k("s_lshl_b32 s30, s28, 6\ns_add_u32 s30, s30, s26\ns_lshl_b32 s30, s30, 10\ns_add_u32 s30, s30, s53")
    k("s_mov_b32 s28, s31")
    k(f"s_lshl_b32 s56, s19, 11\ns_lshl_b32 s27, s21, 7\ns_add_u32 s56, s56, s27\ns_lshl_b32 s27, s29, 3\ns_add_u32 s56, s56, s27\ns_add_u32 s56, s56, {FB}")
    for sl in range(7):
        a = ACC + 8 * sl
        k(f"s_cmp_lt_u32 s28, {9 - sl}\ns_cselect_b32 s31, {fbits(18 ** -0.5 * LOG2E)}, 1.0")
        for i in range(8): k(f"v_mul_f32 v{a+i}, s31, v{a+i}")
        for i in range(4): k(f"v_cvt_pk_bf16_f32 v{a+i}, v{a+2*i}, v{a+2*i+1}")
        if sl == 6: k(f"s_cmp_eq_u32 s29, 3\ns_cselect_b32 s30, {BIG}, s30")
        k.vm(f"buffer_store_dwordx4 v[{a}:{a+3}], v1, s[8:11], s30 offen sc1")
        if sl < 6: k("s_add_u32 s30, s30, 65536")
    stamp(k, 4)
    signal(k)
    if EARLY in ("p0", "f"): publish_fp(k, FP)
    elif EARLY == "b": early_blocks(k)
    stamp(k, 5)

def p2_attn(k):
    k("s_lshl_b32 s21, s18, 3\ns_and_b32 s22, s17, 7\ns_add_u32 s21, s21, s22")
    k("s_lshr_b32 s48, s17, 3\ns_lshl_b32 s22, s19, 2\ns_add_u32 s22, s22, s48")
    k(f"s_cmp_lg_u32 s20, 0\ns_cbranch_scc1 L_pollx_w0\ns_cmp_lg_u32 s50, 0\ns_cbranch_scc1 L_pollx_w0\ns_mov_b32 s56, {FW}\nv_min_u32 v2, 53, v0\nv_lshlrev_b32 v2, 3, v2")
    poll(k, "w0", wg=False)
    k("v_and_b32 v3, 63, v0\nv_lshrrev_b32 v4, 4, v3")
    k("v_and_b32 v5, 1, v4\nv_lshlrev_b32 v5, 7, v5\nv_xor_b32 v5, v5, v1")
    k("s_mul_i32 s23, s20, 3\ns_lshl_b32 s24, s21, 2\ns_add_u32 s24, s24, s23\ns_sub_i32 s24, s24, 8")
    for c in range(3):
        k(f"s_cmp_lt_i32 s24, {-c}\ns_cselect_b32 s25, {BIG}, 0")
        k(f"v_add_u32 v{6+c}, s25, v1\nv_add_u32 v{9+c}, s25, v5")
    k(f"s_mul_i32 s49, s19, {27*65536}\ns_add_u32 s49, s49, s53")
    k("s_lshl_b32 s24, s24, 10\ns_add_u32 s27, s24, s49")
    k("s_lshl_b32 s25, s48, 17\ns_add_u32 s25, s25, s27")
    k("s_lshl_b32 s23, s23, 10")
    Q, M1, M2, ONE = 16, 32, 36, 40
    L8, LO, HI, BP, OBV, PKA = 44, 45, 46, 47, 12, 5
    k("s_and_b32 s29, s20, 1\ns_lshr_b32 s30, s20, 1")
    k("s_lshl_b32 s32, s21, 2\ns_lshl_b32 s33, s30, 1\ns_add_u32 s32, s32, s33")
    k("s_lshl_b32 s34, s32, 10\ns_add_u32 s34, s34, s49")
    k(f"s_lshl_b32 s33, s48, 1\ns_add_u32 s33, s33, s29\ns_lshl_b32 s33, s33, 16\ns_add_u32 s33, s33, s34\ns_add_u32 s34, s34, {8*65536}")
    k(f"v_and_b32 v12, 15, v3\nv_lshlrev_b32 v46, 2, v4\ns_mov_b32 s35, {fbits(-1e30)}\nv_mov_b32 v47, s35")
    for i in range(4):
        k(f"v_add_u32 v2, {i}, v46\nv_cmp_gt_u32 vcc, v2, v12\nv_mov_b32 v{ONE+i}, 0x3f803f80\ns_nop 0")
        k(f"v_cndmask_b32 v{M1+i}, v47, 0, vcc\nv_cndmask_b32 v{M2+i}, 0, v47, vcc")
    k(f"v_cmp_eq_u32 s[38:39], s48, v4\ns_lshl_b32 s36, s48, 6\nv_lshl_add_u32 v{BP}, v12, 2, s36")
    k("s_cmp_eq_u32 s29, 1\ns_cselect_b64 s[40:41], -1, 0")
    k("s_andn2_b64 s[42:43], s[38:39], s[40:41]\ns_and_b64 s[44:45], s[38:39], s[40:41]")
    k("s_lshl_b32 s36, s22, 1\ns_add_u32 s36, s36, s29")
    k(f"s_lshl_b32 s47, s32, 15\ns_lshl_b32 s37, s36, 9\ns_add_u32 s47, s47, s37\ns_add_u32 s47, s47, {OFF_OF}")
    k(f"s_lshl_b32 s46, s32, 12\ns_lshl_b32 s37, s36, 8\ns_add_u32 s46, s46, s37\ns_add_u32 s46, s46, {OFF_OB}")
    k("s_mul_i32 s36, s29, 12288\ns_lshl_b32 s37, s30, 11\ns_add_u32 s36, s36, s37\ns_add_u32 s37, s37, 24576")
    k("v_and_b32 v44, 3, v3\nv_lshrrev_b32 v48, 2, v3\nv_and_b32 v45, 1, v3\nv_lshlrev_b32 v45, 3, v45\nv_xor_b32 v48, v48, v45\nv_lshl_add_u32 v48, v44, 4, v48\nv_lshlrev_b32 v48, 4, v48")
    k(f"v_lshrrev_b32 v{L8}, 1, v1\nv_mov_b32 v{LO}, {fbits(2.0**-30)}\nv_mov_b32 v{HI}, {fbits(2.0**30)}\ns_mov_b64 s[64:65], {-1 if FORCE_EXACT else 0}")
    k(f"s_lshr_b32 s58, s17, 2\ns_mul_i32 s58, s58, {108*KBY}\ns_add_u32 s58, s58, {OFF_WO}\ns_lshl_b32 s59, s20, 12\ns_add_u32 s58, s58, s59")
    k("v_bfe_u32 v2, v0, 2, 2\nv_min_u32 v2, 2, v2\nv_sub_u32 v2, s21, v2\nv_max_i32 v2, 0, v2\nv_lshlrev_b32 v2, 7, v2\nv_and_b32 v49, 3, v0\nv_lshl_add_u32 v2, v49, 3, v2")
    k(f"s_lshl_b32 s56, s19, 11\ns_add_u32 s56, s56, {FB}")
    poll(k, "b")
    stamp(k, 6)
    fresh(k)
    blocks = [(25, 9), (25, 10), (27, 17), (25, 18), (25, 19), (27, 26)]
    def dma(b):
        sb, nb = blocks[b]
        k(f"s_add_u32 m0, s23, {b*12288}\ns_add_u32 s28, s{sb}, {nb*65536}")
        for c in range(3):
            k.vm(f"buffer_load_dwordx4 v{(6 if b < 3 else 9)+c}, s[8:11], s28 offen offset:{c*1024} lds", ("kv", b // 3))
    for b in range(3): dma(b)
    for i in range(4):
        off = (i >> 1) * 1024 + (i & 1) * 8
        k.vm(f"buffer_load_dwordx2 v[{Q+4*i}:{Q+4*i+1}], v1, s[8:11], s33 offen offset:{off}", "q")
        k.vm(f"buffer_load_dwordx2 v[{Q+4*i+2}:{Q+4*i+3}], v1, s[8:11], s34 offen offset:{off}", "q")
    for b in range(3, 6): dma(b)
    k("v_add_u32 v6, s36, v1\nv_add_u32 v7, s37, v1")
    k("s_add_u32 s36, s36, 36864\ns_add_u32 s37, s37, 36864\nv_add_u32 v8, s36, v48\nv_add_u32 v9, s37, v48")
    k(f"s_lshl_b32 s56, s21, 7\ns_lshl_b32 s27, s22, 3\ns_add_u32 s56, s56, s27\ns_add_u32 s56, s56, {FC}")
    k("v_bfe_u32 v10, v0, 3, 3\nv_mul_u32_u24 v10, 1152, v10\nv_and_b32 v11, 7, v0\nv_lshl_add_u32 v10, v11, 4, v10\nv_add_u32 v11, 9216, v10")
    k("s_mov_b32 s36, s47\nv_lshrrev_b32 v5, 2, v1")
    KR, VR = 0, 80
    k.wait_vm("q")
    k("s_barrier")
    stamp(k, 7)
    for i in range(4):
        k(f"v_cndmask_b32 v{Q+4*i+2}, 0, v{Q+4*i+2}, s[42:43]\nv_cndmask_b32 v{Q+4*i+3}, 0, v{Q+4*i+3}, s[44:45]")
    S0 = 48; OA = S0 + 144; TM = OA + 24
    def run(mf, valu, gap_first=0, frac=0.9):
        tot = sum(f.cost for f in valu); acc = 0; mi = 0
        for f in valu:
            while mi < len(mf) and acc >= gap_first + (tot - gap_first) * mi / max(len(mf), 1) * frac:
                mf[mi](k); mi += 1
            f.fn(k); acc += f.cost
        while mi < len(mf): mf[mi](k); mi += 1
    def epi(i, check):
        o = OA + 12 * (i & 1); t = TM + 2
        L = [line(f"v_rcp_f32 v{t}, v{o+8}", 8),
             line(f"v_cndmask_b32 v{o+4}, v{o+4}, v{o+6}, s[40:41]"), line(f"v_cndmask_b32 v{o+5}, v{o+5}, v{o+7}, s[40:41]")]
        if check:
            L += [line(f"v_med3_f32 v{o+9}, v{o+8}, v{LO}, v{HI}"), line(f"v_sub_f32 v{o+9}, v{o+9}, v{o+8}")]
            L += [line(f"v_fma_f32 v{o+9}, v{o+j}, 0, v{o+9}") for j in range(6)]
            L += [line(f"v_cmp_neq_f32 vcc, 0, v{o+9}")]
        for j in range(6): L.append(line(f"v_mul_f32 v{o+j}, v{o+j}, v{t}"))
        if check: L.append(line("s_or_b64 s[64:65], s[64:65], vcc"))
        for j in (2, 0, 1): L.append(line(f"v_cvt_pk_bf16_f32 v{o+(j if j < 2 else 6)}, v{o+2*j}, v{o+2*j+1}"))
        L.append(lgl(f"ds_bpermute_b32 v{TM+3}, v{BP}, v{o+6}", ("bp", i)))
        L.append(vml(f"buffer_store_dwordx2 v[{o}:{o+1}], v{L8}, s[8:11], s47 offen sc1"))
        L.append(line(f"s_add_u32 s47, s47, 16384"))
        L2 = [line(f"s_mov_b32 vcc_lo, {(0xffff, 0xffff0000, 0, 0)[i]}\ns_mov_b32 vcc_hi, {(0, 0, 0xffff, 0xffff0000)[i]}", 8),
              F(lambda k: (k.wait_lg(("bp", i)), k(f"v_cndmask_b32 v{OBV}, v{OBV}, v{TM+3}, vcc")), 8)]
        if i == 3: L2.append(vml(f"buffer_store_dword v{OBV}, v5, s[8:11], s46 offen sc1"))
        return (L, L2) if check else L + L2
    def variant(lim, fast, first):
        nm = f"{'f' if fast else 'e'}{'' if first else 'r'}{lim}"
        k.label(f"L_attn_{nm}")
        k.lgq = []; k.lg_done = 0
        tiles = lambda i: list(range(max(i, lim), i + 17))
        pairs = lambda i: list(range(max(i, lim) >> 1, ((i + 16) >> 1) + 1))
        kreads, vreads, extra = [], [], []
        if first:
            for kt in range(lim, 20):
                off = (kt >> 1) * 1024 + (kt & 1) * 8
                kreads += [lgl(f"ds_read_b64 a[{KR+4*kt}:{KR+4*kt+1}], v6 offset:{off}", ("k", kt)), lgl(f"ds_read_b64 a[{KR+4*kt+2}:{KR+4*kt+3}], v7 offset:{off}", ("k", kt))]
            vreads = [line("s_waitcnt vmcnt(0)\ns_barrier", 8)]
            for p in range(lim // 2, 10):
                for b in range(2):
                    for hf in range(2):
                        r = VR + 8 * p + 4 * b + 2 * hf
                        vreads.append(lgl(f"ds_read_b64_tr_b16 a[{r}:{r+1}], v{8+b} offset:{p*1024 + hf*8}", ("v", p)))
            wo = [lambda k: (k.wait_lg_all(), k("s_mov_b32 m0, s59\ns_barrier"))]
            for q in range(7):
                for c in range(4):
                    wo.append(lambda k, c=c: k(f"buffer_load_dwordx4 v1, s[8:11], s58 offen offset:{c*1024} lds" + ("\ns_add_u32 m0, m0, 16384\ns_add_u32 s58, s58, 16384" if c == 3 else "")))
            def pkl(u):
                def f(k):
                    k(f"s_cmp_eq_u32 s67, 0\ns_cbranch_scc1 L_pk_{nm}_{u}")
                    for i in range(4): k(f"buffer_load_dwordx4 {lpark(u, i)}, v{10 + (i & 1)}, s[60:63], s{72 + 2*u + (i >> 1)} offen nt")
                    k.label(f"L_pk_{nm}_{u}")
                return f
            extra = [pkl(0), pkl(1), pkl(2)] + wo
            if envs("NOWO", ""): extra = extra[:4]
            if EARLY == "w":
                def pkb(n):
                    def f(k):
                        k(f"s_cmp_eq_u32 s67, 0\ns_cbranch_scc1 L_pb_{nm}_{n}")
                        if n == 0: stage_addr(k)
                        pack_block(k, n, 6)
                        k.label(f"L_pb_{nm}_{n}")
                    return f
                extra = [pkl(0), pkl(1), pkl(2), pkb(0), pkb(1), wo[0]]
                for n in range(6): extra += [pkb(2 + n)] + wo[1 + 28 * n // 6: 1 + 28 * (n + 1) // 6]
        def qk1(i, kt, s):
            c = f"v[{M2}:{M2+3}]" if kt == i + 16 else f"v[{M1}:{M1+3}]" if kt == i else "0"
            def f(k):
                if first: k.wait_lg(("k", kt))
                k(f"{MF} v[{s}:{s+3}], a[{KR+4*kt}:{KR+4*kt+3}], v[{Q+4*i}:{Q+4*i+3}], {c}")
            return f
        def pv1(i, p, b, s):
            o = OA + 12 * (i & 1) + 4 * b
            A = f"v[{ONE}:{ONE+3}]" if b == 2 else f"a[{VR+8*p+4*b}:{VR+8*p+4*b+3}]"
            def f(k):
                if first: k.wait_lg(("v", p))
                k(f"{MF} v[{o}:{o+3}], {A}, v[{s}:{s+3}], " + ("0" if p == pairs(i)[0] else f"v[{o}:{o+3}]"))
            return f
        if fast:
            steps = [(i, p) for i in range(4) for p in pairs(i)]
            QL, PL = 2, int(envs("PL", "7")); NB = QL + PL + 1; SP = int(envs("SP", "14"))
            buf = lambda s: S0 + 8 * (s % NB)
            def qks(s):
                if s >= len(steps): return []
                i, p = steps[s]
                return [qk1(i, 2 * p + hf, buf(s) + 4 * hf) for hf in range(2) if 2 * p + hf in tiles(i)]
            def pvs(s):
                if not 0 <= s < len(steps): return []
                return [pv1(*steps[s], b, buf(s)) for b in range(3)]
            def exps(s):
                if s >= len(steps): return []
                i, p = steps[s]; b = buf(s); va, vb = 2 * p in tiles(i), 2 * p + 1 in tiles(i)
                E = lambda r: line(f"v_exp_f32 v{r}, v{r}", 8); C = lambda d, r: line(f"v_cvt_pk_bf16_f32 v{d}, v{r}, v{r+1}")
                Z = lambda d: line(f"v_mov_b32 v{d}, 0")
                if va and vb: return [E(b), E(b+1), E(b+2), E(b+3), E(b+4), C(b, b), E(b+5), C(b+1, b+2), E(b+6), E(b+7), C(b+2, b+4), C(b+3, b+6)]
                if va: return [E(b), E(b+1), E(b+2), E(b+3), C(b, b), C(b+1, b+2), Z(b+2), Z(b+3)]
                return [E(b+4), E(b+5), E(b+6), E(b+7), Z(b), Z(b+1), C(b+2, b+4), C(b+3, b+6)]
            n0 = min(12, len(kreads))
            for f in kreads[:n0]: f.fn(k)
            side = [f.fn for f in kreads[n0:]]; nk = len(side)
            side = side + [f.fn for f in vreads]
            for s in range(QL):
                for m in qks(s):
                    m(k)
                    for _ in range(2):
                        if side and nk > 0: side.pop(0)(k); nk -= 1
            k("s_nop 4")
            last = {i: max(s for s, (ii, p) in enumerate(steps) if ii == i) for i in range(4)}
            pend = []; pend2 = []; pvp = 0; s = 0; nsteps = max(len(steps), PL) + 2
            while pvp < len(steps):
                if s in [last[i] + 1 for i in range(3)]: stamp(k, 8 + [last[i] + 1 for i in range(3)].index(s))
                todo = []
                while s >= PL and pvp < min(s, len(steps)) and len(todo) < 2 and not (todo and todo[-1] in last.values()):
                    todo.append(pvp); pvp += 1
                mf = [m for t in todo for m in pvs(t)] + qks(s + QL)
                sd = []
                while side and (len(sd) < SP): sd.append(side.pop(0))
                if not side and not sd and extra:
                    q = -(-len(extra) // max(1, nsteps - 2 - s)); sd = extra[:q]; extra = extra[q:]
                va = exps(s)
                if pend and len(va) < 12: va = va + [line("s_nop 7", 32)]
                va = va + pend2 + pend; pend2 = []
                if pend: pend2 = later
                pend = []
                for i in range(4):
                    if last[i] in todo: pend, later = epi(i, True)
                mix = []
                a, b2 = list(mf), list(sd)
                while a or b2:
                    if b2:
                        for _ in range(-(-len(b2) // max(1, len(a)))): mix.append(b2.pop(0))
                    if a: mix.append(a.pop(0))
                if not va: va = [line("s_nop 1")]
                run(mix, va, 4, 0.85)
                s += 1
            for f in extra: f(k)
            assert not side
            for f in pend2: f.fn(k)
            k("s_nop 7")
            for f in pend + later: f.fn(k)
            k("s_cmp_eq_u64 s[64:65], 0\ns_cbranch_scc1 L_attn_done")
            k(f"s_waitcnt vmcnt(0)\ns_mov_b32 s47, s36\ns_branch L_attn_er{lim}")
            return
        sreg = lambda i, kt: S0 + 72 * (i & 1) + 4 * (kt - 2 * (i >> 1))
        qk = lambda i: [qk1(i, kt, sreg(i, kt)) for kt in tiles(i)]
        pv = lambda i: [pv1(i, p, b, sreg(i, 2 * p)) for b in range(3) for p in pairs(i)]
        def softmax(i):
            L = []
            regs = [sreg(i, kt) + j for kt in tiles(i) for j in range(4)]
            m = TM; t = TM + 1
            ch = [regs[0::2], regs[1::2]]
            for c in range(2): L.append(line(f"v_max_f32 v{m+c}, v{ch[c][0]}, v{ch[c][1]}"))
            for j in range(2, len(ch[0]), 2):
                for c in range(2): L.append(line(f"v_max3_f32 v{m+c}, v{m+c}, v{ch[c][j]}, v{ch[c][j+1]}"))
            L.append(line(f"v_max_f32 v{m}, v{m}, v{t}"))
            for sw in ("v_permlane16_swap_b32", "v_permlane32_swap_b32"):
                L.append(line(f"v_mov_b32 v{t}, v{m}\ns_nop 1\n{sw} v{m}, v{t}\nv_max_f32 v{m}, v{m}, v{t}", 16))
            for p in pairs(i):
                base = sreg(i, 2 * p)
                for hf in range(2):
                    kt = 2 * p + hf; s = sreg(i, kt)
                    if kt in tiles(i):
                        for j in range(4): L.append(line(f"v_sub_f32 v{s+j}, v{s+j}, v{m}"))
                        for j in range(4): L.append(line(f"v_exp_f32 v{s+j}, v{s+j}", 8))
                for hf in range(2):
                    kt = 2 * p + hf; s = sreg(i, kt)
                    for j in range(2):
                        if kt in tiles(i): L.append(line(f"v_cvt_pk_bf16_f32 v{base+2*hf+j}, v{s+2*j}, v{s+2*j+1}"))
                        else: L.append(line(f"v_mov_b32 v{base+2*hf+j}, 0"))
            return L
        for f in kreads: f.fn(k)
        for m in qk(0): m(k)
        k("s_nop 7")
        for i in range(4):
            mf = (pv(i - 1) if i >= 1 else []) + (qk(i + 1) if i < 3 else [])
            if i == 0: mf = mf + [f.fn for f in vreads]
            if i == 1: mf = extra + mf
            va = softmax(i)
            if i >= 2: va = epi(i - 2, False) + va
            run(mf, va, 8 if i else 0)
            k("s_nop 1")
        run(pv(3), epi(2, False))
        k("s_nop 7")
        for f in epi(3, False): f.fn(k)
        k("s_branch L_attn_done")
    v = "f" if FAST else "e"
    for lim in (16, 12, 8, 4): k(f"s_cmp_eq_u32 s32, {(16 - lim) // 2}\ns_cbranch_scc1 L_attn_{v}{lim}")
    for lim in (0, 4, 8, 12, 16): variant(lim, FAST, True)
    if FAST:
        for lim in (0, 4, 8, 12, 16): variant(lim, False, False)
    k.label("L_attn_done")
    stamp(k, 12)
    signal(k)
    if EARLY not in ("p0", "f"): publish_fp(k, FP)
    late_blocks(k)
    stamp(k, 13)

AG, AU, T1, T2, XV, RING = 16, 32, 48, 64, 80, 112
WQR = [RING + 4 * i for i in range(21, 35)] + [RING + 4 * i for i in range(6)] + [AU + 4 * i for i in range(4)] + [RING + 4 * i for i in range(6, 14)]
RESID = RING + 4 * 18
G = 3; LEAD = 36 - G
def wload(p):
    r = RING + 4 * (p % 36)
    if p >= 486: return []
    s = f"buffer_load_dwordx4 v[{r}:{r+3}], v1, s[12:15], s25 offen offset:{(p%4)*1024}"
    return [vml(s, ("w", p), cost=int(envs("LC", "8")))] + ([line("s_add_u32 s25, s25, 4096")] if p % 4 == 3 else [])

def p3_wo(k):
    NS = 6; ACC = 16; NB3 = int(envs('NB3', '3')); RES = ACC + 24 + 24 * NB3
    k("s_lshl_b32 s21, s16, 2\ns_and_b32 s22, s17, 3\ns_add_u32 s26, s21, s22")
    k("s_lshr_b32 s22, s17, 2")
    k("s_lshl_b32 s21, s26, 2\ns_add_u32 s21, s21, s20")
    k(f"s_lshl_b32 s23, s21, 14\ns_add_u32 s23, s23, {OFF_OF}")
    k(f"s_lshl_b32 s24, s26, 13\ns_lshl_b32 s30, s20, 6\ns_add_u32 s24, s24, s30\ns_add_u32 s24, s24, {OFF_OB}")
    k("s_lshr_b32 s28, s22, 2\ns_mul_i32 s28, s28, 9\ns_and_b32 s29, s22, 3\ns_lshl_b32 s30, s29, 1\ns_add_u32 s30, s30, 1\ns_cmp_eq_u32 s29, 0\ns_cselect_b32 s30, 0, s30\ns_add_u32 s28, s28, s30")
    k(f"s_mul_i32 s27, s21, 18\ns_add_u32 s27, s27, s28\ns_lshl_b32 s27, s27, 10\ns_add_u32 s40, s27, {OFF_XF}\ns_add_u32 s41, s27, {OFF_X1}")
    k("v_lshrrev_b32 v10, 1, v1\nv_and_b32 v11, 15, v0\nv_lshlrev_b32 v11, 2, v11\nv_bfe_u32 v12, v0, 4, 2\nv_lshl_add_u32 v11, v12, 9, v11")
    k(f"s_lshr_b32 s56, s26, 1\ns_lshl_b32 s56, s56, 7\ns_add_u32 s56, s56, {FC}\nv_and_b32 v2, 15, v0\nv_lshlrev_b32 v2, 3, v2")
    poll(k, "c")
    stamp(k, 14)
    fresh(k)
    loads = []
    for ks in range(16):
        for h in range(2):
            loads.append(tl(f"buffer_load_dwordx2 a[{4*ks+2*h}:{4*ks+2*h+1}], v10, s[8:11], s23 offen offset:{(ks%4)*1024 + 512*h}{LD}", ("x", ks),
                            "s_add_u32 s23, s23, 4096" if ks % 4 == 3 and h else "", 4))
    for q in range(2):
        for j in range(4):
            loads.append(tl(f"buffer_load_dword a{64+4*q+j}, v11, s[8:11], s24 offen offset:{(j>>1)*2048 + (j&1)*256}{LD}", ("x", 16 + q),
                            "s_add_u32 s24, s24, 4096" if j == 3 else "", 4))
    for pr in range(3): loads.append(tl(f"buffer_load_dwordx4 v[{RES+4*pr}:{RES+4*pr+3}], v1, s[8:11], s40 offen offset:{pr*1024}{LD}", "res"))
    if envs("T3", "0") == "1":
        k(f"v_lshlrev_b32 v4, 3, v1\nv_cmp_gt_u32 vcc, 256, v1\nv_mov_b32 v5, {BIG}\ns_lshl_b32 s30, s22, 11\ns_add_u32 s30, s30, s23\nv_cndmask_b32 v4, v5, v4, vcc")
        k.vm(f"buffer_load_dword v5, v4, s[8:11], s30 offen{LD}", "touch")
    gemm_core(k, 1, NS, loads, int(envs("AH3", "14")), 15, False, NB3)
    k.wait_vm("res")
    stamp(k, 16)
    k("s_mov_b32 s31, 0xffff0000\ns_mov_b32 s32, 0x3f803f80\nv_mov_b32 v8, 0\nv_mov_b32 v9, 0\nv_mov_b32 v10, 0\ns_add_u32 s33, s92, s50")
    k(f"v_cmp_gt_u32 vcc, 256, v1\nv_mov_b32 v7, {BIG}\nv_mov_b32 v11, s33\ns_cmp_lg_u32 s29, 0\ns_cbranch_scc1 L_p3_two")
    for pr in (2, 0, 1):
        for h in range(4):
            a = ACC + 8 * pr + 2 * h; r = RES + 4 * pr + h
            k(f"v_lshlrev_b32 v4, 16, v{r}\nv_and_b32 v5, s31, v{r}\nv_add_f32 v4, v4, v{a}\nv_add_f32 v5, v5, v{a+1}\nv_cvt_pk_bf16_f32 v{r}, v4, v5")
        k(f"buffer_store_dwordx4 v[{RES+4*pr}:{RES+4*pr+3}], v1, s[8:11], s41 offen offset:{pr*1024} sc1")
        for h in range(4): k(f"v_dot2c_f32_bf16 v8, s32, v{RES+4*pr+h}\nv_dot2c_f32_bf16 v9, v{RES+4*pr+h}, v{RES+4*pr+h}")
        for h in (0, 2): k(f"v_bitop3_b32 v10, v10, v{RES+4*pr+h}, v{RES+4*pr+h+1} bitop3:0x96")
        if pr == 2: k.label("L_p3_two")
    k(f"v_cndmask_b32 v7, v7, v1, vcc\ns_lshl_b32 s30, s21, 11\ns_lshl_b32 s31, s22, 8\ns_add_u32 s30, s30, s31\ns_add_u32 s30, s30, {OFF_STAT}")
    for sw in ("v_permlane16_swap_b32", "v_permlane32_swap_b32"):
        k(f"v_mov_b32 v4, v10\nv_mov_b32 v5, v8\nv_mov_b32 v6, v9\n{sw} v10, v4\n{sw} v8, v5\n{sw} v9, v6\nv_xor_b32 v10, v10, v4\nv_add_f32 v8, v8, v5\nv_add_f32 v9, v9, v6")
    k("v_bitop3_b32 v10, v10, v8, v9 bitop3:0x96")
    k.vm(f"buffer_store_dwordx4 v[8:11], v7, s[8:11], s30 offen sc1")
    stamp(k, 17)
    if not CKD:
        k(f"s_lshl_b32 s56, s26, 7\ns_lshl_b32 s27, s22, 3\ns_add_u32 s56, s56, s27\ns_add_u32 s56, s56, {FD}")
        signal(k)
    stamp(k, 18)

def p4_ffn(k):
    xreg = lambda ks, tb: (ar(4 * (ks * 4 + tb), 4) if ks < 16 else vr(XV + 4 * (ks * 4 + tb - 64), 4))
    if envs("FMAP", "2") == "2":
        k("s_lshl_b32 s21, s19, 1\ns_and_b32 s22, s17, 1\ns_add_u32 s21, s21, s22")
        k("s_lshl_b32 s22, s18, 4\ns_lshr_b32 s23, s17, 1\ns_add_u32 s22, s22, s23")
    else:
        k("s_and_b32 s21, s16, 1\ns_lshl_b32 s21, s21, 2\ns_and_b32 s22, s17, 3\ns_add_u32 s21, s21, s22")
        k("s_lshr_b32 s22, s16, 1\ns_lshl_b32 s22, s22, 3\ns_lshr_b32 s23, s17, 2\ns_add_u32 s22, s22, s23")
    k(f"s_lshl_b32 s24, s21, 2\ns_add_u32 s24, s24, s20\ns_mul_i32 s24, s24, {486*KBY}\ns_add_u32 s24, s24, {OFF_WF}")
    k(f"s_add_u32 s12, s4, s24\ns_addc_u32 s13, s5, 0\ns_mov_b32 s14, {486*KBY}\ns_mov_b32 s15, 0x00020000\ns_mov_b32 s25, 0")
    poll_fp(k, "p", FP)
    fresh(k)
    PRE = int(envs("PRE", "24")); FILL = int(envs("FILL", "27")); MID = (FILL + LEAD) // 2
    for p in range(PRE):
        for f in wload(p): f.fn(k)
    k(f"s_lshl_b32 s23, s22, 2\ns_add_u32 s23, s23, s20\ns_lshl_b32 s44, s23, 11\ns_add_u32 s44, s44, {OFF_STAT}\ns_mul_i32 s45, s23, {18*KBY}\ns_add_u32 s45, s45, {OFF_X1}")
    ln_consts(k)
    k("v_and_b32 v12, 15, v0\nv_lshlrev_b32 v12, 4, v12\nv_bfe_u32 v5, v0, 4, 2\nv_lshl_add_u32 v12, v5, 9, v12\ns_add_u32 s46, s92, s50")
    X = 16; T = 88; CK = T + 12
    if not CKD:
        k(f"s_lshl_b32 s56, s22, 7\ns_add_u32 s56, s56, {FD}\nv_and_b32 v2, 7, v0\nv_lshlrev_b32 v2, 3, v2")
        poll(k, "d")
    k(f"s_mov_b32 s57, {SPIN}\ns_lshl_b32 s26, s20, 10\nv_add_u32 v2, s26, v1\nv_add_u32 v3, 0x10000, v2\ns_mov_b32 s47, {1 if FORCE_RETRY else 0}")
    if CKD:
        k(f"s_cmp_lg_u32 s20, 0\ns_cbranch_scc1 L_p4_bar\nv_lshlrev_b32 v4, 4, v1\nv_and_b32 v4, 0x1fff, v4")
        k.label("L_p4_in")
        k(f"buffer_load_dword v5, v4, s[8:11], s44 offen offset:12{LD}\ns_sub_u32 s57, s57, 1\ns_waitcnt vmcnt(0)\nv_cmp_eq_u32 vcc, s46, v5\ns_cmp_eq_u32 s57, 0\ns_cbranch_scc1 L_p4_bar")
        k("s_cmp_eq_u64 vcc, -1\ns_cbranch_scc0 L_p4_in")
        k.label("L_p4_bar")
        k("s_barrier")
    k("v_mov_b32 v254, s92\nv_mov_b32 v255, s93")
    publish_fp(k, FP2)
    k(f"s_mov_b32 s30, 0x3f803f80\ns_lshl_b32 s56, s21, 8\ns_add_u32 s56, s56, {FP2}\nv_and_b32 v6, 31, v0\nv_min_u32 v6, 26, v6\nv_lshlrev_b32 v6, 3, v6")
    k.label("L_p4_go")
    if STAMP: k("v_readlane_b32 s90, v15, 46\ns_add_u32 s90, s90, 1\ns_nop 1\nv_writelane_b32 v15, s90, 46")
    k(f"buffer_load_dwordx4 v[{T}:{T+3}], v12, s[8:11], s44 offen{LD}\nbuffer_load_dwordx4 v[{T+4}:{T+7}], v12, s[8:11], s44 offen offset:256{LD}")
    stamp(k, 19)
    k.vmq.append("st")
    k("s_mov_b32 s23, s45")
    for ks in range(18):
        k.vm(f"buffer_load_dwordx4 v[{X+4*ks}:{X+4*ks+3}], v1, s[8:11], s23 offen offset:{(ks%4)*1024}{LD}", ("x", ks))
        if ks % 4 == 3: k("s_add_u32 s23, s23, 4096")
    k.wait_vm("st")
    k(f"v_bitop3_b32 v{CK}, v{T}, v{T+1}, v{T+2} bitop3:0x96\nv_bitop3_b32 v{T+2}, v{T+4}, v{T+5}, v{T+6} bitop3:0x96\nv_xor_b32 v{CK}, v{CK}, v{T+2}")
    k(f"v_xor_b32 v{CK+1}, s46, v{T+3}\nv_bitop3_b32 v{CK+1}, v{CK+1}, v{T+7}, s46 bitop3:0xf6")
    k(f"v_add_f32 v{T}, v{T}, v{T+4}\nv_add_f32 v{T+1}, v{T+1}, v{T+5}")
    red_rows(k, T, T + 2)
    k(f"v_mul_f32 v{T}, s31, v{T}\nv_sub_f32 v{T+3}, 0, v{T}\ns_mov_b32 s26, 0x00003f80\ns_mov_b32 s27, 0x3f800000")
    kk = KB(); red_rows(kk, T + 1, T + 2)
    kk(f"v_mul_f32 v{T+1}, s31, v{T+1}\nv_fma_f32 v{T+1}, -v{T}, v{T}, v{T+1}\nv_max_f32 v{T+1}, 0, v{T+1}\nv_add_f32 v{T+1}, {fbits(1e-5)}, v{T+1}")
    kk(f"v_and_b32 v4, 15, v0\nv_lshlrev_b32 v4, 2, v4\nv_add_u32 v4, {144*KBY}, v4\ns_lshl_b32 s33, s20, 6\nv_add_u32 v5, s33, v4")
    for ks in range(18):
        k.wait_vm(("x", ks))
        for i in range(4): k(f"v_dot2_f32_bf16 v{T+4+2*i}, v{X+4*ks+i}, s26, v{T+3}\nv_dot2_f32_bf16 v{T+5+2*i}, v{X+4*ks+i}, s27, v{T+3}")
        if CKD:
            for i in (0, 2): k(f"v_bitop3_b32 v{CK}, v{CK}, v{X+4*ks+i}, v{X+4*ks+i+1} bitop3:0x96")
        for i in range(4): k(f"v_cvt_pk_bf16_f32 v{X+4*ks+i}, v{T+4+2*i}, v{T+5+2*i}")
        k.lg(f"ds_write_b128 v{2 if ks < 16 else 3}, v[{X+4*ks}:{X+4*ks+3}] offset:{(ks % 16) * 4096}")
        if ks == 0:
            k.lines += kk.lines
            k.lg(f"ds_write_b32 v5, v{T+1}")
        if ks == 12: k.vm(f"buffer_load_dwordx2 v[{T+14}:{T+15}], v6, s[8:11], s56 offen sc1", "fp2")
    if CKD:
        red_rows(k, CK, T + 2, "v_xor_b32")
        k(f"v_or_b32 v{CK}, v{CK}, v{CK+1}\nv_cmp_ne_u32 vcc, s47, v{CK}\ns_mov_b32 s47, 0\ns_cmp_eq_u32 s57, 0\ns_cbranch_scc1 L_p4_ok\ns_sub_u32 s57, s57, 1\ns_cmp_eq_u64 vcc, 0\ns_cbranch_scc0 L_p4_go")
        k.label("L_p4_ok")
    for p in range(PRE, FILL):
        for f in wload(p): f.fn(k)
    k("v_mov_b32 v2, v1\nv_add_u32 v3, 0x10000, v1")
    HB = 72 * KBY
    k(f"s_mov_b32 s33, {fbits(-LOG2E)}")
    k(f"s_lshl_b32 s29, s20, 14\ns_add_u32 s29, s29, {HB}\ns_mov_b32 s28, 8")
    k("s_mov_b32 s34, 7")
    stamp(k, 20)
    k.wait_lg_all(); k("s_barrier")
    fp2 = [F(lambda k: (k.wait_vm("fp2"), k(f"v_cmp_eq_u64 s[48:49], s[92:93], v[{T+14}:{T+15}]")), 8, after=2, before=6)]

    for tb in range(4): k.lg(f"ds_read_b32 v{9+tb}, v4 offset:{64*tb}", "var")
    consts = [F(lambda k: k.wait_lg("var"), 4, after=4)]
    consts += [line(f"v_rsq_f32 v{5+tb}, v{9+tb}", 8) for tb in range(4)] + [line(f"v_sqrt_f32 v{9+tb}, v{9+tb}", 8) for tb in range(4)]
    consts += [line(f"v_mul_f32 v{5+j}, s33, v{5+j}") for j in range(8)]
    def xreads(lo, hi):
        return [lgl(f"ds_read_b128 {xreg(ks, tb)}, v{2 if ks < 16 else 3} offset:{((ks * 4 + tb) % 64) * 1024}", ("xr", ks)) for ks in range(lo, hi) for tb in range(4)]
    def phase(p0, acc, streams, xr=None, pre_extra=None, budget=8, xwait=None, lead=(LEAD, LEAD)):
        mf = []; pre = {}; loads = []
        for g in range(18 // G):
            def p(k, g=g):
                if pre_extra and g in pre_extra: pre_extra[g](k)
                k.wait_vm(("w", p0 + g * G + G - 1), force=True)
                if xr is not None or xwait: k.wait_lg(("xr", g * G + G - 1))
            pre[len(mf)] = p
            n = 18 + lead[1] - lead[0]
            for q in range(p0 + lead[0] + n * g // 6, p0 + lead[0] + n * (g + 1) // 6):
                assert q < p0 + g * G + 36
                for f in wload(q):
                    f.after = len(mf); f.before = len(mf) + 4 * G; loads.append(f)
            for tb in range(4):
                for j in range(G):
                    ks = g * G + j; r = RING + 4 * ((p0 + ks) % 36); a = acc + 4 * tb
                    mf.append(f"{MF} v[{a}:{a+3}], v[{r}:{r+3}], {xreg(ks, tb)}, " + ("0" if ks == 0 else f"v[{a}:{a+3}]"))
        st = [loads] + streams
        if xr:
            for j, f in enumerate(xr):
                g = j // (4 * G); f.after = max(f.after, 4 * G * g - 4); f.before = 4 * G * (g + 1) - 3
            st.append(xr)
        interleave(k, mf, st, pre=pre, budget=budget)
    def finish():
        L = [line("v_add_u32 v4, s29, v1")]
        for tb in range(4):
            for i in range(4): L.append(line(f"v_mul_f32 v{T1+4*tb+i}, v{T1+4*tb+i}, v{AU+4*tb+i}", after=3))
            for i in range(4): L.append(line(f"v_mul_f32 v{T1+4*tb+i}, v{T1+4*tb+i}, v{T2+4*tb+i}"))
            for i in range(2): L.append(line(f"v_cvt_pk_bf16_f32 v{T2+4*tb+i}, v{T1+4*tb+2*i}, v{T1+4*tb+2*i+1}"))
            L.append(lgl(f"ds_write_b64 v4, v[{T2+4*tb}:{T2+4*tb+1}] offset:{tb*1024}", "hw"))
        L += [line("s_add_u32 s29, s29, s28"), line("s_sub_u32 s28, 4096, s28"), line("s_sub_u32 s34, s34, 1")]
        return L
    def expo():
        L = []
        for tb in range(4):
            for i in range(4): L.append(line(f"v_mul_f32 v{T1+4*tb+i}, v{5+tb}, v{AG+4*tb+i}", after=2))
            for i in range(4): L.append(line(f"v_exp_f32 v{T2+4*tb+i}, v{T1+4*tb+i}", 8))
            for i in range(4): L.append(line(f"v_fma_f32 v{T2+4*tb+i}, v{T2+4*tb+i}, v{9+tb}, v{9+tb}"))
            for i in range(4): L.append(line(f"v_rcp_f32 v{T2+4*tb+i}, v{T2+4*tb+i}", 8))
        return L
    xr = xreads(0, 18)
    for f in xr[:4 * G]: f.fn(k)
    stamp(k, 21); stamp(k, 30, True)
    phase(0, AG, [consts, fp2], xr=xr[4 * G:], lead=(FILL, MID), budget=12)
    phase(18, AU, [expo()], lead=(MID, LEAD), budget=12)
    k(f"v_add_u32 v2, {HB}, v1\nv_add_u32 v3, {HB + 0x10000}, v1")
    its = []
    for fb in range(1, 8):
        m0 = k.mark()
        phase(36 * fb, AG, [finish()])
        phase(36 * fb + 18, AU, [expo()])
        its.append(k.lines[m0:]); del k.lines[m0:]
    k.label("L_ffn_gu")
    k.lines += fold(its)
    k("s_cmp_lg_u32 s34, 0\ns_cbranch_scc1 L_ffn_gu")
    k("v_mov_b32 v4, v2\ns_cmp_eq_u64 s[48:49], -1\ns_cbranch_scc1 L_pollx_p2")
    poll_fp(k, "p2", FP2)
    k("v_mov_b32 v2, v4")
    phase(288, AG, [finish()[:-3]])
    k.wait_lg_all(); k("s_barrier")
    k.lgq = []; k.lg_done = 0
    hr = xreads(0, 15)
    for j, f in enumerate(hr): f.after = 12 * (j // 12 + 1)
    phase(306, AU, [expo(), hr], budget=int(envs("TB", "12")))
    stamp(k, 22); stamp(k, 31, True)
    k(f"s_lshr_b32 s29, s20, 1\ns_lshl_b32 s29, s29, 12\ns_and_b32 s35, s20, 1\ns_lshl_b32 s36, s35, 3\ns_add_u32 s29, s29, s36")
    k(f"v_add_u32 v9, s29, v1\ns_add_u32 s29, s29, {HB + 64*KBY}\ns_lshl_b32 s41, s20, 11\nv_add_u32 v10, s41, v1")
    k(f"s_lshl_b32 s37, s21, 7\ns_lshl_b32 s38, s22, 2\ns_add_u32 s37, s37, s38\ns_mul_i32 s37, s37, {18*KBY}\ns_add_u32 s37, s37, {OFF_PART}")
    k(f"s_mul_i32 s38, s20, 9\ns_lshr_b32 s39, s20, 1\ns_mul_i32 s39, s39, 9\ns_add_u32 s39, s39, 4\ns_lshl_b32 s39, s39, 10\ns_mul_i32 s40, s35, {36*KBY}\ns_add_u32 s39, s39, s40\ns_add_u32 s39, s39, s37")
    k("s_add_u32 s38, s38, s35\ns_lshl_b32 s38, s38, 9\ns_add_u32 s38, s38, s37")
    k(f"s_lshl_b32 s56, s22, 7\ns_lshl_b32 s27, s21, 3\ns_add_u32 s56, s56, s27\ns_add_u32 s56, s56, {FE}")
    for tb in range(4): k(f"v_add_u32 v{5+tb}, {tb*18*KBY}, v1")
    fin = finish()[:-3]
    NG = 18 // G
    for f in fin: f.before = 4 * G * (NG - 3)
    def late(k):
        k.wait_lg_all(); k("s_barrier")
        for f in xreads(15, 18): f.fn(k)
    phase(324, AG, [fin], pre_extra={NG - 3: late}, xwait=True)
    def cv(acc, dst, hi, after=0):
        return [line(f"v_cvt_pk_bf16_f32 v{dst+4*tb+2*hi+i}, v{acc+4*tb+2*i}, v{acc+4*tb+2*i+1}", after=after) for tb in range(4) for i in range(2)]
    def st4(src, tb, after, addr="s38"):
        if envs("NOST", ""): return line("s_nop 0", after=after)
        return vml(f"buffer_store_dwordx4 v[{src+4*tb}:{src+4*tb+3}], v{5+tb}, s[8:11], {addr} offen{envs('PST', ' sc1').replace('_', ' ')}", after=after, cost=8)
    c = cv(AG, T2, 0, 8); join = []
    for tb in range(4): join += c[2*tb:2*tb+2] + [lgl(f"ds_write_b64 v9, v[{T2+4*tb}:{T2+4*tb+1}] offset:{tb*1024}")]
    for f in join: f.before = 36
    def joined(k):
        k.wait_lg_all(); k("s_barrier")
        k.lg(f"ds_read_b128 v[{T2}:{T2+3}], v10", "j"); k.lg(f"ds_read_b128 v[{T2+4}:{T2+7}], v10 offset:1024", "j")
    phase(342, AU, [join, [F(lambda k: k.wait_lg("j"), 4, after=50), st4(T2, 0, 52, "s39"), st4(T2, 1, 62, "s39")]], pre_extra={3: joined})
    phase(360, AG, [cv(AU, T1, 0, 8)])
    k("s_mov_b32 s34, 2")
    stamp(k, 23); stamp(k, 32, True)
    SCL = int(envs("SCL", "0"))
    def first_half():
        L = []
        for tb in range(4):
            L += [line(f"v_mov_b32 v{T2+4*tb}, v{T1+4*tb}"), line(f"v_mov_b32 v{T2+4*tb+1}, v{T1+4*tb+1}")]
        if SCL: return cv(AG, T1, 1, 8) + [st4(T1, tb, SCL) for tb in range(4)]
        return L + cv(AG, T2, 1, 8) + [st4(T2, 0, 30), st4(T2, 1, 60)]
    def pair(p, x0=[], x1=[]):
        phase(342 + 36 * p, AU, [first_half(), x0])
        c0 = cv(AU, T1, 0, 8)
        if p == 3:
            for f in c0: f.before = 28
        phase(342 + 36 * p + 18, AG, [c0, ([] if SCL else [st4(T2, 2, 20), st4(T2, 3, 52)]) + [line("s_add_u32 s38, s38, 1024"), line("s_sub_u32 s34, s34, 1")], x1])
    its = []
    for p in range(1, 3):
        m0 = k.mark(); pair(p); its.append(k.lines[m0:]); del k.lines[m0:]
    k.label("L_ffn_dn")
    k.lines += fold(its)
    k("s_cmp_lg_u32 s34, 0\ns_cbranch_scc1 L_ffn_dn")
    stamp(k, 24); stamp(k, 33, True)
    k("s_lshl_b32 s28, s22, 3\ns_add_u32 s28, s28, s21\ns_mov_b32 s42, s22")
    k("v_bfe_u32 v9, v0, 4, 2\nv_lshlrev_b32 v9, 8, v9\nv_bfe_u32 v10, v0, 3, 1\nv_lshl_add_u32 v9, v10, 10, v9\nv_and_b32 v10, 7, v0\nv_lshl_add_u32 v9, v10, 4, v9")
    k(f"s_lshr_b32 s30, s28, 1\ns_mul_i32 s30, s30, {18*KBY}\ns_and_b32 s31, s28, 1\ns_lshl_b32 s31, s31, 7\ns_add_u32 s30, s30, s31\ns_mul_i32 s31, s20, 6144\ns_add_u32 s30, s30, s31\ns_add_u32 s30, s30, {OFF_X1}\ns_add_u32 s31, s30, 4096")
    k(f"s_lshr_b32 s43, s17, 3\ns_lshl_b32 s26, s19, 2\ns_add_u32 s43, s43, s26\ns_mul_i32 s43, s43, {126*KBY}\ns_add_u32 s43, s43, {OFF_WQ}")
    k(f"s_lshl_b32 s26, s20, 15\ns_add_u32 s43, s43, s26")
    tail = [vml(f"buffer_load_dwordx4 v[{RESID+4*i}:{RESID+4*i+3}], v9, s[8:11], s{31 if i == 2 else 30} offen offset:{2048 if i == 1 else 0}{LD}", after=14, cost=8) for i in range(3)]
    def wqc(j0, j1, after):
        def f(k):
            k(f"s_cmp_lg_u32 s50, 0\ns_cbranch_scc1 L_wqc{j0}")
            for j in range(j0, j1): k(f"buffer_load_dwordx4 v[{WQR[j]}:{WQR[j]+3}], v1, s[8:11], s43 offen offset:{(j%4)*1024}" + ("\ns_add_u32 s43, s43, 4096" if j % 4 == 3 else ""))
            k.label(f"L_wqc{j0}")
        return F(f, 8, after=after)
    pair(3, tail + [wqc(3*g, 3*g + 3, 12*(g + 2)) for g in range(4)],
         [wqc(12, 14, 0), wqc(14, 17, 12), wqc(17, 20, 24), wqc(20, 24, 30), wqc(24, 27, 36), wqc(27, 30, 48), wqc(30, 32, 60)])
    k("s_nop 5")
    c = cv(AG, T1, 1)
    for tb in range(4):
        c[2 * tb].fn(k); c[2 * tb + 1].fn(k); st4(T1, tb, 0).fn(k)
    stamp(k, 25); stamp(k, 34, True)
    signal(k)
    stamp(k, 26)

def p5_reduce(k, nlayers):
    k("s_cmp_lg_u32 s50, 0\ns_cbranch_scc1 L_p5_now\ns_lshl_b32 s26, s20, 15\nv_add_u32 v2, s26, v1")
    for j in range(32): k(f"ds_write_b128 v2, v[{WQR[j]}:{WQR[j]+3}] offset:{j*1024}")
    k("s_waitcnt lgkmcnt(0)")
    k.label("L_p5_now")
    k(f"s_cmp_eq_u32 s20, 3\ns_cbranch_scc1 L_p5_w3")
    half_lanes(k, 28)
    k("s_mul_i32 s25, s20, 6144\ns_add_u32 s24, s24, s25\nv_add_u32 v8, 0x1000, v7")
    ln_consts(k)
    k("s_mov_b32 s26, 0x00003f80\ns_mov_b32 s27, 0x3f800000")
    D = 16; ACC = D + 96
    for j in range(12): k(f"v_lshlrev_b32 v{ACC+2*j}, 16, v{RESID+j}\nv_and_b32 v{ACC+2*j+1}, s32, v{RESID+j}")
    k(f"s_lshl_b32 s56, s42, 7\ns_add_u32 s56, s56, {FE}\nv_lshlrev_b32 v2, 3, v6")
    poll(k, "e", wg=False)
    stamp(k, 27)
    fresh(k)
    for src in range(8):
        k(f"s_add_u32 s25, s24, {OFF_PART + src * 2304 * KBY}")
        for i in range(3):
            r = D + 12 * src + 4 * i
            k.vm(f"buffer_load_dwordx4 v[{r}:{r+3}], v{8 if i == 2 else 7}, s[8:11], s25 offen offset:{2048 if i == 1 else 0}{LD}", (src, i))
    for src in range(8):
        for i in range(3):
            k.wait_vm((src, i))
            for j in range(4):
                r = D + 12 * src + 4 * i + j; a = ACC + 8 * i + 2 * j
                k(f"v_dot2c_f32_bf16 v{a}, s26, v{r}\nv_dot2c_f32_bf16 v{a+1}, s27, v{r}")
    k("s_nop 2")
    stamp(k, 28)
    for j in range(12): k(f"v_cvt_pk_bf16_f32 v{D+j}, v{ACC+2*j}, v{ACC+2*j+1}")
    k(f"s_cmp_eq_u32 s50, 1\ns_cbranch_scc1 L_p5_final")
    T = D + 16; O = T + 8
    row_sums(k, D, 12, T)
    k(f"v_lshlrev_b32 v9, 3, v6\nv_add_u32 v9, {150*KBY}, v9\ns_lshl_b32 s23, s20, 6\nv_add_u32 v10, s23, v9")
    k(f"ds_write_b64 v10, v[{T}:{T+1}]\ns_waitcnt lgkmcnt(0)\ns_barrier")
    for w in range(3): k(f"ds_read_b64 v[{T+2*w}:{T+2*w+1}], v9 offset:{64*w}")
    k(f"s_add_u32 s23, s24, {OFF_XN}\ns_add_u32 s25, s24, {OFF_XF}\ns_waitcnt lgkmcnt(0)")
    k(f"v_add_f32 v{T}, v{T}, v{T+2}\nv_add_f32 v{T+1}, v{T+1}, v{T+3}\nv_add_f32 v{T}, v{T}, v{T+4}\nv_add_f32 v{T+1}, v{T+1}, v{T+5}")
    ln_stats_finish(k, T, T + 1)
    for i in range(3):
        for j in range(4): ln_norm(k, D + 4 * i + j, O + 4 * i + j, T, T + 1, T + 2 + 2 * (j & 1))
        k(f"buffer_store_dwordx4 v[{O+4*i}:{O+4*i+3}], v{8 if i == 2 else 7}, s[8:11], s23 offen offset:{2048 if i == 1 else 0} sc1")
    for i in range(3):
        k(f"buffer_store_dwordx4 v[{D+4*i}:{D+4*i+3}], v{8 if i == 2 else 7}, s[8:11], s25 offen offset:{2048 if i == 1 else 0} sc1")
    flag_a_addr(k)
    k("s_branch L_p5_join")
    k.label("L_p5_w3")
    k(f"s_cmp_eq_u32 s50, 1\ns_cbranch_scc1 L_main_fin\ns_barrier")
    k.label("L_p5_join")
    stamp(k, 29)
    k(f"s_add_u32 s50, s50, 1\ns_add_u32 s51, s51, 32768\ns_mov_b32 s53, {OFF_QKV2}")
    signal(k)
    if STAMP: k("v_mov_b32 v14, v15")
    k("s_branch L_layer" if nlayers == 2 else "s_branch L_main_fin")
    k.label("L_p5_final")
    srd(k, 12, 6, 2048 * 1152)
    rowmajor(k, 28, 7)
    k("s_mul_i32 s25, s20, 384\ns_add_u32 s33, s33, s25")
    for i in range(3):
        k(f"v_permlane16_swap_b32 v{D+4*i}, v{D+4*i+2}\nv_permlane16_swap_b32 v{D+4*i+1}, v{D+4*i+3}")
        k(f"buffer_store_dwordx4 v[{D+4*i}:{D+4*i+3}], v7, s[12:15], s33 offen offset:{128*i}{FL[envs('OUTST', 's')]}")
    k.label("L_main_fin")
    if DIAG:
        k("s_waitcnt vmcnt(0)"); stamp(k, 50)
        k("s_cmp_lg_u32 s20, 0\ns_cbranch_scc1 L_end\ns_cmp_lg_u32 s2, 100\ns_cbranch_scc1 L_end\ns_sub_u32 s90, s90, s88\ns_mul_i32 s90, s90, 3\ns_min_u32 s90, s90, 100000\ns_memrealtime s[88:89]\ns_waitcnt lgkmcnt(0)")
        k.label("L_dgs")
        k("s_memrealtime s[94:95]\ns_waitcnt lgkmcnt(0)\ns_sub_u32 s94, s94, s88\ns_cmp_lt_u32 s94, s90\ns_cbranch_scc1 L_dgs")
    if STAMP:
        k.wait_vm_all(); stamp(k, 29)
        k(f"s_add_u32 s84, s4, {OFF_STAMP}\ns_addc_u32 s85, s5, 0\ns_mov_b32 s86, 0x2000000\ns_mov_b32 s87, 0x00020000")
        k("s_lshl_b32 s88, s2, 2\ns_add_u32 s88, s88, s20\ns_lshl_b32 s88, s88, 9\nv_lshrrev_b32 v2, 2, v1")
        k("buffer_store_dword v14, v2, s[84:87], s88 offen\nbuffer_store_dword v15, v2, s[84:87], s88 offen offset:256")

def main_k(name, nlayers=2):
    k = KB()
    k.raw(f".globl {name}\n.p2align 8\n.type {name},@function")
    k.label(name)
    k("s_cmp_ge_u32 s2, 256\ns_cbranch_scc1 L_end")
    if STAMP: k("v_mov_b32 v14, 0\nv_mov_b32 v15, 0"); stamp(k, 40)
    if DIAG: k("s_memrealtime s[88:89]\ns_waitcnt lgkmcnt(0)\ns_mov_b32 s90, s88")
    k("s_load_dwordx4 s[36:39], s[0:1], 0\ns_load_dwordx2 s[46:47], s[0:1], 16\ns_load_dwordx4 s[40:43], s[0:1], 32")
    k("s_load_dwordx2 s[44:45], s[0:1], 48\ns_load_dwordx2 s[6:7], s[0:1], 56\ns_load_dwordx2 s[84:85], s[0:1], 64\ns_load_dwordx2 s[4:5], s[0:1], 72")
    k("v_lshrrev_b32 v2, 6, v0\nv_and_b32 v1, 63, v0\nv_readfirstlane_b32 s20, v2\nv_cmp_eq_u32 vcc, 0, v1\nv_lshlrev_b32 v1, 4, v1")
    k("s_and_b32 s16, s2, 7\ns_lshr_b32 s17, s2, 3\ns_bfe_u32 s18, s2, 0x10002\ns_and_b32 s19, s2, 3")
    k(f"v_mov_b32 v13, {BIG}\ns_mov_b32 s50, 0\ns_mov_b32 s51, 0\ns_mov_b32 s53, {OFF_QKV}\ns_mov_b32 s67, 0\nv_cndmask_b32 v13, v13, 0, vcc")
    p0(k)
    k.label("L_layer")
    fresh(k)
    p1_qkv(k); p2_attn(k); p3_wo(k); p4_ffn(k); p5_reduce(k, nlayers)
    k.label("L_end")
    k("s_endpgm")
    return k

def desc(n, vgpr, accum):
    return f""".p2align 6
.amdhsa_kernel {n}
  .amdhsa_next_free_vgpr {vgpr}
  .amdhsa_next_free_sgpr 96
  .amdhsa_accum_offset {accum}
  .amdhsa_group_segment_fixed_size 0
  .amdhsa_kernarg_size 80
  .amdhsa_user_sgpr_count 2
  .amdhsa_user_sgpr_kernarg_segment_ptr 1
  .amdhsa_system_sgpr_workgroup_id_x 1
  .amdhsa_float_denorm_mode_32 3
.end_amdhsa_kernel"""
def build(nlayers=2):
    name = "interleave_layers__sliding_block__swiglu_ffn__prompt_kernel"
    out = ["; x += attn(LN x); x += swiglu(LN x); twice. One persistent kernel, 256 workgroups. Generated by my own script (work/genq.py)."]
    if STAMP:
        if not envs("NOSLEEP", ""): out.append("; @launch kernel=sleep_kernel grid=(1,1,1) block=(64,1,1) lds=0")
        out.append(f"; @launch kernel={name} grid=(256,1,1) block=(256,1,1) lds=163840")
    else: out.append("; @launch grid=(256,1,1) block=(256,1,1) lds=163840")
    out.append('.amdgcn_target "amdgcn-amd-amdhsa--gfx950"\n.text')
    out.append(main_k(name, nlayers).text())
    if STAMP:
        out.append(""".globl sleep_kernel
.p2align 8
.type sleep_kernel,@function
sleep_kernel:
    s_mov_b32 s4, 2000
L_sleep:
    s_sleep 8
    s_sub_u32 s4, s4, 1
    s_cmp_lg_u32 s4, 0
    s_cbranch_scc1 L_sleep
    s_endpgm""")
    out.append('.section .rodata,"a"')
    out.append(desc(name, 512, 256))
    if STAMP: out.append(desc("sleep_kernel", 8, 8))
    return "\n".join(out) + "\n"

if __name__ == "__main__":
    STAMP = "stamp" in sys.argv[2:]
    open(sys.argv[1], "w").write(build(1 if "one" in sys.argv[2:] else 2))
```

```python
import re, sys, os, struct
from kb import *
KBY = 1024
OFF_XF, OFF_XN, OFF_OF, OFF_X1 = 0, 2304*KBY, 4608*KBY, 6912*KBY
OFF_OB = OFF_OF + 2048*KBY
OFF_QKV = 9216*KBY
OFF_PART = 16128*KBY
OFF_WO = 34560*KBY
OFF_WF = 37376*KBY
OFF_STAT = 53248*KBY
OFF_FLAG = 53376*KBY
OFF_QKV2 = 53408*KBY
OFF_WQ = OFF_QKV2 + 6912*KBY
OFF_FLAG = OFF_WQ + 2048*KBY
OFF_STAT = OFF_FLAG + 64*KBY
WS_USED = OFF_STAT + 256*KBY
FA, FB, FC, FD, FE, FP, FP2, FW, FQ, FE1 = [OFF_FLAG + o for o in (0, 2048, 10240, 12288, 16384, 20480, 22528, 24576, 25600, 27648)]
BIG = 0x40000000
LOG2E = 1.4426950408889634
def fbits(x): return "0x%08x" % struct.unpack("<I", struct.pack("<f", x))[0]
def envs(n, d): return os.environ.get(n, d)
FL = {"s": " sc1", "p": "", "n": " nt"}
MF = "v_mfma_f32_16x16x32_bf16"
LD = " sc1"
SPIN = 300000
STAMP = False
OFF_STAMP = 200 << 20
POLL1 = envs("POLL1", "1") == "1"
CKD = envs("CKD", "1") == "1"
FORCE_RETRY = envs("FORCE_RETRY", "") == "1"
FAST = envs("FAST", "1") == "1"
FORCE_EXACT = envs("FORCE_EXACT", "") == "1"

DIAG = envs("DIAG", "")
def stamp(k, i, cyc=False):
    if DIAG and not cyc and i == int(DIAG.split(",")[1]):
        n = len(k.lines)
        k(f"s_cmp_lg_u32 s50, {DIAG.split(',')[0]}\ns_cbranch_scc1 L_dg{n}\ns_memrealtime s[90:91]"); k("s_waitcnt lgkmcnt(0)"); k.label(f"L_dg{n}")
    if STAMP:
        k(f"{'s_memtime' if cyc else 's_memrealtime'} s[98:99]"); k.wait_lg_all(); k(f"v_writelane_b32 v15, s98, {i}")
def srd(k, d, base, nbytes):
    k(f"s_mov_b32 s{d}, s{base}\ns_mov_b32 s{d+1}, s{base+1}\ns_mov_b32 s{d+2}, {nbytes}\ns_mov_b32 s{d+3}, 0x00020000")
def sdiv(k, dst, src, D, tmp):
    k(f"s_mov_b32 s{tmp}, {-(-(1<<32)//D)}\ns_mul_hi_u32 s{dst}, s{src}, s{tmp}")
def red_rows(k, v, t, op="v_add_f32"):
    for sw in ("v_permlane16_swap_b32", "v_permlane32_swap_b32"):
        k(f"v_mov_b32 v{t}, v{v}\ns_nop 1\n{sw} v{v}, v{t}\n{op} v{v}, v{v}, v{t}")
def ln_stats_finish(k, s, q):
    k(f"v_mul_f32 v{s}, s31, v{s}\nv_mul_f32 v{q}, s31, v{q}\nv_fma_f32 v{q}, -v{s}, v{s}, v{q}\nv_max_f32 v{q}, 0, v{q}")
    k(f"v_add_f32 v{q}, {fbits(1e-5)}, v{q}\nv_rsq_f32 v{q}, v{q}\ns_nop 0\nv_mul_f32 v{s}, v{s}, v{q}\nv_sub_f32 v{s}, 0, v{s}")
def ln_norm(k, x, dst, s, q, t):
    k(f"v_lshlrev_b32 v{t}, 16, v{x}\nv_and_b32 v{t+1}, s32, v{x}\nv_fma_f32 v{t}, v{t}, v{q}, v{s}\nv_fma_f32 v{t+1}, v{t+1}, v{q}, v{s}\nv_cvt_pk_bf16_f32 v{dst}, v{t}, v{t+1}")
def ln_consts(k):
    k(f"s_mov_b32 s30, 0x3f803f80\ns_mov_b32 s31, {fbits(1/576)}\ns_mov_b32 s32, 0xffff0000")
def fold(iters):
    body = []
    assert len({len(x) for x in iters}) == 1, [len(x) for x in iters]
    for ls in zip(*iters):
        if len(set(ls)) == 1: body.append(ls[0]); continue
        ns = [re.fullmatch(r"\s*s_waitcnt vmcnt\((\d+)\)", l) for l in ls]
        assert all(ns), ls
        body.append(f"    s_waitcnt vmcnt({min(int(m.group(1)) for m in ns)})")
    return body
def fresh(k):
    k.vmq = []; k.vm_done = 0; k.lgq = []; k.lg_done = 0

def poll(k, name, wg=True, layer=True):
    if wg: k(f"s_cmp_lg_u32 s20, 0\ns_cbranch_scc1 L_pollx_{name}")
    k(f"s_mov_b32 s57, {SPIN}" + ("\ns_add_u32 s56, s56, s51" if layer else ""))
    if envs("PP", "") and name in "abcde":
        k("buffer_load_dwordx2 v[252:253], v2, s[8:11], s56 offen sc1\ns_sleep 1")
        k.label(f"L_poll_{name}")
        k(f"buffer_load_dwordx2 v[254:255], v2, s[8:11], s56 offen sc1\ns_waitcnt vmcnt(1)\nv_cmp_eq_u64 vcc, s[100:101], v[252:253]\ns_cmp_eq_u64 vcc, -1\ns_cbranch_scc1 L_pollx_{name}")
        k(f"buffer_load_dwordx2 v[252:253], v2, s[8:11], s56 offen sc1\ns_sub_u32 s57, s57, 1\ns_waitcnt vmcnt(1)")
    else:
        k.label(f"L_poll_{name}")
        k(f"buffer_load_dwordx2 v[254:255], v2, s[8:11], s56 offen sc1\ns_sub_u32 s57, s57, 1\ns_waitcnt vmcnt(0)")
    k(f"v_cmp_eq_u64 vcc, s[100:101], v[254:255]\ns_cmp_eq_u32 s57, 0\ns_cbranch_scc1 L_pollx_{name}")
    k(f"s_cmp_eq_u64 vcc, -1\ns_cbranch_scc0 L_poll_{name}")
    k.label(f"L_pollx_{name}")
    if wg: k("s_barrier")
def spoll(k, name, n, wg=True):
    if wg: k(f"s_cmp_lg_u32 s20, 0\ns_cbranch_scc1 L_pollx_{name}")
    k(f"s_mov_b32 s57, {SPIN}\ns_add_u32 s56, s56, s51")
    for c in range(0, n, 8):
        k.label(f"L_poll_{name}{c}")
        k(f"s_load_dwordx16 s[84:99], s[4:5], s56 glc\ns_sub_u32 s57, s57, 1\ns_cmp_eq_u32 s57, 0\ns_waitcnt lgkmcnt(0)\ns_cbranch_scc1 L_pollx_{name}")
        for j in range(84, 100, 2): k(f"s_xor_b64 s[{j}:{j+1}], s[{j}:{j+1}], s[100:101]")
        for j in range(86, 100, 2): k(f"s_or_b64 s[84:85], s[84:85], s[{j}:{j+1}]")
        k(f"s_cbranch_scc0 2\ns_sleep {envs('SLP', '2')}\ns_branch L_poll_{name}{c}")
        if c + 8 < n: k("s_add_u32 s56, s56, 64")
    k.label(f"L_pollx_{name}")
    if wg: k("s_barrier")
SP = envs("SPOLL", "qe")
def publish(k, addr="s56"):
    k("v_mov_b32 v254, s100\nv_mov_b32 v255, s101")
    k.vm(f"buffer_store_dwordx2 v[254:255], v13, s[8:11], {addr} offen sc1")
def signal(k):
    k(f"s_add_u32 s56, s56, s51\ns_cmp_eq_u32 s20, 0\ns_cselect_b32 s56, s56, {BIG}")
    k.wait_vm_all(); k("s_barrier")
    publish(k)
def token_load(k):
    k("v_mov_b32 v2, 0\nbuffer_load_dwordx2 v[254:255], v2, s[84:87], 0 offen sc1")
def token_get(k, name):
    k(f"s_mov_b32 s57, {SPIN}")
    k.label(f"L_tok_{name}")
    k("v_readfirstlane_b32 s100, v254\nv_readfirstlane_b32 s101, v255\ns_sub_u32 s57, s57, 1\ns_min_u32 s94, s100, s101\ns_cmp_eq_u32 s57, 0\ns_cselect_b32 s94, 1, s94")
    k(f"s_cmp_lg_u32 s94, 0\ns_cbranch_scc1 L_tokx_{name}")
    token_load(k)
    k(f"s_waitcnt vmcnt(0)\ns_branch L_tok_{name}")
    k.label(f"L_tokx_{name}")

def half_lanes(k, shb):
    k("v_bfe_u32 v4, v0, 4, 2\nv_bfe_u32 v5, v0, 3, 1\nv_and_b32 v6, 7, v0")
    k(f"s_and_b32 s21, s{shb}, 1\ns_lshr_b32 s22, s{shb}, 1\ns_lshl_b32 s23, s21, 7")
    k("v_lshlrev_b32 v7, 8, v4\nv_lshl_add_u32 v7, v5, 10, v7\nv_lshl_add_u32 v7, v6, 4, v7\nv_add_u32 v7, s23, v7")
    k(f"s_mul_i32 s24, s22, {18*KBY}")
def rowmajor(k, shb, v):
    k(f"v_mul_u32_u24 v{v}, 1152, v6\nv_lshl_add_u32 v{v}, v5, 6, v{v}\nv_and_b32 v9, 1, v4\nv_lshl_add_u32 v{v}, v9, 5, v{v}\nv_lshrrev_b32 v9, 1, v4\nv_lshl_add_u32 v{v}, v9, 4, v{v}")
    k(f"s_mul_i32 s33, s{shb}, 9216")
def row_sums(k, D, n, T):
    for i in range(4): k(f"v_mov_b32 v{T+i}, 0")
    for j in range(n): k(f"v_dot2c_f32_bf16 v{T+(j&1)}, s30, v{D+j}\nv_dot2c_f32_bf16 v{T+2+(j&1)}, v{D+j}, v{D+j}")
    k(f"s_nop 2\nv_add_f32 v{T}, v{T}, v{T+1}\nv_add_f32 v{T+1}, v{T+2}, v{T+3}\ns_nop 1")
    k(f"v_add_f32_dpp v{T}, v{T}, v{T} row_ror:8 row_mask:0xf bank_mask:0xf\nv_add_f32_dpp v{T+1}, v{T+1}, v{T+1} row_ror:8 row_mask:0xf bank_mask:0xf")
    red_rows(k, T, T + 2); red_rows(k, T + 1, T + 2)
def flag_a_addr(k):
    k(f"s_lshr_b32 s56, s28, 4\ns_lshl_b32 s56, s56, 7\ns_and_b32 s27, s28, 15\ns_lshl_b32 s27, s27, 3\ns_add_u32 s56, s56, s27\ns_add_u32 s56, s56, {FA}")

DST = 68
park = lambda u, i: (f"v[{128+16*u+4*i}:{131+16*u+4*i}]" if u < 3 else f"a[{160+16*(u-3)+4*i}:{163+16*(u-3)+4*i}]")
PK = 220
def wq_base(k):
    k(f"s_lshr_b32 s29, s17, 3\ns_lshl_b32 s22, s19, 2\ns_add_u32 s22, s22, s29\ns_mul_i32 s25, s22, {126*KBY}\ns_add_u32 s25, s25, {OFF_WQ}")
def wq_fetch(k, name):
    k(f"s_and_b32 s23, s17, {7 if envs('ROT', '1') == '1' else 0}\ns_lshl_b32 s23, s23, 14\ns_mov_b32 s26, 32")
    k.label(f"L_wqf_{name}")
    k("s_mov_b32 m0, s23\ns_add_u32 s27, s25, s23")
    for c in range(4): k(f"buffer_load_dwordx4 v1, s[8:11], s27 offen offset:{c*1024} lds")
    k(f"s_add_u32 s23, s23, 4096\ns_and_b32 s23, s23, 0x1ffff\ns_sub_u32 s26, s26, 1\ns_waitcnt vmcnt({envs('WQF', '40')})\ns_cmp_lg_u32 s26, 0\ns_cbranch_scc1 L_wqf_{name}")
def stage_addr(k):
    k(f"s_lshl_b32 s66, s20, 13\ns_add_u32 s66, s66, {128*KBY}\nv_add_u32 v10, s66, v1")
    k("v_bfe_u32 v11, v0, 2, 4\nv_lshlrev_b32 v11, 7, v11\nv_and_b32 v252, 3, v0\nv_lshl_add_u32 v11, v252, 3, v11\nv_add_u32 v11, s66, v11")
def pack_block(k, n, nu, dst=lambda u, c: (f"s{DST+c}", (u % 4) * 1024), src=park):
    k("s_waitcnt lgkmcnt(0)")
    if 2 <= n < nu + 2:
        u = n - 2
        for c in range(4):
            r, o = dst(u, c)
            k(f"buffer_store_dwordx4 v[{PK+16*(u&1)+4*c}:{PK+16*(u&1)+4*c+3}], v1, s[8:11], {r} offen offset:{o} sc1" + (f"\ns_add_u32 {r}, {r}, 4096" if o == 3072 else ""))
    if 1 <= n <= nu:
        u = n - 1
        for c in range(4):
            for hf in range(2): k(f"ds_read_b64_tr_b16 v[{PK+16*(u&1)+4*c+2*hf}:{PK+16*(u&1)+4*c+2*hf+1}], v11 offset:{(u&1)*4096 + hf*2048 + c*32}")
    if n < nu:
        for i in range(4): k(f"ds_write_b128 v10, {src(n, i)} offset:{(n&1)*4096 + i*1024}")
lpark = lambda u, i: f"a[{208+16*u+4*i}:{211+16*u+4*i}]"
def late_blocks(k):
    k("s_cmp_eq_u32 s67, 0\ns_cbranch_scc1 L_pks")
    stage_addr(k)
    for n in range(5): pack_block(k, n, 3, lambda u, c: (f"s{78+c}", u * 1024), lpark)
    k("s_mov_b32 s67, 0")
    k.label("L_pks")
EARLY = envs("EARLY", "b")
def early_blocks(k):
    k("s_cmp_eq_u32 s67, 0\ns_cbranch_scc1 L_pke")
    stage_addr(k)
    for n in range(8): pack_block(k, n, 6)
    k.label("L_pke")
def publish_fp(k, base):
    k(f"s_mov_b32 s30, {-(-(1<<32)//27)}\ns_mul_hi_u32 s27, s2, s30\ns_mul_i32 s27, s27, 5\ns_add_u32 s27, s27, s2\ns_lshl_b32 s27, s27, 3\ns_add_u32 s27, s27, {base}")
    k(f"s_cmp_lt_u32 s2, 216\ns_cselect_b32 s27, s27, {BIG}\ns_cmp_eq_u32 s20, 0\ns_cselect_b32 s27, s27, {BIG}")
    k.vm("buffer_store_dwordx2 v[254:255], v13, s[8:11], s27 offen sc1")
def poll_fp(k, name, base):
    k(f"s_cmp_lg_u32 s50, 0\ns_cbranch_scc1 L_pollx_{name}\ns_lshl_b32 s56, s21, 8\ns_add_u32 s56, s56, {base}\nv_and_b32 v2, 31, v0\nv_min_u32 v2, 26, v2\nv_lshlrev_b32 v2, 3, v2")
    poll(k, name, wg=False)
def ptrs(k):
    srd(k, 8, 4, WS_USED); k("s_mov_b32 s86, 256\ns_mov_b32 s87, 0x00020000")
def p0(k):
    k("s_cmp_eq_u32 s20, 1\ns_cbranch_scc1 L_p0_wq\ns_cmp_lg_u32 s20, 0\ns_cbranch_scc1 L_p0_23")
    k("s_lshl_b32 s28, s16, 5\ns_add_u32 s28, s28, s17")
    half_lanes(k, 28); rowmajor(k, 28, 11)
    k("s_waitcnt lgkmcnt(0)")
    srd(k, 12, 36, 2048 * 1152)
    D = 16; T = D + 36; O = T + 8
    for i in range(9): k(f"buffer_load_dwordx4 v[{D+4*i}:{D+4*i+3}], v11, s[12:15], s33 offen offset:{128*i} nt")
    if envs("B0", "2") == "1": k("s_barrier")
    ptrs(k); ln_consts(k); flag_a_addr(k)
    stamp(k, 41)
    for i in range(9): k(f"s_waitcnt vmcnt({8-i})\nv_permlane16_swap_b32 v{D+4*i}, v{D+4*i+2}\nv_permlane16_swap_b32 v{D+4*i+1}, v{D+4*i+3}")
    stamp(k, 42)
    token_load(k)
    row_sums(k, D, 36, T); ln_stats_finish(k, T, T + 1)
    k(f"s_add_u32 s23, s24, {OFF_XN}\ns_add_u32 s25, s24, {OFF_XF}")
    for i in range(9):
        for j in range(4): ln_norm(k, D + 4 * i + j, O + 4 * (i & 1) + j, T, T + 1, T + 2 + 2 * (j & 1))
        k(f"buffer_store_dwordx4 v[{O+4*(i&1)}:{O+4*(i&1)+3}], v7, s[8:11], s23 offen offset:{(i&1)*2048} sc1" + ("\ns_add_u32 s23, s23, 4096" if i & 1 else ""))
    for i in range(9):
        k(f"buffer_store_dwordx4 v[{D+4*i}:{D+4*i+3}], v7, s[8:11], s25 offen offset:{(i&1)*2048} sc1" + ("\ns_add_u32 s25, s25, 4096" if i & 1 else ""))
    stamp(k, 43)
    if envs("B0", "2") == "2": k("s_barrier")
    k("s_waitcnt vmcnt(0)")
    token_get(k, "a")
    publish(k)
    k("s_branch L_p0_wait")
    k.label("L_p0_wq")
    k("s_lshl_b32 s21, s18, 3\ns_and_b32 s22, s17, 7\ns_add_u32 s21, s21, s22\ns_lshr_b32 s29, s17, 3\ns_mul_i32 s79, s29, 7\ns_mul_i32 s33, s19, 288")
    k("v_bfe_u32 v10, v0, 1, 5\nv_mul_u32_u24 v10, 3456, v10\nv_and_b32 v11, 1, v0\nv_lshl_add_u32 v10, v11, 4, v10")
    k("v_bfe_u32 v11, v0, 3, 3\nv_mul_u32_u24 v11, 3456, v11\nv_and_b32 v12, 7, v0\nv_mul_u32_u24 v12, 36, v12\nv_add_u32 v11, v11, v12")
    k("s_lshl_b32 s80, s21, 3")
    sdiv(k, 81, 80, 7, 30)
    k(f"s_mul_i32 s30, s81, 7\ns_sub_u32 s80, s80, s30\ns_mul_i32 s81, s81, {32*3456}\ns_add_u32 s81, s81, s33\ns_mov_b32 m0, {128*KBY}\ns_mov_b32 s82, 8")
    k("s_waitcnt lgkmcnt(0)")
    srd(k, 60, 38, 576 * 3456)
    k.label("L_wq")
    k("s_add_u32 s30, s79, s80\ns_cmp_ge_u32 s30, 18\ns_cselect_b32 s31, 18, 0\ns_cselect_b32 s34, 2304, 0\ns_sub_u32 s30, s30, s31")
    k(f"s_cmp_ge_u32 s30, 9\ns_cselect_b32 s31, 9, 0\ns_cselect_b32 s35, 1152, 0\ns_sub_u32 s30, s30, s31\ns_add_u32 s34, s34, s35\ns_cmp_eq_u32 s34, 3456\ns_cselect_b32 s34, {BIG}, s34")
    k("s_add_u32 s34, s34, s81\ns_cmp_eq_u32 s30, 8\ns_cbranch_scc1 L_wqb\ns_mul_i32 s30, s30, 36\ns_add_u32 s34, s34, s30")
    k("buffer_load_dwordx4 v10, s[60:63], s34 offen lds\ns_add_u32 m0, m0, 1024")
    k.label("L_wqj")
    k(f"s_add_u32 s80, s80, 1\ns_cmp_eq_u32 s80, 7\ns_cselect_b32 s80, 0, s80\ns_cselect_b32 s30, {32*3456}, 0\ns_add_u32 s81, s81, s30")
    k("s_sub_u32 s82, s82, 1\ns_cmp_lg_u32 s82, 0\ns_cbranch_scc1 L_wq\ns_branch L_wqx")
    k.label("L_wqb")
    k("s_add_u32 s34, s34, 32")
    for q in range(4): k(f"buffer_load_dword v11, s[60:63], s34 offen lds\ns_add_u32 m0, m0, 256\ns_add_u32 s34, s34, {8*3456}")
    k("s_branch L_wqj")
    k.label("L_wqx")
    if envs("B0", "2") == "1": k("s_barrier")
    ptrs(k)
    wq_base(k)
    k(f"s_lshl_b32 s30, s21, 13\ns_add_u32 s30, s30, s25\ns_add_u32 s31, s30, 4096\nv_lshrrev_b32 v3, 1, v1\nv_add_u32 v3, {128*KBY}, v3")
    k(f"s_cmp_eq_u32 s21, 15\ns_cselect_b32 s32, {BIG}, s31")
    k(f"s_lshl_b32 s24, s22, 7\ns_add_u32 s24, s24, {FQ}\ns_lshl_b32 s27, s21, 3\ns_add_u32 s27, s27, s24\ns_waitcnt vmcnt(0)")
    stamp(k, 41)
    token_load(k)
    for sl in range(8):
        for hf in range(2): k(f"ds_read_b64_tr_b16 v[{16+4*sl+2*hf}:{17+4*sl+2*hf}], v3 offset:{sl*1024 + hf*512}")
    for sl in range(8): k(f"s_waitcnt lgkmcnt({14-2*sl})\nbuffer_store_dwordx4 v[{16+4*sl}:{19+4*sl}], v1, s[8:11], s{30 if sl < 4 else 31 if sl < 6 else 32} offen offset:{(sl%4)*1024} sc1")
    if envs("B0", "2") == "2": k("s_barrier")
    k("s_waitcnt vmcnt(0)")
    token_get(k, "b")
    publish(k, "s27")
    stamp(k, 42)
    k("s_mov_b32 s56, s24\nv_and_b32 v2, 15, v0\nv_lshlrev_b32 v2, 3, v2")
    if "q" in SP: spoll(k, "q", 16, wg=False)
    else: poll(k, "q", wg=False)
    stamp(k, 43)
    k("s_branch L_p0_fetch")
    k.label("L_p0_23")
    k("s_sub_u32 s21, s20, 2\nv_bfe_u32 v4, v0, 3, 3\nv_and_b32 v5, 7, v0\ns_memrealtime s[94:95]")
    k("s_lshl_b32 s23, s2, 1\ns_add_u32 s23, s23, s21")
    sdiv(k, 25, 23, 3, 30)
    k("s_mul_i32 s30, s25, 3\ns_sub_u32 s28, s23, s30\ns_mul_i32 s28, s28, 6")
    sdiv(k, 26, 25, 18, 30)
    k("s_mul_i32 s30, s26, 18\ns_sub_u32 s25, s25, s30\ns_cmp_ge_u32 s25, 9\ns_cselect_b32 s27, 18, 0\ns_cselect_b32 s30, 9, 0\ns_sub_u32 s25, s25, s30")
    k(f"s_mul_i32 s30, s26, 9\ns_add_u32 s25, s25, s30\ns_lshl_b32 s24, s25, 7\ns_mul_i32 s30, s28, {32*9216}\ns_add_u32 s24, s24, s30")
    k("v_mul_u32_u24 v6, 9216, v4\nv_lshl_add_u32 v6, v5, 4, v6\ns_waitcnt lgkmcnt(0)")
    ptrs(k)
    k(f"s_or_b32 s94, s94, 1\ns_or_b32 s95, s95, 0x80000000\nv_mov_b32 v16, s94\nv_mov_b32 v17, s95\ns_cmp_eq_u32 s23, 0\ns_cselect_b32 s30, 0, {BIG}")
    k("buffer_store_dwordx2 v[16:17], v13, s[84:87], s30 offen sc1")
    k(f"s_sub_u32 s30, s23, 486\ns_lshl_b32 s30, s30, 14\ns_add_u32 s30, s30, {OFF_FLAG}\ns_cmp_ge_u32 s23, 486\ns_cselect_b32 s30, s30, {BIG}\ns_add_u32 s31, s30, 8192\nv_lshlrev_b32 v2, 3, v1")
    k("buffer_load_dword v22, v2, s[8:11], s30 offen\nbuffer_load_dword v21, v2, s[8:11], s31 offen")
    k("s_cmp_ge_u32 s2, 216\ns_cbranch_scc1 L_p0_wo")
    k("s_add_u32 s29, s27, s28")
    for c in range(4):
        k(f"s_lshl_b32 s30, s25, 2\ns_add_u32 s30, s30, {c}")
        sdiv(k, 31, 30, 9, 33)
        k("s_mul_i32 s33, s31, 9\ns_sub_u32 s30, s30, s33\ns_mul_i32 s31, s31, 486\ns_mul_i32 s30, s30, 36\ns_add_u32 s30, s30, s31\ns_add_u32 s30, s30, s29")
        k(f"s_add_u32 s30, s30, {OFF_WF//KBY}\ns_lshl_b32 s{DST+c}, s30, 10")
    if EARLY == "p0":
        stage_addr(k)
        k("s_waitcnt vmcnt(0)")
        stamp(k, 43)
        for n in range(8): pack_block(k, n, 6)
    sdiv(k, 25, 2, 3, 30)
    k("s_mul_i32 s30, s25, 3\ns_sub_u32 s28, s2, s30\ns_mul_i32 s28, s28, 6\ns_mul_i32 s30, s21, 3\ns_add_u32 s28, s28, s30")
    k("s_mul_i32 s30, s26, 9\ns_sub_u32 s25, s25, s30")
    for c in range(4):
        k(f"s_lshl_b32 s31, s25, 1\ns_add_u32 s31, s31, {c >> 1}\ns_and_b32 s31, s31, 3\ns_and_b32 s30, s25, 14\ns_add_u32 s30, s30, {1 + (c & 1)}")
        k(f"s_cmp_eq_u32 s25, 8\ns_cselect_b32 s31, {c}, s31\ns_cselect_b32 s30, 0, s30\ns_lshl_b32 s33, s26, 2\ns_add_u32 s31, s31, s33\ns_mul_i32 s31, s31, 486")
        k(f"s_mul_i32 s30, s30, 18\ns_add_u32 s30, s30, s31\ns_add_u32 s30, s30, s28\ns_add_u32 s30, s30, {324 + OFF_WF//KBY}\ns_lshl_b32 s{78+c}, s30, 10")
    k("s_lshl_b32 s34, s25, 7\ns_mul_i32 s35, s26, 576")
    for u in range(3):
        k("s_lshr_b32 s30, s28, 2\ns_mul_i32 s30, s30, 144\ns_and_b32 s31, s28, 3\ns_lshl_b32 s31, s31, 5\ns_add_u32 s30, s30, s31")
        k("s_mul_i32 s31, s28, 288\ns_sub_u32 s31, s31, 4480\ns_cmp_ge_u32 s28, 16\ns_cselect_b32 s30, s31, s30\ns_cselect_b32 s37, 144, 16")
        k(f"s_add_u32 s30, s30, s35\ns_mul_i32 s30, s30, 1152\ns_add_u32 s{72+2*u}, s30, s34\ns_mul_i32 s37, s37, 1152\ns_add_u32 s{73+2*u}, s{72+2*u}, s37\ns_add_u32 s28, s28, 1")
    if envs("B0", "2") in "12": k("s_barrier")
    k(f"s_cmp_eq_u32 s27, 0\ns_cselect_b32 s60, s40, s42\ns_cselect_b32 s61, s41, s43\ns_mov_b32 s62, {576*9216}\ns_mov_b32 s63, 0x00020000")
    if envs("NOBG", ""): k("s_mov_b32 s62, 0")
    for u in range(6):
        for i in range(4): k(f"buffer_load_dwordx4 {park(u, i)}, v6, s[60:63], s24 offen nt\ns_add_u32 s24, s24, {8*9216}")
    if envs("CODEPF", "1") == "1":
        k("s_getpc_b64 s[12:13]")
        k.label("L_pc")
        k(f"s_mov_b32 s14, L_end-L_pc\ns_mov_b32 s15, 0x00020000\nv_lshlrev_b32 v2, 3, v1\ns_lshl_b32 s30, s17, 13\ns_cmp_eq_u32 s20, 3\ns_cselect_b32 s30, s30, {BIG}")
        k("buffer_load_dword v20, v2, s[12:15], s30 offen")
    token_load(k)
    srd(k, 60, 44, 4608 * 1152)
    k("s_mov_b32 s67, 1")
    if EARLY != "f":
        k("s_waitcnt vmcnt(0)"); token_get(k, "c")
    k("s_branch L_p0_wait")
    k.label("L_p0_wo")
    if envs("B0", "2") in "12": k("s_barrier")
    token_load(k)
    k("s_sub_u32 s23, s23, 432\ns_cmp_lt_u32 s23, 54\ns_cbranch_scc1 L_p0_wo2")
    k("s_waitcnt vmcnt(0)")
    token_get(k, "d")
    k("s_branch L_p0_wait")
    k.label("L_p0_wo2")
    srd(k, 12, 46, 576 * 1152)
    sdiv(k, 27, 23, 3, 30)
    k("s_mul_i32 s30, s27, 3\ns_sub_u32 s25, s23, s30\ns_mul_i32 s25, s25, 3")
    k("v_lshrrev_b32 v7, 1, v4\nv_mul_u32_u24 v7, 18, v7\nv_and_b32 v8, 1, v4\nv_add_u32 v7, v7, v8")
    k("s_mul_i32 s30, s27, 36\ns_sub_u32 s31, s27, 16\ns_mul_i32 s31, s31, 288\ns_add_u32 s31, s31, 16")
    k(f"s_cmp_lt_u32 s27, 16\ns_cselect_b32 s30, s30, s31\ns_mov_b32 s28, {18*1152}\ns_mov_b32 s29, {8*1152}\ns_cselect_b32 s28, s28, {144*1152}\ns_cselect_b32 s29, s29, {72*1152}\ns_cselect_b64 vcc, -1, 0")
    k("s_mul_i32 s32, s30, 1152\ns_lshl_b32 s31, s25, 7\ns_add_u32 s32, s32, s31")
    k("v_cndmask_b32 v8, v7, v4, vcc\nv_mul_u32_u24 v6, 1152, v8\nv_lshl_add_u32 v6, v5, 4, v6")
    k("s_add_u32 s33, s32, s29\ns_add_u32 s34, s32, s28\ns_add_u32 s35, s34, s29")
    for u in range(3):
        for i in range(4): k(f"buffer_load_dwordx4 {park(u, i)}, v6, s[12:15], s{32+i} offen offset:{128*u} nt")
    for u in range(3):
        for c in range(4):
            k(f"s_lshl_b32 s30, s25, 1\ns_add_u32 s30, s30, {2*u + (c >> 1)}\ns_cmp_ge_u32 s30, 9\ns_cselect_b32 s31, 9, 0\ns_cselect_b32 s33, 432, 0\ns_sub_u32 s30, s30, s31")
            k("s_sub_u32 s31, s30, 1\ns_lshr_b32 s31, s31, 1\ns_cmp_lt_u32 s30, 3\ns_cselect_b32 s31, 0, s31\ns_cselect_b32 s34, 0, 2")
            k(f"s_mul_i32 s31, s31, 104\ns_lshl_b32 s30, s30, 1\ns_add_u32 s30, s30, s31\ns_sub_u32 s30, s30, s34\ns_add_u32 s30, s30, s33")
            k(f"s_mul_i32 s31, s27, 6\ns_add_u32 s30, s30, s31\ns_add_u32 s30, s30, {OFF_WO//KBY + (c & 1)}\ns_lshl_b32 s{72+4*u+c}, s30, 10")
    stage_addr(k)
    k("s_waitcnt vmcnt(0)")
    for n in range(5): pack_block(k, n, 3, lambda u, c: (f"s{72+4*u+c}", 0))
    token_get(k, "e")
    k(f"s_lshl_b32 s56, s23, 3\ns_add_u32 s56, s56, {FW}\ns_waitcnt vmcnt(0)")
    publish(k)
    k.label("L_p0_wait")
    stamp(k, 44)
    k.label("L_p0_fetch")
    wq_base(k)
    k("s_lshl_b32 s26, s20, 12\ns_add_u32 s25, s25, s26\ns_mov_b32 m0, s26\ns_barrier")
    for q in range(8):
        for c in range(4): k(f"buffer_load_dwordx4 v1, s[8:11], s25 offen offset:{c*1024} lds")
        k("s_add_u32 m0, m0, 16384\ns_add_u32 s25, s25, 16384")
    if EARLY == "f":
        k("s_cmp_eq_u32 s67, 0\ns_cbranch_scc1 L_layer")
        stage_addr(k)
        k("s_waitcnt vmcnt(32)")
        token_get(k, "c")
        for n in range(8): pack_block(k, n, 6)

def gemm_core(k, NTB, NS, loads, AHEAD, st0, tr, NBUF=2, wwait=None):
    ACC = 16; WB = ACC + 4 * NS * NTB
    pi = 0
    def take(n):
        nonlocal pi
        r = loads[pi:pi + n]; pi += len(r); return r
    nx = {}
    for f in loads: nx[f.tag] = nx.get(f.tag, 0) + 1
    for f in take(AHEAD): f.fn(k)
    if wwait: wwait(k)
    if tr: k("v_lshrrev_b32 v3, 1, v1\nv_add_u32 v2, 0x10000, v3")
    else: k("v_mov_b32 v3, v1\nv_add_u32 v2, 0x10000, v1")
    def rd(ks, sl):
        i = ks * NS + sl; r = WB + 4 * ((ks % NBUF) * NS + sl); a = f"v{3 if i < 64 else 2}"; o = (i % 64) * 1024
        if tr: return [lgl(f"ds_read_b64_tr_b16 v[{r}:{r+1}], {a} offset:{o}", ("r", ks)), lgl(f"ds_read_b64_tr_b16 v[{r+2}:{r+3}], {a} offset:{o+512}", ("r", ks))]
        return [lgl(f"ds_read_b128 v[{r}:{r+3}], {a} offset:{o}", ("r", ks))]
    for ks in range(NBUF - 1):
        for sl in range(NS):
            for f in rd(ks, sl): f.fn(k)
    for ks in range(18):
        while k.vmq.count(("x", ks)) < nx[("x", ks)]: take(1)[0].fn(k)
        k.wait_vm(("x", ks)); k.wait_lg(("r", ks))
        if ks == 0: stamp(k, st0)
        mf = []
        for sl in range(NS):
            for tb in range(NTB):
                a = ACC + 4 * (sl * NTB + tb); w = WB + 4 * ((ks % NBUF) * NS + sl); x = 4 * (ks * NTB + tb)
                mf.append(f"{MF} v[{a}:{a+3}], v[{w}:{w+3}], a[{x}:{x+3}], " + ("0" if ks == 0 else f"v[{a}:{a+3}]"))
        fill = [f for sl in range(NS) for f in rd(ks + NBUF - 1, sl)] if ks + NBUF - 1 < 18 else []
        if NBUF == 2 and envs("FRONT", "1") == "1":
            for j, f in enumerate(fill): f.before = j + 1
        outstanding = len(k.vmq) - k.vm_done
        interleave(k, mf, [fill, take(max(0, AHEAD + 2 - outstanding))], budget=8 if NTB == 2 else 12)
    assert pi == len(loads), (pi, len(loads))
def tl(s, tag, post="", cost=8):
    f = F(lambda k: (k.vm(s, tag), k(post) if post else None), cost); f.tag = tag; return f

def p1_addr(k):
    k("s_lshl_b32 s21, s18, 3\ns_and_b32 s22, s17, 7\ns_add_u32 s21, s21, s22")
    k("s_lshr_b32 s29, s17, 3")
    k(f"s_lshl_b32 s56, s21, 7\ns_add_u32 s56, s56, {FA}\nv_and_b32 v2, 15, v0\nv_lshlrev_b32 v2, 3, v2")
    k(f"s_lshl_b32 s26, s21, 2\ns_add_u32 s26, s26, s20")
    k(f"s_mul_i32 s23, s26, {36*KBY}\ns_add_u32 s23, s23, {OFF_XN}\ns_add_u32 s24, s23, {18*KBY}")
def p1_qkv(k):
    p1_addr(k)
    stamp(k, 0)
    k("s_cmp_lg_u32 s20, 0\ns_cbranch_scc1 L_pollx_a")
    if "a" in SP: spoll(k, "a", 16, wg=False)
    else: poll(k, "a", wg=False)
    k("s_barrier")
    stamp(k, 1)
    fresh(k)
    loads = [tl(f"buffer_load_dwordx4 a[{4*(2*ks+tb)}:{4*(2*ks+tb)+3}], v1, s[8:11], s{23+tb} offen offset:{(ks%4)*1024}{LD}", ("x", ks),
                f"s_add_u32 s{23+tb}, s{23+tb}, 4096" if ks % 4 == 3 else "") for ks in range(18) for tb in range(2)]
    T1K = int(envs("T1", "18"))
    if T1K < 18:
        nl = (18 - T1K) * 2
        k(f"v_lshrrev_b32 v4, 4, v1\nv_cmp_gt_u32 vcc, {nl}, v4\nv_lshlrev_b32 v4, 9, v4\nv_mov_b32 v5, {BIG}\ns_lshl_b32 s30, s29, 7\ns_add_u32 s30, s30, {T1K*1024}\nv_cndmask_b32 v4, v5, v4, vcc")
        k("s_add_u32 s31, s30, s24\ns_add_u32 s30, s30, s23")
        p = int(envs("T1P", "6"))
        loads[p:p] = [tl(f"buffer_load_dword v{5+tb}, v4, s[8:11], s{30+tb} offen{LD}", "touch") for tb in range(2)]
    AH = int(envs("AH1", "10"))
    def wwait(k):
        if EARLY == "f": k(f"s_cmp_eq_u32 s67, 0\ns_cbranch_scc1 2\ns_waitcnt vmcnt({AH + 24})\ns_branch 1")
        k(f"s_waitcnt vmcnt({AH})\ns_barrier")
    gemm_core(k, 2, 7, loads, AH, 2, False, wwait=wwait)
    stamp(k, 3)
    ACC = 16
    k("s_mul_i32 s28, s19, 27\ns_mul_i32 s31, s29, 7\ns_add_u32 s28, s28, s31")
    k("s_lshl_b32 s30, s28, 6\ns_add_u32 s30, s30, s26\ns_lshl_b32 s30, s30, 10\ns_add_u32 s30, s30, s53")
    k("s_mov_b32 s28, s31")
    k(f"s_lshl_b32 s56, s19, 11\ns_lshl_b32 s27, s21, 7\ns_add_u32 s56, s56, s27\ns_lshl_b32 s27, s29, 3\ns_add_u32 s56, s56, s27\ns_add_u32 s56, s56, {FB}")
    for sl in range(7):
        a = ACC + 8 * sl
        k(f"s_cmp_lt_u32 s28, {9 - sl}\ns_cselect_b32 s31, {fbits(18 ** -0.5 * LOG2E)}, 1.0")
        for i in range(8): k(f"v_mul_f32 v{a+i}, s31, v{a+i}")
        for i in range(4): k(f"v_cvt_pk_bf16_f32 v{a+i}, v{a+2*i}, v{a+2*i+1}")
        if sl == 6: k(f"s_cmp_eq_u32 s29, 3\ns_cselect_b32 s30, {BIG}, s30")
        k.vm(f"buffer_store_dwordx4 v[{a}:{a+3}], v1, s[8:11], s30 offen sc1")
        if sl < 6: k("s_add_u32 s30, s30, 65536")
    stamp(k, 4)
    signal(k)
    if EARLY in ("p0", "f"): publish_fp(k, FP)
    elif EARLY == "b": early_blocks(k)
    stamp(k, 5)

def p2_attn(k):
    k("s_lshl_b32 s21, s18, 3\ns_and_b32 s22, s17, 7\ns_add_u32 s21, s21, s22")
    k("s_lshr_b32 s48, s17, 3\ns_lshl_b32 s22, s19, 2\ns_add_u32 s22, s22, s48")
    k(f"s_cmp_lg_u32 s20, 0\ns_cbranch_scc1 L_pollx_w0\ns_cmp_lg_u32 s50, 0\ns_cbranch_scc1 L_pollx_w0\ns_mov_b32 s56, {FW}\nv_min_u32 v2, 53, v0\nv_lshlrev_b32 v2, 3, v2")
    poll(k, "w0", wg=False)
    k("v_and_b32 v3, 63, v0\nv_lshrrev_b32 v4, 4, v3")
    k("v_and_b32 v5, 1, v4\nv_lshlrev_b32 v5, 7, v5\nv_xor_b32 v5, v5, v1")
    k("s_mul_i32 s23, s20, 3\ns_lshl_b32 s24, s21, 2\ns_add_u32 s24, s24, s23\ns_sub_i32 s24, s24, 8")
    for c in range(3):
        k(f"s_cmp_lt_i32 s24, {-c}\ns_cselect_b32 s25, {BIG}, 0")
        k(f"v_add_u32 v{6+c}, s25, v1\nv_add_u32 v{9+c}, s25, v5")
    k(f"s_mul_i32 s49, s19, {27*65536}\ns_add_u32 s49, s49, s53")
    k("s_lshl_b32 s24, s24, 10\ns_add_u32 s27, s24, s49")
    k("s_lshl_b32 s25, s48, 17\ns_add_u32 s25, s25, s27")
    k("s_lshl_b32 s23, s23, 10")
    Q, M1, M2, ONE = 16, 32, 36, 40
    L8, LO, HI, BP, OBV, PKA = 44, 45, 46, 47, 12, 5
    k("s_and_b32 s29, s20, 1\ns_lshr_b32 s30, s20, 1")
    k("s_lshl_b32 s32, s21, 2\ns_lshl_b32 s33, s30, 1\ns_add_u32 s32, s32, s33")
    k("s_lshl_b32 s34, s32, 10\ns_add_u32 s34, s34, s49")
    k(f"s_lshl_b32 s33, s48, 1\ns_add_u32 s33, s33, s29\ns_lshl_b32 s33, s33, 16\ns_add_u32 s33, s33, s34\ns_add_u32 s34, s34, {8*65536}")
    k(f"v_and_b32 v12, 15, v3\nv_lshlrev_b32 v46, 2, v4\ns_mov_b32 s35, {fbits(-1e30)}\nv_mov_b32 v47, s35")
    for i in range(4):
        k(f"v_add_u32 v2, {i}, v46\nv_cmp_gt_u32 vcc, v2, v12\nv_mov_b32 v{ONE+i}, 0x3f803f80\ns_nop 0")
        k(f"v_cndmask_b32 v{M1+i}, v47, 0, vcc\nv_cndmask_b32 v{M2+i}, 0, v47, vcc")
    k(f"v_cmp_eq_u32 s[38:39], s48, v4\ns_lshl_b32 s36, s48, 6\nv_lshl_add_u32 v{BP}, v12, 2, s36")
    k("s_cmp_eq_u32 s29, 1\ns_cselect_b64 s[40:41], -1, 0")
    k("s_andn2_b64 s[42:43], s[38:39], s[40:41]\ns_and_b64 s[44:45], s[38:39], s[40:41]")
    k("s_lshl_b32 s36, s22, 1\ns_add_u32 s36, s36, s29")
    k(f"s_lshl_b32 s47, s32, 15\ns_lshl_b32 s37, s36, 9\ns_add_u32 s47, s47, s37\ns_add_u32 s47, s47, {OFF_OF}")
    k(f"s_lshl_b32 s46, s32, 12\ns_lshl_b32 s37, s36, 8\ns_add_u32 s46, s46, s37\ns_add_u32 s46, s46, {OFF_OB}")
    k("s_mul_i32 s36, s29, 12288\ns_lshl_b32 s37, s30, 11\ns_add_u32 s36, s36, s37\ns_add_u32 s37, s37, 24576")
    k("v_and_b32 v44, 3, v3\nv_lshrrev_b32 v48, 2, v3\nv_and_b32 v45, 1, v3\nv_lshlrev_b32 v45, 3, v45\nv_xor_b32 v48, v48, v45\nv_lshl_add_u32 v48, v44, 4, v48\nv_lshlrev_b32 v48, 4, v48")
    k(f"v_lshrrev_b32 v{L8}, 1, v1\nv_mov_b32 v{LO}, {fbits(2.0**-30)}\nv_mov_b32 v{HI}, {fbits(2.0**30)}\ns_mov_b64 s[64:65], {-1 if FORCE_EXACT else 0}")
    k(f"s_lshr_b32 s58, s17, 2\ns_mul_i32 s58, s58, {108*KBY}\ns_add_u32 s58, s58, {OFF_WO}\ns_lshl_b32 s59, s20, 12\ns_add_u32 s58, s58, s59")
    k("v_bfe_u32 v2, v0, 2, 2\nv_min_u32 v2, 2, v2\nv_sub_u32 v2, s21, v2\nv_max_i32 v2, 0, v2\nv_lshlrev_b32 v2, 7, v2\nv_and_b32 v49, 3, v0\nv_lshl_add_u32 v2, v49, 3, v2")
    k(f"s_lshl_b32 s56, s19, 11\ns_add_u32 s56, s56, {FB}")
    poll(k, "b")
    stamp(k, 6)
    fresh(k)
    blocks = [(25, 9), (25, 10), (27, 17), (25, 18), (25, 19), (27, 26)]
    def dma(b):
        sb, nb = blocks[b]
        k(f"s_add_u32 m0, s23, {b*12288}\ns_add_u32 s28, s{sb}, {nb*65536}")
        for c in range(3):
            k.vm(f"buffer_load_dwordx4 v{(6 if b < 3 else 9)+c}, s[8:11], s28 offen offset:{c*1024} lds", ("kv", b // 3))
    for b in range(3): dma(b)
    for i in range(4):
        off = (i >> 1) * 1024 + (i & 1) * 8
        k.vm(f"buffer_load_dwordx2 v[{Q+4*i}:{Q+4*i+1}], v1, s[8:11], s33 offen offset:{off}", "q")
        k.vm(f"buffer_load_dwordx2 v[{Q+4*i+2}:{Q+4*i+3}], v1, s[8:11], s34 offen offset:{off}", "q")
    for b in range(3, 6): dma(b)
    k("v_add_u32 v6, s36, v1\nv_add_u32 v7, s37, v1")
    k("s_add_u32 s36, s36, 36864\ns_add_u32 s37, s37, 36864\nv_add_u32 v8, s36, v48\nv_add_u32 v9, s37, v48")
    k(f"s_lshl_b32 s56, s21, 7\ns_lshl_b32 s27, s22, 3\ns_add_u32 s56, s56, s27\ns_add_u32 s56, s56, {FC}")
    k("v_bfe_u32 v10, v0, 3, 3\nv_mul_u32_u24 v10, 1152, v10\nv_and_b32 v11, 7, v0\nv_lshl_add_u32 v10, v11, 4, v10\nv_add_u32 v11, 9216, v10")
    k("s_mov_b32 s36, s47\nv_lshrrev_b32 v5, 2, v1")
    KR, VR = 0, 80
    k.wait_vm("q")
    k("s_barrier")
    stamp(k, 7)
    for i in range(4):
        k(f"v_cndmask_b32 v{Q+4*i+2}, 0, v{Q+4*i+2}, s[42:43]\nv_cndmask_b32 v{Q+4*i+3}, 0, v{Q+4*i+3}, s[44:45]")
    S0 = 48; OA = S0 + 144; TM = OA + 24
    def run(mf, valu, gap_first=0, frac=0.9):
        tot = sum(f.cost for f in valu); acc = 0; mi = 0
        for f in valu:
            while mi < len(mf) and acc >= gap_first + (tot - gap_first) * mi / max(len(mf), 1) * frac:
                mf[mi](k); mi += 1
            f.fn(k); acc += f.cost
        while mi < len(mf): mf[mi](k); mi += 1
    def epi(i, check):
        o = OA + 12 * (i & 1); t = TM + 2
        L = [line(f"v_rcp_f32 v{t}, v{o+8}", 8),
             line(f"v_cndmask_b32 v{o+4}, v{o+4}, v{o+6}, s[40:41]"), line(f"v_cndmask_b32 v{o+5}, v{o+5}, v{o+7}, s[40:41]")]
        if check:
            L += [line(f"v_med3_f32 v{o+9}, v{o+8}, v{LO}, v{HI}"), line(f"v_sub_f32 v{o+9}, v{o+9}, v{o+8}")]
            L += [line(f"v_fma_f32 v{o+9}, v{o+j}, 0, v{o+9}") for j in range(6)]
            L += [line(f"v_cmp_neq_f32 vcc, 0, v{o+9}")]
        for j in range(6): L.append(line(f"v_mul_f32 v{o+j}, v{o+j}, v{t}"))
        if check: L.append(line("s_or_b64 s[64:65], s[64:65], vcc"))
        for j in (2, 0, 1): L.append(line(f"v_cvt_pk_bf16_f32 v{o+(j if j < 2 else 6)}, v{o+2*j}, v{o+2*j+1}"))
        L.append(lgl(f"ds_bpermute_b32 v{TM+3}, v{BP}, v{o+6}", ("bp", i)))
        L.append(vml(f"buffer_store_dwordx2 v[{o}:{o+1}], v{L8}, s[8:11], s47 offen sc1"))
        L.append(line(f"s_add_u32 s47, s47, 16384"))
        L2 = [line(f"s_mov_b32 vcc_lo, {(0xffff, 0xffff0000, 0, 0)[i]}\ns_mov_b32 vcc_hi, {(0, 0, 0xffff, 0xffff0000)[i]}", 8),
              F(lambda k: (k.wait_lg(("bp", i)), k(f"v_cndmask_b32 v{OBV}, v{OBV}, v{TM+3}, vcc")), 8)]
        if i == 3: L2.append(vml(f"buffer_store_dword v{OBV}, v5, s[8:11], s46 offen sc1"))
        return (L, L2) if check else L + L2
    def variant(lim, fast, first):
        nm = f"{'f' if fast else 'e'}{'' if first else 'r'}{lim}"
        k.label(f"L_attn_{nm}")
        k.lgq = []; k.lg_done = 0
        tiles = lambda i: list(range(max(i, lim), i + 17))
        pairs = lambda i: list(range(max(i, lim) >> 1, ((i + 16) >> 1) + 1))
        kreads, vreads, extra = [], [], []
        if first:
            for kt in range(lim, 20):
                off = (kt >> 1) * 1024 + (kt & 1) * 8
                kreads += [lgl(f"ds_read_b64 a[{KR+4*kt}:{KR+4*kt+1}], v6 offset:{off}", ("k", kt)), lgl(f"ds_read_b64 a[{KR+4*kt+2}:{KR+4*kt+3}], v7 offset:{off}", ("k", kt))]
            vreads = [line("s_waitcnt vmcnt(0)\ns_barrier", 8)]
            for p in range(lim // 2, 10):
                for b in range(2):
                    for hf in range(2):
                        r = VR + 8 * p + 4 * b + 2 * hf
                        vreads.append(lgl(f"ds_read_b64_tr_b16 a[{r}:{r+1}], v{8+b} offset:{p*1024 + hf*8}", ("v", p)))
            wo = [lambda k: (k.wait_lg_all(), k("s_mov_b32 m0, s59\ns_barrier"))]
            for q in range(7):
                for c in range(4):
                    wo.append(lambda k, c=c: k(f"buffer_load_dwordx4 v1, s[8:11], s58 offen offset:{c*1024} lds" + ("\ns_add_u32 m0, m0, 16384\ns_add_u32 s58, s58, 16384" if c == 3 else "")))
            def pkl(u):
                def f(k):
                    k(f"s_cmp_eq_u32 s67, 0\ns_cbranch_scc1 L_pk_{nm}_{u}")
                    for i in range(4): k(f"buffer_load_dwordx4 {lpark(u, i)}, v{10 + (i & 1)}, s[60:63], s{72 + 2*u + (i >> 1)} offen nt")
                    k.label(f"L_pk_{nm}_{u}")
                return f
            extra = [pkl(0), pkl(1), pkl(2)] + wo
            if envs("NOWO", ""): extra = extra[:4]
            if EARLY == "w":
                def pkb(n):
                    def f(k):
                        k(f"s_cmp_eq_u32 s67, 0\ns_cbranch_scc1 L_pb_{nm}_{n}")
                        if n == 0: stage_addr(k)
                        pack_block(k, n, 6)
                        k.label(f"L_pb_{nm}_{n}")
                    return f
                extra = [pkl(0), pkl(1), pkl(2), pkb(0), pkb(1), wo[0]]
                for n in range(6): extra += [pkb(2 + n)] + wo[1 + 28 * n // 6: 1 + 28 * (n + 1) // 6]
        def qk1(i, kt, s):
            c = f"v[{M2}:{M2+3}]" if kt == i + 16 else f"v[{M1}:{M1+3}]" if kt == i else "0"
            def f(k):
                if first: k.wait_lg(("k", kt))
                k(f"{MF} v[{s}:{s+3}], a[{KR+4*kt}:{KR+4*kt+3}], v[{Q+4*i}:{Q+4*i+3}], {c}")
            return f
        def pv1(i, p, b, s):
            o = OA + 12 * (i & 1) + 4 * b
            A = f"v[{ONE}:{ONE+3}]" if b == 2 else f"a[{VR+8*p+4*b}:{VR+8*p+4*b+3}]"
            def f(k):
                if first: k.wait_lg(("v", p))
                k(f"{MF} v[{o}:{o+3}], {A}, v[{s}:{s+3}], " + ("0" if p == pairs(i)[0] else f"v[{o}:{o+3}]"))
            return f
        if fast:
            steps = [(i, p) for i in range(4) for p in pairs(i)]
            QL, PL = 2, int(envs("PL", "7")); NB = QL + PL + 1; SPC = int(envs("SP", "14"))
            buf = lambda s: S0 + 8 * (s % NB)
            def qks(s):
                if s >= len(steps): return []
                i, p = steps[s]
                return [qk1(i, 2 * p + hf, buf(s) + 4 * hf) for hf in range(2) if 2 * p + hf in tiles(i)]
            def pvs(s):
                if not 0 <= s < len(steps): return []
                return [pv1(*steps[s], b, buf(s)) for b in range(3)]
            def exps(s):
                if s >= len(steps): return []
                i, p = steps[s]; b = buf(s); va, vb = 2 * p in tiles(i), 2 * p + 1 in tiles(i)
                E = lambda r: line(f"v_exp_f32 v{r}, v{r}", 8); C = lambda d, r: line(f"v_cvt_pk_bf16_f32 v{d}, v{r}, v{r+1}")
                Z = lambda d: line(f"v_mov_b32 v{d}, 0")
                if va and vb: return [E(b), E(b+1), E(b+2), E(b+3), E(b+4), C(b, b), E(b+5), C(b+1, b+2), E(b+6), E(b+7), C(b+2, b+4), C(b+3, b+6)]
                if va: return [E(b), E(b+1), E(b+2), E(b+3), C(b, b), C(b+1, b+2), Z(b+2), Z(b+3)]
                return [E(b+4), E(b+5), E(b+6), E(b+7), Z(b), Z(b+1), C(b+2, b+4), C(b+3, b+6)]
            n0 = min(12, len(kreads))
            for f in kreads[:n0]: f.fn(k)
            side = [f.fn for f in kreads[n0:]]; nk = len(side)
            side = side + [f.fn for f in vreads]
            for s in range(QL):
                for m in qks(s):
                    m(k)
                    for _ in range(2):
                        if side and nk > 0: side.pop(0)(k); nk -= 1
            k("s_nop 4")
            last = {i: max(s for s, (ii, p) in enumerate(steps) if ii == i) for i in range(4)}
            pend = []; pend2 = []; pvp = 0; s = 0; nsteps = max(len(steps), PL) + 2
            while pvp < len(steps):
                if s in [last[i] + 1 for i in range(3)]: stamp(k, 8 + [last[i] + 1 for i in range(3)].index(s))
                todo = []
                while s >= PL and pvp < min(s, len(steps)) and len(todo) < 2 and not (todo and todo[-1] in last.values()):
                    todo.append(pvp); pvp += 1
                mf = [m for t in todo for m in pvs(t)] + qks(s + QL)
                sd = []
                while side and (len(sd) < SPC): sd.append(side.pop(0))
                if not side and not sd and extra:
                    q = -(-len(extra) // max(1, nsteps - 2 - s)); sd = extra[:q]; extra = extra[q:]
                va = exps(s)
                if pend and len(va) < 12: va = va + [line("s_nop 7", 32)]
                va = va + pend2 + pend; pend2 = []
                if pend: pend2 = later
                pend = []
                for i in range(4):
                    if last[i] in todo: pend, later = epi(i, True)
                mix = []
                a, b2 = list(mf), list(sd)
                while a or b2:
                    if b2:
                        for _ in range(-(-len(b2) // max(1, len(a)))): mix.append(b2.pop(0))
                    if a: mix.append(a.pop(0))
                if not va: va = [line("s_nop 1")]
                run(mix, va, 4, 0.85)
                s += 1
            for f in extra: f(k)
            assert not side
            for f in pend2: f.fn(k)
            k("s_nop 7")
            for f in pend + later: f.fn(k)
            k("s_cmp_eq_u64 s[64:65], 0\ns_cbranch_scc1 L_attn_done")
            k(f"s_waitcnt vmcnt(0)\ns_mov_b32 s47, s36\ns_branch L_attn_er{lim}")
            return
        sreg = lambda i, kt: S0 + 72 * (i & 1) + 4 * (kt - 2 * (i >> 1))
        qk = lambda i: [qk1(i, kt, sreg(i, kt)) for kt in tiles(i)]
        pv = lambda i: [pv1(i, p, b, sreg(i, 2 * p)) for b in range(3) for p in pairs(i)]
        def softmax(i):
            L = []
            regs = [sreg(i, kt) + j for kt in tiles(i) for j in range(4)]
            m = TM; t = TM + 1
            ch = [regs[0::2], regs[1::2]]
            for c in range(2): L.append(line(f"v_max_f32 v{m+c}, v{ch[c][0]}, v{ch[c][1]}"))
            for j in range(2, len(ch[0]), 2):
                for c in range(2): L.append(line(f"v_max3_f32 v{m+c}, v{m+c}, v{ch[c][j]}, v{ch[c][j+1]}"))
            L.append(line(f"v_max_f32 v{m}, v{m}, v{t}"))
            for sw in ("v_permlane16_swap_b32", "v_permlane32_swap_b32"):
                L.append(line(f"v_mov_b32 v{t}, v{m}\ns_nop 1\n{sw} v{m}, v{t}\nv_max_f32 v{m}, v{m}, v{t}", 16))
            for p in pairs(i):
                base = sreg(i, 2 * p)
                for hf in range(2):
                    kt = 2 * p + hf; s = sreg(i, kt)
                    if kt in tiles(i):
                        for j in range(4): L.append(line(f"v_sub_f32 v{s+j}, v{s+j}, v{m}"))
                        for j in range(4): L.append(line(f"v_exp_f32 v{s+j}, v{s+j}", 8))
                for hf in range(2):
                    kt = 2 * p + hf; s = sreg(i, kt)
                    for j in range(2):
                        if kt in tiles(i): L.append(line(f"v_cvt_pk_bf16_f32 v{base+2*hf+j}, v{s+2*j}, v{s+2*j+1}"))
                        else: L.append(line(f"v_mov_b32 v{base+2*hf+j}, 0"))
            return L
        for f in kreads: f.fn(k)
        for m in qk(0): m(k)
        k("s_nop 7")
        for i in range(4):
            mf = (pv(i - 1) if i >= 1 else []) + (qk(i + 1) if i < 3 else [])
            if i == 0: mf = mf + [f.fn for f in vreads]
            if i == 1: mf = extra + mf
            va = softmax(i)
            if i >= 2: va = epi(i - 2, False) + va
            run(mf, va, 8 if i else 0)
            k("s_nop 1")
        run(pv(3), epi(2, False))
        k("s_nop 7")
        for f in epi(3, False): f.fn(k)
        k("s_branch L_attn_done")
    v = "f" if FAST else "e"
    for lim in (16, 12, 8, 4): k(f"s_cmp_eq_u32 s32, {(16 - lim) // 2}\ns_cbranch_scc1 L_attn_{v}{lim}")
    for lim in (0, 4, 8, 12, 16): variant(lim, FAST, True)
    if FAST:
        for lim in (0, 4, 8, 12, 16): variant(lim, False, False)
    k.label("L_attn_done")
    stamp(k, 12)
    signal(k)
    if EARLY not in ("p0", "f"): publish_fp(k, FP)
    late_blocks(k)
    stamp(k, 13)

AG, AU, T1, T2, XV, RING = 16, 32, 48, 64, 80, 112
WQR = [RING + 4 * i for i in range(21, 35)] + [RING + 4 * i for i in range(6)] + [AU + 4 * i for i in range(4)] + [RING + 4 * i for i in range(6, 14)]
RESID = RING + 4 * 18
G = 3; LEAD = 36 - G
def wload(p):
    r = RING + 4 * (p % 36)
    if p >= 486: return []
    s = f"buffer_load_dwordx4 v[{r}:{r+3}], v1, s[12:15], s25 offen offset:{(p%4)*1024}"
    return [vml(s, ("w", p), cost=int(envs("LC", "8")))] + ([line("s_add_u32 s25, s25, 4096")] if p % 4 == 3 else [])

def p3_wo(k):
    NS = 6; ACC = 16; NB3 = int(envs('NB3', '3')); RES = ACC + 24 + 24 * NB3
    k("s_lshl_b32 s21, s16, 2\ns_and_b32 s22, s17, 3\ns_add_u32 s26, s21, s22")
    k("s_lshr_b32 s22, s17, 2")
    k("s_lshl_b32 s21, s26, 2\ns_add_u32 s21, s21, s20")
    k(f"s_lshl_b32 s23, s21, 14\ns_add_u32 s23, s23, {OFF_OF}")
    k(f"s_lshl_b32 s24, s26, 13\ns_lshl_b32 s30, s20, 6\ns_add_u32 s24, s24, s30\ns_add_u32 s24, s24, {OFF_OB}")
    k("s_lshr_b32 s28, s22, 2\ns_mul_i32 s28, s28, 9\ns_and_b32 s29, s22, 3\ns_lshl_b32 s30, s29, 1\ns_add_u32 s30, s30, 1\ns_cmp_eq_u32 s29, 0\ns_cselect_b32 s30, 0, s30\ns_add_u32 s28, s28, s30")
    k(f"s_mul_i32 s27, s21, 18\ns_add_u32 s27, s27, s28\ns_lshl_b32 s27, s27, 10\ns_add_u32 s40, s27, {OFF_XF}\ns_add_u32 s41, s27, {OFF_X1}")
    k("v_lshrrev_b32 v10, 1, v1\nv_and_b32 v11, 15, v0\nv_lshlrev_b32 v11, 2, v11\nv_bfe_u32 v12, v0, 4, 2\nv_lshl_add_u32 v11, v12, 9, v11")
    k(f"s_lshr_b32 s56, s26, 1\ns_lshl_b32 s56, s56, 7\ns_add_u32 s56, s56, {FC}\nv_and_b32 v2, 15, v0\nv_lshlrev_b32 v2, 3, v2")
    poll(k, "c")
    stamp(k, 14)
    fresh(k)
    loads = []
    for ks in range(16):
        for h in range(2):
            loads.append(tl(f"buffer_load_dwordx2 a[{4*ks+2*h}:{4*ks+2*h+1}], v10, s[8:11], s23 offen offset:{(ks%4)*1024 + 512*h}{LD}", ("x", ks),
                            "s_add_u32 s23, s23, 4096" if ks % 4 == 3 and h else "", 4))
    for q in range(2):
        for j in range(4):
            loads.append(tl(f"buffer_load_dword a{64+4*q+j}, v11, s[8:11], s24 offen offset:{(j>>1)*2048 + (j&1)*256}{LD}", ("x", 16 + q),
                            "s_add_u32 s24, s24, 4096" if j == 3 else "", 4))
    for pr in range(3): loads.append(tl(f"buffer_load_dwordx4 v[{RES+4*pr}:{RES+4*pr+3}], v1, s[8:11], s40 offen offset:{pr*1024}{LD}", "res"))
    if envs("T3", "0") == "1":
        k(f"v_lshlrev_b32 v4, 3, v1\nv_cmp_gt_u32 vcc, 256, v1\nv_mov_b32 v5, {BIG}\ns_lshl_b32 s30, s22, 11\ns_add_u32 s30, s30, s23\nv_cndmask_b32 v4, v5, v4, vcc")
        k.vm(f"buffer_load_dword v5, v4, s[8:11], s30 offen{LD}", "touch")
    gemm_core(k, 1, NS, loads, int(envs("AH3", "14")), 15, False, NB3)
    k.wait_vm("res")
    stamp(k, 16)
    k("s_mov_b32 s31, 0xffff0000\ns_mov_b32 s32, 0x3f803f80\nv_mov_b32 v8, 0\nv_mov_b32 v9, 0\nv_mov_b32 v10, 0\ns_add_u32 s33, s100, s50")
    k(f"v_cmp_gt_u32 vcc, 256, v1\nv_mov_b32 v7, {BIG}\nv_mov_b32 v11, s33\ns_cmp_lg_u32 s29, 0\ns_cbranch_scc1 L_p3_two")
    for pr in (2, 0, 1):
        for h in range(4):
            a = ACC + 8 * pr + 2 * h; r = RES + 4 * pr + h
            k(f"v_lshlrev_b32 v4, 16, v{r}\nv_and_b32 v5, s31, v{r}\nv_add_f32 v4, v4, v{a}\nv_add_f32 v5, v5, v{a+1}\nv_cvt_pk_bf16_f32 v{r}, v4, v5")
        k(f"buffer_store_dwordx4 v[{RES+4*pr}:{RES+4*pr+3}], v1, s[8:11], s41 offen offset:{pr*1024} sc1")
        for h in range(4): k(f"v_dot2c_f32_bf16 v8, s32, v{RES+4*pr+h}\nv_dot2c_f32_bf16 v9, v{RES+4*pr+h}, v{RES+4*pr+h}")
        for h in (0, 2): k(f"v_bitop3_b32 v10, v10, v{RES+4*pr+h}, v{RES+4*pr+h+1} bitop3:0x96")
        if pr == 2: k.label("L_p3_two")
    k(f"v_cndmask_b32 v7, v7, v1, vcc\ns_lshl_b32 s30, s21, 11\ns_lshl_b32 s31, s22, 8\ns_add_u32 s30, s30, s31\ns_add_u32 s30, s30, {OFF_STAT}")
    for sw in ("v_permlane16_swap_b32", "v_permlane32_swap_b32"):
        k(f"v_mov_b32 v4, v10\nv_mov_b32 v5, v8\nv_mov_b32 v6, v9\n{sw} v10, v4\n{sw} v8, v5\n{sw} v9, v6\nv_xor_b32 v10, v10, v4\nv_add_f32 v8, v8, v5\nv_add_f32 v9, v9, v6")
    k("v_bitop3_b32 v10, v10, v8, v9 bitop3:0x96")
    k.vm(f"buffer_store_dwordx4 v[8:11], v7, s[8:11], s30 offen sc1")
    stamp(k, 17)
    if not CKD:
        k(f"s_lshl_b32 s56, s26, 7\ns_lshl_b32 s27, s22, 3\ns_add_u32 s56, s56, s27\ns_add_u32 s56, s56, {FD}")
        signal(k)
    stamp(k, 18)

def p4_ffn(k):
    xreg = lambda ks, tb: (ar(4 * (ks * 4 + tb), 4) if ks < 16 else vr(XV + 4 * (ks * 4 + tb - 64), 4))
    if envs("FMAP", "2") == "2":
        k("s_lshl_b32 s21, s19, 1\ns_and_b32 s22, s17, 1\ns_add_u32 s21, s21, s22")
        k("s_lshl_b32 s22, s18, 4\ns_lshr_b32 s23, s17, 1\ns_add_u32 s22, s22, s23")
    else:
        k("s_and_b32 s21, s16, 1\ns_lshl_b32 s21, s21, 2\ns_and_b32 s22, s17, 3\ns_add_u32 s21, s21, s22")
        k("s_lshr_b32 s22, s16, 1\ns_lshl_b32 s22, s22, 3\ns_lshr_b32 s23, s17, 2\ns_add_u32 s22, s22, s23")
    k(f"s_lshl_b32 s24, s21, 2\ns_add_u32 s24, s24, s20\ns_mul_i32 s24, s24, {486*KBY}\ns_add_u32 s24, s24, {OFF_WF}")
    k(f"s_add_u32 s12, s4, s24\ns_addc_u32 s13, s5, 0\ns_mov_b32 s14, {486*KBY}\ns_mov_b32 s15, 0x00020000\ns_mov_b32 s25, 0")
    poll_fp(k, "p", FP)
    fresh(k)
    PRE = int(envs("PRE", "24")); FILL = int(envs("FILL", "27")); MID = (FILL + LEAD) // 2
    for p in range(PRE):
        for f in wload(p): f.fn(k)
    k(f"s_lshl_b32 s23, s22, 2\ns_add_u32 s23, s23, s20\ns_lshl_b32 s44, s23, 11\ns_add_u32 s44, s44, {OFF_STAT}\ns_mul_i32 s45, s23, {18*KBY}\ns_add_u32 s45, s45, {OFF_X1}")
    ln_consts(k)
    k("v_and_b32 v12, 15, v0\nv_lshlrev_b32 v12, 4, v12\nv_bfe_u32 v5, v0, 4, 2\nv_lshl_add_u32 v12, v5, 9, v12\ns_add_u32 s46, s100, s50")
    X = 16; T = 88; CK = T + 12
    if not CKD:
        k(f"s_lshl_b32 s56, s22, 7\ns_add_u32 s56, s56, {FD}\nv_and_b32 v2, 7, v0\nv_lshlrev_b32 v2, 3, v2")
        poll(k, "d")
    k(f"s_mov_b32 s57, {SPIN}\ns_lshl_b32 s26, s20, 10\nv_add_u32 v2, s26, v1\nv_add_u32 v3, 0x10000, v2\ns_mov_b32 s47, {1 if FORCE_RETRY else 0}")
    if CKD:
        k(f"s_cmp_lg_u32 s20, 0\ns_cbranch_scc1 L_p4_bar\nv_lshlrev_b32 v4, 4, v1\nv_and_b32 v4, 0x1fff, v4")
        k.label("L_p4_in")
        k(f"buffer_load_dword v5, v4, s[8:11], s44 offen offset:12{LD}\ns_sub_u32 s57, s57, 1\ns_waitcnt vmcnt(0)\nv_cmp_eq_u32 vcc, s46, v5\ns_cmp_eq_u32 s57, 0\ns_cbranch_scc1 L_p4_bar")
        k("s_cmp_eq_u64 vcc, -1\ns_cbranch_scc0 L_p4_in")
        k.label("L_p4_bar")
        k("s_barrier")
    k("v_mov_b32 v254, s100\nv_mov_b32 v255, s101")
    publish_fp(k, FP2)
    k(f"s_mov_b32 s30, 0x3f803f80\ns_lshl_b32 s56, s21, 8\ns_add_u32 s56, s56, {FP2}\nv_and_b32 v6, 31, v0\nv_min_u32 v6, 26, v6\nv_lshlrev_b32 v6, 3, v6")
    k.label("L_p4_go")
    if STAMP: k("v_readlane_b32 s90, v15, 46\ns_add_u32 s90, s90, 1\ns_nop 1\nv_writelane_b32 v15, s90, 46")
    k(f"buffer_load_dwordx4 v[{T}:{T+3}], v12, s[8:11], s44 offen{LD}\nbuffer_load_dwordx4 v[{T+4}:{T+7}], v12, s[8:11], s44 offen offset:256{LD}")
    stamp(k, 19)
    k.vmq.append("st")
    k("s_mov_b32 s23, s45")
    for ks in range(18):
        k.vm(f"buffer_load_dwordx4 v[{X+4*ks}:{X+4*ks+3}], v1, s[8:11], s23 offen offset:{(ks%4)*1024}{LD}", ("x", ks))
        if ks % 4 == 3: k("s_add_u32 s23, s23, 4096")
    k.wait_vm("st")
    k(f"v_bitop3_b32 v{CK}, v{T}, v{T+1}, v{T+2} bitop3:0x96\nv_bitop3_b32 v{T+2}, v{T+4}, v{T+5}, v{T+6} bitop3:0x96\nv_xor_b32 v{CK}, v{CK}, v{T+2}")
    k(f"v_xor_b32 v{CK+1}, s46, v{T+3}\nv_bitop3_b32 v{CK+1}, v{CK+1}, v{T+7}, s46 bitop3:0xf6")
    k(f"v_add_f32 v{T}, v{T}, v{T+4}\nv_add_f32 v{T+1}, v{T+1}, v{T+5}")
    red_rows(k, T, T + 2)
    k(f"v_mul_f32 v{T}, s31, v{T}\nv_sub_f32 v{T+3}, 0, v{T}\ns_mov_b32 s26, 0x00003f80\ns_mov_b32 s27, 0x3f800000")
    kk = KB(); red_rows(kk, T + 1, T + 2)
    kk(f"v_mul_f32 v{T+1}, s31, v{T+1}\nv_fma_f32 v{T+1}, -v{T}, v{T}, v{T+1}\nv_max_f32 v{T+1}, 0, v{T+1}\nv_add_f32 v{T+1}, {fbits(1e-5)}, v{T+1}")
    kk(f"v_and_b32 v4, 15, v0\nv_lshlrev_b32 v4, 2, v4\nv_add_u32 v4, {144*KBY}, v4\ns_lshl_b32 s33, s20, 6\nv_add_u32 v5, s33, v4")
    for ks in range(18):
        k.wait_vm(("x", ks))
        for i in range(4): k(f"v_dot2_f32_bf16 v{T+4+2*i}, v{X+4*ks+i}, s26, v{T+3}\nv_dot2_f32_bf16 v{T+5+2*i}, v{X+4*ks+i}, s27, v{T+3}")
        if CKD:
            for i in (0, 2): k(f"v_bitop3_b32 v{CK}, v{CK}, v{X+4*ks+i}, v{X+4*ks+i+1} bitop3:0x96")
        for i in range(4): k(f"v_cvt_pk_bf16_f32 v{X+4*ks+i}, v{T+4+2*i}, v{T+5+2*i}")
        k.lg(f"ds_write_b128 v{2 if ks < 16 else 3}, v[{X+4*ks}:{X+4*ks+3}] offset:{(ks % 16) * 4096}")
        if ks == 0:
            k.lines += kk.lines
            k.lg(f"ds_write_b32 v5, v{T+1}")
        if ks == 12: k.vm(f"buffer_load_dwordx2 v[{T+14}:{T+15}], v6, s[8:11], s56 offen sc1", "fp2")
    if CKD:
        red_rows(k, CK, T + 2, "v_xor_b32")
        k(f"v_or_b32 v{CK}, v{CK}, v{CK+1}\nv_cmp_ne_u32 vcc, s47, v{CK}\ns_mov_b32 s47, 0\ns_cmp_eq_u32 s57, 0\ns_cbranch_scc1 L_p4_ok\ns_sub_u32 s57, s57, 1\ns_cmp_eq_u64 vcc, 0\ns_cbranch_scc0 L_p4_go")
        k.label("L_p4_ok")
    for p in range(PRE, FILL):
        for f in wload(p): f.fn(k)
    k("v_mov_b32 v2, v1\nv_add_u32 v3, 0x10000, v1")
    HB = 72 * KBY
    k(f"s_mov_b32 s33, {fbits(-LOG2E)}")
    k(f"s_lshl_b32 s29, s20, 14\ns_add_u32 s29, s29, {HB}\ns_mov_b32 s28, 8")
    k("s_mov_b32 s34, 7")
    stamp(k, 20)
    k.wait_lg_all(); k("s_barrier")
    fp2 = [F(lambda k: (k.wait_vm("fp2"), k(f"v_cmp_eq_u64 s[48:49], s[100:101], v[{T+14}:{T+15}]")), 8, after=2, before=6)]

    for tb in range(4): k.lg(f"ds_read_b32 v{9+tb}, v4 offset:{64*tb}", "var")
    consts = [F(lambda k: k.wait_lg("var"), 4, after=4)]
    consts += [line(f"v_rsq_f32 v{5+tb}, v{9+tb}", 8) for tb in range(4)] + [line(f"v_sqrt_f32 v{9+tb}, v{9+tb}", 8) for tb in range(4)]
    consts += [line(f"v_mul_f32 v{5+j}, s33, v{5+j}") for j in range(8)]
    def xreads(lo, hi):
        return [lgl(f"ds_read_b128 {xreg(ks, tb)}, v{2 if ks < 16 else 3} offset:{((ks * 4 + tb) % 64) * 1024}", ("xr", ks)) for ks in range(lo, hi) for tb in range(4)]
    def phase(p0, acc, streams, xr=None, pre_extra=None, budget=8, xwait=None, lead=(LEAD, LEAD)):
        mf = []; pre = {}; loads = []
        for g in range(18 // G):
            def p(k, g=g):
                if pre_extra and g in pre_extra: pre_extra[g](k)
                k.wait_vm(("w", p0 + g * G + G - 1), force=True)
                if xr is not None or xwait: k.wait_lg(("xr", g * G + G - 1))
            pre[len(mf)] = p
            n = 18 + lead[1] - lead[0]
            for q in range(p0 + lead[0] + n * g // 6, p0 + lead[0] + n * (g + 1) // 6):
                assert q < p0 + g * G + 36
                for f in wload(q):
                    f.after = len(mf); f.before = len(mf) + 4 * G; loads.append(f)
            for tb in range(4):
                for j in range(G):
                    ks = g * G + j; r = RING + 4 * ((p0 + ks) % 36); a = acc + 4 * tb
                    mf.append(f"{MF} v[{a}:{a+3}], v[{r}:{r+3}], {xreg(ks, tb)}, " + ("0" if ks == 0 else f"v[{a}:{a+3}]"))
        st = [loads] + streams
        if xr:
            for j, f in enumerate(xr):
                g = j // (4 * G); f.after = max(f.after, 4 * G * g - 4); f.before = 4 * G * (g + 1) - 3
            st.append(xr)
        interleave(k, mf, st, pre=pre, budget=budget)
    def finish():
        L = [line("v_add_u32 v4, s29, v1")]
        for tb in range(4):
            for i in range(4): L.append(line(f"v_mul_f32 v{T1+4*tb+i}, v{T1+4*tb+i}, v{AU+4*tb+i}", after=3))
            for i in range(4): L.append(line(f"v_mul_f32 v{T1+4*tb+i}, v{T1+4*tb+i}, v{T2+4*tb+i}"))
            for i in range(2): L.append(line(f"v_cvt_pk_bf16_f32 v{T2+4*tb+i}, v{T1+4*tb+2*i}, v{T1+4*tb+2*i+1}"))
            L.append(lgl(f"ds_write_b64 v4, v[{T2+4*tb}:{T2+4*tb+1}] offset:{tb*1024}", "hw"))
        L += [line("s_add_u32 s29, s29, s28"), line("s_sub_u32 s28, 4096, s28"), line("s_sub_u32 s34, s34, 1")]
        return L
    def expo():
        L = []
        for tb in range(4):
            for i in range(4): L.append(line(f"v_mul_f32 v{T1+4*tb+i}, v{5+tb}, v{AG+4*tb+i}", after=2))
            for i in range(4): L.append(line(f"v_exp_f32 v{T2+4*tb+i}, v{T1+4*tb+i}", 8))
            for i in range(4): L.append(line(f"v_fma_f32 v{T2+4*tb+i}, v{T2+4*tb+i}, v{9+tb}, v{9+tb}"))
            for i in range(4): L.append(line(f"v_rcp_f32 v{T2+4*tb+i}, v{T2+4*tb+i}", 8))
        return L
    xr = xreads(0, 18)
    for f in xr[:4 * G]: f.fn(k)
    stamp(k, 21); stamp(k, 30, True)
    phase(0, AG, [consts, fp2], xr=xr[4 * G:], lead=(FILL, MID), budget=12)
    phase(18, AU, [expo()], lead=(MID, LEAD), budget=12)
    k(f"v_add_u32 v2, {HB}, v1\nv_add_u32 v3, {HB + 0x10000}, v1")
    its = []
    for fb in range(1, 8):
        m0 = k.mark()
        phase(36 * fb, AG, [finish()])
        phase(36 * fb + 18, AU, [expo()])
        its.append(k.lines[m0:]); del k.lines[m0:]
    k.label("L_ffn_gu")
    k.lines += fold(its)
    k("s_cmp_lg_u32 s34, 0\ns_cbranch_scc1 L_ffn_gu")
    k("v_mov_b32 v4, v2\ns_cmp_eq_u64 s[48:49], -1\ns_cbranch_scc1 L_pollx_p2")
    poll_fp(k, "p2", FP2)
    k("v_mov_b32 v2, v4")
    phase(288, AG, [finish()[:-3]])
    k.wait_lg_all(); k("s_barrier")
    k.lgq = []; k.lg_done = 0
    hr = xreads(0, 15)
    for j, f in enumerate(hr): f.after = 12 * (j // 12 + 1)
    phase(306, AU, [expo(), hr], budget=int(envs("TB", "12")))
    stamp(k, 22); stamp(k, 31, True)
    k(f"s_lshr_b32 s29, s20, 1\ns_lshl_b32 s29, s29, 12\ns_and_b32 s35, s20, 1\ns_lshl_b32 s36, s35, 3\ns_add_u32 s29, s29, s36")
    k(f"v_add_u32 v9, s29, v1\ns_add_u32 s29, s29, {HB + 64*KBY}\ns_lshl_b32 s41, s20, 11\nv_add_u32 v10, s41, v1")
    k(f"s_lshl_b32 s37, s21, 7\ns_lshl_b32 s38, s22, 2\ns_add_u32 s37, s37, s38\ns_mul_i32 s37, s37, {18*KBY}\ns_add_u32 s37, s37, {OFF_PART}")
    k(f"s_lshr_b32 s39, s20, 1\ns_add_u32 s39, s39, 16\ns_lshl_b32 s39, s39, 10\ns_mul_i32 s40, s35, {36*KBY}\ns_add_u32 s39, s39, s40\ns_add_u32 s39, s39, s37")
    k("s_lshl_b32 s38, s20, 10\ns_add_u32 s38, s38, s37")
    k(f"s_lshl_b32 s56, s22, 7\ns_lshl_b32 s27, s21, 3\ns_add_u32 s56, s56, s27\ns_add_u32 s56, s56, {FE}")
    for tb in range(4): k(f"v_add_u32 v{5+tb}, {tb*18*KBY}, v1")
    k(f"s_lshr_b32 s44, s21, 1\ns_lshl_b32 s45, s35, 1\ns_sub_u32 s45, s44, s45\ns_sub_u32 s30, s38, s37\ns_add_u32 s30, s30, {130*KBY}\nv_add_u32 v11, s30, v1")
    k(f"s_sub_u32 s30, s39, s37\ns_sub_u32 s30, s30, s40\ns_add_u32 s30, s30, {130*KBY}\nv_add_u32 v12, s30, v1")
    fin = finish()[:-3]
    NG = 18 // G
    for f in fin: f.before = 4 * G * (NG - 3)
    def late(k):
        k.wait_lg_all(); k("s_barrier")
        for f in xreads(15, 18): f.fn(k)
    phase(324, AG, [fin], pre_extra={NG - 3: late}, xwait=True)
    def cv(acc, dst, hi, after=0):
        return [line(f"v_cvt_pk_bf16_f32 v{dst+4*tb+2*hi+i}, v{acc+4*tb+2*i}, v{acc+4*tb+2*i+1}", after=after) for tb in range(4) for i in range(2)]
    OWN = envs("OWN", "1") == "1"
    uid = [0]
    def keep(src, tb, cmp, vaddr):
        def f(k):
            uid[0] += 1
            k(f"s_cmp_lg_u32 {cmp}, {tb}\ns_cbranch_scc1 2\nds_write_b128 {vaddr}, v[{src+4*tb}:{src+4*tb+3}]")
        return [F(f, 8)] if OWN else []
    def st4(src, tb, after, addr="s38", tag=None):
        if envs("NOST", ""): return line("s_nop 0", after=after)
        return vml(f"buffer_store_dwordx4 v[{src+4*tb}:{src+4*tb+3}], v{5+tb}, s[8:11], {addr} offen{envs('PST', ' sc1').replace('_', ' ')}", tag, after=after, cost=8)
    c = cv(AG, T2, 0, 8); join = []
    for tb in range(4): join += c[2*tb:2*tb+2] + [lgl(f"ds_write_b64 v9, v[{T2+4*tb}:{T2+4*tb+1}] offset:{tb*1024}")]
    for f in join: f.before = 36
    def joined(k):
        k.wait_lg_all(); k("s_barrier")
        k.lg(f"ds_read_b128 v[{T2}:{T2+3}], v10", "j"); k.lg(f"ds_read_b128 v[{T2+4}:{T2+7}], v10 offset:1024", "j")
    phase(342, AU, [join, [F(lambda k: k.wait_lg("j"), 4, after=50), st4(T2, 0, 52, "s39"), st4(T2, 1, 62, "s39")] + keep(T2, 0, "s45", "v12") + keep(T2, 1, "s45", "v12")], pre_extra={3: joined})
    kk = KB()
    kk("s_lshl_b32 s28, s22, 3\ns_add_u32 s28, s28, s21\ns_mov_b32 s42, s22\ns_mov_b32 s47, s21")
    kk("v_bfe_u32 v9, v0, 4, 2\nv_lshlrev_b32 v9, 8, v9\nv_bfe_u32 v10, v0, 3, 1\nv_lshl_add_u32 v9, v10, 10, v9\nv_and_b32 v10, 7, v0\nv_lshl_add_u32 v9, v10, 4, v9")
    kk(f"s_and_b32 s31, s28, 1\ns_lshl_b32 s31, s31, 7\ns_lshl_b32 s26, s20, 11\ns_add_u32 s31, s31, s26\nv_add_u32 v9, s31, v9\nv_lshlrev_b32 v4, 3, v10")
    kk(f"s_lshr_b32 s24, s28, 1\ns_mul_i32 s24, s24, {18*KBY}\ns_add_u32 s30, s24, {OFF_X1}")
    kk(f"s_add_u32 s31, s30, 16384\ns_cmp_eq_u32 s20, 0\ns_cselect_b32 s31, s31, {BIG}\ns_add_u32 s32, s30, 8192")
    kk(f"s_add_u32 s46, s56, {FE1 - FE}\ns_add_u32 s46, s46, s51\ns_and_b32 s48, s46, 0xffffff80\ns_cmp_eq_u32 s20, 0\ns_cselect_b32 s46, s46, {BIG}")
    for src in range(7):
        kk(f"s_cmp_gt_u32 s47, {src}\ns_cselect_b32 s26, {src}, {src + 1}\ns_mul_i32 s26, s26, {2304*KBY}\ns_add_u32 s26, s26, s24\ns_add_u32 s{72+src}, s26, {OFF_PART}")
    setup = []; ls = [l.strip() for l in kk.lines]; j = 0
    while j < len(ls):
        n = 2 if (ls[j].startswith("s_cmp") or j + 1 >= len(ls) or not ls[j + 1].startswith("s_cmp")) else 1
        setup.append(line("\n".join(ls[j:j + n]), 8)); j += n
    phase(360, AG, [cv(AU, T1, 0, 8), setup])
    k("s_mov_b32 s34, 2")
    stamp(k, 23); stamp(k, 32, True)
    SCL = int(envs("SCL", "0"))
    def first_half():
        L = []
        for tb in range(4):
            L += [line(f"v_mov_b32 v{T2+4*tb}, v{T1+4*tb}"), line(f"v_mov_b32 v{T2+4*tb+1}, v{T1+4*tb+1}")]
        if SCL: return cv(AG, T1, 1, 8) + [st4(T1, tb, SCL) for tb in range(4)]
        return L + cv(AG, T2, 1, 8) + [f for tb in range(4) for f in keep(T2, tb, "s44", "v11")] + [line("v_add_u32 v11, 0x1000, v11")] + [st4(T2, 0, 30), st4(T2, 1, 60)]
    def pair(p, x0=[], x1=[], pre=None):
        phase(342 + 36 * p, AU, [first_half(), x0], pre_extra=pre)
        c0 = cv(AU, T1, 0, 8)
        phase(342 + 36 * p + 18, AG, [c0, ([] if SCL else [st4(T2, 2, 20), st4(T2, 3, 52, tag=("ps", p))]) + [line("s_add_u32 s38, s38, 4096"), line("s_sub_u32 s34, s34, 1")], x1])
    its = []
    for p in range(1, 3):
        m0 = k.mark(); pair(p); its.append(k.lines[m0:]); del k.lines[m0:]
    k.label("L_ffn_dn")
    k.lines += fold(its)
    k("s_cmp_lg_u32 s34, 0\ns_cbranch_scc1 L_ffn_dn")
    stamp(k, 24); stamp(k, 33, True)
    tail = [vml(f"buffer_load_dwordx4 v[{RESID+4*i}:{RESID+4*i+3}], v9, s[8:11], s{30+i} offen{LD}", after=14, cost=8) for i in range(3)]
    def early(k):
        k.wait_vm(("ps", 2)); k("s_barrier\nv_mov_b32 v2, s100\nv_mov_b32 v3, s101")
        k.vm("buffer_store_dwordx2 v[2:3], v13, s[8:11], s46 offen sc1")
    pair(3, tail, [vml("buffer_load_dwordx2 v[2:3], v4, s[8:11], s48 offen sc1", "e1", after=int(envs("E1AT", "62")), cost=8)], {int(envs("EAT", "3")): early})
    k("s_nop 5")
    c = cv(AG, T1, 1)
    for tb in range(4):
        c[2 * tb].fn(k); c[2 * tb + 1].fn(k); st4(T1, tb, 0).fn(k)
    for tb in range(4):
        for f in keep(T1, tb, "s44", "v11"): f.fn(k)
    stamp(k, 25); stamp(k, 34, True)
    k.wait_vm("e1")
    k(f"v_cmp_eq_u64 vcc, s[100:101], v[2:3]\ns_add_u32 s56, s56, s51\ns_cmp_eq_u32 s20, 0\ns_cselect_b32 s56, s56, {BIG}")
    k(f"s_cmp_eq_u64 vcc, {-1 if not envs('NOE1', '') else 5}\ns_cselect_b32 s49, 1, 0\ns_cbranch_scc0 L_ffn_noe")
    for src in range(7): k(f"buffer_load_dwordx4 v[{P5R[0]+4*src}:{P5R[0]+4*src+3}], v9, s[8:11], s{72+src} offen{LD}")
    k("s_waitcnt vmcnt(7) lgkmcnt(0)\ns_branch L_ffn_sig")
    k.label("L_ffn_noe")
    k("s_waitcnt vmcnt(0) lgkmcnt(0)")
    k.label("L_ffn_sig")
    k("s_barrier")
    publish(k)
    stamp(k, 26)

P5R = (48, 76, 16)
def p5_reduce(k, nlayers):
    k(f"v_mov_b32 v8, v9\nv_add_u32 v10, 0x2000, v9\ns_cmp_eq_u32 s20, 0\ns_cselect_b32 s35, 16384, {BIG}\nv_add_u32 v9, s35, v9")
    def ld(i):
        for src in range(7): k.vm(f"buffer_load_dwordx4 v[{P5R[i]+4*src}:{P5R[i]+4*src+3}], v{8+i}, s[8:11], s{72+src} offen{LD}", (src, i))
    k("s_cmp_eq_u32 s49, 1\ns_cbranch_scc1 L_p5_e1\ns_mov_b32 s56, s48\nv_mov_b32 v2, v4")
    poll(k, "e1", wg=False, layer=False)
    ld(0)
    k.label("L_p5_e1")
    k("s_cmp_lg_u32 s20, 0\ns_cbranch_scc1 L_p5_n1")
    ld(1)
    k.label("L_p5_n1")
    k("v_bfe_u32 v4, v0, 4, 2\nv_bfe_u32 v5, v0, 3, 1\nv_and_b32 v6, 7, v0")
    ln_consts(k)
    k("s_mov_b32 s26, 0x00003f80\ns_mov_b32 s27, 0x3f800000")
    D = 136; ACC = 112
    k(f"v_min_u32 v12, 0x4800, v9\nv_add_u32 v11, {130*KBY}, v8\nv_add_u32 v12, {130*KBY}, v12\ns_waitcnt lgkmcnt(0)")
    k(f"ds_read_b128 v[{D}:{D+3}], v11\nds_read_b128 v[{D+4}:{D+7}], v12\nds_read_b128 v[{D+8}:{D+11}], v11 offset:8192")
    k(f"s_lshl_b32 s56, s42, 7\ns_add_u32 s56, s56, {FE}\nv_lshlrev_b32 v2, 3, v6")
    for j in range(12): k(f"v_lshlrev_b32 v{ACC+2*j}, 16, v{RESID+j}\nv_and_b32 v{ACC+2*j+1}, s32, v{RESID+j}")
    k("s_waitcnt lgkmcnt(0)")
    for j in range(12): k(f"v_dot2c_f32_bf16 v{ACC+2*j}, s26, v{D+j}\nv_dot2c_f32_bf16 v{ACC+2*j+1}, s27, v{D+j}")
    if "e" in SP: spoll(k, "e", 8)
    else: poll(k, "e")
    stamp(k, 27)
    fresh(k)
    ld(2)
    def add(src, i):
        for j in range(4):
            r = P5R[i] + 4 * src + j; a = ACC + 8 * i + 2 * j
            k(f"v_dot2c_f32_bf16 v{a}, s26, v{r}\nv_dot2c_f32_bf16 v{a+1}, s27, v{r}")
    k("s_waitcnt vmcnt(7)")
    for src in range(7): add(src, 0)
    k("s_cmp_lg_u32 s20, 0\ns_cbranch_scc1 L_p5_n2")
    for src in range(7): add(src, 1)
    k.label("L_p5_n2")
    for src in range(7): k.wait_vm((src, 2)); add(src, 2)
    k("s_nop 2")
    stamp(k, 28)
    for j in range(12): k(f"v_cvt_pk_bf16_f32 v{D+j}, v{ACC+2*j}, v{ACC+2*j+1}")
    k(f"s_cmp_eq_u32 s50, 1\ns_cbranch_scc1 L_p5_final\ns_cmp_eq_u32 s20, 0\ns_cbranch_scc1 L_p5_w0")
    for j in range(4): k(f"v_mov_b32 v{D+4+j}, 0")
    k.label("L_p5_w0")
    T = D + 16; O = T + 8
    row_sums(k, D, 12, T)
    k(f"v_lshlrev_b32 v11, 3, v6\nv_add_u32 v11, {150*KBY}, v11\ns_lshl_b32 s23, s20, 6\nv_add_u32 v12, s23, v11")
    k(f"ds_write_b64 v12, v[{T}:{T+1}]\ns_waitcnt lgkmcnt(0)\ns_barrier")
    for w in range(4): k(f"ds_read_b64 v[{T+2*w}:{T+2*w+1}], v11 offset:{64*w}")
    k(f"s_add_u32 s23, s24, {OFF_XN}\ns_add_u32 s25, s24, {OFF_XF}\ns_waitcnt lgkmcnt(0)")
    k(f"v_add_f32 v{T}, v{T}, v{T+2}\nv_add_f32 v{T+1}, v{T+1}, v{T+3}\nv_add_f32 v{T+4}, v{T+4}, v{T+6}\nv_add_f32 v{T+5}, v{T+5}, v{T+7}\nv_add_f32 v{T}, v{T}, v{T+4}\nv_add_f32 v{T+1}, v{T+1}, v{T+5}")
    ln_stats_finish(k, T, T + 1)
    for i in range(3):
        for j in range(4): ln_norm(k, D + 4 * i + j, O + 4 * i + j, T, T + 1, T + 2 + 2 * (j & 1))
        k(f"buffer_store_dwordx4 v[{O+4*i}:{O+4*i+3}], v{8+i}, s[8:11], s23 offen sc1")
    for i in range(3): k(f"buffer_store_dwordx4 v[{D+4*i}:{D+4*i+3}], v{8+i}, s[8:11], s25 offen sc1")
    flag_a_addr(k)
    stamp(k, 29)
    k(f"s_add_u32 s50, s50, 1\ns_add_u32 s51, s51, 32768\ns_mov_b32 s53, {OFF_QKV2}")
    signal(k)
    if STAMP: k("v_mov_b32 v14, v15")
    k("s_branch L_p0_fetch" if nlayers == 2 else "s_branch L_main_fin")
    k.label("L_p5_final")
    srd(k, 12, 6, 2048 * 1152)
    rowmajor(k, 28, 7)
    k(f"s_add_u32 s35, s33, 1024\ns_cmp_eq_u32 s20, 0\ns_cselect_b32 s35, s35, {BIG}\ns_lshl_b32 s25, s20, 7\ns_add_u32 s34, s33, s25\ns_add_u32 s36, s34, 512")
    for i in (2, 0, 1):
        k(f"v_permlane16_swap_b32 v{D+4*i}, v{D+4*i+2}\nv_permlane16_swap_b32 v{D+4*i+1}, v{D+4*i+3}")
        k(f"buffer_store_dwordx4 v[{D+4*i}:{D+4*i+3}], v7, s[12:15], s{34+i} offen{FL[envs('OUTST', 's')]}")
    k.label("L_main_fin")
    if DIAG:
        k("s_waitcnt vmcnt(0)"); stamp(k, 50)
        k("s_cmp_lg_u32 s20, 0\ns_cbranch_scc1 L_end\ns_cmp_lg_u32 s2, 100\ns_cbranch_scc1 L_end\ns_sub_u32 s90, s90, s88\ns_mul_i32 s90, s90, 3\ns_min_u32 s90, s90, 100000\ns_memrealtime s[88:89]\ns_waitcnt lgkmcnt(0)")
        k.label("L_dgs")
        k("s_memrealtime s[94:95]\ns_waitcnt lgkmcnt(0)\ns_sub_u32 s94, s94, s88\ns_cmp_lt_u32 s94, s90\ns_cbranch_scc1 L_dgs")
    if STAMP:
        k.wait_vm_all(); stamp(k, 29)
        k(f"s_add_u32 s84, s4, {OFF_STAMP}\ns_addc_u32 s85, s5, 0\ns_mov_b32 s86, 0x2000000\ns_mov_b32 s87, 0x00020000")
        k("s_lshl_b32 s88, s2, 2\ns_add_u32 s88, s88, s20\ns_lshl_b32 s88, s88, 9\nv_lshrrev_b32 v2, 2, v1")
        k("buffer_store_dword v14, v2, s[84:87], s88 offen\nbuffer_store_dword v15, v2, s[84:87], s88 offen offset:256")

def main_k(name, nlayers=2):
    k = KB()
    k.raw(f".globl {name}\n.p2align 8\n.type {name},@function")
    k.label(name)
    k("s_cmp_ge_u32 s2, 256\ns_cbranch_scc1 L_end")
    if STAMP: k("v_mov_b32 v14, 0\nv_mov_b32 v15, 0"); stamp(k, 40)
    if DIAG: k("s_memrealtime s[88:89]\ns_waitcnt lgkmcnt(0)\ns_mov_b32 s90, s88")
    k("s_load_dwordx4 s[36:39], s[0:1], 0\ns_load_dwordx2 s[46:47], s[0:1], 16\ns_load_dwordx4 s[40:43], s[0:1], 32")
    k("s_load_dwordx2 s[44:45], s[0:1], 48\ns_load_dwordx2 s[6:7], s[0:1], 56\ns_load_dwordx2 s[84:85], s[0:1], 64\ns_load_dwordx2 s[4:5], s[0:1], 72")
    k("v_lshrrev_b32 v2, 6, v0\nv_and_b32 v1, 63, v0\nv_readfirstlane_b32 s20, v2\nv_cmp_eq_u32 vcc, 0, v1\nv_lshlrev_b32 v1, 4, v1")
    k("s_and_b32 s16, s2, 7\ns_lshr_b32 s17, s2, 3\ns_bfe_u32 s18, s2, 0x10002\ns_and_b32 s19, s2, 3")
    k(f"v_mov_b32 v13, {BIG}\ns_mov_b32 s50, 0\ns_mov_b32 s51, 0\ns_mov_b32 s53, {OFF_QKV}\ns_mov_b32 s67, 0\nv_cndmask_b32 v13, v13, 0, vcc")
    p0(k)
    k.label("L_layer")
    fresh(k)
    p1_qkv(k); p2_attn(k); p3_wo(k); p4_ffn(k); p5_reduce(k, nlayers)
    k.label("L_end")
    k("s_endpgm")
    return k

def desc(n, vgpr, accum):
    return f""".p2align 6
.amdhsa_kernel {n}
  .amdhsa_next_free_vgpr {vgpr}
  .amdhsa_next_free_sgpr 102
  .amdhsa_accum_offset {accum}
  .amdhsa_group_segment_fixed_size 0
  .amdhsa_kernarg_size 80
  .amdhsa_user_sgpr_count 2
  .amdhsa_user_sgpr_kernarg_segment_ptr 1
  .amdhsa_system_sgpr_workgroup_id_x 1
  .amdhsa_float_denorm_mode_32 3
.end_amdhsa_kernel"""
def build(nlayers=2):
    name = "interleave_layers__sliding_block__swiglu_ffn__prompt_kernel"
    out = ["; x += attn(LN x); x += swiglu(LN x); twice. One persistent kernel, 256 workgroups. Generated by my own script (work/genq.py)."]
    if STAMP:
        if not envs("NOSLEEP", ""): out.append("; @launch kernel=sleep_kernel grid=(1,1,1) block=(64,1,1) lds=0")
        out.append(f"; @launch kernel={name} grid=(256,1,1) block=(256,1,1) lds=163840")
    else: out.append("; @launch grid=(256,1,1) block=(256,1,1) lds=163840")
    out.append('.amdgcn_target "amdgcn-amd-amdhsa--gfx950"\n.text')
    out.append(main_k(name, nlayers).text())
    if STAMP:
        out.append(""".globl sleep_kernel
.p2align 8
.type sleep_kernel,@function
sleep_kernel:
    s_mov_b32 s4, 2000
L_sleep:
    s_sleep 8
    s_sub_u32 s4, s4, 1
    s_cmp_lg_u32 s4, 0
    s_cbranch_scc1 L_sleep
    s_endpgm""")
    out.append('.section .rodata,"a"')
    out.append(desc(name, 512, 256))
    if STAMP: out.append(desc("sleep_kernel", 8, 8))
    return "\n".join(out) + "\n"

if __name__ == "__main__":
    STAMP = "stamp" in sys.argv[2:]
    open(sys.argv[1], "w").write(build(1 if "one" in sys.argv[2:] else 2))
```

```python
import re, sys, os, struct
from kb import *
KBY = 1024
OFF_XF, OFF_XN, OFF_OF, OFF_X1 = 0, 2304*KBY, 4608*KBY, 6912*KBY
OFF_OB = OFF_OF + 2048*KBY
OFF_QKV = 9216*KBY
OFF_PART = 16128*KBY
OFF_WO = 34560*KBY
OFF_WF = 37376*KBY
OFF_STAT = 53248*KBY
OFF_FLAG = 53376*KBY
OFF_QKV2 = 53408*KBY
OFF_WQ = OFF_QKV2 + 6912*KBY
OFF_FLAG = OFF_WQ + 2048*KBY
OFF_STAT = OFF_FLAG + 64*KBY
WS_USED = OFF_STAT + 256*KBY
FA, FB, FC, FE2, FE, FP, FP2, FW, FQ, FE1 = [OFF_FLAG + o for o in (0, 2048, 10240, 12288, 16384, 20480, 22528, 24576, 25600, 27648)]
BIG = 0x40000000
LOG2E = 1.4426950408889634
def fbits(x): return "0x%08x" % struct.unpack("<I", struct.pack("<f", x))[0]
def envs(n, d): return os.environ.get(n, d)
FL = {"s": " sc1", "p": "", "n": " nt"}
MF = "v_mfma_f32_16x16x32_bf16"
LD = " sc1"
SPIN = 300000
STAMP = False
OFF_STAMP = 200 << 20
POLL1 = envs("POLL1", "1") == "1"
CKD = envs("CKD", "1") == "1"
FORCE_RETRY = envs("FORCE_RETRY", "") == "1"
FAST = envs("FAST", "1") == "1"
FORCE_EXACT = envs("FORCE_EXACT", "") == "1"

DIAG = envs("DIAG", "")
def stamp(k, i, cyc=False):
    if DIAG and not cyc and i == int(DIAG.split(",")[1]):
        n = len(k.lines)
        k(f"s_cmp_lg_u32 s50, {DIAG.split(',')[0]}\ns_cbranch_scc1 L_dg{n}\ns_memrealtime s[90:91]"); k("s_waitcnt lgkmcnt(0)"); k.label(f"L_dg{n}")
    if STAMP:
        k(f"{'s_memtime' if cyc else 's_memrealtime'} s[98:99]"); k.wait_lg_all(); k(f"v_writelane_b32 v15, s98, {i}")
def srd(k, d, base, nbytes):
    k(f"s_mov_b32 s{d}, s{base}\ns_mov_b32 s{d+1}, s{base+1}\ns_mov_b32 s{d+2}, {nbytes}\ns_mov_b32 s{d+3}, 0x00020000")
def sdiv(k, dst, src, D, tmp):
    k(f"s_mov_b32 s{tmp}, {-(-(1<<32)//D)}\ns_mul_hi_u32 s{dst}, s{src}, s{tmp}")
def red_rows(k, v, t, op="v_add_f32"):
    for sw in ("v_permlane16_swap_b32", "v_permlane32_swap_b32"):
        k(f"v_mov_b32 v{t}, v{v}\ns_nop 1\n{sw} v{v}, v{t}\n{op} v{v}, v{v}, v{t}")
def ln_stats_finish(k, s, q):
    k(f"v_mul_f32 v{s}, s31, v{s}\nv_mul_f32 v{q}, s31, v{q}\nv_fma_f32 v{q}, -v{s}, v{s}, v{q}\nv_max_f32 v{q}, 0, v{q}")
    k(f"v_add_f32 v{q}, {fbits(1e-5)}, v{q}\nv_rsq_f32 v{q}, v{q}\ns_nop 0\nv_mul_f32 v{s}, v{s}, v{q}\nv_sub_f32 v{s}, 0, v{s}")
def ln_norm(k, x, dst, s, q, t):
    if envs("PKF", "1") == "1":
        assert q == s + 1 and s % 2 == 0 and t % 2 == 0
        k(f"v_lshlrev_b32 v{t}, 16, v{x}\nv_and_b32 v{t+1}, s32, v{x}\nv_pk_fma_f32 v[{t}:{t+1}], v[{t}:{t+1}], v[{s}:{q}], v[{s}:{q}] op_sel:[0,1,0] op_sel_hi:[1,1,0]\nv_cvt_pk_bf16_f32 v{dst}, v{t}, v{t+1}")
    else: k(f"v_lshlrev_b32 v{t}, 16, v{x}\nv_and_b32 v{t+1}, s32, v{x}\nv_fma_f32 v{t}, v{t}, v{q}, v{s}\nv_fma_f32 v{t+1}, v{t+1}, v{q}, v{s}\nv_cvt_pk_bf16_f32 v{dst}, v{t}, v{t+1}")
def ln_consts(k):
    k(f"s_mov_b32 s30, 0x3f803f80\ns_mov_b32 s31, {fbits(1/576)}\ns_mov_b32 s32, 0xffff0000")
def fold(iters):
    body = []
    assert len({len(x) for x in iters}) == 1, [len(x) for x in iters]
    for ls in zip(*iters):
        if len(set(ls)) == 1: body.append(ls[0]); continue
        ns = [re.fullmatch(r"\s*s_waitcnt vmcnt\((\d+)\)", l) for l in ls]
        assert all(ns), ls
        body.append(f"    s_waitcnt vmcnt({min(int(m.group(1)) for m in ns)})")
    return body
def fresh(k):
    k.vmq = []; k.vm_done = 0; k.lgq = []; k.lg_done = 0

def poll(k, name, wg=True, layer=True):
    if wg: k(f"s_cmp_lg_u32 s20, 0\ns_cbranch_scc1 L_pollx_{name}")
    k(f"s_mov_b32 s57, {SPIN}" + ("\ns_add_u32 s56, s56, s51" if layer else ""))
    if envs("PP", "") and name in "abcde":
        k("buffer_load_dwordx2 v[252:253], v2, s[8:11], s56 offen sc1\ns_sleep 1")
        k.label(f"L_poll_{name}")
        k(f"buffer_load_dwordx2 v[254:255], v2, s[8:11], s56 offen sc1\ns_waitcnt vmcnt(1)\nv_cmp_eq_u64 vcc, s[100:101], v[252:253]\ns_cmp_eq_u64 vcc, -1\ns_cbranch_scc1 L_pollx_{name}")
        k(f"buffer_load_dwordx2 v[252:253], v2, s[8:11], s56 offen sc1\ns_sub_u32 s57, s57, 1\ns_waitcnt vmcnt(1)")
    else:
        k.label(f"L_poll_{name}")
        k(f"buffer_load_dwordx2 v[254:255], v2, s[8:11], s56 offen sc1\ns_sub_u32 s57, s57, 1\ns_waitcnt vmcnt(0)")
    k(f"v_cmp_eq_u64 vcc, s[100:101], v[254:255]\ns_cmp_eq_u32 s57, 0\ns_cbranch_scc1 L_pollx_{name}")
    k(f"s_cmp_eq_u64 vcc, -1\ns_cbranch_scc0 L_poll_{name}")
    k.label(f"L_pollx_{name}")
    if wg: k("s_barrier")
def spoll(k, name, n, wg=True):
    if wg: k(f"s_cmp_lg_u32 s20, 0\ns_cbranch_scc1 L_pollx_{name}")
    k(f"s_mov_b32 s57, {SPIN}\ns_add_u32 s56, s56, s51")
    for c in range(0, n, 8):
        k.label(f"L_poll_{name}{c}")
        k(f"s_load_dwordx16 s[84:99], s[4:5], s56 glc\ns_sub_u32 s57, s57, 1\ns_cmp_eq_u32 s57, 0\ns_waitcnt lgkmcnt(0)\ns_cbranch_scc1 L_pollx_{name}")
        for j in range(84, 100, 2): k(f"s_xor_b64 s[{j}:{j+1}], s[{j}:{j+1}], s[100:101]")
        for j in range(86, 100, 2): k(f"s_or_b64 s[84:85], s[84:85], s[{j}:{j+1}]")
        k(f"s_cbranch_scc0 2\ns_sleep {envs('SLP', '2')}\ns_branch L_poll_{name}{c}")
        if c + 8 < n: k("s_add_u32 s56, s56, 64")
    k.label(f"L_pollx_{name}")
    if wg: k("s_barrier")
SP = envs("SPOLL", "qe")
def publish(k, addr="s56"):
    k("v_mov_b32 v254, s100\nv_mov_b32 v255, s101")
    k.vm(f"buffer_store_dwordx2 v[254:255], v13, s[8:11], {addr} offen sc1")
def signal(k):
    k(f"s_add_u32 s56, s56, s51\ns_cmp_eq_u32 s20, 0\ns_cselect_b32 s56, s56, {BIG}")
    k.wait_vm_all(); k("s_barrier")
    publish(k)
def token_load(k):
    k("v_mov_b32 v2, 0\nbuffer_load_dwordx2 v[254:255], v2, s[84:87], 0 offen sc1")
def token_get(k, name):
    k(f"s_mov_b32 s57, {SPIN}")
    k.label(f"L_tok_{name}")
    k("v_readfirstlane_b32 s100, v254\nv_readfirstlane_b32 s101, v255\ns_sub_u32 s57, s57, 1\ns_min_u32 s94, s100, s101\ns_cmp_eq_u32 s57, 0\ns_cselect_b32 s94, 1, s94")
    k(f"s_cmp_lg_u32 s94, 0\ns_cbranch_scc1 L_tokx_{name}")
    token_load(k)
    k(f"s_waitcnt vmcnt(0)\ns_branch L_tok_{name}")
    k.label(f"L_tokx_{name}")

def half_lanes(k, shb):
    k("v_bfe_u32 v4, v0, 4, 2\nv_bfe_u32 v5, v0, 3, 1\nv_and_b32 v6, 7, v0")
    k(f"s_and_b32 s21, s{shb}, 1\ns_lshr_b32 s22, s{shb}, 1\ns_lshl_b32 s23, s21, 7")
    k("v_lshlrev_b32 v7, 8, v4\nv_lshl_add_u32 v7, v5, 10, v7\nv_lshl_add_u32 v7, v6, 4, v7\nv_add_u32 v7, s23, v7")
    k(f"s_mul_i32 s24, s22, {18*KBY}")
def rowmajor(k, shb, v):
    k(f"v_mul_u32_u24 v{v}, 1152, v6\nv_lshl_add_u32 v{v}, v5, 6, v{v}\nv_and_b32 v9, 1, v4\nv_lshl_add_u32 v{v}, v9, 5, v{v}\nv_lshrrev_b32 v9, 1, v4\nv_lshl_add_u32 v{v}, v9, 4, v{v}")
    k(f"s_mul_i32 s33, s{shb}, 9216")
def row_sums(k, D, n, T):
    for i in range(4): k(f"v_mov_b32 v{T+i}, 0")
    for j in range(n): k(f"v_dot2c_f32_bf16 v{T+(j&1)}, s30, v{D+j}\nv_dot2c_f32_bf16 v{T+2+(j&1)}, v{D+j}, v{D+j}")
    k(f"s_nop 2\nv_add_f32 v{T}, v{T}, v{T+1}\nv_add_f32 v{T+1}, v{T+2}, v{T+3}\ns_nop 1")
    k(f"v_add_f32_dpp v{T}, v{T}, v{T} row_ror:8 row_mask:0xf bank_mask:0xf\nv_add_f32_dpp v{T+1}, v{T+1}, v{T+1} row_ror:8 row_mask:0xf bank_mask:0xf")
    red_rows(k, T, T + 2); red_rows(k, T + 1, T + 2)
def flag_a_addr(k):
    k(f"s_lshr_b32 s56, s28, 4\ns_lshl_b32 s56, s56, 7\ns_and_b32 s27, s28, 15\ns_lshl_b32 s27, s27, 3\ns_add_u32 s56, s56, s27\ns_add_u32 s56, s56, {FA}")

DST = 68
park = lambda u, i: (f"v[{128+16*u+4*i}:{131+16*u+4*i}]" if u < 3 else f"a[{160+16*(u-3)+4*i}:{163+16*(u-3)+4*i}]")
PK = 220
def wq_base(k):
    k(f"s_lshr_b32 s29, s17, 3\ns_lshl_b32 s22, s19, 2\ns_add_u32 s22, s22, s29\ns_mul_i32 s25, s22, {126*KBY}\ns_add_u32 s25, s25, {OFF_WQ}")
def wq_fetch(k, name):
    k(f"s_and_b32 s23, s17, {7 if envs('ROT', '1') == '1' else 0}\ns_lshl_b32 s23, s23, 14\ns_mov_b32 s26, 32")
    k.label(f"L_wqf_{name}")
    k("s_mov_b32 m0, s23\ns_add_u32 s27, s25, s23")
    for c in range(4): k(f"buffer_load_dwordx4 v1, s[8:11], s27 offen offset:{c*1024} lds")
    k(f"s_add_u32 s23, s23, 4096\ns_and_b32 s23, s23, 0x1ffff\ns_sub_u32 s26, s26, 1\ns_waitcnt vmcnt({envs('WQF', '40')})\ns_cmp_lg_u32 s26, 0\ns_cbranch_scc1 L_wqf_{name}")
def stage_addr(k):
    k(f"s_lshl_b32 s66, s20, 13\ns_add_u32 s66, s66, {128*KBY}\nv_add_u32 v10, s66, v1")
    k("v_bfe_u32 v11, v0, 2, 4\nv_lshlrev_b32 v11, 7, v11\nv_and_b32 v252, 3, v0\nv_lshl_add_u32 v11, v252, 3, v11\nv_add_u32 v11, s66, v11")
def pack_block(k, n, nu, dst=lambda u, c: (f"s{DST+c}", (u % 4) * 1024), src=park):
    k("s_waitcnt lgkmcnt(0)")
    if 2 <= n < nu + 2:
        u = n - 2
        for c in range(4):
            r, o = dst(u, c)
            k(f"buffer_store_dwordx4 v[{PK+16*(u&1)+4*c}:{PK+16*(u&1)+4*c+3}], v1, s[8:11], {r} offen offset:{o} sc1" + (f"\ns_add_u32 {r}, {r}, 4096" if o == 3072 else ""))
    if 1 <= n <= nu:
        u = n - 1
        for c in range(4):
            for hf in range(2): k(f"ds_read_b64_tr_b16 v[{PK+16*(u&1)+4*c+2*hf}:{PK+16*(u&1)+4*c+2*hf+1}], v11 offset:{(u&1)*4096 + hf*2048 + c*32}")
    if n < nu:
        for i in range(4): k(f"ds_write_b128 v10, {src(n, i)} offset:{(n&1)*4096 + i*1024}")
lpark = lambda u, i: f"a[{208+16*u+4*i}:{211+16*u+4*i}]"
def late_blocks(k):
    k("s_cmp_eq_u32 s67, 0\ns_cbranch_scc1 L_pks")
    stage_addr(k)
    for n in range(5): pack_block(k, n, 3, lambda u, c: (f"s{78+c}", u * 1024), lpark)
    k("s_mov_b32 s67, 0")
    k.label("L_pks")
EARLY = envs("EARLY", "b")
def early_blocks(k):
    k("s_cmp_eq_u32 s67, 0\ns_cbranch_scc1 L_pke")
    stage_addr(k)
    for n in range(8): pack_block(k, n, 6)
    k.label("L_pke")
def publish_fp(k, base):
    k(f"s_mov_b32 s30, {-(-(1<<32)//27)}\ns_mul_hi_u32 s27, s2, s30\ns_mul_i32 s27, s27, 5\ns_add_u32 s27, s27, s2\ns_lshl_b32 s27, s27, 3\ns_add_u32 s27, s27, {base}")
    k(f"s_cmp_lt_u32 s2, 216\ns_cselect_b32 s27, s27, {BIG}\ns_cmp_eq_u32 s20, 0\ns_cselect_b32 s27, s27, {BIG}")
    k.vm("buffer_store_dwordx2 v[254:255], v13, s[8:11], s27 offen sc1")
def poll_fp(k, name, base):
    k(f"s_cmp_lg_u32 s50, 0\ns_cbranch_scc1 L_pollx_{name}\ns_lshl_b32 s56, s21, 8\ns_add_u32 s56, s56, {base}\nv_and_b32 v2, 31, v0\nv_min_u32 v2, 26, v2\nv_lshlrev_b32 v2, 3, v2")
    poll(k, name, wg=False)
def ptrs(k):
    srd(k, 8, 4, WS_USED); k("s_mov_b32 s86, 256\ns_mov_b32 s87, 0x00020000")
def p0(k):
    k("s_cmp_eq_u32 s20, 1\ns_cbranch_scc1 L_p0_wq\ns_cmp_lg_u32 s20, 0\ns_cbranch_scc1 L_p0_23")
    k("s_lshl_b32 s28, s16, 5\ns_add_u32 s28, s28, s17")
    half_lanes(k, 28); rowmajor(k, 28, 11)
    k("s_waitcnt lgkmcnt(0)")
    srd(k, 12, 36, 2048 * 1152)
    D = 16; T = D + 36; O = T + 8
    for i in range(9): k(f"buffer_load_dwordx4 v[{D+4*i}:{D+4*i+3}], v11, s[12:15], s33 offen offset:{128*i} nt")
    if envs("B0", "2") == "1": k("s_barrier")
    ptrs(k); ln_consts(k); flag_a_addr(k)
    stamp(k, 41)
    k(f"s_add_u32 s25, s24, {OFF_XF}")
    for i in range(9):
        k(f"s_waitcnt vmcnt(8)\nv_permlane16_swap_b32 v{D+4*i}, v{D+4*i+2}\nv_permlane16_swap_b32 v{D+4*i+1}, v{D+4*i+3}")
        k(f"buffer_store_dwordx4 v[{D+4*i}:{D+4*i+3}], v7, s[8:11], s25 offen offset:{(i&1)*2048} sc1" + ("\ns_add_u32 s25, s25, 4096" if i & 1 else ""))
    stamp(k, 42)
    token_load(k)
    row_sums(k, D, 36, T); ln_stats_finish(k, T, T + 1)
    k(f"s_add_u32 s23, s24, {OFF_XN}")
    for i in range(9):
        for j in range(4): ln_norm(k, D + 4 * i + j, O + 4 * (i & 1) + j, T, T + 1, T + 2 + 2 * (j & 1))
        k(f"buffer_store_dwordx4 v[{O+4*(i&1)}:{O+4*(i&1)+3}], v7, s[8:11], s23 offen offset:{(i&1)*2048} sc1" + ("\ns_add_u32 s23, s23, 4096" if i & 1 else ""))
    stamp(k, 43)
    if envs("B0", "2") == "2": k("s_barrier")
    k("s_waitcnt vmcnt(0)")
    token_get(k, "a")
    publish(k)
    k("s_branch L_p0_wait")
    k.label("L_p0_wq")
    k("s_lshl_b32 s21, s18, 3\ns_and_b32 s22, s17, 7\ns_add_u32 s21, s21, s22\ns_lshr_b32 s29, s17, 3\ns_mul_i32 s79, s29, 7\ns_mul_i32 s33, s19, 288")
    k("v_bfe_u32 v10, v0, 1, 5\nv_mul_u32_u24 v10, 3456, v10\nv_and_b32 v11, 1, v0\nv_lshl_add_u32 v10, v11, 4, v10")
    k("v_bfe_u32 v11, v0, 3, 3\nv_mul_u32_u24 v11, 3456, v11\nv_and_b32 v12, 7, v0\nv_mul_u32_u24 v12, 36, v12\nv_add_u32 v11, v11, v12")
    k("s_lshl_b32 s80, s21, 3")
    sdiv(k, 81, 80, 7, 30)
    k(f"s_mul_i32 s30, s81, 7\ns_sub_u32 s80, s80, s30\ns_mul_i32 s81, s81, {32*3456}\ns_add_u32 s81, s81, s33\ns_mov_b32 m0, {128*KBY}\ns_mov_b32 s82, 8")
    k("s_waitcnt lgkmcnt(0)")
    srd(k, 60, 38, 576 * 3456)
    k.label("L_wq")
    k("s_add_u32 s30, s79, s80\ns_cmp_ge_u32 s30, 18\ns_cselect_b32 s31, 18, 0\ns_cselect_b32 s34, 2304, 0\ns_sub_u32 s30, s30, s31")
    k(f"s_cmp_ge_u32 s30, 9\ns_cselect_b32 s31, 9, 0\ns_cselect_b32 s35, 1152, 0\ns_sub_u32 s30, s30, s31\ns_add_u32 s34, s34, s35\ns_cmp_eq_u32 s34, 3456\ns_cselect_b32 s34, {BIG}, s34")
    k("s_add_u32 s34, s34, s81\ns_cmp_eq_u32 s30, 8\ns_cbranch_scc1 L_wqb\ns_mul_i32 s30, s30, 36\ns_add_u32 s34, s34, s30")
    k("buffer_load_dwordx4 v10, s[60:63], s34 offen lds\ns_add_u32 m0, m0, 1024")
    k.label("L_wqj")
    k(f"s_add_u32 s80, s80, 1\ns_cmp_eq_u32 s80, 7\ns_cselect_b32 s80, 0, s80\ns_cselect_b32 s30, {32*3456}, 0\ns_add_u32 s81, s81, s30")
    k("s_sub_u32 s82, s82, 1\ns_cmp_lg_u32 s82, 0\ns_cbranch_scc1 L_wq\ns_branch L_wqx")
    k.label("L_wqb")
    k("s_add_u32 s34, s34, 32")
    for q in range(4): k(f"buffer_load_dword v11, s[60:63], s34 offen lds\ns_add_u32 m0, m0, 256\ns_add_u32 s34, s34, {8*3456}")
    k("s_branch L_wqj")
    k.label("L_wqx")
    if envs("B0", "2") == "1": k("s_barrier")
    ptrs(k)
    wq_base(k)
    k(f"s_lshl_b32 s30, s21, 13\ns_add_u32 s30, s30, s25\ns_add_u32 s31, s30, 4096\nv_lshrrev_b32 v3, 1, v1\nv_add_u32 v3, {128*KBY}, v3")
    k(f"s_cmp_eq_u32 s21, 15\ns_cselect_b32 s32, {BIG}, s31")
    k(f"s_lshl_b32 s24, s22, 7\ns_add_u32 s24, s24, {FQ}\ns_lshl_b32 s27, s21, 3\ns_add_u32 s27, s27, s24\ns_waitcnt vmcnt(0)")
    stamp(k, 41)
    token_load(k)
    for sl in range(8):
        for hf in range(2): k(f"ds_read_b64_tr_b16 v[{16+4*sl+2*hf}:{17+4*sl+2*hf}], v3 offset:{sl*1024 + hf*512}")
    for sl in range(8): k(f"s_waitcnt lgkmcnt({14-2*sl})\nbuffer_store_dwordx4 v[{16+4*sl}:{19+4*sl}], v1, s[8:11], s{30 if sl < 4 else 31 if sl < 6 else 32} offen offset:{(sl%4)*1024} sc1")
    if envs("B0", "2") == "2": k("s_barrier")
    k("s_waitcnt vmcnt(0)")
    token_get(k, "b")
    publish(k, "s27")
    stamp(k, 42)
    k("s_mov_b32 s56, s24\nv_and_b32 v2, 15, v0\nv_lshlrev_b32 v2, 3, v2")
    if "q" in SP: spoll(k, "q", 16, wg=False)
    else: poll(k, "q", wg=False)
    stamp(k, 43)
    k("s_branch L_p0_fetch")
    k.label("L_p0_23")
    k("s_sub_u32 s21, s20, 2\nv_bfe_u32 v4, v0, 3, 3\nv_and_b32 v5, 7, v0\ns_memrealtime s[94:95]")
    k("s_lshl_b32 s23, s2, 1\ns_add_u32 s23, s23, s21")
    sdiv(k, 25, 23, 3, 30)
    k("s_mul_i32 s30, s25, 3\ns_sub_u32 s28, s23, s30\ns_mul_i32 s28, s28, 6")
    sdiv(k, 26, 25, 18, 30)
    k("s_mul_i32 s30, s26, 18\ns_sub_u32 s25, s25, s30\ns_cmp_ge_u32 s25, 9\ns_cselect_b32 s27, 18, 0\ns_cselect_b32 s30, 9, 0\ns_sub_u32 s25, s25, s30")
    k(f"s_mul_i32 s30, s26, 9\ns_add_u32 s25, s25, s30\ns_lshl_b32 s24, s25, 7\ns_mul_i32 s30, s28, {32*9216}\ns_add_u32 s24, s24, s30")
    k("v_mul_u32_u24 v6, 9216, v4\nv_lshl_add_u32 v6, v5, 4, v6\ns_waitcnt lgkmcnt(0)")
    ptrs(k)
    k(f"s_or_b32 s94, s94, 1\ns_or_b32 s95, s95, 0x80000000\nv_mov_b32 v16, s94\nv_mov_b32 v17, s95\ns_cmp_eq_u32 s23, 0\ns_cselect_b32 s30, 0, {BIG}")
    k("buffer_store_dwordx2 v[16:17], v13, s[84:87], s30 offen sc1")
    k(f"s_sub_u32 s30, s23, 486\ns_lshl_b32 s30, s30, 14\ns_add_u32 s30, s30, {OFF_FLAG}\ns_cmp_ge_u32 s23, 486\ns_cselect_b32 s30, s30, {BIG}\ns_add_u32 s31, s30, 8192\nv_lshlrev_b32 v2, 3, v1")
    k("buffer_load_dword v22, v2, s[8:11], s30 offen\nbuffer_load_dword v21, v2, s[8:11], s31 offen")
    k("s_cmp_ge_u32 s2, 216\ns_cbranch_scc1 L_p0_wo")
    k("s_add_u32 s29, s27, s28")
    for c in range(4):
        k(f"s_lshl_b32 s30, s25, 2\ns_add_u32 s30, s30, {c}")
        sdiv(k, 31, 30, 9, 33)
        k("s_mul_i32 s33, s31, 9\ns_sub_u32 s30, s30, s33\ns_mul_i32 s31, s31, 486\ns_mul_i32 s30, s30, 36\ns_add_u32 s30, s30, s31\ns_add_u32 s30, s30, s29")
        k(f"s_add_u32 s30, s30, {OFF_WF//KBY}\ns_lshl_b32 s{DST+c}, s30, 10")
    if EARLY == "p0":
        stage_addr(k)
        k("s_waitcnt vmcnt(0)")
        stamp(k, 43)
        for n in range(8): pack_block(k, n, 6)
    sdiv(k, 25, 2, 3, 30)
    k("s_mul_i32 s30, s25, 3\ns_sub_u32 s28, s2, s30\ns_mul_i32 s28, s28, 6\ns_mul_i32 s30, s21, 3\ns_add_u32 s28, s28, s30")
    k("s_mul_i32 s30, s26, 9\ns_sub_u32 s25, s25, s30")
    for c in range(4):
        k(f"s_lshl_b32 s31, s25, 1\ns_add_u32 s31, s31, {c >> 1}\ns_and_b32 s31, s31, 3\ns_and_b32 s30, s25, 14\ns_add_u32 s30, s30, {1 + (c & 1)}")
        k(f"s_cmp_eq_u32 s25, 8\ns_cselect_b32 s31, {c}, s31\ns_cselect_b32 s30, 0, s30\ns_lshl_b32 s33, s26, 2\ns_add_u32 s31, s31, s33\ns_mul_i32 s31, s31, 486")
        k(f"s_mul_i32 s30, s30, 18\ns_add_u32 s30, s30, s31\ns_add_u32 s30, s30, s28\ns_add_u32 s30, s30, {324 + OFF_WF//KBY}\ns_lshl_b32 s{78+c}, s30, 10")
    k("s_lshl_b32 s34, s25, 7\ns_mul_i32 s35, s26, 576")
    for u in range(3):
        k("s_lshr_b32 s30, s28, 2\ns_mul_i32 s30, s30, 144\ns_and_b32 s31, s28, 3\ns_lshl_b32 s31, s31, 5\ns_add_u32 s30, s30, s31")
        k("s_mul_i32 s31, s28, 288\ns_sub_u32 s31, s31, 4480\ns_cmp_ge_u32 s28, 16\ns_cselect_b32 s30, s31, s30\ns_cselect_b32 s37, 144, 16")
        k(f"s_add_u32 s30, s30, s35\ns_mul_i32 s30, s30, 1152\ns_add_u32 s{72+2*u}, s30, s34\ns_mul_i32 s37, s37, 1152\ns_add_u32 s{73+2*u}, s{72+2*u}, s37\ns_add_u32 s28, s28, 1")
    if envs("B0", "2") in "12": k("s_barrier")
    k(f"s_cmp_eq_u32 s27, 0\ns_cselect_b32 s60, s40, s42\ns_cselect_b32 s61, s41, s43\ns_mov_b32 s62, {576*9216}\ns_mov_b32 s63, 0x00020000")
    if envs("NOBG", ""): k("s_mov_b32 s62, 0")
    for u in range(6):
        for i in range(4): k(f"buffer_load_dwordx4 {park(u, i)}, v6, s[60:63], s24 offen nt\ns_add_u32 s24, s24, {8*9216}")
    if envs("CODEPF", "1") == "1":
        k("s_getpc_b64 s[12:13]")
        k.label("L_pc")
        k(f"s_mov_b32 s14, L_end-L_pc\ns_mov_b32 s15, 0x00020000\nv_lshlrev_b32 v2, 3, v1\ns_lshl_b32 s30, s17, 13\ns_cmp_eq_u32 s20, 3\ns_cselect_b32 s30, s30, {BIG}")
        k("buffer_load_dword v20, v2, s[12:15], s30 offen")
    token_load(k)
    srd(k, 60, 44, 4608 * 1152)
    k("s_mov_b32 s67, 1")
    if EARLY != "f":
        k("s_waitcnt vmcnt(0)"); token_get(k, "c")
    k("s_branch L_p0_wait")
    k.label("L_p0_wo")
    if envs("B0", "2") in "12": k("s_barrier")
    token_load(k)
    k("s_sub_u32 s23, s23, 432\ns_cmp_lt_u32 s23, 54\ns_cbranch_scc1 L_p0_wo2")
    k("s_waitcnt vmcnt(0)")
    token_get(k, "d")
    k("s_branch L_p0_wait")
    k.label("L_p0_wo2")
    srd(k, 12, 46, 576 * 1152)
    sdiv(k, 27, 23, 3, 30)
    k("s_mul_i32 s30, s27, 3\ns_sub_u32 s25, s23, s30\ns_mul_i32 s25, s25, 3")
    k("v_lshrrev_b32 v7, 1, v4\nv_mul_u32_u24 v7, 18, v7\nv_and_b32 v8, 1, v4\nv_add_u32 v7, v7, v8")
    k("s_mul_i32 s30, s27, 36\ns_sub_u32 s31, s27, 16\ns_mul_i32 s31, s31, 288\ns_add_u32 s31, s31, 16")
    k(f"s_cmp_lt_u32 s27, 16\ns_cselect_b32 s30, s30, s31\ns_mov_b32 s28, {18*1152}\ns_mov_b32 s29, {8*1152}\ns_cselect_b32 s28, s28, {144*1152}\ns_cselect_b32 s29, s29, {72*1152}\ns_cselect_b64 vcc, -1, 0")
    k("s_mul_i32 s32, s30, 1152\ns_lshl_b32 s31, s25, 7\ns_add_u32 s32, s32, s31")
    k("v_cndmask_b32 v8, v7, v4, vcc\nv_mul_u32_u24 v6, 1152, v8\nv_lshl_add_u32 v6, v5, 4, v6")
    k("s_add_u32 s33, s32, s29\ns_add_u32 s34, s32, s28\ns_add_u32 s35, s34, s29")
    for u in range(3):
        for i in range(4): k(f"buffer_load_dwordx4 {park(u, i)}, v6, s[12:15], s{32+i} offen offset:{128*u} nt")
    for u in range(3):
        for c in range(4):
            k(f"s_lshl_b32 s30, s25, 1\ns_add_u32 s30, s30, {2*u + (c >> 1)}\ns_cmp_ge_u32 s30, 9\ns_cselect_b32 s31, 9, 0\ns_cselect_b32 s33, 432, 0\ns_sub_u32 s30, s30, s31")
            k("s_sub_u32 s31, s30, 1\ns_lshr_b32 s31, s31, 1\ns_cmp_lt_u32 s30, 3\ns_cselect_b32 s31, 0, s31\ns_cselect_b32 s34, 0, 2")
            k(f"s_mul_i32 s31, s31, 104\ns_lshl_b32 s30, s30, 1\ns_add_u32 s30, s30, s31\ns_sub_u32 s30, s30, s34\ns_add_u32 s30, s30, s33")
            k(f"s_mul_i32 s31, s27, 6\ns_add_u32 s30, s30, s31\ns_add_u32 s30, s30, {OFF_WO//KBY + (c & 1)}\ns_lshl_b32 s{72+4*u+c}, s30, 10")
    stage_addr(k)
    k("s_waitcnt vmcnt(0)")
    for n in range(5): pack_block(k, n, 3, lambda u, c: (f"s{72+4*u+c}", 0))
    token_get(k, "e")
    k(f"s_lshl_b32 s56, s23, 3\ns_add_u32 s56, s56, {FW}\ns_waitcnt vmcnt(0)")
    publish(k)
    k.label("L_p0_wait")
    stamp(k, 44)
    k.label("L_p0_fetch")
    wq_base(k)
    k("s_lshl_b32 s26, s20, 12\ns_add_u32 s25, s25, s26\ns_mov_b32 m0, s26\ns_barrier")
    for q in range(8):
        for c in range(4): k(f"buffer_load_dwordx4 v1, s[8:11], s25 offen offset:{c*1024} lds")
        k("s_add_u32 m0, m0, 16384\ns_add_u32 s25, s25, 16384")
    if EARLY == "f":
        k("s_cmp_eq_u32 s67, 0\ns_cbranch_scc1 L_layer")
        stage_addr(k)
        k("s_waitcnt vmcnt(32)")
        token_get(k, "c")
        for n in range(8): pack_block(k, n, 6)

def gemm_core(k, NTB, NS, loads, AHEAD, st0, tr, NBUF=2, wwait=None, last=None):
    ACC = 16; WB = ACC + 4 * NS * NTB
    pi = 0
    def take(n):
        nonlocal pi
        r = loads[pi:pi + n]; pi += len(r); return r
    nx = {}
    for f in loads: nx[f.tag] = nx.get(f.tag, 0) + 1
    for f in take(AHEAD): f.fn(k)
    if wwait: wwait(k)
    if tr: k("v_lshrrev_b32 v3, 1, v1\nv_add_u32 v2, 0x10000, v3")
    else: k("v_mov_b32 v3, v1\nv_add_u32 v2, 0x10000, v1")
    def rd(ks, sl):
        i = ks * NS + sl; r = WB + 4 * ((ks % NBUF) * NS + sl); a = f"v{3 if i < 64 else 2}"; o = (i % 64) * 1024
        if tr: return [lgl(f"ds_read_b64_tr_b16 v[{r}:{r+1}], {a} offset:{o}", ("r", ks)), lgl(f"ds_read_b64_tr_b16 v[{r+2}:{r+3}], {a} offset:{o+512}", ("r", ks))]
        return [lgl(f"ds_read_b128 v[{r}:{r+3}], {a} offset:{o}", ("r", ks))]
    for ks in range(NBUF - 1):
        for sl in range(NS):
            for f in rd(ks, sl): f.fn(k)
    treg = lambda n: WB + 4 * ((n + NS * ((18 - int(envs("TK", "6"))) & 1)) % (2 * NS))
    def trd(n):
        TKk = int(envs("TK", "6")); sl, j = divmod(n, TKk); i = (18 - TKk + j) * NS + sl
        return lgl(f"ds_read_b128 v[{treg(n)}:{treg(n)+3}], v{3 if i < 64 else 2} offset:{(i % 64) * 1024}", ("t", n))
    TK = int(envs("TK", "6")) if last else 0
    K1 = 18 - TK
    for ks in range(K1 if TK else 18):
        while k.vmq.count(("x", ks)) < nx[("x", ks)]: take(1)[0].fn(k)
        k.wait_vm(("x", ks)); k.wait_lg(("r", ks))
        if ks == 0: stamp(k, st0)
        mf = []
        for sl in range(NS):
            for tb in range(NTB):
                a = ACC + 4 * (sl * NTB + tb); w = WB + 4 * ((ks % NBUF) * NS + sl); x = 4 * (ks * NTB + tb)
                mf.append(f"{MF} v[{a}:{a+3}], v[{w}:{w+3}], a[{x}:{x+3}], " + ("0" if ks == 0 else f"v[{a}:{a+3}]"))
        fill = [f for sl in range(NS) for f in rd(ks + NBUF - 1, sl)] if ks + NBUF - 1 < (K1 if TK else 18) else []
        if TK and ks == K1 - 1: fill = [trd(n) for n in range(NS)]
        if NBUF == 2 and envs("FRONT", "1") == "1":
            for j, f in enumerate(fill): f.before = j + 1
        outstanding = len(k.vmq) - k.vm_done
        if ks == 17 and last:
            n = len(mf); j = 0
            for i, m in enumerate(mf):
                k(m)
                c = 0
                while j < len(last) and last[j].after <= i and c < 4: last[j].fn(k); j += 1; c += 1
            k("s_nop 3")
            for f in last[j:]: f.fn(k)
            continue
        interleave(k, mf, [fill, take(max(0, AHEAD + 2 - outstanding + (2 if TK else 0)))], budget=8 if NTB == 2 else 12)
    if TK:
        for f in take(len(loads)): f.fn(k)
        per = len(last) // NS + 1
        for sl in range(NS):
            mf = []; pre = {}
            for j in range(TK):
                n = sl * TK + j; ks = K1 + j
                pre[len(mf)] = (lambda k, n=n, ks=ks: (k.wait_vm(("x", ks)), k.wait_lg(("t", n))))
                for tb in range(NTB):
                    a = ACC + 4 * (sl * NTB + tb); w = treg(n); x = 4 * (ks * NTB + tb)
                    mf.append(f"{MF} v[{a}:{a+3}], v[{w}:{w+3}], a[{x}:{x+3}], v[{a}:{a+3}]")
            fill = [trd(n) for n in range(sl * TK + NS, min((sl + 1) * TK + NS, NS * TK))]
            for j, f in enumerate(fill): f.after = NTB * j
            ep = [f for f in last if f.blk == sl - 1]
            for f in ep: f.after = 3
            interleave(k, mf, [fill, ep], pre=pre, budget=12)
        k("s_nop 5")
        for f in last:
            if f.blk == NS - 1: f.fn(k)
    assert pi == len(loads), (pi, len(loads))
def tl(s, tag, post="", cost=8):
    f = F(lambda k: (k.vm(s, tag), k(post) if post else None), cost); f.tag = tag; return f

def p1_addr(k):
    k("s_lshl_b32 s21, s18, 3\ns_and_b32 s22, s17, 7\ns_add_u32 s21, s21, s22")
    k("s_lshr_b32 s29, s17, 3")
    k(f"s_lshl_b32 s56, s21, 7\ns_add_u32 s56, s56, {FA}\nv_and_b32 v2, 15, v0\nv_lshlrev_b32 v2, 3, v2")
    k(f"s_lshl_b32 s26, s21, 2\ns_add_u32 s26, s26, s20")
    k(f"s_mul_i32 s23, s26, {36*KBY}\ns_add_u32 s23, s23, {OFF_XN}\ns_add_u32 s24, s23, {18*KBY}")
def p1_qkv(k):
    p1_addr(k)
    stamp(k, 0)
    k("s_cmp_lg_u32 s20, 0\ns_cbranch_scc1 L_pollx_a")
    if "a" in SP: spoll(k, "a", 16, wg=False)
    else: poll(k, "a", wg=False)
    k("s_barrier")
    stamp(k, 1)
    fresh(k)
    loads = [tl(f"buffer_load_dwordx4 a[{4*(2*ks+tb)}:{4*(2*ks+tb)+3}], v1, s[8:11], s{23+tb} offen offset:{(ks%4)*1024}{LD}", ("x", ks),
                f"s_add_u32 s{23+tb}, s{23+tb}, 4096" if ks % 4 == 3 else "") for ks in range(18) for tb in range(2)]
    T1K = int(envs("T1", "18"))
    if T1K < 18:
        nl = (18 - T1K) * 2
        k(f"v_lshrrev_b32 v4, 4, v1\nv_cmp_gt_u32 vcc, {nl}, v4\nv_lshlrev_b32 v4, 9, v4\nv_mov_b32 v5, {BIG}\ns_lshl_b32 s30, s29, 7\ns_add_u32 s30, s30, {T1K*1024}\nv_cndmask_b32 v4, v5, v4, vcc")
        k("s_add_u32 s31, s30, s24\ns_add_u32 s30, s30, s23")
        p = int(envs("T1P", "6"))
        loads[p:p] = [tl(f"buffer_load_dword v{5+tb}, v4, s[8:11], s{30+tb} offen{LD}", "touch") for tb in range(2)]
    ACC = 16
    k("s_mul_i32 s28, s19, 27\ns_mul_i32 s31, s29, 7\ns_add_u32 s28, s28, s31")
    k("s_lshl_b32 s30, s28, 6\ns_add_u32 s30, s30, s26\ns_lshl_b32 s30, s30, 10\ns_add_u32 s30, s30, s53")
    k(f"s_lshl_b32 s56, s19, 11\ns_lshl_b32 s27, s21, 7\ns_add_u32 s56, s56, s27\ns_lshl_b32 s27, s29, 3\ns_add_u32 s56, s56, s27\ns_add_u32 s56, s56, {FB}")
    for sl in range(7):
        k(f"s_cmp_lt_u32 s31, {9 - sl}\ns_cselect_b32 s{32+2*sl}, {fbits(18 ** -0.5 * LOG2E)}, 1.0\ns_mov_b32 s{33+2*sl}, s{32+2*sl}")
    k(f"s_add_u32 s47, s30, {6*65536}\ns_cmp_eq_u32 s29, 3\ns_cselect_b32 s47, {BIG}, s47")
    epi = []
    for sl in range(7):
        a = ACC + 8 * sl; at = max(9, 2 * sl + 5)
        epi += [line(f"v_pk_mul_f32 v[{a+i}:{a+i+1}], v[{a+i}:{a+i+1}], s[{32+2*sl}:{33+2*sl}]", after=at) for i in (0, 2, 4, 6)]
        epi += [line(f"v_cvt_pk_bf16_f32 v{a+i}, v{a+2*i}, v{a+2*i+1}") for i in range(4)]
        epi += [vml(f"buffer_store_dwordx4 v[{a}:{a+3}], v1, s[8:11], s{30 if sl < 6 else 47} offen sc1")] + ([line("s_add_u32 s30, s30, 65536")] if sl < 5 else [])
        for f in epi:
            if not hasattr(f, "blk"): f.blk = sl
    AH = int(envs("AH1", "10"))
    def wwait(k):
        if EARLY == "f": k(f"s_cmp_eq_u32 s67, 0\ns_cbranch_scc1 2\ns_waitcnt vmcnt({AH + 24})\ns_branch 1")
        k(f"s_waitcnt vmcnt({AH})\ns_barrier")
    gemm_core(k, 2, 7, loads, AH, 2, False, wwait=wwait, last=epi)
    stamp(k, 4)
    signal(k)
    if EARLY in ("p0", "f"): publish_fp(k, FP)
    elif EARLY == "b": early_blocks(k)
    stamp(k, 5)

def p2_attn(k):
    k("s_lshl_b32 s21, s18, 3\ns_and_b32 s22, s17, 7\ns_add_u32 s21, s21, s22")
    k("s_lshr_b32 s48, s17, 3\ns_lshl_b32 s22, s19, 2\ns_add_u32 s22, s22, s48")
    k(f"s_cmp_lg_u32 s20, 0\ns_cbranch_scc1 L_pollx_w0\ns_cmp_lg_u32 s50, 0\ns_cbranch_scc1 L_pollx_w0\ns_mov_b32 s56, {FW}\nv_min_u32 v2, 53, v0\nv_lshlrev_b32 v2, 3, v2")
    poll(k, "w0", wg=False)
    k("v_and_b32 v3, 63, v0\nv_lshrrev_b32 v4, 4, v3")
    k("v_and_b32 v5, 1, v4\nv_lshlrev_b32 v5, 7, v5\nv_xor_b32 v5, v5, v1")
    k("s_mul_i32 s23, s20, 3\ns_lshl_b32 s24, s21, 2\ns_add_u32 s24, s24, s23\ns_sub_i32 s24, s24, 8")
    for c in range(3):
        k(f"s_cmp_lt_i32 s24, {-c}\ns_cselect_b32 s25, {BIG}, 0")
        k(f"v_add_u32 v{6+c}, s25, v1\nv_add_u32 v{9+c}, s25, v5")
    k(f"s_mul_i32 s49, s19, {27*65536}\ns_add_u32 s49, s49, s53")
    k("s_lshl_b32 s24, s24, 10\ns_add_u32 s27, s24, s49")
    k("s_lshl_b32 s25, s48, 17\ns_add_u32 s25, s25, s27")
    k("s_lshl_b32 s23, s23, 10")
    Q, M1, M2, ONE = 16, 32, 36, 40
    L8, LO, HI, BP, OBV, PKA = 44, 45, 46, 47, 12, 5
    k("s_and_b32 s29, s20, 1\ns_lshr_b32 s30, s20, 1")
    k("s_lshl_b32 s32, s21, 2\ns_lshl_b32 s33, s30, 1\ns_add_u32 s32, s32, s33")
    k("s_lshl_b32 s34, s32, 10\ns_add_u32 s34, s34, s49")
    k(f"s_lshl_b32 s33, s48, 1\ns_add_u32 s33, s33, s29\ns_lshl_b32 s33, s33, 16\ns_add_u32 s33, s33, s34\ns_add_u32 s34, s34, {8*65536}")
    k(f"v_and_b32 v12, 15, v3\nv_lshlrev_b32 v46, 2, v4\ns_mov_b32 s35, {fbits(-1e30)}\nv_mov_b32 v47, s35")
    for i in range(4):
        k(f"v_add_u32 v2, {i}, v46\nv_cmp_gt_u32 vcc, v2, v12\nv_mov_b32 v{ONE+i}, 0x3f803f80\ns_nop 0")
        k(f"v_cndmask_b32 v{M1+i}, v47, 0, vcc\nv_cndmask_b32 v{M2+i}, 0, v47, vcc")
    k(f"v_cmp_eq_u32 s[38:39], s48, v4\ns_lshl_b32 s36, s48, 6\nv_lshl_add_u32 v{BP}, v12, 2, s36")
    k("s_cmp_eq_u32 s29, 1\ns_cselect_b64 s[40:41], -1, 0")
    k("s_andn2_b64 s[42:43], s[38:39], s[40:41]\ns_and_b64 s[44:45], s[38:39], s[40:41]")
    k("s_lshl_b32 s36, s22, 1\ns_add_u32 s36, s36, s29")
    k(f"s_lshl_b32 s47, s32, 15\ns_lshl_b32 s37, s36, 9\ns_add_u32 s47, s47, s37\ns_add_u32 s47, s47, {OFF_OF}")
    k(f"s_lshl_b32 s46, s32, 12\ns_lshl_b32 s37, s36, 8\ns_add_u32 s46, s46, s37\ns_add_u32 s46, s46, {OFF_OB}")
    k("s_mul_i32 s36, s29, 12288\ns_lshl_b32 s37, s30, 11\ns_add_u32 s36, s36, s37\ns_add_u32 s37, s37, 24576")
    k("v_and_b32 v44, 3, v3\nv_lshrrev_b32 v48, 2, v3\nv_and_b32 v45, 1, v3\nv_lshlrev_b32 v45, 3, v45\nv_xor_b32 v48, v48, v45\nv_lshl_add_u32 v48, v44, 4, v48\nv_lshlrev_b32 v48, 4, v48")
    k(f"v_lshrrev_b32 v{L8}, 1, v1\nv_mov_b32 v{LO}, {fbits(2.0**-30)}\nv_mov_b32 v{HI}, {fbits(2.0**30)}\ns_mov_b64 s[64:65], {-1 if FORCE_EXACT else 0}")
    k(f"s_lshr_b32 s58, s17, 2\ns_mul_i32 s58, s58, {108*KBY}\ns_add_u32 s58, s58, {OFF_WO}\ns_lshl_b32 s59, s20, 12\ns_add_u32 s58, s58, s59")
    k("v_bfe_u32 v2, v0, 2, 2\nv_min_u32 v2, 2, v2\nv_sub_u32 v2, s21, v2\nv_max_i32 v2, 0, v2\nv_lshlrev_b32 v2, 7, v2\nv_and_b32 v49, 3, v0\nv_lshl_add_u32 v2, v49, 3, v2")
    k(f"s_lshl_b32 s56, s19, 11\ns_add_u32 s56, s56, {FB}")
    poll(k, "b")
    stamp(k, 6)
    fresh(k)
    blocks = [(25, 9), (25, 10), (27, 17), (25, 18), (25, 19), (27, 26)]
    def dma(b):
        sb, nb = blocks[b]
        k(f"s_add_u32 m0, s23, {b*12288}\ns_add_u32 s28, s{sb}, {nb*65536}")
        for c in range(3):
            k.vm(f"buffer_load_dwordx4 v{(6 if b < 3 else 9)+c}, s[8:11], s28 offen offset:{c*1024} lds", ("kv", b // 3))
    for b in range(3): dma(b)
    for i in range(4):
        off = (i >> 1) * 1024 + (i & 1) * 8
        k.vm(f"buffer_load_dwordx2 v[{Q+4*i}:{Q+4*i+1}], v1, s[8:11], s33 offen offset:{off}", "q")
        k.vm(f"buffer_load_dwordx2 v[{Q+4*i+2}:{Q+4*i+3}], v1, s[8:11], s34 offen offset:{off}", "q")
    for b in range(3, 6): dma(b)
    k("v_add_u32 v6, s36, v1\nv_add_u32 v7, s37, v1")
    k("s_add_u32 s36, s36, 36864\ns_add_u32 s37, s37, 36864\nv_add_u32 v8, s36, v48\nv_add_u32 v9, s37, v48")
    k(f"s_lshl_b32 s56, s21, 7\ns_lshl_b32 s27, s22, 3\ns_add_u32 s56, s56, s27\ns_add_u32 s56, s56, {FC}")
    k("v_bfe_u32 v10, v0, 3, 3\nv_mul_u32_u24 v10, 1152, v10\nv_and_b32 v11, 7, v0\nv_lshl_add_u32 v10, v11, 4, v10\nv_add_u32 v11, 9216, v10")
    k("s_mov_b32 s36, s47\nv_lshrrev_b32 v5, 2, v1")
    KR, VR = 0, 80
    k.wait_vm("q")
    k("s_barrier")
    stamp(k, 7)
    for i in range(4):
        k(f"v_cndmask_b32 v{Q+4*i+2}, 0, v{Q+4*i+2}, s[42:43]\nv_cndmask_b32 v{Q+4*i+3}, 0, v{Q+4*i+3}, s[44:45]")
    S0 = 48; OA = S0 + 144; TM = OA + 24
    def run(mf, valu, gap_first=0, frac=0.9):
        tot = sum(f.cost for f in valu); acc = 0; mi = 0
        for f in valu:
            while mi < len(mf) and acc >= gap_first + (tot - gap_first) * mi / max(len(mf), 1) * frac:
                mf[mi](k); mi += 1
            f.fn(k); acc += f.cost
        while mi < len(mf): mf[mi](k); mi += 1
    def epi(i, check):
        o = OA + 12 * (i & 1); t = TM + 2
        L = [line(f"v_rcp_f32 v{t}, v{o+8}", 8),
             line(f"v_cndmask_b32 v{o+4}, v{o+4}, v{o+6}, s[40:41]"), line(f"v_cndmask_b32 v{o+5}, v{o+5}, v{o+7}, s[40:41]")]
        if check:
            L += [line(f"v_med3_f32 v{o+9}, v{o+8}, v{LO}, v{HI}"), line(f"v_sub_f32 v{o+9}, v{o+9}, v{o+8}")]
            L += [line(f"v_fma_f32 v{o+9}, v{o+j}, 0, v{o+9}") for j in range(6)]
            L += [line(f"v_cmp_neq_f32 vcc, 0, v{o+9}")]
        for j in range(6): L.append(line(f"v_mul_f32 v{o+j}, v{o+j}, v{t}"))
        if check: L.append(line("s_or_b64 s[64:65], s[64:65], vcc"))
        for j in (2, 0, 1): L.append(line(f"v_cvt_pk_bf16_f32 v{o+(j if j < 2 else 6)}, v{o+2*j}, v{o+2*j+1}"))
        L.append(lgl(f"ds_bpermute_b32 v{TM+3}, v{BP}, v{o+6}", ("bp", i)))
        L.append(vml(f"buffer_store_dwordx2 v[{o}:{o+1}], v{L8}, s[8:11], s47 offen sc1"))
        L.append(line(f"s_add_u32 s47, s47, 16384"))
        L2 = [line(f"s_mov_b32 vcc_lo, {(0xffff, 0xffff0000, 0, 0)[i]}\ns_mov_b32 vcc_hi, {(0, 0, 0xffff, 0xffff0000)[i]}", 8),
              F(lambda k: (k.wait_lg(("bp", i)), k(f"v_cndmask_b32 v{OBV}, v{OBV}, v{TM+3}, vcc")), 8)]
        if i == 3: L2.append(vml(f"buffer_store_dword v{OBV}, v5, s[8:11], s46 offen sc1"))
        return (L, L2) if check else L + L2
    def variant(lim, fast, first):
        nm = f"{'f' if fast else 'e'}{'' if first else 'r'}{lim}"
        k.label(f"L_attn_{nm}")
        k.lgq = []; k.lg_done = 0
        tiles = lambda i: list(range(max(i, lim), i + 17))
        pairs = lambda i: list(range(max(i, lim) >> 1, ((i + 16) >> 1) + 1))
        kreads, vreads, extra = [], [], []
        if first:
            for kt in range(lim, 20):
                off = (kt >> 1) * 1024 + (kt & 1) * 8
                kreads += [lgl(f"ds_read_b64 a[{KR+4*kt}:{KR+4*kt+1}], v6 offset:{off}", ("k", kt)), lgl(f"ds_read_b64 a[{KR+4*kt+2}:{KR+4*kt+3}], v7 offset:{off}", ("k", kt))]
            vreads = [line("s_waitcnt vmcnt(0)\ns_barrier", 8)]
            for p in range(lim // 2, 10):
                for b in range(2):
                    for hf in range(2):
                        r = VR + 8 * p + 4 * b + 2 * hf
                        vreads.append(lgl(f"ds_read_b64_tr_b16 a[{r}:{r+1}], v{8+b} offset:{p*1024 + hf*8}", ("v", p)))
            wo = [lambda k: (k.wait_lg_all(), k("s_mov_b32 m0, s59\ns_barrier"))]
            for q in range(7):
                for c in range(4):
                    wo.append(lambda k, c=c: k(f"buffer_load_dwordx4 v1, s[8:11], s58 offen offset:{c*1024} lds" + ("\ns_add_u32 m0, m0, 16384\ns_add_u32 s58, s58, 16384" if c == 3 else "")))
            def pkl(u):
                def f(k):
                    k(f"s_cmp_eq_u32 s67, 0\ns_cbranch_scc1 L_pk_{nm}_{u}")
                    for i in range(4): k(f"buffer_load_dwordx4 {lpark(u, i)}, v{10 + (i & 1)}, s[60:63], s{72 + 2*u + (i >> 1)} offen nt")
                    k.label(f"L_pk_{nm}_{u}")
                return f
            extra = [pkl(0), pkl(1), pkl(2)] + wo
            if envs("NOWO", ""): extra = extra[:4]
            if EARLY == "w":
                def pkb(n):
                    def f(k):
                        k(f"s_cmp_eq_u32 s67, 0\ns_cbranch_scc1 L_pb_{nm}_{n}")
                        if n == 0: stage_addr(k)
                        pack_block(k, n, 6)
                        k.label(f"L_pb_{nm}_{n}")
                    return f
                extra = [pkl(0), pkl(1), pkl(2), pkb(0), pkb(1), wo[0]]
                for n in range(6): extra += [pkb(2 + n)] + wo[1 + 28 * n // 6: 1 + 28 * (n + 1) // 6]
        def qk1(i, kt, s):
            c = f"v[{M2}:{M2+3}]" if kt == i + 16 else f"v[{M1}:{M1+3}]" if kt == i else "0"
            def f(k):
                if first: k.wait_lg(("k", kt))
                k(f"{MF} v[{s}:{s+3}], a[{KR+4*kt}:{KR+4*kt+3}], v[{Q+4*i}:{Q+4*i+3}], {c}")
            return f
        def pv1(i, p, b, s):
            o = OA + 12 * (i & 1) + 4 * b
            A = f"v[{ONE}:{ONE+3}]" if b == 2 else f"a[{VR+8*p+4*b}:{VR+8*p+4*b+3}]"
            def f(k):
                if first: k.wait_lg(("v", p))
                k(f"{MF} v[{o}:{o+3}], {A}, v[{s}:{s+3}], " + ("0" if p == pairs(i)[0] else f"v[{o}:{o+3}]"))
            return f
        if fast:
            steps = [(i, p) for i in range(4) for p in pairs(i)]
            QL, PL = 2, int(envs("PL", "7")); NB = QL + PL + 1; SPC = int(envs("SP", "14"))
            buf = lambda s: S0 + 8 * (s % NB)
            def qks(s):
                if s >= len(steps): return []
                i, p = steps[s]
                return [qk1(i, 2 * p + hf, buf(s) + 4 * hf) for hf in range(2) if 2 * p + hf in tiles(i)]
            def pvs(s):
                if not 0 <= s < len(steps): return []
                return [pv1(*steps[s], b, buf(s)) for b in range(3)]
            def exps(s):
                if s >= len(steps): return []
                i, p = steps[s]; b = buf(s); va, vb = 2 * p in tiles(i), 2 * p + 1 in tiles(i)
                E = lambda r: line(f"v_exp_f32 v{r}, v{r}", 8); C = lambda d, r: line(f"v_cvt_pk_bf16_f32 v{d}, v{r}, v{r+1}")
                Z = lambda d: line(f"v_mov_b32 v{d}, 0")
                if va and vb: return [E(b), E(b+1), E(b+2), E(b+3), E(b+4), C(b, b), E(b+5), C(b+1, b+2), E(b+6), E(b+7), C(b+2, b+4), C(b+3, b+6)]
                if va: return [E(b), E(b+1), E(b+2), E(b+3), C(b, b), C(b+1, b+2), Z(b+2), Z(b+3)]
                return [E(b+4), E(b+5), E(b+6), E(b+7), Z(b), Z(b+1), C(b+2, b+4), C(b+3, b+6)]
            n0 = min(12, len(kreads))
            for f in kreads[:n0]: f.fn(k)
            side = [f.fn for f in kreads[n0:]]; nk = len(side)
            side = side + [f.fn for f in vreads]
            for s in range(QL):
                for m in qks(s):
                    m(k)
                    for _ in range(2):
                        if side and nk > 0: side.pop(0)(k); nk -= 1
            k("s_nop 4")
            last = {i: max(s for s, (ii, p) in enumerate(steps) if ii == i) for i in range(4)}
            pend = []; pend2 = []; pvp = 0; s = 0; nsteps = max(len(steps), PL) + 2
            while pvp < len(steps):
                if s in [last[i] + 1 for i in range(3)]: stamp(k, 8 + [last[i] + 1 for i in range(3)].index(s))
                todo = []
                while s >= PL and pvp < min(s, len(steps)) and len(todo) < 2 and not (todo and todo[-1] in last.values()):
                    todo.append(pvp); pvp += 1
                mf = [m for t in todo for m in pvs(t)] + qks(s + QL)
                sd = []
                while side and (len(sd) < SPC): sd.append(side.pop(0))
                if not side and not sd and extra:
                    q = -(-len(extra) // max(1, nsteps - 2 - s)); sd = extra[:q]; extra = extra[q:]
                va = exps(s)
                if pend and len(va) < 12: va = va + [line("s_nop 7", 32)]
                va = va + pend2 + pend; pend2 = []
                if pend: pend2 = later
                pend = []
                for i in range(4):
                    if last[i] in todo: pend, later = epi(i, True)
                mix = []
                a, b2 = list(mf), list(sd)
                while a or b2:
                    if b2:
                        for _ in range(-(-len(b2) // max(1, len(a)))): mix.append(b2.pop(0))
                    if a: mix.append(a.pop(0))
                if not va: va = [line("s_nop 1")]
                run(mix, va, 4, 0.85)
                s += 1
            for f in extra: f(k)
            assert not side
            for f in pend2: f.fn(k)
            k("s_nop 7")
            for f in pend + later: f.fn(k)
            k("s_cmp_eq_u64 s[64:65], 0\ns_cbranch_scc1 L_attn_done")
            k(f"s_waitcnt vmcnt(0)\ns_mov_b32 s47, s36\ns_branch L_attn_er{lim}")
            return
        sreg = lambda i, kt: S0 + 72 * (i & 1) + 4 * (kt - 2 * (i >> 1))
        qk = lambda i: [qk1(i, kt, sreg(i, kt)) for kt in tiles(i)]
        pv = lambda i: [pv1(i, p, b, sreg(i, 2 * p)) for b in range(3) for p in pairs(i)]
        def softmax(i):
            L = []
            regs = [sreg(i, kt) + j for kt in tiles(i) for j in range(4)]
            m = TM; t = TM + 1
            ch = [regs[0::2], regs[1::2]]
            for c in range(2): L.append(line(f"v_max_f32 v{m+c}, v{ch[c][0]}, v{ch[c][1]}"))
            for j in range(2, len(ch[0]), 2):
                for c in range(2): L.append(line(f"v_max3_f32 v{m+c}, v{m+c}, v{ch[c][j]}, v{ch[c][j+1]}"))
            L.append(line(f"v_max_f32 v{m}, v{m}, v{t}"))
            for sw in ("v_permlane16_swap_b32", "v_permlane32_swap_b32"):
                L.append(line(f"v_mov_b32 v{t}, v{m}\ns_nop 1\n{sw} v{m}, v{t}\nv_max_f32 v{m}, v{m}, v{t}", 16))
            for p in pairs(i):
                base = sreg(i, 2 * p)
                for hf in range(2):
                    kt = 2 * p + hf; s = sreg(i, kt)
                    if kt in tiles(i):
                        for j in range(4): L.append(line(f"v_sub_f32 v{s+j}, v{s+j}, v{m}"))
                        for j in range(4): L.append(line(f"v_exp_f32 v{s+j}, v{s+j}", 8))
                for hf in range(2):
                    kt = 2 * p + hf; s = sreg(i, kt)
                    for j in range(2):
                        if kt in tiles(i): L.append(line(f"v_cvt_pk_bf16_f32 v{base+2*hf+j}, v{s+2*j}, v{s+2*j+1}"))
                        else: L.append(line(f"v_mov_b32 v{base+2*hf+j}, 0"))
            return L
        for f in kreads: f.fn(k)
        for m in qk(0): m(k)
        k("s_nop 7")
        for i in range(4):
            mf = (pv(i - 1) if i >= 1 else []) + (qk(i + 1) if i < 3 else [])
            if i == 0: mf = mf + [f.fn for f in vreads]
            if i == 1: mf = extra + mf
            va = softmax(i)
            if i >= 2: va = epi(i - 2, False) + va
            run(mf, va, 8 if i else 0)
            k("s_nop 1")
        run(pv(3), epi(2, False))
        k("s_nop 7")
        for f in epi(3, False): f.fn(k)
        k("s_branch L_attn_done")
    v = "f" if FAST else "e"
    for lim in (16, 12, 8, 4): k(f"s_cmp_eq_u32 s32, {(16 - lim) // 2}\ns_cbranch_scc1 L_attn_{v}{lim}")
    for lim in (0, 4, 8, 12, 16): variant(lim, FAST, True)
    if FAST:
        for lim in (0, 4, 8, 12, 16): variant(lim, False, False)
    k.label("L_attn_done")
    stamp(k, 12)
    signal(k)
    if EARLY not in ("p0", "f"): publish_fp(k, FP)
    late_blocks(k)
    stamp(k, 13)

AG, AU, T1, T2, XV, RING = 16, 32, 48, 64, 80, 112
WQR = [RING + 4 * i for i in range(21, 35)] + [RING + 4 * i for i in range(6)] + [AU + 4 * i for i in range(4)] + [RING + 4 * i for i in range(6, 14)]
RESID = RING + 4 * 18
G = 3; LEAD = 36 - G
def wload(p):
    r = RING + 4 * (p % 36)
    if p >= 486: return []
    s = f"buffer_load_dwordx4 v[{r}:{r+3}], v1, s[12:15], s25 offen offset:{(p%4)*1024}"
    return [vml(s, ("w", p), cost=int(envs("LC", "8")))] + ([line("s_add_u32 s25, s25, 4096")] if p % 4 == 3 else [])

def p3_wo(k):
    NS = 6; ACC = 16; NB3 = int(envs('NB3', '3')); RES = ACC + 24 + 24 * NB3
    k("s_lshl_b32 s21, s16, 2\ns_and_b32 s22, s17, 3\ns_add_u32 s26, s21, s22")
    k("s_lshr_b32 s22, s17, 2")
    k("s_lshl_b32 s21, s26, 2\ns_add_u32 s21, s21, s20")
    k(f"s_lshl_b32 s23, s21, 14\ns_add_u32 s23, s23, {OFF_OF}")
    k(f"s_lshl_b32 s24, s26, 13\ns_lshl_b32 s30, s20, 6\ns_add_u32 s24, s24, s30\ns_add_u32 s24, s24, {OFF_OB}")
    k("s_lshr_b32 s28, s22, 2\ns_mul_i32 s28, s28, 9\ns_and_b32 s29, s22, 3\ns_lshl_b32 s30, s29, 1\ns_add_u32 s30, s30, 1\ns_cmp_eq_u32 s29, 0\ns_cselect_b32 s30, 0, s30\ns_add_u32 s28, s28, s30")
    k(f"s_mul_i32 s27, s21, 18\ns_add_u32 s27, s27, s28\ns_lshl_b32 s27, s27, 10\ns_add_u32 s40, s27, {OFF_XF}\ns_add_u32 s41, s27, {OFF_X1}")
    k("v_lshrrev_b32 v10, 1, v1\nv_and_b32 v11, 15, v0\nv_lshlrev_b32 v11, 2, v11\nv_bfe_u32 v12, v0, 4, 2\nv_lshl_add_u32 v11, v12, 9, v11")
    k(f"s_lshr_b32 s56, s26, 1\ns_lshl_b32 s56, s56, 7\ns_add_u32 s56, s56, {FC}\nv_and_b32 v2, 15, v0\nv_lshlrev_b32 v2, 3, v2")
    poll(k, "c")
    stamp(k, 14)
    fresh(k)
    loads = []
    for ks in range(16):
        for h in range(2):
            loads.append(tl(f"buffer_load_dwordx2 a[{4*ks+2*h}:{4*ks+2*h+1}], v10, s[8:11], s23 offen offset:{(ks%4)*1024 + 512*h}{LD}", ("x", ks),
                            "s_add_u32 s23, s23, 4096" if ks % 4 == 3 and h else "", 4))
    for q in range(2):
        for j in range(4):
            loads.append(tl(f"buffer_load_dword a{64+4*q+j}, v11, s[8:11], s24 offen offset:{(j>>1)*2048 + (j&1)*256}{LD}", ("x", 16 + q),
                            "s_add_u32 s24, s24, 4096" if j == 3 else "", 4))
    for pr in range(3): loads.append(tl(f"buffer_load_dwordx4 v[{RES+4*pr}:{RES+4*pr+3}], v1, s[8:11], s40 offen offset:{pr*1024}{LD}", "res"))
    if envs("T3", "0") == "1":
        k(f"v_lshlrev_b32 v4, 3, v1\nv_cmp_gt_u32 vcc, 256, v1\nv_mov_b32 v5, {BIG}\ns_lshl_b32 s30, s22, 11\ns_add_u32 s30, s30, s23\nv_cndmask_b32 v4, v5, v4, vcc")
        k.vm(f"buffer_load_dword v5, v4, s[8:11], s30 offen{LD}", "touch")
    gemm_core(k, 1, NS, loads, int(envs("AH3", "14")), 15, False, NB3)
    k.wait_vm("res")
    stamp(k, 16)
    k("s_mov_b32 s31, 0xffff0000\ns_mov_b32 s32, 0x3f803f80\nv_mov_b32 v8, 0\nv_mov_b32 v9, 0\nv_mov_b32 v10, 0\ns_add_u32 s33, s100, s50")
    k(f"v_cmp_gt_u32 vcc, 256, v1\nv_mov_b32 v7, {BIG}\nv_mov_b32 v11, s33\ns_cmp_lg_u32 s29, 0\ns_cbranch_scc1 L_p3_two")
    for pr in (2, 0, 1):
        for h in range(4):
            a = ACC + 8 * pr + 2 * h; r = RES + 4 * pr + h
            k(f"v_lshlrev_b32 v4, 16, v{r}\nv_and_b32 v5, s31, v{r}\nv_pk_add_f32 v[4:5], v[4:5], v[{a}:{a+1}]\nv_cvt_pk_bf16_f32 v{r}, v4, v5")
        k(f"buffer_store_dwordx4 v[{RES+4*pr}:{RES+4*pr+3}], v1, s[8:11], s41 offen offset:{pr*1024} sc1")
        for h in range(4): k(f"v_dot2c_f32_bf16 v8, s32, v{RES+4*pr+h}\nv_dot2c_f32_bf16 v9, v{RES+4*pr+h}, v{RES+4*pr+h}")
        for h in (0, 2): k(f"v_bitop3_b32 v10, v10, v{RES+4*pr+h}, v{RES+4*pr+h+1} bitop3:0x96")
        if pr == 2: k.label("L_p3_two")
    k(f"v_cndmask_b32 v7, v7, v1, vcc\ns_lshl_b32 s30, s21, 11\ns_lshl_b32 s31, s22, 8\ns_add_u32 s30, s30, s31\ns_add_u32 s30, s30, {OFF_STAT}")
    for sw in ("v_permlane16_swap_b32", "v_permlane32_swap_b32"):
        k(f"v_mov_b32 v4, v10\nv_mov_b32 v5, v8\nv_mov_b32 v6, v9\n{sw} v10, v4\n{sw} v8, v5\n{sw} v9, v6\nv_xor_b32 v10, v10, v4\nv_add_f32 v8, v8, v5\nv_add_f32 v9, v9, v6")
    k("v_bitop3_b32 v10, v10, v8, v9 bitop3:0x96")
    k.vm(f"buffer_store_dwordx4 v[8:11], v7, s[8:11], s30 offen sc1")
    stamp(k, 17)
    if not CKD:
        k(f"s_lshl_b32 s56, s26, 7\ns_lshl_b32 s27, s22, 3\ns_add_u32 s56, s56, s27\ns_add_u32 s56, s56, {FE2}")
        signal(k)
    stamp(k, 18)

def p4_ffn(k):
    xreg = lambda ks, tb: (ar(4 * (ks * 4 + tb), 4) if ks < 16 else vr(XV + 4 * (ks * 4 + tb - 64), 4))
    if envs("FMAP", "2") == "2":
        k("s_lshl_b32 s21, s19, 1\ns_and_b32 s22, s17, 1\ns_add_u32 s21, s21, s22")
        k("s_lshl_b32 s22, s18, 4\ns_lshr_b32 s23, s17, 1\ns_add_u32 s22, s22, s23")
    else:
        k("s_and_b32 s21, s16, 1\ns_lshl_b32 s21, s21, 2\ns_and_b32 s22, s17, 3\ns_add_u32 s21, s21, s22")
        k("s_lshr_b32 s22, s16, 1\ns_lshl_b32 s22, s22, 3\ns_lshr_b32 s23, s17, 2\ns_add_u32 s22, s22, s23")
    k(f"s_lshl_b32 s24, s21, 2\ns_add_u32 s24, s24, s20\ns_mul_i32 s24, s24, {486*KBY}\ns_add_u32 s24, s24, {OFF_WF}")
    k(f"s_add_u32 s12, s4, s24\ns_addc_u32 s13, s5, 0\ns_mov_b32 s14, {486*KBY}\ns_mov_b32 s15, 0x00020000\ns_mov_b32 s25, 0")
    poll_fp(k, "p", FP)
    fresh(k)
    PRE = int(envs("PRE", "24")); FILL = int(envs("FILL", "27")); MID = (FILL + LEAD) // 2
    for p in range(PRE):
        for f in wload(p): f.fn(k)
    k(f"s_lshl_b32 s23, s22, 2\ns_add_u32 s23, s23, s20\ns_lshl_b32 s44, s23, 11\ns_add_u32 s44, s44, {OFF_STAT}\ns_mul_i32 s45, s23, {18*KBY}\ns_add_u32 s45, s45, {OFF_X1}")
    ln_consts(k)
    k("v_and_b32 v12, 15, v0\nv_lshlrev_b32 v12, 4, v12\nv_bfe_u32 v5, v0, 4, 2\nv_lshl_add_u32 v12, v5, 9, v12\ns_add_u32 s46, s100, s50")
    X = 16; T = 88; CK = T + 12
    k("v_bfe_u32 v4, v0, 2, 2\nv_cmp_eq_u32 vcc, v4, v5\nv_and_b32 v4, 1, v0\nv_lshlrev_b32 v4, 4, v4\nv_mov_b32 v244, 0x3f80\nv_lshlrev_b32 v4, v4, v244\nv_cndmask_b32 v4, 0, v4, vcc")
    k("v_and_b32 v245, 2, v0\nv_cmp_eq_u32 vcc, 0, v245\nv_mov_b32 v244, 0\nv_mov_b32 v245, 0\nv_mov_b32 v248, 0\nv_mov_b32 v249, 0\nv_cndmask_b32 v246, 0, v4, vcc\nv_cndmask_b32 v247, v4, 0, vcc")
    if not CKD:
        k(f"s_lshl_b32 s56, s22, 7\ns_add_u32 s56, s56, {FE2}\nv_and_b32 v2, 7, v0\nv_lshlrev_b32 v2, 3, v2")
        poll(k, "d")
    k(f"s_mov_b32 s57, {SPIN}\ns_lshl_b32 s26, s20, 10\nv_add_u32 v2, s26, v1\nv_add_u32 v3, 0x10000, v2\ns_mov_b32 s47, {1 if FORCE_RETRY else 0}")
    if CKD:
        k(f"s_cmp_lg_u32 s20, 0\ns_cbranch_scc1 L_p4_bar\nv_lshlrev_b32 v4, 4, v1\nv_and_b32 v4, 0x1fff, v4")
        k.label("L_p4_in")
        k(f"buffer_load_dword v5, v4, s[8:11], s44 offen offset:12{LD}\ns_sub_u32 s57, s57, 1\ns_waitcnt vmcnt(0)\nv_cmp_eq_u32 vcc, s46, v5\ns_cmp_eq_u32 s57, 0\ns_cbranch_scc1 L_p4_bar")
        k("s_cmp_eq_u64 vcc, -1\ns_cbranch_scc0 L_p4_in")
        k.label("L_p4_bar")
        k("s_barrier")
    k("v_mov_b32 v254, s100\nv_mov_b32 v255, s101")
    publish_fp(k, FP2)
    k(f"s_mov_b32 s30, 0x3f803f80\ns_lshl_b32 s56, s21, 8\ns_add_u32 s56, s56, {FP2}\nv_and_b32 v6, 31, v0\nv_min_u32 v6, 26, v6\nv_lshlrev_b32 v6, 3, v6")
    k.label("L_p4_go")
    if STAMP: k("v_readlane_b32 s90, v15, 46\ns_add_u32 s90, s90, 1\ns_nop 1\nv_writelane_b32 v15, s90, 46")
    k(f"buffer_load_dwordx4 v[{T}:{T+3}], v12, s[8:11], s44 offen{LD}\nbuffer_load_dwordx4 v[{T+4}:{T+7}], v12, s[8:11], s44 offen offset:256{LD}")
    stamp(k, 19)
    k.vmq.append("st")
    k("s_mov_b32 s23, s45")
    for ks in range(18):
        k.vm(f"buffer_load_dwordx4 v[{X+4*ks}:{X+4*ks+3}], v1, s[8:11], s23 offen offset:{(ks%4)*1024}{LD}", ("x", ks))
        if ks % 4 == 3: k("s_add_u32 s23, s23, 4096")
    k.wait_vm("st")
    k(f"v_bitop3_b32 v{CK}, v{T}, v{T+1}, v{T+2} bitop3:0x96\nv_bitop3_b32 v{T+2}, v{T+4}, v{T+5}, v{T+6} bitop3:0x96\nv_xor_b32 v{CK}, v{CK}, v{T+2}")
    k(f"v_xor_b32 v{CK+1}, s46, v{T+3}\nv_bitop3_b32 v{CK+1}, v{CK+1}, v{T+7}, s46 bitop3:0xf6")
    k(f"v_add_f32 v{T}, v{T}, v{T+4}\nv_add_f32 v{T+1}, v{T+1}, v{T+5}")
    red_rows(k, T, T + 2)
    k(f"v_mul_f32 v{T}, s31, v{T}\nv_sub_f32 v{T+3}, 0, v{T}\ns_mov_b32 s26, 0x00003f80\ns_mov_b32 s27, 0x3f800000")
    kk = KB(); red_rows(kk, T + 1, T + 2)
    kk(f"v_mul_f32 v{T+1}, s31, v{T+1}\nv_fma_f32 v{T+1}, -v{T}, v{T}, v{T+1}\nv_max_f32 v{T+1}, 0, v{T+1}\nv_add_f32 v{T+1}, {fbits(1e-5)}, v{T+1}")
    kk(f"v_and_b32 v4, 15, v0\nv_lshlrev_b32 v4, 2, v4\nv_add_u32 v4, {144*KBY}, v4\ns_lshl_b32 s33, s20, 6\nv_add_u32 v5, s33, v4")
    MC = envs("MC", "1") == "1"; DD, CQ4, SEL = 224, 240, 244
    assert FILL <= 28
    def fin1(ks):
        src = (lambda i: DD + 8 * (ks & 1) + 2 * i) if MC else (lambda i: T + 4 + 2 * i)
        for i in range(4): k(f"v_cvt_pk_bf16_f32 v{X+4*ks+i}, v{src(i)}, v{src(i)+1}")
        k.lg(f"ds_write_b128 v{2 if ks < 16 else 3}, v[{X+4*ks}:{X+4*ks+3}] offset:{(ks % 16) * 4096}")
    if MC:
        assert CKD
        for i in range(4): k(f"v_mov_b32 v{CQ4+i}, v{T+3}")
        k("s_nop 0")
    for ks in range(18):
        k.wait_vm(("x", ks))
        if MC:
            d = DD + 8 * (ks & 1)
            k(f"{MF} v[{d}:{d+3}], v[{SEL+2}:{SEL+5}], v[{X+4*ks}:{X+4*ks+3}], v[{CQ4}:{CQ4+3}]")
            k(f"v_bitop3_b32 v{CK}, v{CK}, v{X+4*ks}, v{X+4*ks+1} bitop3:0x96\nv_bitop3_b32 v{CK}, v{CK}, v{X+4*ks+2}, v{X+4*ks+3} bitop3:0x96")
            k(f"{MF} v[{d+4}:{d+7}], v[{SEL}:{SEL+3}], v[{X+4*ks}:{X+4*ks+3}], v[{CQ4}:{CQ4+3}]")
            if ks: fin1(ks - 1)
        else:
            for i in range(4): k(f"v_dot2_f32_bf16 v{T+4+2*i}, v{X+4*ks+i}, s26, v{T+3}\nv_dot2_f32_bf16 v{T+5+2*i}, v{X+4*ks+i}, s27, v{T+3}")
            if CKD:
                for i in (0, 2): k(f"v_bitop3_b32 v{CK}, v{CK}, v{X+4*ks+i}, v{X+4*ks+i+1} bitop3:0x96")
            fin1(ks)
        if ks == 0:
            k.lines += kk.lines
            k.lg(f"ds_write_b32 v5, v{T+1}")
        if ks == 12: k.vm(f"buffer_load_dwordx2 v[{T+14}:{T+15}], v6, s[8:11], s56 offen sc1", "fp2")
    post = (lambda: fin1(17)) if MC else (lambda: None)
    if CKD:
        red_rows(k, CK, T + 2, "v_xor_b32")
        post()
        k(f"v_or_b32 v{CK}, v{CK}, v{CK+1}\nv_cmp_ne_u32 vcc, s47, v{CK}\ns_mov_b32 s47, 0\ns_cmp_eq_u32 s57, 0\ns_cbranch_scc1 L_p4_ok\ns_sub_u32 s57, s57, 1\ns_cmp_eq_u64 vcc, 0\ns_cbranch_scc0 L_p4_go")
        k.label("L_p4_ok")
    for p in range(PRE, FILL):
        for f in wload(p): f.fn(k)
    k("v_mov_b32 v2, v1\nv_add_u32 v3, 0x10000, v1")
    HB = 72 * KBY
    k(f"s_mov_b32 s33, {fbits(-LOG2E)}")
    k(f"s_lshl_b32 s29, s20, 14\ns_add_u32 s29, s29, {HB}\ns_mov_b32 s28, 8")
    k("s_mov_b32 s34, 7")
    stamp(k, 20)
    k.wait_lg_all(); k("s_barrier")
    fp2 = [F(lambda k: (k.wait_vm("fp2"), k(f"v_cmp_eq_u64 s[48:49], s[100:101], v[{T+14}:{T+15}]")), 8, after=2, before=6)]

    for tb in range(4): k.lg(f"ds_read_b32 v{9+tb}, v4 offset:{64*tb}", "var")
    consts = [F(lambda k: k.wait_lg("var"), 4, after=4)]
    consts += [line(f"v_rsq_f32 v{5+tb}, v{9+tb}", 8) for tb in range(4)] + [line(f"v_sqrt_f32 v{9+tb}, v{9+tb}", 8) for tb in range(4)]
    consts += [line(f"v_mul_f32 v{5+j}, s33, v{5+j}") for j in range(8)]
    def xreads(lo, hi):
        return [lgl(f"ds_read_b128 {xreg(ks, tb)}, v{2 if ks < 16 else 3} offset:{((ks * 4 + tb) % 64) * 1024}", ("xr", ks)) for ks in range(lo, hi) for tb in range(4)]
    def phase(p0, acc, streams, xr=None, pre_extra=None, budget=8, xwait=None, lead=(LEAD, LEAD)):
        mf = []; pre = {}; loads = []
        for g in range(18 // G):
            def p(k, g=g):
                if pre_extra and g in pre_extra: pre_extra[g](k)
                k.wait_vm(("w", p0 + g * G + G - 1), force=True)
                if xr is not None or xwait: k.wait_lg(("xr", g * G + G - 1))
            pre[len(mf)] = p
            n = 18 + lead[1] - lead[0]
            for q in range(p0 + lead[0] + n * g // 6, p0 + lead[0] + n * (g + 1) // 6):
                assert q < p0 + g * G + 36
                for f in wload(q):
                    f.after = len(mf); f.before = len(mf) + 4 * G; loads.append(f)
            for tb in range(4):
                for j in range(G):
                    ks = g * G + j; r = RING + 4 * ((p0 + ks) % 36); a = acc + 4 * tb
                    mf.append(f"{MF} v[{a}:{a+3}], v[{r}:{r+3}], {xreg(ks, tb)}, " + ("0" if ks == 0 else f"v[{a}:{a+3}]"))
        st = [loads] + streams
        if xr:
            for j, f in enumerate(xr):
                g = j // (4 * G); f.after = max(f.after, 4 * G * g - 4); f.before = 4 * G * (g + 1) - 3
            st.append(xr)
        interleave(k, mf, st, pre=pre, budget=budget)
    def finish():
        L = [line("v_add_u32 v4, s29, v1")]
        for tb in range(4):
            for i in range(4): L.append(line(f"v_mul_f32 v{T1+4*tb+i}, v{T1+4*tb+i}, v{AU+4*tb+i}", after=3))
            for i in range(4): L.append(line(f"v_mul_f32 v{T1+4*tb+i}, v{T1+4*tb+i}, v{T2+4*tb+i}"))
            for i in range(2): L.append(line(f"v_cvt_pk_bf16_f32 v{T2+4*tb+i}, v{T1+4*tb+2*i}, v{T1+4*tb+2*i+1}"))
            L.append(lgl(f"ds_write_b64 v4, v[{T2+4*tb}:{T2+4*tb+1}] offset:{tb*1024}", "hw"))
        L += [line("s_add_u32 s29, s29, s28"), line("s_sub_u32 s28, 4096, s28"), line("s_sub_u32 s34, s34, 1")]
        return L
    def expo():
        L = []
        for tb in range(4):
            for i in range(4): L.append(line(f"v_mul_f32 v{T1+4*tb+i}, v{5+tb}, v{AG+4*tb+i}", after=2))
            for i in range(4): L.append(line(f"v_exp_f32 v{T2+4*tb+i}, v{T1+4*tb+i}", 8))
            for i in range(4): L.append(line(f"v_fma_f32 v{T2+4*tb+i}, v{T2+4*tb+i}, v{9+tb}, v{9+tb}"))
            for i in range(4): L.append(line(f"v_rcp_f32 v{T2+4*tb+i}, v{T2+4*tb+i}", 8))
        return L
    xr = xreads(0, 18)
    for f in xr[:4 * G]: f.fn(k)
    stamp(k, 21); stamp(k, 30, True)
    phase(0, AG, [consts, fp2], xr=xr[4 * G:], lead=(FILL, MID), budget=12)
    phase(18, AU, [expo()], lead=(MID, LEAD), budget=12)
    k(f"v_add_u32 v2, {HB}, v1\nv_add_u32 v3, {HB + 0x10000}, v1")
    its = []
    for fb in range(1, 8):
        m0 = k.mark()
        phase(36 * fb, AG, [finish()])
        phase(36 * fb + 18, AU, [expo()])
        its.append(k.lines[m0:]); del k.lines[m0:]
    k.label("L_ffn_gu")
    k.lines += fold(its)
    k("s_cmp_lg_u32 s34, 0\ns_cbranch_scc1 L_ffn_gu")
    k("v_mov_b32 v4, v2\ns_cmp_eq_u64 s[48:49], -1\ns_cbranch_scc1 L_pollx_p2")
    poll_fp(k, "p2", FP2)
    k("v_mov_b32 v2, v4")
    phase(288, AG, [finish()[:-3]])
    k.wait_lg_all(); k("s_barrier")
    k.lgq = []; k.lg_done = 0
    hr = xreads(0, 15)
    for j, f in enumerate(hr): f.after = 12 * (j // 12 + 1)
    phase(306, AU, [expo(), hr], budget=int(envs("TB", "12")))
    stamp(k, 22); stamp(k, 31, True)
    k(f"s_lshr_b32 s29, s20, 1\ns_lshl_b32 s29, s29, 12\ns_and_b32 s35, s20, 1\ns_lshl_b32 s36, s35, 3\ns_add_u32 s29, s29, s36")
    k(f"v_add_u32 v9, s29, v1\ns_add_u32 s29, s29, {HB + 64*KBY}\ns_lshl_b32 s41, s20, 11\nv_add_u32 v10, s41, v1")
    k(f"s_lshl_b32 s37, s21, 7\ns_lshl_b32 s38, s22, 2\ns_add_u32 s37, s37, s38\ns_mul_i32 s37, s37, {18*KBY}\ns_add_u32 s37, s37, {OFF_PART}")
    k(f"s_lshr_b32 s39, s20, 1\ns_add_u32 s39, s39, 16\ns_lshl_b32 s39, s39, 10\ns_mul_i32 s40, s35, {36*KBY}\ns_add_u32 s39, s39, s40\ns_add_u32 s39, s39, s37")
    k("s_lshl_b32 s38, s20, 10\ns_add_u32 s38, s38, s37")
    k(f"s_lshl_b32 s56, s22, 7\ns_lshl_b32 s27, s21, 3\ns_add_u32 s56, s56, s27\ns_add_u32 s56, s56, {FE}")
    for tb in range(4): k(f"v_add_u32 v{5+tb}, {tb*18*KBY}, v1")
    k(f"s_lshr_b32 s44, s21, 1\ns_lshl_b32 s45, s35, 1\ns_sub_u32 s45, s44, s45\ns_sub_u32 s30, s38, s37\ns_add_u32 s30, s30, {130*KBY}\nv_add_u32 v11, s30, v1")
    k(f"s_sub_u32 s30, s39, s37\ns_sub_u32 s30, s30, s40\ns_add_u32 s30, s30, {130*KBY}\nv_add_u32 v12, s30, v1")
    fin = finish()[:-3]
    NG = 18 // G
    for f in fin: f.before = 4 * G * (NG - 3)
    def late(k):
        k.wait_lg_all(); k("s_barrier")
        for f in xreads(15, 18): f.fn(k)
    phase(324, AG, [fin], pre_extra={NG - 3: late}, xwait=True)
    def cv(acc, dst, hi, after=0):
        return [line(f"v_cvt_pk_bf16_f32 v{dst+4*tb+2*hi+i}, v{acc+4*tb+2*i}, v{acc+4*tb+2*i+1}", after=after) for tb in range(4) for i in range(2)]
    OWN = envs("OWN", "1") == "1"
    uid = [0]
    def keep(src, tb, cmp, vaddr):
        def f(k):
            uid[0] += 1
            k(f"s_cmp_lg_u32 {cmp}, {tb}\ns_cbranch_scc1 2\nds_write_b128 {vaddr}, v[{src+4*tb}:{src+4*tb+3}]")
        if envs("KEEPV", "1") == "1":
            return [line(f"ds_write_b128 v{KA[vaddr] + tb}, v[{src+4*tb}:{src+4*tb+3}]", 8)] if False else [F(f, 8)]
        return [F(f, 8)] if OWN else []
    def st4(src, tb, after, addr="s38", tag=None):
        if envs("NOST", ""): return line("s_nop 0", after=after)
        return vml(f"buffer_store_dwordx4 v[{src+4*tb}:{src+4*tb+3}], v{5+tb}, s[8:11], {addr} offen{envs('PST', ' sc1').replace('_', ' ')}", tag, after=after, cost=8)
    c = cv(AG, T2, 0, 8); join = []
    for tb in range(4): join += c[2*tb:2*tb+2] + [lgl(f"ds_write_b64 v9, v[{T2+4*tb}:{T2+4*tb+1}] offset:{tb*1024}")]
    for f in join: f.before = 36
    def joined(k):
        k.wait_lg_all(); k("s_barrier")
        k.lg(f"ds_read_b128 v[{T2}:{T2+3}], v10", "j"); k.lg(f"ds_read_b128 v[{T2+4}:{T2+7}], v10 offset:1024", "j")
    phase(342, AU, [join, [F(lambda k: k.wait_lg("j"), 4, after=50), st4(T2, 0, 52, "s39"), st4(T2, 1, 62, "s39")] + keep(T2, 0, "s45", "v12") + keep(T2, 1, "s45", "v12")], pre_extra={3: joined})
    kk = KB()
    kk("s_lshl_b32 s28, s22, 3\ns_add_u32 s28, s28, s21\ns_mov_b32 s42, s22\ns_mov_b32 s47, s21")
    kk("v_bfe_u32 v9, v0, 4, 2\nv_lshlrev_b32 v9, 8, v9\nv_bfe_u32 v10, v0, 3, 1\nv_lshl_add_u32 v9, v10, 10, v9\nv_and_b32 v10, 7, v0\nv_lshl_add_u32 v9, v10, 4, v9")
    kk(f"s_and_b32 s31, s28, 1\ns_lshl_b32 s31, s31, 7\ns_lshl_b32 s26, s20, 11\ns_add_u32 s31, s31, s26\nv_add_u32 v9, s31, v9\nv_lshlrev_b32 v4, 3, v10")
    kk(f"s_lshr_b32 s24, s28, 1\ns_mul_i32 s24, s24, {18*KBY}\ns_add_u32 s30, s24, {OFF_X1}")
    kk(f"s_add_u32 s31, s30, 16384\ns_cmp_eq_u32 s20, 0\ns_cselect_b32 s31, s31, {BIG}\ns_add_u32 s32, s30, 8192")
    kk(f"s_add_u32 s46, s56, {FE1 - FE}\ns_add_u32 s46, s46, s51\ns_and_b32 s48, s46, 0xffffff80\ns_cmp_eq_u32 s20, 0\ns_cselect_b32 s46, s46, {BIG}")
    for src in range(7):
        kk(f"s_cmp_gt_u32 s47, {src}\ns_cselect_b32 s26, {src}, {src + 1}\ns_mul_i32 s26, s26, {2304*KBY}\ns_add_u32 s26, s26, s24\ns_add_u32 s{72+src}, s26, {OFF_PART}")
    setup = []; ls = [l.strip() for l in kk.lines]; j = 0
    while j < len(ls):
        n = 2 if (ls[j].startswith("s_cmp") or j + 1 >= len(ls) or not ls[j + 1].startswith("s_cmp")) else 1
        setup.append(line("\n".join(ls[j:j + n]), 8)); j += n
    phase(360, AG, [cv(AU, T1, 0, 8), setup])
    k("s_mov_b32 s34, 2")
    stamp(k, 23); stamp(k, 32, True)
    E2 = envs("E2", "1") == "1"; TBM = E2 and envs("TBM", "1") == "1"
    SCL = int(envs("SCL", "0"))
    def first_half():
        L = []
        for tb in range(4):
            L += [line(f"v_mov_b32 v{T2+4*tb}, v{T1+4*tb}"), line(f"v_mov_b32 v{T2+4*tb+1}, v{T1+4*tb+1}")]
        if SCL: return cv(AG, T1, 1, 8) + [st4(T1, tb, SCL) for tb in range(4)]
        return L + cv(AG, T2, 1, 8) + [f for tb in range(4) for f in keep(T2, tb, "s44", "v11")] + [line("v_add_u32 v11, 0x1000, v11")] + [st4(T2, 0, 30), st4(T2, 1, 60)]
    def pair(p, x0=[], x1=[], pre=None, pre1=None):
        fh = first_half()
        if p == 3 and E2:
            fh = fh[:-2]
            if envs("CMP", "1") == "1":
                for f in fh: f.before = 26
            for tb in range(4):
                fh.append(st4(T2, tb, 26 + 8 * tb, tag=("ps", 3)))
                if envs("CMP", "1") == "1": fh[-1].before = 28 + 8 * tb
        phase(342 + 36 * p, AU, [fh, x0], pre_extra=pre)
        if p == 3: stamp(k, 35, True)
        c0 = cv(AU, T1, 0, 8)
        if p == 3 and TBM:
            p0 = 342 + 36 * p + 18
            mf = [f"{MF} v[{AG+4*tb}:{AG+4*tb+3}], v[{RING+4*((p0+ks)%36)}:{RING+4*((p0+ks)%36)+3}], {xreg(ks, tb)}, " + ("0" if ks == 0 else f"v[{AG+4*tb}:{AG+4*tb+3}]") for tb in range(4) for ks in range(18)]
            for f in c0: f.before = 24
            c1 = cv(AG, T1, 1); out = [line("s_add_u32 s38, s38, 4096")]
            for tb in range(3):
                c1[2*tb].after = 18 * (tb + 1) + 7
                out += c1[2*tb:2*tb+2] + [st4(T1, tb, 0)] + keep(T1, tb, "s44", "v11")
                for f in out[-4:]: f.before = 18 * (tb + 1) + 14
            pre = {0: lambda k: k.wait_vm(("w", 485))}
            for g, fn in pre1.items(): pre[12 * g] = fn
            interleave(k, mf, [c0, out, x1], pre=pre)
            return
        phase(342 + 36 * p + 18, AG, [c0, ([] if SCL or (p == 3 and E2) else [st4(T2, 2, 20), st4(T2, 3, 52, tag=("ps", p))]) + [line("s_add_u32 s38, s38, 4096"), line("s_sub_u32 s34, s34, 1")], x1], pre_extra=pre1)
    its = []
    for p in range(1, 3):
        m0 = k.mark(); pair(p); its.append(k.lines[m0:]); del k.lines[m0:]
    k.label("L_ffn_dn")
    k.lines += fold(its)
    k("s_cmp_lg_u32 s34, 0\ns_cbranch_scc1 L_ffn_dn")
    stamp(k, 24); stamp(k, 33, True)
    tail = [vml(f"buffer_load_dwordx4 v[{RESID+4*i}:{RESID+4*i+3}], v9, s[8:11], s{30+i} offen{LD}", after=14, cost=8) for i in range(3)]
    def early(k):
        k.wait_vm(("ps", 2)); k("s_barrier\nv_mov_b32 v2, s100\nv_mov_b32 v3, s101")
        k.vm("buffer_store_dwordx2 v[2:3], v13, s[8:11], s46 offen sc1")
    def early2(k):
        k.wait_vm(("ps", 3)); k(f"s_barrier\ns_sub_u32 s46, s46, {FE1 - FE2}")
        k.vm("buffer_store_dwordx2 v[2:3], v13, s[8:11], s46 offen sc1")
    pair(3, tail, [vml("buffer_load_dwordx2 v[2:3], v4, s[8:11], s48 offen sc1", "e1", after=int(envs("E1AT", "62")), cost=8)], {int(envs("EAT", "5")): early}, {int(envs("E2AT", "5")): early2} if E2 else None)
    stamp(k, 36, True)
    k("s_nop 7" if TBM else "s_nop 5")
    c = cv(AG, T1, 1)
    for tb in range(3 if TBM else 0, 4):
        c[2 * tb].fn(k); c[2 * tb + 1].fn(k); st4(T1, tb, 0).fn(k)
    for tb in range(3 if TBM else 0, 4):
        for f in keep(T1, tb, "s44", "v11"): f.fn(k)
    stamp(k, 25); stamp(k, 34, True)
    k.wait_vm("e1")
    k(f"v_cmp_eq_u64 vcc, s[100:101], v[2:3]\ns_add_u32 s56, s56, s51\ns_cmp_eq_u32 s20, 0\ns_cselect_b32 s56, s56, {BIG}")
    k(f"s_cmp_eq_u64 vcc, {-1 if not envs('NOE1', '') else 5}\ns_cselect_b32 s49, 1, 0\ns_cbranch_scc0 L_ffn_noe")
    for src in range(7): k(f"buffer_load_dwordx4 v[{P5R[0]+4*src}:{P5R[0]+4*src+3}], v9, s[8:11], s{72+src} offen{LD}")
    k("s_waitcnt vmcnt(7) lgkmcnt(0)\ns_branch L_ffn_sig")
    k.label("L_ffn_noe")
    k("s_waitcnt vmcnt(0) lgkmcnt(0)")
    k.label("L_ffn_sig")
    k("s_barrier")
    publish(k)
    stamp(k, 26)

P5R = (48, 76, 16)
def p5_reduce(k, nlayers):
    k(f"v_mov_b32 v8, v9\nv_add_u32 v10, 0x2000, v9\ns_cmp_eq_u32 s20, 0\ns_cselect_b32 s35, 16384, {BIG}\nv_add_u32 v9, s35, v9")
    def ld(i):
        for src in range(7): k.vm(f"buffer_load_dwordx4 v[{P5R[i]+4*src}:{P5R[i]+4*src+3}], v{8+i}, s[8:11], s{72+src} offen{LD}", (src, i))
    k("s_cmp_eq_u32 s49, 1\ns_cbranch_scc1 L_p5_e1\ns_mov_b32 s56, s48\nv_mov_b32 v2, v4")
    poll(k, "e1", wg=False, layer=False)
    ld(0)
    k.label("L_p5_e1")
    k("s_cmp_lg_u32 s20, 0\ns_cbranch_scc1 L_p5_n1")
    ld(1)
    k.label("L_p5_n1")
    k("v_bfe_u32 v4, v0, 4, 2\nv_bfe_u32 v5, v0, 3, 1\nv_and_b32 v6, 7, v0")
    ln_consts(k)
    k("s_mov_b32 s26, 0x00003f80\ns_mov_b32 s27, 0x3f800000")
    D = 136; ACC = 112
    k(f"v_min_u32 v12, 0x4800, v9\nv_add_u32 v11, {130*KBY}, v8\nv_add_u32 v12, {130*KBY}, v12\ns_waitcnt lgkmcnt(0)")
    k(f"ds_read_b128 v[{D}:{D+3}], v11\nds_read_b128 v[{D+4}:{D+7}], v12\nds_read_b128 v[{D+8}:{D+11}], v11 offset:8192")
    k(f"s_lshl_b32 s56, s42, 7\ns_add_u32 s56, s56, {FE}\nv_lshlrev_b32 v2, 3, v6")
    for j in range(12): k(f"v_lshlrev_b32 v{ACC+2*j}, 16, v{RESID+j}\nv_and_b32 v{ACC+2*j+1}, s32, v{RESID+j}")
    k("s_waitcnt lgkmcnt(0)")
    for j in range(12): k(f"v_dot2c_f32_bf16 v{ACC+2*j}, s26, v{D+j}\nv_dot2c_f32_bf16 v{ACC+2*j+1}, s27, v{D+j}")
    if envs("E2", "1") == "1":
        k(f"s_cmp_lt_u32 s20, 2\ns_cselect_b32 s23, {FE - FE2}, 0\ns_sub_u32 s56, s56, s23")
        spoll(k, "e", 8, wg=False)
    elif "e" in SP: spoll(k, "e", 8)
    else: poll(k, "e")
    stamp(k, 27)
    fresh(k)
    ld(2)
    def add(src, i):
        for j in range(4):
            r = P5R[i] + 4 * src + j; a = ACC + 8 * i + 2 * j
            k(f"v_dot2c_f32_bf16 v{a}, s26, v{r}\nv_dot2c_f32_bf16 v{a+1}, s27, v{r}")
    k("s_waitcnt vmcnt(7)")
    for src in range(7): add(src, 0)
    k("s_cmp_lg_u32 s20, 0\ns_cbranch_scc1 L_p5_n2")
    for src in range(7): add(src, 1)
    k.label("L_p5_n2")
    T = D + 16; O = T + 8
    k("s_nop 1")
    for j in range(8): k(f"v_cvt_pk_bf16_f32 v{D+j}, v{ACC+2*j}, v{ACC+2*j+1}")
    k(f"s_add_u32 s25, s24, {OFF_XF}\ns_cmp_eq_u32 s50, 1\ns_cbranch_scc1 L_p5_final")
    saved = (list(k.vmq), k.vm_done)
    for i in range(2): k.vm(f"buffer_store_dwordx4 v[{D+4*i}:{D+4*i+3}], v{8+i}, s[8:11], s25 offen sc1")
    k("s_cmp_eq_u32 s20, 0\ns_cbranch_scc1 L_p5_w0")
    for j in range(4): k(f"v_mov_b32 v{D+4+j}, 0")
    k.label("L_p5_w0")
    for i in range(4): k(f"v_mov_b32 v{T+i}, 0")
    for j in range(8): k(f"v_dot2c_f32_bf16 v{T+(j&1)}, s30, v{D+j}\nv_dot2c_f32_bf16 v{T+2+(j&1)}, v{D+j}, v{D+j}")
    for src in range(7): k.wait_vm((src, 2)); add(src, 2)
    stamp(k, 28)
    k("s_nop 2")
    for j in range(8, 12): k(f"v_cvt_pk_bf16_f32 v{D+j}, v{ACC+2*j}, v{ACC+2*j+1}")
    k(f"buffer_store_dwordx4 v[{D+8}:{D+11}], v10, s[8:11], s25 offen sc1")
    for j in range(8, 12): k(f"v_dot2c_f32_bf16 v{T+(j&1)}, s30, v{D+j}\nv_dot2c_f32_bf16 v{T+2+(j&1)}, v{D+j}, v{D+j}")
    k(f"s_nop 2\nv_add_f32 v{T}, v{T}, v{T+1}\nv_add_f32 v{T+1}, v{T+2}, v{T+3}\ns_nop 1")
    k(f"v_add_f32_dpp v{T}, v{T}, v{T} row_ror:8 row_mask:0xf bank_mask:0xf\nv_add_f32_dpp v{T+1}, v{T+1}, v{T+1} row_ror:8 row_mask:0xf bank_mask:0xf")
    for sw in ("v_permlane16_swap_b32", "v_permlane32_swap_b32"):
        k(f"v_mov_b32 v{T+2}, v{T}\nv_mov_b32 v{T+3}, v{T+1}\ns_nop 0\n{sw} v{T}, v{T+2}\n{sw} v{T+1}, v{T+3}\nv_pk_add_f32 v[{T}:{T+1}], v[{T}:{T+1}], v[{T+2}:{T+3}]")
    k(f"v_lshlrev_b32 v11, 3, v6\nv_add_u32 v11, {150*KBY}, v11\ns_lshl_b32 s23, s20, 6\nv_add_u32 v12, s23, v11")
    k(f"ds_write_b64 v12, v[{T}:{T+1}]\ns_waitcnt lgkmcnt(0)\ns_barrier")
    for w in range(4): k(f"ds_read_b64 v[{T+2*w}:{T+2*w+1}], v11 offset:{64*w}")
    k(f"s_add_u32 s23, s24, {OFF_XN}\ns_waitcnt lgkmcnt(0)")
    k(f"v_pk_add_f32 v[{T}:{T+1}], v[{T}:{T+1}], v[{T+2}:{T+3}]\nv_pk_add_f32 v[{T+4}:{T+5}], v[{T+4}:{T+5}], v[{T+6}:{T+7}]\nv_pk_add_f32 v[{T}:{T+1}], v[{T}:{T+1}], v[{T+4}:{T+5}]")
    ln_stats_finish(k, T, T + 1)
    for i in range(3):
        for j in range(4): ln_norm(k, D + 4 * i + j, O + 4 * i + j, T, T + 1, T + 2 + 2 * (j & 1))
        k(f"buffer_store_dwordx4 v[{O+4*i}:{O+4*i+3}], v{8+i}, s[8:11], s23 offen sc1")
    flag_a_addr(k)
    stamp(k, 29)
    k(f"s_add_u32 s50, s50, 1\ns_add_u32 s51, s51, 32768\ns_mov_b32 s53, {OFF_QKV2}")
    signal(k)
    if STAMP: k("v_mov_b32 v14, v15")
    k("s_branch L_p0_fetch" if nlayers == 2 else "s_branch L_main_fin")
    k.label("L_p5_final")
    srd(k, 12, 6, 2048 * 1152)
    rowmajor(k, 28, 7)
    k(f"s_add_u32 s35, s33, 1024\ns_cmp_eq_u32 s20, 0\ns_cselect_b32 s35, s35, {BIG}\ns_lshl_b32 s25, s20, 7\ns_add_u32 s34, s33, s25\ns_add_u32 s36, s34, 512")
    k.vmq, k.vm_done = saved
    for i in range(3):
        if i == 2:
            for src in range(7): k.wait_vm((src, 2)); add(src, 2)
            stamp(k, 28)
            k("s_nop 2")
            for j in range(8, 12): k(f"v_cvt_pk_bf16_f32 v{D+j}, v{ACC+2*j}, v{ACC+2*j+1}")
            k("s_nop 0")
        k(f"v_permlane16_swap_b32 v{D+4*i}, v{D+4*i+2}\nv_permlane16_swap_b32 v{D+4*i+1}, v{D+4*i+3}")
        k.vm(f"buffer_store_dwordx4 v[{D+4*i}:{D+4*i+3}], v7, s[12:15], s{34+i} offen{FL[envs('OUTST', 's')]}")
    k.label("L_main_fin")
    if DIAG:
        k("s_waitcnt vmcnt(0)"); stamp(k, 50)
        k("s_cmp_lg_u32 s20, 0\ns_cbranch_scc1 L_end\ns_cmp_lg_u32 s2, 100\ns_cbranch_scc1 L_end\ns_sub_u32 s90, s90, s88\ns_mul_i32 s90, s90, 3\ns_min_u32 s90, s90, 100000\ns_memrealtime s[88:89]\ns_waitcnt lgkmcnt(0)")
        k.label("L_dgs")
        k("s_memrealtime s[94:95]\ns_waitcnt lgkmcnt(0)\ns_sub_u32 s94, s94, s88\ns_cmp_lt_u32 s94, s90\ns_cbranch_scc1 L_dgs")
    if STAMP:
        k.wait_vm_all(); stamp(k, 29)
        k(f"s_add_u32 s84, s4, {OFF_STAMP}\ns_addc_u32 s85, s5, 0\ns_mov_b32 s86, 0x2000000\ns_mov_b32 s87, 0x00020000")
        k("s_lshl_b32 s88, s2, 2\ns_add_u32 s88, s88, s20\ns_lshl_b32 s88, s88, 9\nv_lshrrev_b32 v2, 2, v1")
        k("buffer_store_dword v14, v2, s[84:87], s88 offen\nbuffer_store_dword v15, v2, s[84:87], s88 offen offset:256")

def main_k(name, nlayers=2):
    k = KB()
    k.raw(f".globl {name}\n.p2align 8\n.type {name},@function")
    k.label(name)
    k("s_cmp_ge_u32 s2, 256\ns_cbranch_scc1 L_end")
    if STAMP: k("v_mov_b32 v14, 0\nv_mov_b32 v15, 0"); stamp(k, 40)
    if DIAG: k("s_memrealtime s[88:89]\ns_waitcnt lgkmcnt(0)\ns_mov_b32 s90, s88")
    k("s_load_dwordx4 s[36:39], s[0:1], 0\ns_load_dwordx2 s[46:47], s[0:1], 16\ns_load_dwordx4 s[40:43], s[0:1], 32")
    k("s_load_dwordx2 s[44:45], s[0:1], 48\ns_load_dwordx2 s[6:7], s[0:1], 56\ns_load_dwordx2 s[84:85], s[0:1], 64\ns_load_dwordx2 s[4:5], s[0:1], 72")
    k("v_lshrrev_b32 v2, 6, v0\nv_and_b32 v1, 63, v0\nv_readfirstlane_b32 s20, v2\nv_cmp_eq_u32 vcc, 0, v1\nv_lshlrev_b32 v1, 4, v1")
    k("s_and_b32 s16, s2, 7\ns_lshr_b32 s17, s2, 3\ns_bfe_u32 s18, s2, 0x10002\ns_and_b32 s19, s2, 3")
    k(f"v_mov_b32 v13, {BIG}\ns_mov_b32 s50, 0\ns_mov_b32 s51, 0\ns_mov_b32 s53, {OFF_QKV}\ns_mov_b32 s67, 0\nv_cndmask_b32 v13, v13, 0, vcc")
    p0(k)
    k.label("L_layer")
    fresh(k)
    p1_qkv(k); p2_attn(k); p3_wo(k); p4_ffn(k); p5_reduce(k, nlayers)
    k.label("L_end")
    k("s_endpgm")
    return k

def desc(n, vgpr, accum):
    return f""".p2align 6
.amdhsa_kernel {n}
  .amdhsa_next_free_vgpr {vgpr}
  .amdhsa_next_free_sgpr 102
  .amdhsa_accum_offset {accum}
  .amdhsa_group_segment_fixed_size 0
  .amdhsa_kernarg_size 80
  .amdhsa_user_sgpr_count 2
  .amdhsa_user_sgpr_kernarg_segment_ptr 1
  .amdhsa_system_sgpr_workgroup_id_x 1
  .amdhsa_float_denorm_mode_32 3
.end_amdhsa_kernel"""
def build(nlayers=2):
    name = "interleave_layers__sliding_block__swiglu_ffn__prompt_kernel"
    out = ["; x += attn(LN x); x += swiglu(LN x); twice. One persistent kernel, 256 workgroups. Generated by my own script (work/genq.py)."]
    if STAMP:
        if not envs("NOSLEEP", ""): out.append("; @launch kernel=sleep_kernel grid=(1,1,1) block=(64,1,1) lds=0")
        out.append(f"; @launch kernel={name} grid=(256,1,1) block=(256,1,1) lds=163840")
    else: out.append("; @launch grid=(256,1,1) block=(256,1,1) lds=163840")
    out.append('.amdgcn_target "amdgcn-amd-amdhsa--gfx950"\n.text')
    out.append(main_k(name, nlayers).text())
    if STAMP:
        out.append(""".globl sleep_kernel
.p2align 8
.type sleep_kernel,@function
sleep_kernel:
    s_mov_b32 s4, 2000
L_sleep:
    s_sleep 8
    s_sub_u32 s4, s4, 1
    s_cmp_lg_u32 s4, 0
    s_cbranch_scc1 L_sleep
    s_endpgm""")
    out.append('.section .rodata,"a"')
    out.append(desc(name, 512, 256))
    if STAMP: out.append(desc("sleep_kernel", 8, 8))
    return "\n".join(out) + "\n"

if __name__ == "__main__":
    STAMP = "stamp" in sys.argv[2:]
    open(sys.argv[1], "w").write(build(1 if "one" in sys.argv[2:] else 2))
```

```python
import re, sys, os, struct
from kb import *
KBY = 1024
OFF_XF, OFF_XN, OFF_OF, OFF_X1 = 0, 2304*KBY, 4608*KBY, 6912*KBY
OFF_OB = OFF_OF + 2048*KBY
OFF_QKV = 9216*KBY
OFF_PART = 16128*KBY
OFF_WO = 34560*KBY
OFF_WF = 37376*KBY
OFF_STAT = 53248*KBY
OFF_FLAG = 53376*KBY
OFF_QKV2 = 53408*KBY
OFF_WQ = OFF_QKV2 + 6912*KBY
OFF_FLAG = OFF_WQ + 2048*KBY
OFF_STAT = OFF_FLAG + 64*KBY
WS_USED = OFF_STAT + 256*KBY
FA, FB, FC, FE2, FE, FP, FP2, FW, FQ, FE1 = [OFF_FLAG + o for o in (0, 2048, 10240, 12288, 16384, 20480, 22528, 24576, 25600, 27648)]
BIG = 0x40000000
LOG2E = 1.4426950408889634
def fbits(x): return "0x%08x" % struct.unpack("<I", struct.pack("<f", x))[0]
def envs(n, d): return os.environ.get(n, d)
FL = {"s": " sc1", "p": "", "n": " nt"}
MF = "v_mfma_f32_16x16x32_bf16"
LD = " sc1"
SPIN = 300000
STAMP = False
OFF_STAMP = 200 << 20
POLL1 = envs("POLL1", "1") == "1"
CKD = envs("CKD", "1") == "1"
FORCE_RETRY = envs("FORCE_RETRY", "") == "1"
FAST = envs("FAST", "1") == "1"
FORCE_EXACT = envs("FORCE_EXACT", "") == "1"

DIAG = envs("DIAG", "")
def stamp(k, i, cyc=False):
    if DIAG and not cyc and i == int(DIAG.split(",")[1]):
        n = len(k.lines)
        k(f"s_cmp_lg_u32 s50, {DIAG.split(',')[0]}\ns_cbranch_scc1 L_dg{n}\ns_memrealtime s[90:91]"); k("s_waitcnt lgkmcnt(0)"); k.label(f"L_dg{n}")
    if STAMP:
        k(f"{'s_memtime' if cyc else 's_memrealtime'} s[98:99]"); k.wait_lg_all(); k(f"v_writelane_b32 v15, s98, {i}")
def srd(k, d, base, nbytes):
    k(f"s_mov_b32 s{d}, s{base}\ns_mov_b32 s{d+1}, s{base+1}\ns_mov_b32 s{d+2}, {nbytes}\ns_mov_b32 s{d+3}, 0x00020000")
def sdiv(k, dst, src, D, tmp):
    k(f"s_mov_b32 s{tmp}, {-(-(1<<32)//D)}\ns_mul_hi_u32 s{dst}, s{src}, s{tmp}")
def red_rows(k, v, t, op="v_add_f32"):
    for sw in ("v_permlane16_swap_b32", "v_permlane32_swap_b32"):
        k(f"v_mov_b32 v{t}, v{v}\ns_nop 1\n{sw} v{v}, v{t}\n{op} v{v}, v{v}, v{t}")
def ln_stats_finish(k, s, q):
    k(f"v_mul_f32 v{s}, s31, v{s}\nv_mul_f32 v{q}, s31, v{q}\nv_fma_f32 v{q}, -v{s}, v{s}, v{q}\nv_max_f32 v{q}, 0, v{q}")
    k(f"v_add_f32 v{q}, {fbits(1e-5)}, v{q}\nv_rsq_f32 v{q}, v{q}\ns_nop 0\nv_mul_f32 v{s}, v{s}, v{q}\nv_sub_f32 v{s}, 0, v{s}")
def ln_norm(k, x, dst, s, q, t):
    if envs("PKF", "1") == "1":
        assert q == s + 1 and s % 2 == 0 and t % 2 == 0
        k(f"v_lshlrev_b32 v{t}, 16, v{x}\nv_and_b32 v{t+1}, s32, v{x}\nv_pk_fma_f32 v[{t}:{t+1}], v[{t}:{t+1}], v[{s}:{q}], v[{s}:{q}] op_sel:[0,1,0] op_sel_hi:[1,1,0]\nv_cvt_pk_bf16_f32 v{dst}, v{t}, v{t+1}")
    else: k(f"v_lshlrev_b32 v{t}, 16, v{x}\nv_and_b32 v{t+1}, s32, v{x}\nv_fma_f32 v{t}, v{t}, v{q}, v{s}\nv_fma_f32 v{t+1}, v{t+1}, v{q}, v{s}\nv_cvt_pk_bf16_f32 v{dst}, v{t}, v{t+1}")
def ln_consts(k):
    k(f"s_mov_b32 s30, 0x3f803f80\ns_mov_b32 s31, {fbits(1/576)}\ns_mov_b32 s32, 0xffff0000")
def fold(iters):
    body = []
    assert len({len(x) for x in iters}) == 1, [len(x) for x in iters]
    for ls in zip(*iters):
        if len(set(ls)) == 1: body.append(ls[0]); continue
        ns = [re.fullmatch(r"\s*s_waitcnt vmcnt\((\d+)\)", l) for l in ls]
        assert all(ns), ls
        body.append(f"    s_waitcnt vmcnt({min(int(m.group(1)) for m in ns)})")
    return body
def fresh(k):
    k.vmq = []; k.vm_done = 0; k.lgq = []; k.lg_done = 0

def poll(k, name, wg=True, layer=True):
    if wg: k(f"s_cmp_lg_u32 s20, 0\ns_cbranch_scc1 L_pollx_{name}")
    k(f"s_mov_b32 s57, {SPIN}" + ("\ns_add_u32 s56, s56, s51" if layer else ""))
    if envs("PP", "") and name in "abcde":
        k("buffer_load_dwordx2 v[252:253], v2, s[8:11], s56 offen sc1\ns_sleep 1")
        k.label(f"L_poll_{name}")
        k(f"buffer_load_dwordx2 v[254:255], v2, s[8:11], s56 offen sc1\ns_waitcnt vmcnt(1)\nv_cmp_eq_u64 vcc, s[100:101], v[252:253]\ns_cmp_eq_u64 vcc, -1\ns_cbranch_scc1 L_pollx_{name}")
        k(f"buffer_load_dwordx2 v[252:253], v2, s[8:11], s56 offen sc1\ns_sub_u32 s57, s57, 1\ns_waitcnt vmcnt(1)")
    else:
        k.label(f"L_poll_{name}")
        k(f"buffer_load_dwordx2 v[254:255], v2, s[8:11], s56 offen sc1\ns_sub_u32 s57, s57, 1\ns_waitcnt vmcnt(0)")
    k(f"v_cmp_eq_u64 vcc, s[100:101], v[254:255]\ns_cmp_eq_u32 s57, 0\ns_cbranch_scc1 L_pollx_{name}")
    k(f"s_cmp_eq_u64 vcc, -1\ns_cbranch_scc0 L_poll_{name}")
    k.label(f"L_pollx_{name}")
    if wg: k("s_barrier")
def spoll(k, name, n, wg=True):
    if wg: k(f"s_cmp_lg_u32 s20, 0\ns_cbranch_scc1 L_pollx_{name}")
    k(f"s_mov_b32 s57, {SPIN}\ns_add_u32 s56, s56, s51")
    for c in range(0, n, 8):
        k.label(f"L_poll_{name}{c}")
        k(f"s_load_dwordx16 s[84:99], s[4:5], s56 glc\ns_sub_u32 s57, s57, 1\ns_cmp_eq_u32 s57, 0\ns_waitcnt lgkmcnt(0)\ns_cbranch_scc1 L_pollx_{name}")
        for j in range(84, 100, 2): k(f"s_xor_b64 s[{j}:{j+1}], s[{j}:{j+1}], s[100:101]")
        for j in range(86, 100, 2): k(f"s_or_b64 s[84:85], s[84:85], s[{j}:{j+1}]")
        k(f"s_cbranch_scc0 2\ns_sleep {envs('SLP', '2')}\ns_branch L_poll_{name}{c}")
        if c + 8 < n: k("s_add_u32 s56, s56, 64")
    k.label(f"L_pollx_{name}")
    if wg: k("s_barrier")
SP = envs("SPOLL", "qe")
def publish(k, addr="s56"):
    k("v_mov_b32 v254, s100\nv_mov_b32 v255, s101")
    k.vm(f"buffer_store_dwordx2 v[254:255], v13, s[8:11], {addr} offen sc1")
def signal(k):
    k(f"s_add_u32 s56, s56, s51\ns_cmp_eq_u32 s20, 0\ns_cselect_b32 s56, s56, {BIG}")
    k.wait_vm_all(); k("s_barrier")
    publish(k)
def token_load(k):
    k("v_mov_b32 v2, 0\nbuffer_load_dwordx2 v[254:255], v2, s[84:87], 0 offen sc1")
def token_get(k, name):
    k(f"s_mov_b32 s57, {SPIN}")
    k.label(f"L_tok_{name}")
    k("v_readfirstlane_b32 s100, v254\nv_readfirstlane_b32 s101, v255\ns_sub_u32 s57, s57, 1\ns_min_u32 s94, s100, s101\ns_cmp_eq_u32 s57, 0\ns_cselect_b32 s94, 1, s94")
    k(f"s_cmp_lg_u32 s94, 0\ns_cbranch_scc1 L_tokx_{name}")
    token_load(k)
    k(f"s_waitcnt vmcnt(0)\ns_branch L_tok_{name}")
    k.label(f"L_tokx_{name}")

def half_lanes(k, shb):
    k("v_bfe_u32 v4, v0, 4, 2\nv_bfe_u32 v5, v0, 3, 1\nv_and_b32 v6, 7, v0")
    k(f"s_and_b32 s21, s{shb}, 1\ns_lshr_b32 s22, s{shb}, 1\ns_lshl_b32 s23, s21, 7")
    k("v_lshlrev_b32 v7, 8, v4\nv_lshl_add_u32 v7, v5, 10, v7\nv_lshl_add_u32 v7, v6, 4, v7\nv_add_u32 v7, s23, v7")
    k(f"s_mul_i32 s24, s22, {18*KBY}")
def rowmajor(k, shb, v):
    k(f"v_mul_u32_u24 v{v}, 1152, v6\nv_lshl_add_u32 v{v}, v5, 6, v{v}\nv_and_b32 v9, 1, v4\nv_lshl_add_u32 v{v}, v9, 5, v{v}\nv_lshrrev_b32 v9, 1, v4\nv_lshl_add_u32 v{v}, v9, 4, v{v}")
    k(f"s_mul_i32 s33, s{shb}, 9216")
def row_sums(k, D, n, T):
    for i in range(4): k(f"v_mov_b32 v{T+i}, 0")
    for j in range(n): k(f"v_dot2c_f32_bf16 v{T+(j&1)}, s30, v{D+j}\nv_dot2c_f32_bf16 v{T+2+(j&1)}, v{D+j}, v{D+j}")
    k(f"s_nop 2\nv_add_f32 v{T}, v{T}, v{T+1}\nv_add_f32 v{T+1}, v{T+2}, v{T+3}\ns_nop 1")
    k(f"v_add_f32_dpp v{T}, v{T}, v{T} row_ror:8 row_mask:0xf bank_mask:0xf\nv_add_f32_dpp v{T+1}, v{T+1}, v{T+1} row_ror:8 row_mask:0xf bank_mask:0xf")
    red_rows(k, T, T + 2); red_rows(k, T + 1, T + 2)
def flag_a_addr(k):
    k(f"s_lshr_b32 s56, s28, 4\ns_lshl_b32 s56, s56, 7\ns_and_b32 s27, s28, 15\ns_lshl_b32 s27, s27, 3\ns_add_u32 s56, s56, s27\ns_add_u32 s56, s56, {FA}")

DST = 68
park = lambda u, i: (f"v[{128+16*u+4*i}:{131+16*u+4*i}]" if u < 3 else f"a[{160+16*(u-3)+4*i}:{163+16*(u-3)+4*i}]")
PK = 220
AMAP = int(envs("AMAP", "2"))
def att_ids(k):
    if AMAP == 2: k("s_lshl_b32 s21, s18, 3\ns_and_b32 s22, s17, 7\ns_add_u32 s21, s21, s22\ns_lshr_b32 s29, s17, 3\ns_lshl_b32 s22, s19, 2\ns_add_u32 s22, s22, s29")
    elif AMAP == 4: k("s_and_b32 s21, s16, 6\ns_lshl_b32 s21, s21, 1\ns_and_b32 s22, s17, 3\ns_add_u32 s21, s21, s22\ns_lshr_b32 s29, s17, 2\ns_and_b32 s22, s16, 1\ns_lshl_b32 s22, s22, 3\ns_add_u32 s22, s22, s29")
    else: k("s_lshl_b32 s21, s16, 1\ns_and_b32 s22, s17, 1\ns_add_u32 s21, s21, s22\ns_lshr_b32 s22, s17, 1")
def wq_base(k):
    att_ids(k)
    k(f"s_mul_i32 s25, s22, {126*KBY}\ns_add_u32 s25, s25, {OFF_WQ}")
def wq_fetch(k, name):
    k(f"s_and_b32 s23, s17, {7 if envs('ROT', '1') == '1' else 0}\ns_lshl_b32 s23, s23, 14\ns_mov_b32 s26, 32")
    k.label(f"L_wqf_{name}")
    k("s_mov_b32 m0, s23\ns_add_u32 s27, s25, s23")
    for c in range(4): k(f"buffer_load_dwordx4 v1, s[8:11], s27 offen offset:{c*1024} lds")
    k(f"s_add_u32 s23, s23, 4096\ns_and_b32 s23, s23, 0x1ffff\ns_sub_u32 s26, s26, 1\ns_waitcnt vmcnt({envs('WQF', '40')})\ns_cmp_lg_u32 s26, 0\ns_cbranch_scc1 L_wqf_{name}")
def stage_addr(k):
    k(f"s_lshl_b32 s66, s20, 13\ns_add_u32 s66, s66, {128*KBY}\nv_add_u32 v10, s66, v1")
    k("v_bfe_u32 v11, v0, 2, 4\nv_lshlrev_b32 v11, 7, v11\nv_and_b32 v252, 3, v0\nv_lshl_add_u32 v11, v252, 3, v11\nv_add_u32 v11, s66, v11")
def pack_block(k, n, nu, dst=lambda u, c: (f"s{DST+c}", (u % 4) * 1024), src=park, PK=220):
    k("s_waitcnt lgkmcnt(0)")
    if 2 <= n < nu + 2:
        u = n - 2
        for c in range(4):
            r, o = dst(u, c)
            k(f"buffer_store_dwordx4 v[{PK+16*(u&1)+4*c}:{PK+16*(u&1)+4*c+3}], v1, s[8:11], {r} offen offset:{o} sc1" + (f"\ns_add_u32 {r}, {r}, 4096" if o == 3072 else ""))
    if 1 <= n <= nu:
        u = n - 1
        for c in range(4):
            for hf in range(2): k(f"ds_read_b64_tr_b16 v[{PK+16*(u&1)+4*c+2*hf}:{PK+16*(u&1)+4*c+2*hf+1}], v11 offset:{(u&1)*4096 + hf*2048 + c*32}")
    if n < nu:
        for i in range(4): k(f"ds_write_b128 v10, {src(n, i)} offset:{(n&1)*4096 + i*1024}")
lpark = lambda u, i: f"a[{208+16*u+4*i}:{211+16*u+4*i}]"
def late_blocks(k):
    k("s_cmp_eq_u32 s67, 0\ns_cbranch_scc1 L_pks")
    stage_addr(k)
    for n in range(5): pack_block(k, n, 3, lambda u, c: (f"s{78+c}", u * 1024), lpark)
    k("s_mov_b32 s67, 0")
    k.label("L_pks")
EARLY = envs("EARLY", "b")
def early_blocks(k):
    k("s_cmp_eq_u32 s67, 0\ns_cbranch_scc1 L_pke")
    stage_addr(k)
    for n in range(8): pack_block(k, n, 6, PK=48)
    k.label("L_pke")
def publish_fp(k, base):
    k(f"s_mov_b32 s30, {-(-(1<<32)//27)}\ns_mul_hi_u32 s27, s2, s30\ns_mul_i32 s27, s27, 5\ns_add_u32 s27, s27, s2\ns_lshl_b32 s27, s27, 3\ns_add_u32 s27, s27, {base}")
    k(f"s_cmp_lt_u32 s2, 216\ns_cselect_b32 s27, s27, {BIG}\ns_cmp_eq_u32 s20, 0\ns_cselect_b32 s27, s27, {BIG}")
    k.vm("buffer_store_dwordx2 v[254:255], v13, s[8:11], s27 offen sc1")
def poll_fp(k, name, base):
    k(f"s_cmp_lg_u32 s50, 0\ns_cbranch_scc1 L_pollx_{name}\ns_lshl_b32 s56, s21, 8\ns_add_u32 s56, s56, {base}\nv_and_b32 v2, 31, v0\nv_min_u32 v2, 26, v2\nv_lshlrev_b32 v2, 3, v2")
    poll(k, name, wg=False)
def ptrs(k):
    srd(k, 8, 4, WS_USED); k("s_mov_b32 s86, 256\ns_mov_b32 s87, 0x00020000")
def p0(k):
    k("s_cmp_eq_u32 s20, 1\ns_cbranch_scc1 L_p0_wq\ns_cmp_lg_u32 s20, 0\ns_cbranch_scc1 L_p0_23")
    k("s_lshl_b32 s28, s16, 5\ns_add_u32 s28, s28, s17")
    half_lanes(k, 28); rowmajor(k, 28, 11)
    k("s_waitcnt lgkmcnt(0)")
    srd(k, 12, 36, 2048 * 1152)
    D = 16; T = D + 36; O = T + 8
    for i in range(9): k(f"buffer_load_dwordx4 v[{D+4*i}:{D+4*i+3}], v11, s[12:15], s33 offen offset:{128*i} nt")
    if envs("B0", "2") == "1": k("s_barrier")
    ptrs(k); ln_consts(k); flag_a_addr(k)
    stamp(k, 41)
    k(f"s_add_u32 s25, s24, {OFF_XF}")
    for i in range(9):
        k(f"s_waitcnt vmcnt(8)\nv_permlane16_swap_b32 v{D+4*i}, v{D+4*i+2}\nv_permlane16_swap_b32 v{D+4*i+1}, v{D+4*i+3}")
        k(f"buffer_store_dwordx4 v[{D+4*i}:{D+4*i+3}], v7, s[8:11], s25 offen offset:{(i&1)*2048} sc1" + ("\ns_add_u32 s25, s25, 4096" if i & 1 else ""))
    stamp(k, 42)
    token_load(k)
    row_sums(k, D, 36, T); ln_stats_finish(k, T, T + 1)
    k(f"s_add_u32 s23, s24, {OFF_XN}")
    for i in range(9):
        for j in range(4): ln_norm(k, D + 4 * i + j, O + 4 * (i & 1) + j, T, T + 1, T + 2 + 2 * (j & 1))
        k(f"buffer_store_dwordx4 v[{O+4*(i&1)}:{O+4*(i&1)+3}], v7, s[8:11], s23 offen offset:{(i&1)*2048} sc1" + ("\ns_add_u32 s23, s23, 4096" if i & 1 else ""))
    stamp(k, 43)
    if envs("B0", "2") == "2": k("s_barrier")
    k("s_waitcnt vmcnt(0)")
    token_get(k, "a")
    publish(k)
    k("s_branch L_p0_wait")
    k.label("L_p0_wq")
    att_ids(k)
    k("s_mul_i32 s33, s22, 72")
    k("v_bfe_u32 v10, v0, 1, 5\nv_mul_u32_u24 v10, 3456, v10\nv_and_b32 v11, 1, v0\nv_lshl_add_u32 v10, v11, 4, v10")
    k("v_mul_u32_u24 v12, 36, v11\nv_bfe_u32 v11, v0, 3, 3\nv_mul_u32_u24 v11, 3456, v11\nv_add_u32 v11, v11, v12\nv_bfe_u32 v12, v0, 1, 2\nv_cmp_eq_u32 vcc, 3, v12\nv_mul_u32_u24 v12, 1152, v12")
    k(f"v_add_u32 v11, v11, v12\nv_mov_b32 v12, {BIG}\nv_cndmask_b32 v11, v11, v12, vcc")
    k(f"s_lshl_b32 s80, s21, 3\ns_mov_b32 m0, {128*KBY}\ns_mov_b32 s82, 8\ns_mov_b32 s79, {-(-(1<<32)//5)}")
    k("s_waitcnt lgkmcnt(0)")
    srd(k, 60, 38, 576 * 3456)
    k.label("L_wq")
    k("s_mul_hi_u32 s81, s80, s79\ns_mul_i32 s30, s81, 5\ns_sub_u32 s30, s80, s30\ns_lshr_b32 s31, s30, 1\ns_add_u32 s31, s31, 1")
    k("s_sub_u32 s34, s80, 90\ns_lshr_b32 s35, s34, 1\ns_and_b32 s34, s34, 1\ns_cmp_ge_u32 s80, 90\ns_cselect_b32 s81, s35, s81\ns_cselect_b32 s30, s34, s30\ns_cselect_b32 s31, 0, s31")
    k(f"s_mul_i32 s34, s81, {32*3456}\ns_add_u32 s34, s34, s33\ns_cmp_eq_u32 s30, 4\ns_cbranch_scc1 L_wqb")
    k("s_mul_i32 s31, s31, 1152\ns_and_b32 s30, s30, 1\ns_mul_i32 s30, s30, 36\ns_add_u32 s34, s34, s31\ns_add_u32 s34, s34, s30")
    k("buffer_load_dwordx4 v10, s[60:63], s34 offen lds\ns_add_u32 m0, m0, 1024")
    k.label("L_wqj")
    k("s_add_u32 s80, s80, 1\ns_sub_u32 s82, s82, 1\ns_cmp_lg_u32 s82, 0\ns_cbranch_scc1 L_wq\ns_branch L_wqx")
    k.label("L_wqb")
    k("s_add_u32 s34, s34, 32")
    for q in range(4): k(f"buffer_load_dword v11, s[60:63], s34 offen lds\ns_add_u32 m0, m0, 256\ns_add_u32 s34, s34, {8*3456}")
    k("s_branch L_wqj")
    k.label("L_wqx")
    if envs("B0", "2") == "1": k("s_barrier")
    ptrs(k)
    wq_base(k)
    k(f"s_lshl_b32 s30, s21, 13\ns_add_u32 s30, s30, s25\ns_add_u32 s31, s30, 4096\nv_lshrrev_b32 v3, 1, v1\nv_add_u32 v3, {128*KBY}, v3")
    k(f"s_cmp_eq_u32 s21, 15\ns_cselect_b32 s32, {BIG}, s31")
    k(f"s_lshl_b32 s24, s22, 7\ns_add_u32 s24, s24, {FQ}\ns_lshl_b32 s27, s21, 3\ns_add_u32 s27, s27, s24\ns_waitcnt vmcnt(0)")
    stamp(k, 41)
    token_load(k)
    for sl in range(8):
        for hf in range(2): k(f"ds_read_b64_tr_b16 v[{16+4*sl+2*hf}:{17+4*sl+2*hf}], v3 offset:{sl*1024 + hf*512}")
    for sl in range(8): k(f"s_waitcnt lgkmcnt({14-2*sl})\nbuffer_store_dwordx4 v[{16+4*sl}:{19+4*sl}], v1, s[8:11], s{30 if sl < 4 else 31 if sl < 6 else 32} offen offset:{(sl%4)*1024} sc1")
    if envs("B0", "2") == "2": k("s_barrier")
    k("s_waitcnt vmcnt(0)")
    token_get(k, "b")
    publish(k, "s27")
    stamp(k, 42)
    k("s_mov_b32 s56, s24\nv_and_b32 v2, 15, v0\nv_lshlrev_b32 v2, 3, v2")
    if "q" in SP: spoll(k, "q", 16, wg=False)
    else: poll(k, "q", wg=False)
    stamp(k, 43)
    k("s_branch L_p0_fetch")
    k.label("L_p0_23")
    k("s_sub_u32 s21, s20, 2\nv_bfe_u32 v4, v0, 3, 3\nv_and_b32 v5, 7, v0\ns_memrealtime s[94:95]")
    k("s_lshl_b32 s23, s2, 1\ns_add_u32 s23, s23, s21")
    sdiv(k, 25, 23, 3, 30)
    k("s_mul_i32 s30, s25, 3\ns_sub_u32 s28, s23, s30\ns_mul_i32 s28, s28, 6")
    sdiv(k, 26, 25, 18, 30)
    k("s_mul_i32 s30, s26, 18\ns_sub_u32 s25, s25, s30\ns_cmp_ge_u32 s25, 9\ns_cselect_b32 s27, 18, 0\ns_cselect_b32 s30, 9, 0\ns_sub_u32 s25, s25, s30")
    k(f"s_mul_i32 s30, s26, 9\ns_add_u32 s25, s25, s30\ns_lshl_b32 s24, s25, 7\ns_mul_i32 s30, s28, {32*9216}\ns_add_u32 s24, s24, s30")
    k("v_mul_u32_u24 v6, 9216, v4\nv_lshl_add_u32 v6, v5, 4, v6\ns_waitcnt lgkmcnt(0)")
    ptrs(k)
    k(f"s_or_b32 s94, s94, 1\ns_or_b32 s95, s95, 0x80000000\nv_mov_b32 v16, s94\nv_mov_b32 v17, s95\ns_cmp_eq_u32 s23, 0\ns_cselect_b32 s30, 0, {BIG}")
    k("buffer_store_dwordx2 v[16:17], v13, s[84:87], s30 offen sc1")
    k(f"s_sub_u32 s30, s23, 486\ns_lshl_b32 s30, s30, 14\ns_add_u32 s30, s30, {OFF_FLAG}\ns_cmp_ge_u32 s23, 486\ns_cselect_b32 s30, s30, {BIG}\ns_add_u32 s31, s30, 8192\nv_lshlrev_b32 v2, 3, v1")
    k("buffer_load_dword v22, v2, s[8:11], s30 offen\nbuffer_load_dword v21, v2, s[8:11], s31 offen")
    k("s_cmp_ge_u32 s2, 216\ns_cbranch_scc1 L_p0_wo")
    k("s_add_u32 s29, s27, s28")
    for c in range(4):
        k(f"s_lshl_b32 s30, s25, 2\ns_add_u32 s30, s30, {c}")
        sdiv(k, 31, 30, 9, 33)
        k("s_mul_i32 s33, s31, 9\ns_sub_u32 s30, s30, s33\ns_mul_i32 s31, s31, 486\ns_mul_i32 s30, s30, 36\ns_add_u32 s30, s30, s31\ns_add_u32 s30, s30, s29")
        k(f"s_add_u32 s30, s30, {OFF_WF//KBY}\ns_lshl_b32 s{DST+c}, s30, 10")
    if EARLY == "p0":
        stage_addr(k)
        k("s_waitcnt vmcnt(0)")
        stamp(k, 43)
        for n in range(8): pack_block(k, n, 6)
    sdiv(k, 25, 2, 3, 30)
    k("s_mul_i32 s30, s25, 3\ns_sub_u32 s28, s2, s30\ns_mul_i32 s28, s28, 6\ns_mul_i32 s30, s21, 3\ns_add_u32 s28, s28, s30")
    k("s_mul_i32 s30, s26, 9\ns_sub_u32 s25, s25, s30")
    for c in range(4):
        k(f"s_lshl_b32 s31, s25, 1\ns_add_u32 s31, s31, {c >> 1}\ns_and_b32 s31, s31, 3\ns_and_b32 s30, s25, 14\ns_add_u32 s30, s30, {1 + (c & 1)}")
        k(f"s_cmp_eq_u32 s25, 8\ns_cselect_b32 s31, {c}, s31\ns_cselect_b32 s30, 0, s30\ns_lshl_b32 s33, s26, 2\ns_add_u32 s31, s31, s33\ns_mul_i32 s31, s31, 486")
        k(f"s_mul_i32 s30, s30, 18\ns_add_u32 s30, s30, s31\ns_add_u32 s30, s30, s28\ns_add_u32 s30, s30, {324 + OFF_WF//KBY}\ns_lshl_b32 s{78+c}, s30, 10")
    k("s_lshl_b32 s34, s25, 7\ns_mul_i32 s35, s26, 576")
    for u in range(3):
        k("s_lshr_b32 s30, s28, 2\ns_mul_i32 s30, s30, 144\ns_and_b32 s31, s28, 3\ns_lshl_b32 s31, s31, 5\ns_add_u32 s30, s30, s31")
        k("s_mul_i32 s31, s28, 288\ns_sub_u32 s31, s31, 4480\ns_cmp_ge_u32 s28, 16\ns_cselect_b32 s30, s31, s30\ns_cselect_b32 s37, 144, 16")
        k(f"s_add_u32 s30, s30, s35\ns_mul_i32 s30, s30, 1152\ns_add_u32 s{72+2*u}, s30, s34\ns_mul_i32 s37, s37, 1152\ns_add_u32 s{73+2*u}, s{72+2*u}, s37\ns_add_u32 s28, s28, 1")
    if envs("B0", "2") in "12": k("s_barrier")
    k(f"s_cmp_eq_u32 s27, 0\ns_cselect_b32 s60, s40, s42\ns_cselect_b32 s61, s41, s43\ns_mov_b32 s62, {576*9216}\ns_mov_b32 s63, 0x00020000")
    if envs("NOBG", ""): k("s_mov_b32 s62, 0")
    for u in range(6):
        for i in range(4): k(f"buffer_load_dwordx4 {park(u, i)}, v6, s[60:63], s24 offen nt\ns_add_u32 s24, s24, {8*9216}")
    if envs("CODEPF", "1") == "1":
        k("s_getpc_b64 s[12:13]")
        k.label("L_pc")
        k(f"s_mov_b32 s14, L_end-L_pc\ns_mov_b32 s15, 0x00020000\nv_lshlrev_b32 v2, 3, v1\ns_lshl_b32 s30, s17, 13\ns_cmp_eq_u32 s20, 3\ns_cselect_b32 s30, s30, {BIG}")
        k("buffer_load_dword v20, v2, s[12:15], s30 offen")
    token_load(k)
    srd(k, 60, 44, 4608 * 1152)
    k("s_mov_b32 s67, 1")
    if EARLY != "f":
        k("s_waitcnt vmcnt(0)"); token_get(k, "c")
    k("s_branch L_p0_wait")
    k.label("L_p0_wo")
    if envs("B0", "2") in "12": k("s_barrier")
    token_load(k)
    k("s_sub_u32 s23, s23, 432\ns_cmp_lt_u32 s23, 54\ns_cbranch_scc1 L_p0_wo2")
    k("s_waitcnt vmcnt(0)")
    token_get(k, "d")
    k("s_branch L_p0_wait")
    k.label("L_p0_wo2")
    srd(k, 12, 46, 576 * 1152)
    sdiv(k, 27, 23, 3, 30)
    k("s_mul_i32 s30, s27, 3\ns_sub_u32 s25, s23, s30\ns_mul_i32 s25, s25, 3")
    k("v_lshrrev_b32 v7, 1, v4\nv_mul_u32_u24 v7, 18, v7\nv_and_b32 v8, 1, v4\nv_add_u32 v7, v7, v8")
    k("s_mul_i32 s30, s27, 36\ns_sub_u32 s31, s27, 16\ns_mul_i32 s31, s31, 288\ns_add_u32 s31, s31, 16")
    k(f"s_cmp_lt_u32 s27, 16\ns_cselect_b32 s30, s30, s31\ns_mov_b32 s28, {18*1152}\ns_mov_b32 s29, {8*1152}\ns_cselect_b32 s28, s28, {144*1152}\ns_cselect_b32 s29, s29, {72*1152}\ns_cselect_b64 vcc, -1, 0")
    k("s_mul_i32 s32, s30, 1152\ns_lshl_b32 s31, s25, 7\ns_add_u32 s32, s32, s31")
    k("v_cndmask_b32 v8, v7, v4, vcc\nv_mul_u32_u24 v6, 1152, v8\nv_lshl_add_u32 v6, v5, 4, v6")
    k("s_add_u32 s33, s32, s29\ns_add_u32 s34, s32, s28\ns_add_u32 s35, s34, s29")
    for u in range(3):
        for i in range(4): k(f"buffer_load_dwordx4 {park(u, i)}, v6, s[12:15], s{32+i} offen offset:{128*u} nt")
    for u in range(3):
        for c in range(4):
            k(f"s_lshl_b32 s30, s25, 1\ns_add_u32 s30, s30, {2*u + (c >> 1)}\ns_cmp_ge_u32 s30, 9\ns_cselect_b32 s31, 9, 0\ns_cselect_b32 s33, 432, 0\ns_sub_u32 s30, s30, s31")
            k("s_sub_u32 s31, s30, 1\ns_lshr_b32 s31, s31, 1\ns_cmp_lt_u32 s30, 3\ns_cselect_b32 s31, 0, s31\ns_cselect_b32 s34, 0, 2")
            k(f"s_mul_i32 s31, s31, 104\ns_lshl_b32 s30, s30, 1\ns_add_u32 s30, s30, s31\ns_sub_u32 s30, s30, s34\ns_add_u32 s30, s30, s33")
            k(f"s_mul_i32 s31, s27, 6\ns_add_u32 s30, s30, s31\ns_add_u32 s30, s30, {OFF_WO//KBY + (c & 1)}\ns_lshl_b32 s{72+4*u+c}, s30, 10")
    stage_addr(k)
    k("s_waitcnt vmcnt(0)")
    for n in range(5): pack_block(k, n, 3, lambda u, c: (f"s{72+4*u+c}", 0))
    token_get(k, "e")
    k(f"s_lshl_b32 s56, s23, 3\ns_add_u32 s56, s56, {FW}\ns_waitcnt vmcnt(0)")
    publish(k)
    k.label("L_p0_wait")
    stamp(k, 44)
    k.label("L_p0_fetch")
    wq_base(k)
    k("s_lshl_b32 s26, s20, 12\ns_add_u32 s25, s25, s26\ns_mov_b32 m0, s26\ns_barrier")
    for q in range(8):
        for c in range(4): k(f"buffer_load_dwordx4 v1, s[8:11], s25 offen offset:{c*1024} lds")
        k("s_add_u32 m0, m0, 16384\ns_add_u32 s25, s25, 16384")
    if EARLY == "f":
        k("s_cmp_eq_u32 s67, 0\ns_cbranch_scc1 L_layer")
        stage_addr(k)
        k("s_waitcnt vmcnt(32)")
        token_get(k, "c")
        for n in range(8): pack_block(k, n, 6)

def gemm_core(k, NTB, NS, loads, AHEAD, st0, tr, NBUF=2, wwait=None, last=None, more=None):
    ACC = 16; WB = ACC + 4 * NS * NTB
    pi = 0
    def take(n):
        nonlocal pi
        r = loads[pi:pi + n]; pi += len(r); return r
    nx = {}
    for f in loads: nx[f.tag] = nx.get(f.tag, 0) + 1
    for f in take(AHEAD): f.fn(k)
    if wwait: wwait(k)
    if tr: k("v_lshrrev_b32 v3, 1, v1\nv_add_u32 v2, 0x10000, v3")
    else: k("v_mov_b32 v3, v1\nv_add_u32 v2, 0x10000, v1")
    def rd(ks, sl):
        i = ks * NS + sl; r = WB + 4 * ((ks % NBUF) * NS + sl); a = f"v{3 if i < 64 else 2}"; o = (i % 64) * 1024
        if tr: return [lgl(f"ds_read_b64_tr_b16 v[{r}:{r+1}], {a} offset:{o}", ("r", ks)), lgl(f"ds_read_b64_tr_b16 v[{r+2}:{r+3}], {a} offset:{o+512}", ("r", ks))]
        return [lgl(f"ds_read_b128 v[{r}:{r+3}], {a} offset:{o}", ("r", ks))]
    for ks in range(NBUF - 1):
        for sl in range(NS):
            for f in rd(ks, sl): f.fn(k)
    treg = lambda n: WB + 4 * ((n + NS * ((18 - int(envs("TK", "6"))) & 1)) % (2 * NS))
    def trd(n):
        TKk = int(envs("TK", "6")); sl, j = divmod(n, TKk); i = (18 - TKk + j) * NS + sl
        return lgl(f"ds_read_b128 v[{treg(n)}:{treg(n)+3}], v{3 if i < 64 else 2} offset:{(i % 64) * 1024}", ("t", n))
    TK = int(envs("TK", "6")) if last else 0
    K1 = 18 - TK
    for ks in range(K1 if TK else 18):
        while k.vmq.count(("x", ks)) < nx[("x", ks)]: take(1)[0].fn(k)
        k.wait_vm(("x", ks)); k.wait_lg(("r", ks))
        if ks == 0: stamp(k, st0)
        mf = []
        for sl in range(NS):
            for tb in range(NTB):
                a = ACC + 4 * (sl * NTB + tb); w = WB + 4 * ((ks % NBUF) * NS + sl); x = 4 * (ks * NTB + tb)
                mf.append(f"{MF} v[{a}:{a+3}], v[{w}:{w+3}], a[{x}:{x+3}], " + ("0" if ks == 0 else f"v[{a}:{a+3}]"))
        fill = [f for sl in range(NS) for f in rd(ks + NBUF - 1, sl)] if ks + NBUF - 1 < (K1 if TK else 18) else []
        if TK and ks == K1 - 1: fill = [trd(n) for n in range(NS)]
        if NBUF == 2 and envs("FRONT", "1") == "1":
            for j, f in enumerate(fill): f.before = j + 1
        outstanding = len(k.vmq) - k.vm_done
        if ks == 17 and last:
            n = len(mf); j = 0
            for i, m in enumerate(mf):
                k(m)
                c = 0
                while j < len(last) and last[j].after <= i and c < 4: last[j].fn(k); j += 1; c += 1
            k("s_nop 3")
            for f in last[j:]: f.fn(k)
            continue
        tk = take(max(0, AHEAD + 2 - outstanding + (2 if TK else 0)))
        if more and pi == len(loads) and not tk:
            n = -(-len(more) // (18 - ks)); tk = more[:n]; more = more[n:]
        interleave(k, mf, [fill, tk], budget=8 if NTB == 2 else 12)
    if TK:
        for f in take(len(loads)): f.fn(k)
        per = len(last) // NS + 1
        for sl in range(NS):
            mf = []; pre = {}
            for j in range(TK):
                n = sl * TK + j; ks = K1 + j
                pre[len(mf)] = (lambda k, n=n, ks=ks: (k.wait_vm(("x", ks)), k.wait_lg(("t", n))))
                for tb in range(NTB):
                    a = ACC + 4 * (sl * NTB + tb); w = treg(n); x = 4 * (ks * NTB + tb)
                    mf.append(f"{MF} v[{a}:{a+3}], v[{w}:{w+3}], a[{x}:{x+3}], v[{a}:{a+3}]")
            fill = [trd(n) for n in range(sl * TK + NS, min((sl + 1) * TK + NS, NS * TK))]
            for j, f in enumerate(fill): f.after = NTB * j
            ep = [f for f in last if f.blk == sl - 1]
            for f in ep: f.after = 3
            interleave(k, mf, [fill, ep], pre=pre, budget=12)
        k("s_nop 5")
        for f in last:
            if f.blk == NS - 1: f.fn(k)
    assert pi == len(loads) and not more, (pi, len(loads))
def tl(s, tag, post="", cost=8):
    f = F(lambda k: (k.vm(s, tag), k(post) if post else None), cost); f.tag = tag; return f

def p1_addr(k):
    att_ids(k)
    k(f"s_lshl_b32 s56, s21, 7\ns_add_u32 s56, s56, {FA}\nv_and_b32 v2, 15, v0\nv_lshlrev_b32 v2, 3, v2")
    k(f"s_lshl_b32 s26, s21, 2\ns_add_u32 s26, s26, s20")
    k(f"s_mul_i32 s23, s26, {36*KBY}\ns_add_u32 s23, s23, {OFF_XN}\ns_add_u32 s24, s23, {18*KBY}")
QB = 60 * KBY
def p1_qkv(k):
    p1_addr(k)
    stamp(k, 0)
    k(f"s_add_u32 s56, s56, s51\ns_mov_b32 s57, {SPIN}\ns_cmp_eq_u32 s20, 0\ns_cselect_b32 s27, s56, {BIG}\nbuffer_load_dwordx2 v[254:255], v2, s[8:11], s27 offen sc1")
    p2_consts(k)
    k("s_cmp_lg_u32 s20, 0\ns_cbranch_scc1 L_pollx_w0\ns_branch L_look_a")
    k.label("L_poll_a")
    k("buffer_load_dwordx2 v[254:255], v2, s[8:11], s56 offen sc1")
    k.label("L_look_a")
    k("s_sub_u32 s57, s57, 1\ns_waitcnt vmcnt(0)\nv_cmp_eq_u64 vcc, s[100:101], v[254:255]\ns_cmp_eq_u32 s57, 0\ns_cbranch_scc1 L_pollx_a\ns_cmp_eq_u64 vcc, -1\ns_cbranch_scc0 L_poll_a")
    k.label("L_pollx_a")
    k.label("L_pollx_w0")
    k("s_barrier")
    stamp(k, 1)
    fresh(k)
    loads = [tl(f"buffer_load_dwordx4 a[{4*(2*ks+tb)}:{4*(2*ks+tb)+3}], v1, s[8:11], s{23+tb} offen offset:{(ks%4)*1024}{LD}", ("x", ks),
                f"s_add_u32 s{23+tb}, s{23+tb}, 4096" if ks % 4 == 3 else "") for ks in range(18) for tb in range(2)]
    ACC, WB, NR, LA = 16, 72, 14, 7
    AH = int(envs("AH1", "10")); TK = int(envs("TK", "6")); QK1 = int(envs("QK1", "0")); SIG = int(envs("SIG", "16"))
    for f in loads[:AH]: f.fn(k)
    pi = AH
    k(f"s_mul_i32 s30, s22, {5*65536}\ns_lshl_b32 s27, s26, 10\ns_add_u32 s30, s30, s27\ns_add_u32 s30, s30, s53")
    k(f"s_lshl_b32 s56, s22, 7\ns_lshl_b32 s27, s21, 3\ns_add_u32 s56, s56, s27\ns_add_u32 s56, s56, {FB}\ns_add_u32 s56, s56, s51\ns_cmp_eq_u32 s20, 0\ns_cselect_b32 s56, s56, {BIG}")
    k(f"s_mov_b32 s32, {fbits(18 ** -0.5 * LOG2E)}\ns_mov_b32 s33, s32\nv_cmp_eq_u32 vcc, 0, v4\nv_cmp_eq_u32 s[34:35], 3, v4\nv_mov_b32 v8, s32\nv_mov_b32 v10, 0x3f803f80")
    k("v_cndmask_b32 v8, 1.0, v8, vcc\nv_mov_b32 v9, v8")
    k(f"s_lshl_b32 s27, s20, 10\ns_add_u32 s28, s27, 8192\nv_add_u32 v6, s28, v1\nv_add_u32 v7, s28, v5\ns_add_u32 s27, s27, {QB}\nv_add_u32 v11, s27, v1")
    k(f"s_lshl_b32 s36, s20, 1\ns_lshl_b32 s37, s21, 2\ns_add_u32 s37, s37, s36\ns_sub_i32 s37, s37, 8\ns_lshl_b32 s25, s37, 10\ns_mul_i32 s27, s22, {5*65536}\ns_add_u32 s25, s25, s27\ns_add_u32 s25, s25, s53")
    k(f"s_cmp_lt_i32 s37, 0\ns_cselect_b32 s25, {BIG}, s25\ns_lshl_b32 s36, s36, 10\ns_ashr_i32 s37, s37, 2\ns_cmp_lt_i32 s37, 0\ns_cselect_b32 s37, s21, s37")
    k(f"s_lshl_b32 s37, s37, 3\ns_lshl_b32 s27, s22, 7\ns_add_u32 s37, s37, s27\ns_add_u32 s37, s37, {FB}\ns_add_u32 s38, s37, s51\nv_mov_b32 v12, 0")
    if EARLY == "f": k(f"s_cmp_eq_u32 s67, 0\ns_cbranch_scc1 2\ns_waitcnt vmcnt({AH + 24})\ns_branch 1")
    k(f"s_waitcnt vmcnt({AH})\ns_barrier\nv_mov_b32 v3, v1\nv_add_u32 v2, 0x10000, v1")
    K1 = 18 - TK
    units = [(sl, ks) for ks in range(K1) for sl in range(7 if ks < QK1 else 5)]
    units += [(sl, ks) for sl in range(5) for ks in range(K1, 18)]
    n2 = len(units)
    QS = int(envs("QS", "3"))
    units += [(sl, ks) for ks in range(QK1, 18 - QS) for sl in (5, 6)] + [(sl, ks) for sl in (5, 6) for ks in range(18 - QS, 18)]
    def rd(n):
        sl, ks = units[n]; i = ks * 5 + sl if sl < 5 else 90 + 2 * ks + sl - 5; r = WB + 4 * (n % NR)
        return lgl(f"ds_read_b128 v[{r}:{r+3}], v{3 if i < 64 else 2} offset:{(i % 64) * 1024}", ("w", n))
    def epi(sl):
        a = ACC + 8 * sl; L = []
        if sl >= 4: L += [line(f"v_pk_mul_f32 v[{a+i}:{a+i+1}], v[{a+i}:{a+i+1}], " + ("v[8:9]" if sl == 4 else "s[32:33]")) for i in (0, 2, 4, 6)]
        L += [line(f"v_cvt_pk_bf16_f32 v{a+i}, v{a+2*i}, v{a+2*i+1}") for i in range(4)]
        if sl == 4: L += [line(f"v_cndmask_b32 v{a+i}, v{a+i}, v10, s[34:35]") for i in range(4)]
        if sl < 5: L += [vml(f"buffer_store_dwordx4 v[{a}:{a+3}], v1, s[8:11], s30 offen sc1", cost=8)] + ([line("s_add_u32 s30, s30, 65536")] if sl < 4 else [])
        else: L += [lgl(f"ds_write_b128 v11, v[{a}:{a+3}] offset:{(sl - 5) * 4096}", cost=8)]
        return L
    own = [lgl(f"ds_write_b128 v{6 if sl < 2 else 7}, v[{ACC+8*sl}:{ACC+8*sl+3}] offset:{sl*12288}", cost=8) for sl in range(5)]
    for n in range(LA): rd(n).fn(k)
    seen = set(); side = []; lastu = {sl: max(n for n, u in enumerate(units) if u[0] == sl) for sl in range(7)}
    sig = min(n2 + SIG, len(units)); delay = 0
    for n, (sl, ks) in enumerate(units):
        if n == sig:
            assert not side
            stamp(k, 4)
            k.wait_vm_all(); k("s_barrier"); publish(k); side += own
            stamp(k, 5)
        if n == len(units) - int(envs("LOOK", "6")): k.vm("buffer_load_dwordx2 v[252:253], v12, s[8:11], s38 offen sc1", "look")
        if ks not in seen:
            while k.vmq.count(("x", ks)) < 2: loads[pi].fn(k); pi += 1
            k.wait_vm(("x", ks)); seen.add(ks)
        k.wait_lg(("w", n))
        if n == 0: stamp(k, 2)
        for tb in range(2):
            a = ACC + 4 * (2 * sl + tb); w = WB + 4 * (n % NR); x = 4 * (2 * ks + tb)
            k(f"{MF} v[{a}:{a+3}], v[{w}:{w+3}], a[{x}:{x+3}], " + ("0" if ks == 0 else f"v[{a}:{a+3}]"))
            left = 12
            if tb == 0 and n + LA < len(units): rd(n + LA).fn(k); left -= 4
            if pi < len(loads) and len(k.vmq) - k.vm_done < AH + 2 and tb == 1: loads[pi].fn(k); pi += 1; left -= 8
            while side and delay <= 0 and side[0].cost <= left: left -= side[0].cost; side.pop(0).fn(k)
        delay -= 1
        for s2, lu in lastu.items():
            if lu == n:
                assert s2 < 5 or n >= sig
                side += epi(s2); delay = 2
    assert pi == len(loads) and sig < len(units)
    k.wait_vm("look")
    k("v_cmp_eq_u64 vcc, s[100:101], v[252:253]\ns_mov_b32 s56, s37\nv_mov_b32 v2, 0\ns_cmp_eq_u64 vcc, -1\ns_cbranch_scc1 L_pollx_b")
    poll(k, "b", wg=False)
    stamp(k, 6)
    for b in (0, 1, 4, 2, 3):
        k(f"s_add_u32 m0, s36, {b*12288}\ns_add_u32 s28, s25, {b*65536}")
        for c in range(2): k(f"buffer_load_dwordx4 v{1 if b < 2 else 5}, s[8:11], s28 offen offset:{c*1024} lds")
    for f in side: f.fn(k)
    if EARLY in ("p0", "f"): publish_fp(k, FP)
    k.wait_lg_all(); k("s_barrier")
    stamp(k, 3)
    k(f"s_cmp_lg_u32 s20, 0\ns_cbranch_scc1 L_pollx_w1\ns_cmp_lg_u32 s50, 0\ns_cbranch_scc1 L_pollx_w1\ns_mov_b32 s56, {FW}\nv_min_u32 v2, 53, v0\nv_lshlrev_b32 v2, 3, v2")
    poll(k, "w1", wg=False)
    if EARLY == "b": early_blocks(k)

Q, M1, M2, L8, LO, HI, BP, KA, KB_, VA, VB, QA, QX, L4, OBV = 16, 232, 236, 240, 241, 242, 243, 244, 245, 246, 247, 248, 249, 250, 12
def p2_consts(k):
    k("s_and_b32 s29, s20, 1\ns_lshr_b32 s30, s20, 1\ns_mul_i32 s36, s29, 12288\ns_lshl_b32 s37, s30, 11\ns_add_u32 s36, s36, s37\ns_add_u32 s37, s37, 49152")
    k(f"s_lshl_b32 s33, s29, 12\ns_lshl_b32 s34, s30, 11\ns_add_u32 s33, s33, s34\ns_add_u32 s33, s33, {QB}\nv_add_u32 v{QA}, s33, v1")
    k(f"v_bfe_u32 v4, v0, 4, 2\nv_and_b32 v5, 1, v4\nv_lshlrev_b32 v5, 7, v5\nv_xor_b32 v5, v5, v1")
    k(f"v_and_b32 v12, 15, v0\nv_lshlrev_b32 v3, 4, v12\ns_add_u32 s34, s37, 8192\nv_add_u32 v{QX}, s34, v3\nv_add_u32 v{KA}, s36, v1\nv_add_u32 v{KB_}, s37, v5")
    k("v_and_b32 v3, 63, v0\nv_and_b32 v6, 3, v3\nv_lshrrev_b32 v7, 2, v3\nv_and_b32 v8, 1, v3\nv_lshlrev_b32 v8, 3, v8\nv_xor_b32 v7, v7, v8\nv_lshl_add_u32 v7, v6, 4, v7\nv_lshlrev_b32 v7, 4, v7")
    k(f"s_add_u32 s36, s36, 24576\nv_add_u32 v{VA}, s36, v7\nv_add_u32 v{VB}, s37, v7")
    k("s_lshl_b32 s49, s21, 2\ns_lshl_b32 s33, s30, 1\ns_add_u32 s49, s49, s33")
    k(f"v_lshlrev_b32 v6, 2, v4\nv_mov_b32 v7, {fbits(-1e30)}")
    for i in range(4):
        k(f"v_add_u32 v8, {i}, v6\nv_cmp_gt_u32 vcc, v8, v12\ns_nop 1\nv_cndmask_b32 v{M1+i}, v7, 0, vcc\nv_cndmask_b32 v{M2+i}, 0, v7, vcc")
    k(f"v_cmp_eq_u32 s[38:39], 1, v4\nv_lshlrev_b32 v{BP}, 2, v12\nv_add_u32 v{BP}, 128, v{BP}")
    k("s_cmp_eq_u32 s29, 1\ns_cselect_b64 s[40:41], -1, 0")
    k("s_andn2_b64 s[42:43], s[38:39], s[40:41]\ns_and_b64 s[44:45], s[38:39], s[40:41]")
    k("s_lshl_b32 s36, s22, 1\ns_add_u32 s36, s36, s29")
    k(f"s_lshl_b32 s47, s49, 15\ns_lshl_b32 s37, s36, 9\ns_add_u32 s47, s47, s37\ns_add_u32 s47, s47, {OFF_OF}\ns_mov_b32 s48, s47")
    k(f"s_lshl_b32 s46, s49, 12\ns_lshl_b32 s37, s36, 8\ns_add_u32 s46, s46, s37\ns_add_u32 s46, s46, {OFF_OB}")
    k(f"v_lshrrev_b32 v{L8}, 1, v1\nv_lshrrev_b32 v{L4}, 2, v1\nv_mov_b32 v{LO}, {fbits(2.0**-30)}\nv_mov_b32 v{HI}, {fbits(2.0**30)}\ns_mov_b64 s[64:65], {-1 if FORCE_EXACT else 0}")
    k(f"s_lshr_b32 s58, s17, 2\ns_mul_i32 s58, s58, {108*KBY}\ns_add_u32 s58, s58, {OFF_WO}\ns_lshl_b32 s59, s20, 12\ns_add_u32 s58, s58, s59")
    k(f"s_lshl_b32 s39, s21, 7\ns_lshl_b32 s27, s22, 3\ns_add_u32 s39, s39, s27\ns_add_u32 s39, s39, {FC}")
def p2_attn(k):
    KR, VR = 0, 80
    for i in range(4):
        off = (i >> 1) * 1024 + (i & 1) * 8
        k.lg(f"ds_read_b64 v[{Q+4*i}:{Q+4*i+1}], v{QA} offset:{off}", "q"); k.lg(f"ds_read_b64 v[{Q+4*i+2}:{Q+4*i+3}], v{QX} offset:{off}", "q")
    def kread(kt):
        off = (kt >> 1) * 1024 + (kt & 1) * 8
        return [lgl(f"ds_read_b64 a[{KR+4*kt}:{KR+4*kt+1}], v{KA} offset:{off}", ("k", kt)), lgl(f"ds_read_b64 a[{KR+4*kt+2}:{KR+4*kt+3}], v{KB_} offset:{off}", ("k", kt))]
    def vread(p):
        return [lgl(f"ds_read_b64_tr_b16 a[{VR+8*p+4*b+2*hf}:{VR+8*p+4*b+2*hf+1}], v{VA+b} offset:{p*1024 + hf*8}", ("v", p)) for b in range(2) for hf in range(2)]
    for f in [f for kt in range(16, 20) for f in kread(kt)]: f.fn(k)
    k.wait_lg("q")
    for f in vread(8) + vread(9): f.fn(k)
    for i in range(4):
        k(f"v_cndmask_b32 v{Q+4*i+2}, 0, v{Q+4*i+2}, s[42:43]\nv_cndmask_b32 v{Q+4*i+3}, 0, v{Q+4*i+3}, s[44:45]")
    k("v_bfe_u32 v10, v0, 3, 3\nv_mul_u32_u24 v10, 1152, v10\nv_and_b32 v11, 7, v0\nv_lshl_add_u32 v10, v11, 4, v10\nv_add_u32 v11, 9216, v10")
    k("s_mov_b32 s56, s39\ns_waitcnt lgkmcnt(0)")
    stamp(k, 11)
    fresh(k)
    S0 = 48; OA = S0 + 144; TM = OA + 32
    def landed(k):
        if EARLY == "b": k("s_cmp_eq_u32 s67, 0\ns_cbranch_scc1 2\ns_waitcnt vmcnt(24)\ns_branch 1")
        k("s_waitcnt vmcnt(0)\ns_barrier")
        stamp(k, 7)
    def kv_read(k):
        k.wait_lg_all(); k("s_mov_b32 m0, s59\ns_waitcnt vmcnt(0)\ns_barrier")
        if EARLY == "b":
            k("v_mov_b32 v254, s100\nv_mov_b32 v255, s101")
            publish_fp(k, FP)
    def run(mf, valu, gap_first=0, frac=0.9):
        tot = sum(f.cost for f in valu); acc = 0; mi = 0
        for f in valu:
            while mi < len(mf) and acc >= gap_first + (tot - gap_first) * mi / max(len(mf), 1) * frac:
                mf[mi](k); mi += 1
            f.fn(k); acc += f.cost
        while mi < len(mf): mf[mi](k); mi += 1
    def epi(i, check):
        o = OA + 8 * i; t = TM + 2; l = TM + 4; z = TM + 5
        L = [line(f"v_mov_b32 v{l}, v{o+7}\nv_mov_b32 v{t}, v{o+7}", 8),
             line(f"v_cndmask_b32 v{o+4}, v{o+4}, v{o+6}, s[40:41]"), line(f"v_cndmask_b32 v{o+5}, v{o+5}, v{o+7}, s[40:41]"),
             line(f"v_permlane32_swap_b32 v{t}, v{l}\nv_mov_b32 v{t}, v{l}\ns_nop 1\nv_permlane16_swap_b32 v{t}, v{l}", 20), line(f"v_rcp_f32 v{t}, v{l}", 8)]
        if check:
            L += [line(f"v_med3_f32 v{z}, v{l}, v{LO}, v{HI}"), line(f"v_sub_f32 v{z}, v{z}, v{l}")]
            L += [line(f"v_fma_f32 v{z}, v{o+j}, 0, v{z}") for j in range(6)]
            L += [line(f"v_cmp_neq_f32 vcc, 0, v{z}")]
        else: L += [line("s_nop 0")]
        for j in (0, 2, 4): L.append(line(f"v_pk_mul_f32 v[{o+j}:{o+j+1}], v[{o+j}:{o+j+1}], v[{t}:{t+1}] op_sel_hi:[1,0]"))
        if check: L.append(line("s_or_b64 s[64:65], s[64:65], vcc"))
        for j in (2, 0, 1): L.append(line(f"v_cvt_pk_bf16_f32 v{o+(j if j < 2 else 6)}, v{o+2*j}, v{o+2*j+1}"))
        L.append(lgl(f"ds_bpermute_b32 v{TM+3}, v{BP}, v{o+6}", ("bp", i)))
        L.append(vml(f"buffer_store_dwordx2 v[{o}:{o+1}], v{L8}, s[8:11], s47 offen sc1"))
        L.append(line(f"s_add_u32 s47, s47, 16384"))
        L2 = [line(f"s_mov_b32 vcc_lo, {(0xffff, 0xffff0000, 0, 0)[i]}\ns_mov_b32 vcc_hi, {(0, 0, 0xffff, 0xffff0000)[i]}", 8),
              F(lambda k: (k.wait_lg(("bp", i)), k(f"v_cndmask_b32 v{OBV}, v{OBV}, v{TM+3}, vcc")), 8)]
        if i == 3: L2.append(vml(f"buffer_store_dword v{OBV}, v{L4}, s[8:11], s46 offen sc1"))
        return (L, L2) if check else L + L2
    def variant(lim, fast, first):
        nm = f"{'f' if fast else 'e'}{'' if first else 'r'}{lim}"
        k.label(f"L_attn_{nm}")
        k.lgq = []; k.lg_done = 0
        tiles = lambda i: list(range(max(i, lim), i + 17))
        pairs = lambda i: list(range(max(i, lim) >> 1, ((i + 16) >> 1) + 1))
        kreads, vreads, extra = [], [], []
        if first:
            kreads = [f for kt in range(lim, 16) for f in kread(kt)]
            vreads = [f for p in range(lim // 2, 8) for f in vread(p)]
            wo = [kv_read]
            for q in range(7):
                for c in range(4):
                    wo.append(lambda k, c=c: k(f"buffer_load_dwordx4 v1, s[8:11], s58 offen offset:{c*1024} lds" + ("\ns_add_u32 m0, m0, 16384\ns_add_u32 s58, s58, 16384" if c == 3 else "")))
            def pkl(u):
                def f(k):
                    k(f"s_cmp_eq_u32 s67, 0\ns_cbranch_scc1 L_pk_{nm}_{u}")
                    for i in range(4): k(f"buffer_load_dwordx4 {lpark(u, i)}, v{10 + (i & 1)}, s[60:63], s{72 + 2*u + (i >> 1)} offen nt")
                    k.label(f"L_pk_{nm}_{u}")
                return f
            extra = wo[:1] + [pkl(0), pkl(1), pkl(2)] + wo[1:]
            if envs("NOWO", ""): extra = extra[:4]
            if EARLY == "w":
                def pkb(n):
                    def f(k):
                        k(f"s_cmp_eq_u32 s67, 0\ns_cbranch_scc1 L_pb_{nm}_{n}")
                        if n == 0: stage_addr(k)
                        pack_block(k, n, 6)
                        k.label(f"L_pb_{nm}_{n}")
                    return f
                extra = [pkl(0), pkl(1), pkl(2), pkb(0), pkb(1), wo[0]]
                for n in range(6): extra += [pkb(2 + n)] + wo[1 + 28 * n // 6: 1 + 28 * (n + 1) // 6]
        def qk1(i, kt, s):
            c = f"v[{M2}:{M2+3}]" if kt == i + 16 else f"v[{M1}:{M1+3}]" if kt == i else "0"
            def f(k):
                if first and kt < 16: k.wait_lg(("k", kt))
                k(f"{MF} v[{s}:{s+3}], a[{KR+4*kt}:{KR+4*kt+3}], v[{Q+4*i}:{Q+4*i+3}], {c}")
            return f
        def pv1(i, p, b, s, zero):
            o = OA + 8 * i + 4 * b
            def f(k):
                if first and p < 8: k.wait_lg(("v", p))
                k(f"{MF} v[{o}:{o+3}], a[{VR+8*p+4*b}:{VR+8*p+4*b+3}], v[{s}:{s+3}], " + ("0" if zero else f"v[{o}:{o+3}]"))
            return f
        if fast:
            steps = [(i, p) for i in range(4) for p in pairs(i) if p >= 8]; NL = len(steps)
            steps += [(i, p) for i in range(4) for p in pairs(i) if p < 8]
            QL = 2; NB = 10; SPC = int(envs("SP", "14"))
            buf = lambda s: S0 + 8 * (s % NB)
            def qks(s):
                if s >= len(steps): return []
                i, p = steps[s]
                return [qk1(i, 2 * p + hf, buf(s) + 4 * hf) for hf in range(2) if 2 * p + hf in tiles(i)]
            def pvs(s):
                if not 0 <= s < len(steps): return []
                return [pv1(*steps[s], b, buf(s), all(steps[t][0] != steps[s][0] for t in range(s))) for b in range(2)]
            def exps(s):
                if s >= len(steps): return []
                i, p = steps[s]; b = buf(s); va, vb = 2 * p in tiles(i), 2 * p + 1 in tiles(i)
                E = lambda r: line(f"v_exp_f32 v{r}, v{r}", 8); C = lambda d, r: line(f"v_cvt_pk_bf16_f32 v{d}, v{r}, v{r+1}")
                Z = lambda d: line(f"v_mov_b32 v{d}, 0")
                if va and vb: return [E(b), E(b+1), E(b+2), E(b+3), E(b+4), C(b, b), E(b+5), C(b+1, b+2), E(b+6), E(b+7), C(b+2, b+4), C(b+3, b+6)]
                if va: return [E(b), E(b+1), E(b+2), E(b+3), C(b, b), C(b+1, b+2), Z(b+2), Z(b+3)]
                return [E(b+4), E(b+5), E(b+6), E(b+7), Z(b), Z(b+1), C(b+2, b+4), C(b+3, b+6)]
            SB = int(envs("SB", "3"))
            side = [landed] + [f.fn for f in kreads + vreads]
            for s in range(NL):
                for m in qks(s): m(k)
            k("s_nop 2")
            last = {i: max(s for s, (ii, p) in enumerate(steps) if ii == i) for i in range(4)}
            pend = []; pend2 = []; pvp = 0; qp = NL; s = 0; nsteps = len(steps) + 2
            issued = lambda tag: tag in k.lgq
            while pvp < len(steps):
                if s in (NL, NL + 10, NL + 20): stamp(k, 8 + (s - NL) // 10)
                todo = []
                while pvp < min(s, len(steps)) and len(todo) < 2 and not (todo and todo[-1] in last.values()) and (steps[pvp][1] >= 8 or issued(("v", steps[pvp][1]))):
                    todo.append(pvp); pvp += 1
                qs = []
                while qp < min(s + QL + 1, len(steps)) and len(qs) < 2 and issued(("k", 2 * steps[qp][1] + 1)):
                    assert qp - NB < pvp - len(todo) or qp < NB, (qp, pvp)
                    qs.append(qp); qp += 1
                assert qp > s + 1 or qp == len(steps), (lim, s, qp)
                mf = [m for t in todo for m in pvs(t)] + [m for t in qs for m in qks(t)]
                sd = []
                while s >= SB and side and (len(sd) < SPC): sd.append(side.pop(0))
                if s > SB and not side and not sd and extra:
                    q = -(-len(extra) // max(1, nsteps - 2 - s)); sd = extra[:q]; extra = extra[q:]
                va = exps(s)
                if pend and len(va) < 12: va = va + [line("s_nop 7", 32)]
                va = va + pend2 + pend; pend2 = []
                if pend: pend2 = later
                pend = []
                for i in range(4):
                    if last[i] in todo: pend, later = epi(i, True)
                mix = []
                a, b2 = list(mf), list(sd)
                while a or b2:
                    if b2:
                        for _ in range(-(-len(b2) // max(1, len(a)))): mix.append(b2.pop(0))
                    if a: mix.append(a.pop(0))
                if not va: va = [line("s_nop 1")]
                run(mix, va, 9, 0.85)
                s += 1
            for f in side: f(k)
            side = []
            for f in extra: f(k)
            assert not side
            for f in pend2: f.fn(k)
            k("s_nop 7")
            for f in pend + later: f.fn(k)
            k("s_cmp_eq_u64 s[64:65], 0\ns_cbranch_scc1 L_attn_done")
            k(f"s_waitcnt vmcnt(0)\ns_mov_b32 s47, s48\ns_branch L_attn_er{lim}")
            return
        sreg = lambda i, kt: S0 + 72 * (i & 1) + 4 * (kt - 2 * (i >> 1))
        qk = lambda i: [qk1(i, kt, sreg(i, kt)) for kt in tiles(i)]
        pv = lambda i: [pv1(i, p, b, sreg(i, 2 * p), p == pairs(i)[0]) for b in range(2) for p in pairs(i)]
        def softmax(i):
            L = []
            regs = [sreg(i, kt) + j for kt in tiles(i) for j in range(4)]
            m = TM; t = TM + 1
            ch = [regs[0::2], regs[1::2]]
            for c in range(2): L.append(line(f"v_max_f32 v{m+c}, v{ch[c][0]}, v{ch[c][1]}"))
            for j in range(2, len(ch[0]), 2):
                for c in range(2): L.append(line(f"v_max3_f32 v{m+c}, v{m+c}, v{ch[c][j]}, v{ch[c][j+1]}"))
            L.append(line(f"v_max_f32 v{m}, v{m}, v{t}"))
            for sw in ("v_permlane16_swap_b32", "v_permlane32_swap_b32"):
                L.append(line(f"v_mov_b32 v{t}, v{m}\ns_nop 1\n{sw} v{m}, v{t}\nv_max_f32 v{m}, v{m}, v{t}", 16))
            for p in pairs(i):
                base = sreg(i, 2 * p)
                for hf in range(2):
                    kt = 2 * p + hf; s = sreg(i, kt)
                    if kt in tiles(i):
                        for j in range(4): L.append(line(f"v_sub_f32 v{s+j}, v{s+j}, v{m}"))
                        for j in range(4): L.append(line(f"v_exp_f32 v{s+j}, v{s+j}", 8))
                for hf in range(2):
                    kt = 2 * p + hf; s = sreg(i, kt)
                    for j in range(2):
                        if kt in tiles(i): L.append(line(f"v_cvt_pk_bf16_f32 v{base+2*hf+j}, v{s+2*j}, v{s+2*j+1}"))
                        else: L.append(line(f"v_mov_b32 v{base+2*hf+j}, 0"))
            return L
        if first: landed(k)
        for f in kreads: f.fn(k)
        for m in qk(0): m(k)
        k("s_nop 7")
        for i in range(4):
            mf = (pv(i - 1) if i >= 1 else []) + (qk(i + 1) if i < 3 else [])
            if i == 0: mf = mf + [f.fn for f in vreads]
            if i == 1: mf = extra + mf
            va = softmax(i)
            if i >= 2: va = epi(i - 2, False) + va
            run(mf, va, 8 if i else 0)
            k("s_nop 1")
        run(pv(3), epi(2, False))
        k("s_nop 7")
        for f in epi(3, False): f.fn(k)
        k("s_branch L_attn_done")
    v = "f" if FAST else "e"
    for lim in (16, 12, 8, 4): k(f"s_cmp_eq_u32 s49, {(16 - lim) // 2}\ns_cbranch_scc1 L_attn_{v}{lim}")
    for lim in (0, 4, 8, 12, 16): variant(lim, FAST, True)
    if FAST:
        for lim in (0, 4, 8, 12, 16): variant(lim, False, False)
    k.label("L_attn_done")
    stamp(k, 12)
    signal(k)
    late_blocks(k)
    stamp(k, 13)

AG, AU, T1, T2, XV, RING = 16, 32, 48, 64, 80, 112
WQR = [RING + 4 * i for i in range(21, 35)] + [RING + 4 * i for i in range(6)] + [AU + 4 * i for i in range(4)] + [RING + 4 * i for i in range(6, 14)]
RESID = RING + 4 * 18
G = 3; LEAD = 36 - G
def wload(p):
    r = RING + 4 * (p % 36)
    if p >= 486: return []
    s = f"buffer_load_dwordx4 v[{r}:{r+3}], v1, s[12:15], s25 offen offset:{(p%4)*1024}"
    return [vml(s, ("w", p), cost=int(envs("LC", "8")))] + ([line("s_add_u32 s25, s25, 4096")] if p % 4 == 3 else [])

PRE = int(envs("PRE", "24")); PRE3 = int(envs("PRE3", "0"))
def ffn_stream(k):
    k("s_lshl_b32 s21, s19, 1\ns_and_b32 s22, s17, 1\ns_add_u32 s21, s21, s22")
    k(f"s_lshl_b32 s24, s21, 2\ns_add_u32 s24, s24, s20\ns_mul_i32 s24, s24, {486*KBY}\ns_add_u32 s24, s24, {OFF_WF}")
    k(f"s_add_u32 s12, s4, s24\ns_addc_u32 s13, s5, 0\ns_mov_b32 s14, {486*KBY}\ns_mov_b32 s15, 0x00020000\ns_mov_b32 s25, 0")
    k("s_cmp_lg_u32 s20, 0\ns_cbranch_scc1 L_pollx_p")
    poll_fp(k, "p", FP)
def p3_wo(k):
    NS = 6; ACC = 16; NB3 = int(envs('NB3', '3')); RES = 240
    ffn_stream(k)
    k("s_lshl_b32 s21, s16, 2\ns_and_b32 s22, s17, 3\ns_add_u32 s26, s21, s22")
    k("s_lshr_b32 s22, s17, 2")
    k("s_lshl_b32 s21, s26, 2\ns_add_u32 s21, s21, s20")
    k(f"s_lshl_b32 s23, s21, 14\ns_add_u32 s23, s23, {OFF_OF}")
    k(f"s_lshl_b32 s24, s26, 13\ns_lshl_b32 s30, s20, 6\ns_add_u32 s24, s24, s30\ns_add_u32 s24, s24, {OFF_OB}")
    k("s_lshr_b32 s28, s22, 2\ns_mul_i32 s28, s28, 9\ns_and_b32 s29, s22, 3\ns_lshl_b32 s30, s29, 1\ns_add_u32 s30, s30, 1\ns_cmp_eq_u32 s29, 0\ns_cselect_b32 s30, 0, s30\ns_add_u32 s28, s28, s30")
    k(f"s_mul_i32 s27, s21, 18\ns_add_u32 s27, s27, s28\ns_lshl_b32 s27, s27, 10\ns_add_u32 s40, s27, {OFF_XF}\ns_add_u32 s41, s27, {OFF_X1}")
    k("v_lshrrev_b32 v10, 1, v1\nv_and_b32 v11, 15, v0\nv_lshlrev_b32 v11, 2, v11\nv_bfe_u32 v12, v0, 4, 2\nv_lshl_add_u32 v11, v12, 9, v11")
    k(f"s_lshr_b32 s56, s26, 1\ns_lshl_b32 s56, s56, 7\ns_add_u32 s56, s56, {FC}\nv_and_b32 v2, 15, v0\nv_lshlrev_b32 v2, 3, v2")
    poll(k, "c")
    stamp(k, 14)
    fresh(k)
    loads = []
    for ks in range(16):
        for h in range(2):
            loads.append(tl(f"buffer_load_dwordx2 a[{4*ks+2*h}:{4*ks+2*h+1}], v10, s[8:11], s23 offen offset:{(ks%4)*1024 + 512*h}{LD}", ("x", ks),
                            "s_add_u32 s23, s23, 4096" if ks % 4 == 3 and h else "", 4))
    for q in range(2):
        for j in range(4):
            loads.append(tl(f"buffer_load_dword a{64+4*q+j}, v11, s[8:11], s24 offen offset:{(j>>1)*2048 + (j&1)*256}{LD}", ("x", 16 + q),
                            "s_add_u32 s24, s24, 4096" if j == 3 else "", 4))
    for pr in range(3): loads.append(tl(f"buffer_load_dwordx4 v[{RES+4*pr}:{RES+4*pr+3}], v1, s[8:11], s40 offen offset:{pr*1024}{LD}", "res"))
    if envs("T3", "0") == "1":
        k(f"v_lshlrev_b32 v4, 3, v1\nv_cmp_gt_u32 vcc, 256, v1\nv_mov_b32 v5, {BIG}\ns_lshl_b32 s30, s22, 11\ns_add_u32 s30, s30, s23\nv_cndmask_b32 v4, v5, v4, vcc")
        k.vm(f"buffer_load_dword v5, v4, s[8:11], s30 offen{LD}", "touch")
    gemm_core(k, 1, NS, loads, int(envs("AH3", "14")), 15, False, NB3, more=[f for p in range(PRE3) for f in wload(p)])
    k.wait_vm("res")
    stamp(k, 16)
    k("s_mov_b32 s31, 0xffff0000\ns_mov_b32 s32, 0x3f803f80\nv_mov_b32 v8, 0\nv_mov_b32 v9, 0\nv_mov_b32 v10, 0\ns_add_u32 s33, s100, s50")
    k(f"v_cmp_gt_u32 vcc, 256, v1\nv_mov_b32 v7, {BIG}\nv_mov_b32 v11, s33\ns_cmp_lg_u32 s29, 0\ns_cbranch_scc1 L_p3_two")
    for pr in (2, 0, 1):
        for h in range(4):
            a = ACC + 8 * pr + 2 * h; r = RES + 4 * pr + h
            k(f"v_lshlrev_b32 v4, 16, v{r}\nv_and_b32 v5, s31, v{r}\nv_pk_add_f32 v[4:5], v[4:5], v[{a}:{a+1}]\nv_cvt_pk_bf16_f32 v{r}, v4, v5")
        k(f"buffer_store_dwordx4 v[{RES+4*pr}:{RES+4*pr+3}], v1, s[8:11], s41 offen offset:{pr*1024} sc1")
        for h in range(4): k(f"v_dot2c_f32_bf16 v8, s32, v{RES+4*pr+h}\nv_dot2c_f32_bf16 v9, v{RES+4*pr+h}, v{RES+4*pr+h}")
        for h in (0, 2): k(f"v_bitop3_b32 v10, v10, v{RES+4*pr+h}, v{RES+4*pr+h+1} bitop3:0x96")
        if pr == 2: k.label("L_p3_two")
    k(f"v_cndmask_b32 v7, v7, v1, vcc\ns_lshl_b32 s30, s21, 11\ns_lshl_b32 s31, s22, 8\ns_add_u32 s30, s30, s31\ns_add_u32 s30, s30, {OFF_STAT}")
    for sw in ("v_permlane16_swap_b32", "v_permlane32_swap_b32"):
        k(f"v_mov_b32 v4, v10\nv_mov_b32 v5, v8\nv_mov_b32 v6, v9\n{sw} v10, v4\n{sw} v8, v5\n{sw} v9, v6\nv_xor_b32 v10, v10, v4\nv_add_f32 v8, v8, v5\nv_add_f32 v9, v9, v6")
    k("v_bitop3_b32 v10, v10, v8, v9 bitop3:0x96")
    k.vm(f"buffer_store_dwordx4 v[8:11], v7, s[8:11], s30 offen sc1")
    stamp(k, 17)
    if not CKD:
        k(f"s_lshl_b32 s56, s26, 7\ns_lshl_b32 s27, s22, 3\ns_add_u32 s56, s56, s27\ns_add_u32 s56, s56, {FE2}")
        signal(k)
    stamp(k, 18)

def p4_ffn(k):
    xreg = lambda ks, tb: (ar(4 * (ks * 4 + tb), 4) if ks < 16 else vr(XV + 4 * (ks * 4 + tb - 64), 4))
    if envs("FMAP", "2") == "2":
        k("s_lshl_b32 s21, s19, 1\ns_and_b32 s22, s17, 1\ns_add_u32 s21, s21, s22")
        k("s_lshl_b32 s22, s18, 4\ns_lshr_b32 s23, s17, 1\ns_add_u32 s22, s22, s23")
    else:
        k("s_and_b32 s21, s16, 1\ns_lshl_b32 s21, s21, 2\ns_and_b32 s22, s17, 3\ns_add_u32 s21, s21, s22")
        k("s_lshr_b32 s22, s16, 1\ns_lshl_b32 s22, s22, 3\ns_lshr_b32 s23, s17, 2\ns_add_u32 s22, s22, s23")
    FILL = int(envs("FILL", "27")); MID = (FILL + LEAD) // 2
    for p in range(PRE3, PRE):
        for f in wload(p): f.fn(k)
    k(f"s_lshl_b32 s23, s22, 2\ns_add_u32 s23, s23, s20\ns_lshl_b32 s44, s23, 11\ns_add_u32 s44, s44, {OFF_STAT}\ns_mul_i32 s45, s23, {18*KBY}\ns_add_u32 s45, s45, {OFF_X1}")
    ln_consts(k)
    k("v_and_b32 v12, 15, v0\nv_lshlrev_b32 v12, 4, v12\nv_bfe_u32 v5, v0, 4, 2\nv_lshl_add_u32 v12, v5, 9, v12\ns_add_u32 s46, s100, s50")
    X = 16; T = 88; CK = T + 12
    k("v_bfe_u32 v4, v0, 2, 2\nv_cmp_eq_u32 vcc, v4, v5\nv_and_b32 v4, 1, v0\nv_lshlrev_b32 v4, 4, v4\nv_mov_b32 v244, 0x3f80\nv_lshlrev_b32 v4, v4, v244\nv_cndmask_b32 v4, 0, v4, vcc")
    k("v_and_b32 v245, 2, v0\nv_cmp_eq_u32 vcc, 0, v245\nv_mov_b32 v244, 0\nv_mov_b32 v245, 0\nv_mov_b32 v248, 0\nv_mov_b32 v249, 0\nv_cndmask_b32 v246, 0, v4, vcc\nv_cndmask_b32 v247, v4, 0, vcc")
    if not CKD:
        k(f"s_lshl_b32 s56, s22, 7\ns_add_u32 s56, s56, {FE2}\nv_and_b32 v2, 7, v0\nv_lshlrev_b32 v2, 3, v2")
        poll(k, "d")
    k(f"s_mov_b32 s57, {SPIN}\ns_lshl_b32 s26, s20, 10\nv_add_u32 v2, s26, v1\nv_add_u32 v3, 0x10000, v2\ns_mov_b32 s47, {1 if FORCE_RETRY else 0}")
    if CKD:
        k(f"s_cmp_lg_u32 s20, 0\ns_cbranch_scc1 L_p4_bar\nv_lshlrev_b32 v4, 4, v1\nv_and_b32 v4, 0x1fff, v4")
        k.label("L_p4_in")
        k(f"buffer_load_dword v5, v4, s[8:11], s44 offen offset:12{LD}\ns_sub_u32 s57, s57, 1\ns_waitcnt vmcnt(0)\nv_cmp_eq_u32 vcc, s46, v5\ns_cmp_eq_u32 s57, 0\ns_cbranch_scc1 L_p4_bar")
        k("s_cmp_eq_u64 vcc, -1\ns_cbranch_scc0 L_p4_in")
        k.label("L_p4_bar")
        k("s_barrier")
    k("v_mov_b32 v254, s100\nv_mov_b32 v255, s101")
    publish_fp(k, FP2)
    k(f"s_mov_b32 s30, 0x3f803f80\ns_lshl_b32 s56, s21, 8\ns_add_u32 s56, s56, {FP2}\nv_and_b32 v6, 31, v0\nv_min_u32 v6, 26, v6\nv_lshlrev_b32 v6, 3, v6")
    k.label("L_p4_go")
    if STAMP: k("v_readlane_b32 s90, v15, 46\ns_add_u32 s90, s90, 1\ns_nop 1\nv_writelane_b32 v15, s90, 46")
    k(f"buffer_load_dwordx4 v[{T}:{T+3}], v12, s[8:11], s44 offen{LD}\nbuffer_load_dwordx4 v[{T+4}:{T+7}], v12, s[8:11], s44 offen offset:256{LD}")
    stamp(k, 19)
    k.vmq.append("st")
    k("s_mov_b32 s23, s45")
    for ks in range(18):
        k.vm(f"buffer_load_dwordx4 v[{X+4*ks}:{X+4*ks+3}], v1, s[8:11], s23 offen offset:{(ks%4)*1024}{LD}", ("x", ks))
        if ks % 4 == 3: k("s_add_u32 s23, s23, 4096")
    k.wait_vm("st")
    k(f"v_bitop3_b32 v{CK}, v{T}, v{T+1}, v{T+2} bitop3:0x96\nv_bitop3_b32 v{T+2}, v{T+4}, v{T+5}, v{T+6} bitop3:0x96\nv_xor_b32 v{CK}, v{CK}, v{T+2}")
    k(f"v_xor_b32 v{CK+1}, s46, v{T+3}\nv_bitop3_b32 v{CK+1}, v{CK+1}, v{T+7}, s46 bitop3:0xf6")
    k(f"v_add_f32 v{T}, v{T}, v{T+4}\nv_add_f32 v{T+1}, v{T+1}, v{T+5}")
    red_rows(k, T, T + 2)
    k(f"v_mul_f32 v{T}, s31, v{T}\nv_sub_f32 v{T+3}, 0, v{T}\ns_mov_b32 s26, 0x00003f80\ns_mov_b32 s27, 0x3f800000")
    kk = KB(); red_rows(kk, T + 1, T + 2)
    kk(f"v_mul_f32 v{T+1}, s31, v{T+1}\nv_fma_f32 v{T+1}, -v{T}, v{T}, v{T+1}\nv_max_f32 v{T+1}, 0, v{T+1}\nv_add_f32 v{T+1}, {fbits(1e-5)}, v{T+1}")
    kk(f"v_and_b32 v4, 15, v0\nv_lshlrev_b32 v4, 2, v4\nv_add_u32 v4, {144*KBY}, v4\ns_lshl_b32 s33, s20, 6\nv_add_u32 v5, s33, v4")
    MC = envs("MC", "1") == "1"; DD, CQ4, SEL = 224, 240, 244
    assert FILL <= 28
    def fin1(ks):
        src = (lambda i: DD + 8 * (ks & 1) + 2 * i) if MC else (lambda i: T + 4 + 2 * i)
        for i in range(4): k(f"v_cvt_pk_bf16_f32 v{X+4*ks+i}, v{src(i)}, v{src(i)+1}")
        k.lg(f"ds_write_b128 v{2 if ks < 16 else 3}, v[{X+4*ks}:{X+4*ks+3}] offset:{(ks % 16) * 4096}")
    if MC:
        assert CKD
        for i in range(4): k(f"v_mov_b32 v{CQ4+i}, v{T+3}")
        k("s_nop 0")
    for ks in range(18):
        k.wait_vm(("x", ks))
        if MC:
            d = DD + 8 * (ks & 1)
            k(f"{MF} v[{d}:{d+3}], v[{SEL+2}:{SEL+5}], v[{X+4*ks}:{X+4*ks+3}], v[{CQ4}:{CQ4+3}]")
            k(f"v_bitop3_b32 v{CK}, v{CK}, v{X+4*ks}, v{X+4*ks+1} bitop3:0x96\nv_bitop3_b32 v{CK}, v{CK}, v{X+4*ks+2}, v{X+4*ks+3} bitop3:0x96")
            k(f"{MF} v[{d+4}:{d+7}], v[{SEL}:{SEL+3}], v[{X+4*ks}:{X+4*ks+3}], v[{CQ4}:{CQ4+3}]")
            if ks: fin1(ks - 1)
        else:
            for i in range(4): k(f"v_dot2_f32_bf16 v{T+4+2*i}, v{X+4*ks+i}, s26, v{T+3}\nv_dot2_f32_bf16 v{T+5+2*i}, v{X+4*ks+i}, s27, v{T+3}")
            if CKD:
                for i in (0, 2): k(f"v_bitop3_b32 v{CK}, v{CK}, v{X+4*ks+i}, v{X+4*ks+i+1} bitop3:0x96")
            fin1(ks)
        if ks == 0:
            k.lines += kk.lines
            k.lg(f"ds_write_b32 v5, v{T+1}")
        if ks == 12: k.vm(f"buffer_load_dwordx2 v[{T+14}:{T+15}], v6, s[8:11], s56 offen sc1", "fp2")
    post = (lambda: fin1(17)) if MC else (lambda: None)
    if CKD:
        red_rows(k, CK, T + 2, "v_xor_b32")
        post()
        k(f"v_or_b32 v{CK}, v{CK}, v{CK+1}\nv_cmp_ne_u32 vcc, s47, v{CK}\ns_mov_b32 s47, 0\ns_cmp_eq_u32 s57, 0\ns_cbranch_scc1 L_p4_ok\ns_sub_u32 s57, s57, 1\ns_cmp_eq_u64 vcc, 0\ns_cbranch_scc0 L_p4_go")
        k.label("L_p4_ok")
    for p in range(PRE, FILL):
        for f in wload(p): f.fn(k)
    k("v_mov_b32 v2, v1\nv_add_u32 v3, 0x10000, v1")
    HB = 72 * KBY
    k(f"s_mov_b32 s33, {fbits(-LOG2E)}")
    k(f"s_lshl_b32 s29, s20, 14\ns_add_u32 s29, s29, {HB}\ns_mov_b32 s28, 8")
    k("s_mov_b32 s34, 7")
    stamp(k, 20)
    k.wait_lg_all(); k("s_barrier")
    fp2 = [F(lambda k: (k.wait_vm("fp2"), k(f"v_cmp_eq_u64 s[48:49], s[100:101], v[{T+14}:{T+15}]")), 8, after=2, before=6)]

    for tb in range(4): k.lg(f"ds_read_b32 v{9+tb}, v4 offset:{64*tb}", "var")
    consts = [F(lambda k: k.wait_lg("var"), 4, after=4)]
    consts += [line(f"v_rsq_f32 v{5+tb}, v{9+tb}", 8) for tb in range(4)] + [line(f"v_sqrt_f32 v{9+tb}, v{9+tb}", 8) for tb in range(4)]
    consts += [line(f"v_mul_f32 v{5+j}, s33, v{5+j}") for j in range(8)]
    def xreads(lo, hi):
        return [lgl(f"ds_read_b128 {xreg(ks, tb)}, v{2 if ks < 16 else 3} offset:{((ks * 4 + tb) % 64) * 1024}", ("xr", ks)) for ks in range(lo, hi) for tb in range(4)]
    def phase(p0, acc, streams, xr=None, pre_extra=None, budget=8, xwait=None, lead=(LEAD, LEAD)):
        mf = []; pre = {}; loads = []
        for g in range(18 // G):
            def p(k, g=g):
                if pre_extra and g in pre_extra: pre_extra[g](k)
                k.wait_vm(("w", p0 + g * G + G - 1), force=True)
                if xr is not None or xwait: k.wait_lg(("xr", g * G + G - 1))
            pre[len(mf)] = p
            n = 18 + lead[1] - lead[0]
            for q in range(p0 + lead[0] + n * g // 6, p0 + lead[0] + n * (g + 1) // 6):
                assert q < p0 + g * G + 36
                for f in wload(q):
                    f.after = len(mf); f.before = len(mf) + 4 * G; loads.append(f)
            for tb in range(4):
                for j in range(G):
                    ks = g * G + j; r = RING + 4 * ((p0 + ks) % 36); a = acc + 4 * tb
                    mf.append(f"{MF} v[{a}:{a+3}], v[{r}:{r+3}], {xreg(ks, tb)}, " + ("0" if ks == 0 else f"v[{a}:{a+3}]"))
        st = [loads] + streams
        if xr:
            for j, f in enumerate(xr):
                g = j // (4 * G); f.after = max(f.after, 4 * G * g - 4); f.before = 4 * G * (g + 1) - 3
            st.append(xr)
        interleave(k, mf, st, pre=pre, budget=budget)
    def finish():
        L = [line("v_add_u32 v4, s29, v1")]
        for tb in range(4):
            for i in range(4): L.append(line(f"v_mul_f32 v{T1+4*tb+i}, v{T1+4*tb+i}, v{AU+4*tb+i}", after=3))
            for i in range(4): L.append(line(f"v_mul_f32 v{T1+4*tb+i}, v{T1+4*tb+i}, v{T2+4*tb+i}"))
            for i in range(2): L.append(line(f"v_cvt_pk_bf16_f32 v{T2+4*tb+i}, v{T1+4*tb+2*i}, v{T1+4*tb+2*i+1}"))
            L.append(lgl(f"ds_write_b64 v4, v[{T2+4*tb}:{T2+4*tb+1}] offset:{tb*1024}", "hw"))
        L += [line("s_add_u32 s29, s29, s28"), line("s_sub_u32 s28, 4096, s28"), line("s_sub_u32 s34, s34, 1")]
        return L
    def expo():
        L = []
        for tb in range(4):
            for i in range(4): L.append(line(f"v_mul_f32 v{T1+4*tb+i}, v{5+tb}, v{AG+4*tb+i}", after=2))
            for i in range(4): L.append(line(f"v_exp_f32 v{T2+4*tb+i}, v{T1+4*tb+i}", 8))
            for i in range(4): L.append(line(f"v_fma_f32 v{T2+4*tb+i}, v{T2+4*tb+i}, v{9+tb}, v{9+tb}"))
            for i in range(4): L.append(line(f"v_rcp_f32 v{T2+4*tb+i}, v{T2+4*tb+i}", 8))
        return L
    xr = xreads(0, 18)
    for f in xr[:4 * G]: f.fn(k)
    stamp(k, 21); stamp(k, 30, True)
    phase(0, AG, [consts, fp2], xr=xr[4 * G:], lead=(FILL, MID), budget=12)
    phase(18, AU, [expo()], lead=(MID, LEAD), budget=12)
    k(f"v_add_u32 v2, {HB}, v1\nv_add_u32 v3, {HB + 0x10000}, v1")
    its = []
    for fb in range(1, 8):
        m0 = k.mark()
        phase(36 * fb, AG, [finish()])
        phase(36 * fb + 18, AU, [expo()])
        its.append(k.lines[m0:]); del k.lines[m0:]
    k.label("L_ffn_gu")
    k.lines += fold(its)
    k("s_cmp_lg_u32 s34, 0\ns_cbranch_scc1 L_ffn_gu")
    k("v_mov_b32 v4, v2\ns_cmp_eq_u64 s[48:49], -1\ns_cbranch_scc1 L_pollx_p2")
    poll_fp(k, "p2", FP2)
    k("v_mov_b32 v2, v4")
    phase(288, AG, [finish()[:-3]])
    k.wait_lg_all(); k("s_barrier")
    k.lgq = []; k.lg_done = 0
    hr = xreads(0, 15)
    for j, f in enumerate(hr): f.after = 12 * (j // 12 + 1)
    phase(306, AU, [expo(), hr], budget=int(envs("TB", "12")))
    stamp(k, 22); stamp(k, 31, True)
    k(f"s_lshr_b32 s29, s20, 1\ns_lshl_b32 s29, s29, 12\ns_and_b32 s35, s20, 1\ns_lshl_b32 s36, s35, 3\ns_add_u32 s29, s29, s36")
    k(f"v_add_u32 v9, s29, v1\ns_add_u32 s29, s29, {HB + 64*KBY}\ns_lshl_b32 s41, s20, 11\nv_add_u32 v10, s41, v1")
    k(f"s_lshl_b32 s37, s21, 7\ns_lshl_b32 s38, s22, 2\ns_add_u32 s37, s37, s38\ns_mul_i32 s37, s37, {18*KBY}\ns_add_u32 s37, s37, {OFF_PART}")
    k(f"s_lshr_b32 s39, s20, 1\ns_add_u32 s39, s39, 16\ns_lshl_b32 s39, s39, 10\ns_mul_i32 s40, s35, {36*KBY}\ns_add_u32 s39, s39, s40\ns_add_u32 s39, s39, s37")
    k("s_lshl_b32 s38, s20, 10\ns_add_u32 s38, s38, s37")
    k(f"s_lshl_b32 s56, s22, 7\ns_lshl_b32 s27, s21, 3\ns_add_u32 s56, s56, s27\ns_add_u32 s56, s56, {FE}")
    for tb in range(4): k(f"v_add_u32 v{5+tb}, {tb*18*KBY}, v1")
    k(f"s_lshr_b32 s44, s21, 1\ns_lshl_b32 s45, s35, 1\ns_sub_u32 s45, s44, s45\ns_sub_u32 s30, s38, s37\ns_add_u32 s30, s30, {130*KBY}\nv_add_u32 v11, s30, v1")
    k(f"s_sub_u32 s30, s39, s37\ns_sub_u32 s30, s30, s40\ns_add_u32 s30, s30, {130*KBY}\nv_add_u32 v12, s30, v1")
    fin = finish()[:-3]
    NG = 18 // G
    for f in fin: f.before = 4 * G * (NG - 3)
    def late(k):
        k.wait_lg_all(); k("s_barrier")
        for f in xreads(15, 18): f.fn(k)
    phase(324, AG, [fin], pre_extra={NG - 3: late}, xwait=True)
    def cv(acc, dst, hi, after=0):
        return [line(f"v_cvt_pk_bf16_f32 v{dst+4*tb+2*hi+i}, v{acc+4*tb+2*i}, v{acc+4*tb+2*i+1}", after=after) for tb in range(4) for i in range(2)]
    OWN = envs("OWN", "1") == "1"
    uid = [0]
    def keep(src, tb, cmp, vaddr):
        def f(k):
            uid[0] += 1
            k(f"s_cmp_lg_u32 {cmp}, {tb}\ns_cbranch_scc1 2\nds_write_b128 {vaddr}, v[{src+4*tb}:{src+4*tb+3}]")
        if envs("KEEPV", "1") == "1":
            return [line(f"ds_write_b128 v{KA[vaddr] + tb}, v[{src+4*tb}:{src+4*tb+3}]", 8)] if False else [F(f, 8)]
        return [F(f, 8)] if OWN else []
    def st4(src, tb, after, addr="s38", tag=None):
        if envs("NOST", ""): return line("s_nop 0", after=after)
        return vml(f"buffer_store_dwordx4 v[{src+4*tb}:{src+4*tb+3}], v{5+tb}, s[8:11], {addr} offen{envs('PST', ' sc1').replace('_', ' ')}", tag, after=after, cost=8)
    c = cv(AG, T2, 0, 8); join = []
    for tb in range(4): join += c[2*tb:2*tb+2] + [lgl(f"ds_write_b64 v9, v[{T2+4*tb}:{T2+4*tb+1}] offset:{tb*1024}")]
    for f in join: f.before = 36
    def joined(k):
        k.wait_lg_all(); k("s_barrier")
        k.lg(f"ds_read_b128 v[{T2}:{T2+3}], v10", "j"); k.lg(f"ds_read_b128 v[{T2+4}:{T2+7}], v10 offset:1024", "j")
    phase(342, AU, [join, [F(lambda k: k.wait_lg("j"), 4, after=50), st4(T2, 0, 52, "s39"), st4(T2, 1, 62, "s39")] + keep(T2, 0, "s45", "v12") + keep(T2, 1, "s45", "v12")], pre_extra={3: joined})
    kk = KB()
    kk("s_lshl_b32 s28, s22, 3\ns_add_u32 s28, s28, s21\ns_mov_b32 s42, s22\ns_mov_b32 s47, s21")
    kk("v_bfe_u32 v9, v0, 4, 2\nv_lshlrev_b32 v9, 8, v9\nv_bfe_u32 v10, v0, 3, 1\nv_lshl_add_u32 v9, v10, 10, v9\nv_and_b32 v10, 7, v0\nv_lshl_add_u32 v9, v10, 4, v9")
    kk(f"s_and_b32 s31, s28, 1\ns_lshl_b32 s31, s31, 7\ns_lshl_b32 s26, s20, 11\ns_add_u32 s31, s31, s26\nv_add_u32 v9, s31, v9\nv_lshlrev_b32 v4, 3, v10")
    kk(f"s_lshr_b32 s24, s28, 1\ns_mul_i32 s24, s24, {18*KBY}\ns_add_u32 s30, s24, {OFF_X1}")
    kk(f"s_add_u32 s31, s30, 16384\ns_cmp_eq_u32 s20, 0\ns_cselect_b32 s31, s31, {BIG}\ns_add_u32 s32, s30, 8192")
    kk(f"s_add_u32 s46, s56, {FE1 - FE}\ns_add_u32 s46, s46, s51\ns_and_b32 s48, s46, 0xffffff80\ns_cmp_eq_u32 s20, 0\ns_cselect_b32 s46, s46, {BIG}")
    for src in range(7):
        kk(f"s_cmp_gt_u32 s47, {src}\ns_cselect_b32 s26, {src}, {src + 1}\ns_mul_i32 s26, s26, {2304*KBY}\ns_add_u32 s26, s26, s24\ns_add_u32 s{72+src}, s26, {OFF_PART}")
    setup = []; ls = [l.strip() for l in kk.lines]; j = 0
    while j < len(ls):
        n = 2 if (ls[j].startswith("s_cmp") or j + 1 >= len(ls) or not ls[j + 1].startswith("s_cmp")) else 1
        setup.append(line("\n".join(ls[j:j + n]), 8)); j += n
    phase(360, AG, [cv(AU, T1, 0, 8), setup])
    k("s_mov_b32 s34, 2")
    stamp(k, 23); stamp(k, 32, True)
    E2 = envs("E2", "1") == "1"; TBM = E2 and envs("TBM", "1") == "1"
    SCL = int(envs("SCL", "0"))
    def first_half():
        L = []
        for tb in range(4):
            L += [line(f"v_mov_b32 v{T2+4*tb}, v{T1+4*tb}"), line(f"v_mov_b32 v{T2+4*tb+1}, v{T1+4*tb+1}")]
        if SCL: return cv(AG, T1, 1, 8) + [st4(T1, tb, SCL) for tb in range(4)]
        return L + cv(AG, T2, 1, 8) + [f for tb in range(4) for f in keep(T2, tb, "s44", "v11")] + [line("v_add_u32 v11, 0x1000, v11")] + [st4(T2, 0, 30), st4(T2, 1, 60)]
    def pair(p, x0=[], x1=[], pre=None, pre1=None):
        fh = first_half()
        if p == 3 and E2:
            fh = fh[:-2]
            if envs("CMP", "1") == "1":
                for f in fh: f.before = 26
            for tb in range(4):
                fh.append(st4(T2, tb, 26 + 8 * tb, tag=("ps", 3)))
                if envs("CMP", "1") == "1": fh[-1].before = 28 + 8 * tb
        phase(342 + 36 * p, AU, [fh, x0], pre_extra=pre)
        if p == 3: stamp(k, 35, True)
        c0 = cv(AU, T1, 0, 8)
        if p == 3 and TBM:
            p0 = 342 + 36 * p + 18
            mf = [f"{MF} v[{AG+4*tb}:{AG+4*tb+3}], v[{RING+4*((p0+ks)%36)}:{RING+4*((p0+ks)%36)+3}], {xreg(ks, tb)}, " + ("0" if ks == 0 else f"v[{AG+4*tb}:{AG+4*tb+3}]") for tb in range(4) for ks in range(18)]
            for f in c0: f.before = 24
            c1 = cv(AG, T1, 1); out = [line("s_add_u32 s38, s38, 4096")]
            for tb in range(3):
                c1[2*tb].after = 18 * (tb + 1) + 7
                out += c1[2*tb:2*tb+2] + [st4(T1, tb, 0)] + keep(T1, tb, "s44", "v11")
                for f in out[-4:]: f.before = 18 * (tb + 1) + 14
            pre = {0: lambda k: k.wait_vm(("w", 485))}
            for g, fn in pre1.items(): pre[12 * g] = fn
            interleave(k, mf, [c0, out, x1], pre=pre)
            return
        phase(342 + 36 * p + 18, AG, [c0, ([] if SCL or (p == 3 and E2) else [st4(T2, 2, 20), st4(T2, 3, 52, tag=("ps", p))]) + [line("s_add_u32 s38, s38, 4096"), line("s_sub_u32 s34, s34, 1")], x1], pre_extra=pre1)
    its = []
    for p in range(1, 3):
        m0 = k.mark(); pair(p); its.append(k.lines[m0:]); del k.lines[m0:]
    k.label("L_ffn_dn")
    k.lines += fold(its)
    k("s_cmp_lg_u32 s34, 0\ns_cbranch_scc1 L_ffn_dn")
    stamp(k, 24); stamp(k, 33, True)
    tail = [vml(f"buffer_load_dwordx4 v[{RESID+4*i}:{RESID+4*i+3}], v9, s[8:11], s{30+i} offen{LD}", after=14, cost=8) for i in range(3)]
    def early(k):
        k.wait_vm(("ps", 2)); k("s_barrier\nv_mov_b32 v2, s100\nv_mov_b32 v3, s101")
        k.vm("buffer_store_dwordx2 v[2:3], v13, s[8:11], s46 offen sc1")
    def early2(k):
        k.wait_vm(("ps", 3)); k(f"s_barrier\ns_sub_u32 s46, s46, {FE1 - FE2}")
        k.vm("buffer_store_dwordx2 v[2:3], v13, s[8:11], s46 offen sc1")
    pair(3, tail, [vml("buffer_load_dwordx2 v[2:3], v4, s[8:11], s48 offen sc1", "e1", after=int(envs("E1AT", "62")), cost=8)], {int(envs("EAT", "5")): early}, {int(envs("E2AT", "5")): early2} if E2 else None)
    stamp(k, 36, True)
    k("s_nop 7" if TBM else "s_nop 5")
    c = cv(AG, T1, 1)
    for tb in range(3 if TBM else 0, 4):
        c[2 * tb].fn(k); c[2 * tb + 1].fn(k); st4(T1, tb, 0).fn(k)
    for tb in range(3 if TBM else 0, 4):
        for f in keep(T1, tb, "s44", "v11"): f.fn(k)
    stamp(k, 25); stamp(k, 34, True)
    k.wait_vm("e1")
    k(f"v_cmp_eq_u64 vcc, s[100:101], v[2:3]\ns_add_u32 s56, s56, s51\ns_cmp_eq_u32 s20, 0\ns_cselect_b32 s56, s56, {BIG}")
    k(f"s_cmp_eq_u64 vcc, {-1 if not envs('NOE1', '') else 5}\ns_cselect_b32 s49, 1, 0\ns_cbranch_scc0 L_ffn_noe")
    for src in range(7): k(f"buffer_load_dwordx4 v[{P5R[0]+4*src}:{P5R[0]+4*src+3}], v9, s[8:11], s{72+src} offen{LD}")
    k("s_waitcnt vmcnt(7) lgkmcnt(0)\ns_branch L_ffn_sig")
    k.label("L_ffn_noe")
    k("s_waitcnt vmcnt(0) lgkmcnt(0)")
    k.label("L_ffn_sig")
    k("s_barrier")
    publish(k)
    stamp(k, 26)

P5R = (48, 76, 16)
def p5_reduce(k, nlayers):
    k(f"v_mov_b32 v8, v9\nv_add_u32 v10, 0x2000, v9\ns_cmp_eq_u32 s20, 0\ns_cselect_b32 s35, 16384, {BIG}\nv_add_u32 v9, s35, v9")
    def ld(i):
        for src in range(7): k.vm(f"buffer_load_dwordx4 v[{P5R[i]+4*src}:{P5R[i]+4*src+3}], v{8+i}, s[8:11], s{72+src} offen{LD}", (src, i))
    k("s_cmp_eq_u32 s49, 1\ns_cbranch_scc1 L_p5_e1\ns_mov_b32 s56, s48\nv_mov_b32 v2, v4")
    poll(k, "e1", wg=False, layer=False)
    ld(0)
    k.label("L_p5_e1")
    k("s_cmp_lg_u32 s20, 0\ns_cbranch_scc1 L_p5_n1")
    ld(1)
    k.label("L_p5_n1")
    k("v_bfe_u32 v4, v0, 4, 2\nv_bfe_u32 v5, v0, 3, 1\nv_and_b32 v6, 7, v0")
    ln_consts(k)
    k("s_mov_b32 s26, 0x00003f80\ns_mov_b32 s27, 0x3f800000")
    D = 136; ACC = 112
    k(f"v_min_u32 v12, 0x4800, v9\nv_add_u32 v11, {130*KBY}, v8\nv_add_u32 v12, {130*KBY}, v12\ns_waitcnt lgkmcnt(0)")
    k(f"ds_read_b128 v[{D}:{D+3}], v11\nds_read_b128 v[{D+4}:{D+7}], v12\nds_read_b128 v[{D+8}:{D+11}], v11 offset:8192")
    k(f"s_lshl_b32 s56, s42, 7\ns_add_u32 s56, s56, {FE}\nv_lshlrev_b32 v2, 3, v6")
    for j in range(12): k(f"v_lshlrev_b32 v{ACC+2*j}, 16, v{RESID+j}\nv_and_b32 v{ACC+2*j+1}, s32, v{RESID+j}")
    k("s_waitcnt lgkmcnt(0)")
    for j in range(12): k(f"v_dot2c_f32_bf16 v{ACC+2*j}, s26, v{D+j}\nv_dot2c_f32_bf16 v{ACC+2*j+1}, s27, v{D+j}")
    if envs("E2", "1") == "1":
        k(f"s_cmp_lt_u32 s20, 2\ns_cselect_b32 s23, {FE - FE2}, 0\ns_sub_u32 s56, s56, s23")
        spoll(k, "e", 8, wg=False)
    elif "e" in SP: spoll(k, "e", 8)
    else: poll(k, "e")
    stamp(k, 27)
    fresh(k)
    ld(2)
    def add(src, i):
        for j in range(4):
            r = P5R[i] + 4 * src + j; a = ACC + 8 * i + 2 * j
            k(f"v_dot2c_f32_bf16 v{a}, s26, v{r}\nv_dot2c_f32_bf16 v{a+1}, s27, v{r}")
    k("s_waitcnt vmcnt(7)")
    for src in range(7): add(src, 0)
    k("s_cmp_lg_u32 s20, 0\ns_cbranch_scc1 L_p5_n2")
    for src in range(7): add(src, 1)
    k.label("L_p5_n2")
    T = D + 16; O = T + 8
    k("s_nop 1")
    for j in range(8): k(f"v_cvt_pk_bf16_f32 v{D+j}, v{ACC+2*j}, v{ACC+2*j+1}")
    k(f"s_add_u32 s25, s24, {OFF_XF}\ns_cmp_eq_u32 s50, 1\ns_cbranch_scc1 L_p5_final")
    saved = (list(k.vmq), k.vm_done)
    for i in range(2): k.vm(f"buffer_store_dwordx4 v[{D+4*i}:{D+4*i+3}], v{8+i}, s[8:11], s25 offen sc1")
    k("s_cmp_eq_u32 s20, 0\ns_cbranch_scc1 L_p5_w0")
    for j in range(4): k(f"v_mov_b32 v{D+4+j}, 0")
    k.label("L_p5_w0")
    for i in range(4): k(f"v_mov_b32 v{T+i}, 0")
    for j in range(8): k(f"v_dot2c_f32_bf16 v{T+(j&1)}, s30, v{D+j}\nv_dot2c_f32_bf16 v{T+2+(j&1)}, v{D+j}, v{D+j}")
    for src in range(7): k.wait_vm((src, 2)); add(src, 2)
    stamp(k, 28)
    k("s_nop 2")
    for j in range(8, 12): k(f"v_cvt_pk_bf16_f32 v{D+j}, v{ACC+2*j}, v{ACC+2*j+1}")
    k(f"buffer_store_dwordx4 v[{D+8}:{D+11}], v10, s[8:11], s25 offen sc1")
    for j in range(8, 12): k(f"v_dot2c_f32_bf16 v{T+(j&1)}, s30, v{D+j}\nv_dot2c_f32_bf16 v{T+2+(j&1)}, v{D+j}, v{D+j}")
    k(f"s_nop 2\nv_add_f32 v{T}, v{T}, v{T+1}\nv_add_f32 v{T+1}, v{T+2}, v{T+3}\ns_nop 1")
    k(f"v_add_f32_dpp v{T}, v{T}, v{T} row_ror:8 row_mask:0xf bank_mask:0xf\nv_add_f32_dpp v{T+1}, v{T+1}, v{T+1} row_ror:8 row_mask:0xf bank_mask:0xf")
    for sw in ("v_permlane16_swap_b32", "v_permlane32_swap_b32"):
        k(f"v_mov_b32 v{T+2}, v{T}\nv_mov_b32 v{T+3}, v{T+1}\ns_nop 0\n{sw} v{T}, v{T+2}\n{sw} v{T+1}, v{T+3}\nv_pk_add_f32 v[{T}:{T+1}], v[{T}:{T+1}], v[{T+2}:{T+3}]")
    k(f"v_lshlrev_b32 v11, 3, v6\nv_add_u32 v11, {150*KBY}, v11\ns_lshl_b32 s23, s20, 6\nv_add_u32 v12, s23, v11")
    k(f"ds_write_b64 v12, v[{T}:{T+1}]\ns_waitcnt lgkmcnt(0)\ns_barrier")
    for w in range(4): k(f"ds_read_b64 v[{T+2*w}:{T+2*w+1}], v11 offset:{64*w}")
    k(f"s_add_u32 s23, s24, {OFF_XN}\ns_waitcnt lgkmcnt(0)")
    k(f"v_pk_add_f32 v[{T}:{T+1}], v[{T}:{T+1}], v[{T+2}:{T+3}]\nv_pk_add_f32 v[{T+4}:{T+5}], v[{T+4}:{T+5}], v[{T+6}:{T+7}]\nv_pk_add_f32 v[{T}:{T+1}], v[{T}:{T+1}], v[{T+4}:{T+5}]")
    ln_stats_finish(k, T, T + 1)
    for i in range(3):
        for j in range(4): ln_norm(k, D + 4 * i + j, O + 4 * i + j, T, T + 1, T + 2 + 2 * (j & 1))
        k(f"buffer_store_dwordx4 v[{O+4*i}:{O+4*i+3}], v{8+i}, s[8:11], s23 offen sc1")
    flag_a_addr(k)
    stamp(k, 29)
    k(f"s_add_u32 s50, s50, 1\ns_add_u32 s51, s51, 32768\ns_mov_b32 s53, {OFF_QKV2}")
    signal(k)
    if STAMP: k("v_mov_b32 v14, v15")
    k("s_branch L_p0_fetch" if nlayers == 2 else "s_branch L_main_fin")
    k.label("L_p5_final")
    srd(k, 12, 6, 2048 * 1152)
    rowmajor(k, 28, 7)
    k(f"s_add_u32 s35, s33, 1024\ns_cmp_eq_u32 s20, 0\ns_cselect_b32 s35, s35, {BIG}\ns_lshl_b32 s25, s20, 7\ns_add_u32 s34, s33, s25\ns_add_u32 s36, s34, 512")
    k.vmq, k.vm_done = saved
    for i in range(3):
        if i == 2:
            for src in range(7): k.wait_vm((src, 2)); add(src, 2)
            stamp(k, 28)
            k("s_nop 2")
            for j in range(8, 12): k(f"v_cvt_pk_bf16_f32 v{D+j}, v{ACC+2*j}, v{ACC+2*j+1}")
            k("s_nop 0")
        k(f"v_permlane16_swap_b32 v{D+4*i}, v{D+4*i+2}\nv_permlane16_swap_b32 v{D+4*i+1}, v{D+4*i+3}")
        k.vm(f"buffer_store_dwordx4 v[{D+4*i}:{D+4*i+3}], v7, s[12:15], s{34+i} offen{FL[envs('OUTST', 's')]}")
    k.label("L_main_fin")
    if DIAG:
        k("s_waitcnt vmcnt(0)"); stamp(k, 50)
        k("s_cmp_lg_u32 s20, 0\ns_cbranch_scc1 L_end\ns_cmp_lg_u32 s2, 100\ns_cbranch_scc1 L_end\ns_sub_u32 s90, s90, s88\ns_mul_i32 s90, s90, 3\ns_min_u32 s90, s90, 100000\ns_memrealtime s[88:89]\ns_waitcnt lgkmcnt(0)")
        k.label("L_dgs")
        k("s_memrealtime s[94:95]\ns_waitcnt lgkmcnt(0)\ns_sub_u32 s94, s94, s88\ns_cmp_lt_u32 s94, s90\ns_cbranch_scc1 L_dgs")
    if STAMP:
        k.wait_vm_all(); stamp(k, 29)
        k(f"s_add_u32 s84, s4, {OFF_STAMP}\ns_addc_u32 s85, s5, 0\ns_mov_b32 s86, 0x2000000\ns_mov_b32 s87, 0x00020000")
        k("s_lshl_b32 s88, s2, 2\ns_add_u32 s88, s88, s20\ns_lshl_b32 s88, s88, 9\nv_lshrrev_b32 v2, 2, v1")
        k("buffer_store_dword v14, v2, s[84:87], s88 offen\nbuffer_store_dword v15, v2, s[84:87], s88 offen offset:256")

def main_k(name, nlayers=2):
    k = KB()
    k.raw(f".globl {name}\n.p2align 8\n.type {name},@function")
    k.label(name)
    k("s_cmp_ge_u32 s2, 256\ns_cbranch_scc1 L_end")
    if STAMP: k("v_mov_b32 v14, 0\nv_mov_b32 v15, 0"); stamp(k, 40)
    if DIAG: k("s_memrealtime s[88:89]\ns_waitcnt lgkmcnt(0)\ns_mov_b32 s90, s88")
    k("s_load_dwordx4 s[36:39], s[0:1], 0\ns_load_dwordx2 s[46:47], s[0:1], 16\ns_load_dwordx4 s[40:43], s[0:1], 32")
    k("s_load_dwordx2 s[44:45], s[0:1], 48\ns_load_dwordx2 s[6:7], s[0:1], 56\ns_load_dwordx2 s[84:85], s[0:1], 64\ns_load_dwordx2 s[4:5], s[0:1], 72")
    k("v_lshrrev_b32 v2, 6, v0\nv_and_b32 v1, 63, v0\nv_readfirstlane_b32 s20, v2\nv_cmp_eq_u32 vcc, 0, v1\nv_lshlrev_b32 v1, 4, v1")
    k("s_and_b32 s16, s2, 7\ns_lshr_b32 s17, s2, 3\ns_bfe_u32 s18, s2, 0x10002\ns_and_b32 s19, s2, 3")
    k(f"v_mov_b32 v13, {BIG}\ns_mov_b32 s50, 0\ns_mov_b32 s51, 0\ns_mov_b32 s53, {OFF_QKV}\ns_mov_b32 s67, 0\nv_cndmask_b32 v13, v13, 0, vcc")
    p0(k)
    k.label("L_layer")
    fresh(k)
    p1_qkv(k); p2_attn(k); p3_wo(k); p4_ffn(k); p5_reduce(k, nlayers)
    k.label("L_end")
    k("s_endpgm")
    return k

def desc(n, vgpr, accum):
    return f""".p2align 6
.amdhsa_kernel {n}
  .amdhsa_next_free_vgpr {vgpr}
  .amdhsa_next_free_sgpr 102
  .amdhsa_accum_offset {accum}
  .amdhsa_group_segment_fixed_size 0
  .amdhsa_kernarg_size 80
  .amdhsa_user_sgpr_count 2
  .amdhsa_user_sgpr_kernarg_segment_ptr 1
  .amdhsa_system_sgpr_workgroup_id_x 1
  .amdhsa_float_denorm_mode_32 3
.end_amdhsa_kernel"""
def build(nlayers=2):
    name = "interleave_layers__sliding_block__swiglu_ffn__prompt_kernel"
    out = ["; x += attn(LN x); x += swiglu(LN x); twice. One persistent kernel, 256 workgroups. Generated by my own script (work/genq.py)."]
    if STAMP:
        if not envs("NOSLEEP", ""): out.append("; @launch kernel=sleep_kernel grid=(1,1,1) block=(64,1,1) lds=0")
        out.append(f"; @launch kernel={name} grid=(256,1,1) block=(256,1,1) lds=163840")
    else: out.append("; @launch grid=(256,1,1) block=(256,1,1) lds=163840")
    out.append('.amdgcn_target "amdgcn-amd-amdhsa--gfx950"\n.text')
    out.append(main_k(name, nlayers).text())
    if STAMP:
        out.append(""".globl sleep_kernel
.p2align 8
.type sleep_kernel,@function
sleep_kernel:
    s_mov_b32 s4, 2000
L_sleep:
    s_sleep 8
    s_sub_u32 s4, s4, 1
    s_cmp_lg_u32 s4, 0
    s_cbranch_scc1 L_sleep
    s_endpgm""")
    out.append('.section .rodata,"a"')
    out.append(desc(name, 512, 256))
    if STAMP: out.append(desc("sleep_kernel", 8, 8))
    return "\n".join(out) + "\n"

if __name__ == "__main__":
    STAMP = "stamp" in sys.argv[2:]
    open(sys.argv[1], "w").write(build(1 if "one" in sys.argv[2:] else 2))
```

```python
import re, sys, os, struct
from kb import *
KBY = 1024
OFF_XF, OFF_XN, OFF_OF, OFF_X1 = 0, 2304*KBY, 4608*KBY, 6912*KBY
OFF_OB = OFF_OF + 2048*KBY
OFF_QKV = 9216*KBY
OFF_PART = 16128*KBY
OFF_WO = 34560*KBY
OFF_WF = 37376*KBY
OFF_STAT = 53248*KBY
OFF_FLAG = 53376*KBY
OFF_QKV2 = 53408*KBY
OFF_WQ = OFF_QKV2 + 6912*KBY
OFF_FLAG = OFF_WQ + 2048*KBY
OFF_STAT = OFF_FLAG + 64*KBY
WS_USED = OFF_STAT + 256*KBY
FA, FB, FC, FE2, FE, FP, FP2, FW, FQ, FE1 = [OFF_FLAG + o for o in (0, 2048, 10240, 12288, 16384, 20480, 22528, 24576, 25600, 27648)]
FD = FB + 2048
BIG = 0x40000000
LOG2E = 1.4426950408889634
def fbits(x): return "0x%08x" % struct.unpack("<I", struct.pack("<f", x))[0]
def envs(n, d): return os.environ.get(n, d)
FL = {"s": " sc1", "p": "", "n": " nt"}
MF = "v_mfma_f32_16x16x32_bf16"
LD = " sc1"
SPIN = 300000
STAMP = False
OFF_STAMP = 200 << 20
POLL1 = envs("POLL1", "1") == "1"
CKD = envs("CKD", "1") == "1"
FORCE_RETRY = envs("FORCE_RETRY", "") == "1"
FAST = envs("FAST", "1") == "1"
FORCE_EXACT = envs("FORCE_EXACT", "") == "1"

DIAG = envs("DIAG", "")
def stamp(k, i, cyc=False):
    if DIAG and not cyc and i == int(DIAG.split(",")[1]):
        n = len(k.lines)
        k(f"s_cmp_lg_u32 s50, {DIAG.split(',')[0]}\ns_cbranch_scc1 L_dg{n}\ns_memrealtime s[90:91]"); k("s_waitcnt lgkmcnt(0)"); k.label(f"L_dg{n}")
    if STAMP:
        k(f"{'s_memtime' if cyc else 's_memrealtime'} s[98:99]"); k.wait_lg_all(); k(f"v_writelane_b32 v15, s98, {i}")
def srd(k, d, base, nbytes):
    k(f"s_mov_b32 s{d}, s{base}\ns_mov_b32 s{d+1}, s{base+1}\ns_mov_b32 s{d+2}, {nbytes}\ns_mov_b32 s{d+3}, 0x00020000")
def sdiv(k, dst, src, D, tmp):
    k(f"s_mov_b32 s{tmp}, {-(-(1<<32)//D)}\ns_mul_hi_u32 s{dst}, s{src}, s{tmp}")
def red_rows(k, v, t, op="v_add_f32"):
    for sw in ("v_permlane16_swap_b32", "v_permlane32_swap_b32"):
        k(f"v_mov_b32 v{t}, v{v}\ns_nop 1\n{sw} v{v}, v{t}\n{op} v{v}, v{v}, v{t}")
def ln_stats_finish(k, s, q):
    k(f"v_mul_f32 v{s}, s31, v{s}\nv_mul_f32 v{q}, s31, v{q}\nv_fma_f32 v{q}, -v{s}, v{s}, v{q}\nv_max_f32 v{q}, 0, v{q}")
    k(f"v_add_f32 v{q}, {fbits(1e-5)}, v{q}\nv_rsq_f32 v{q}, v{q}\ns_nop 0\nv_mul_f32 v{s}, v{s}, v{q}\nv_sub_f32 v{s}, 0, v{s}")
def ln_norm(k, x, dst, s, q, t):
    if envs("PKF", "1") == "1":
        assert q == s + 1 and s % 2 == 0 and t % 2 == 0
        k(f"v_lshlrev_b32 v{t}, 16, v{x}\nv_and_b32 v{t+1}, s32, v{x}\nv_pk_fma_f32 v[{t}:{t+1}], v[{t}:{t+1}], v[{s}:{q}], v[{s}:{q}] op_sel:[0,1,0] op_sel_hi:[1,1,0]\nv_cvt_pk_bf16_f32 v{dst}, v{t}, v{t+1}")
    else: k(f"v_lshlrev_b32 v{t}, 16, v{x}\nv_and_b32 v{t+1}, s32, v{x}\nv_fma_f32 v{t}, v{t}, v{q}, v{s}\nv_fma_f32 v{t+1}, v{t+1}, v{q}, v{s}\nv_cvt_pk_bf16_f32 v{dst}, v{t}, v{t+1}")
def ln_consts(k):
    k(f"s_mov_b32 s30, 0x3f803f80\ns_mov_b32 s31, {fbits(1/576)}\ns_mov_b32 s32, 0xffff0000")
def fold(iters):
    body = []
    assert len({len(x) for x in iters}) == 1, [len(x) for x in iters]
    for ls in zip(*iters):
        if len(set(ls)) == 1: body.append(ls[0]); continue
        ns = [re.fullmatch(r"\s*s_waitcnt vmcnt\((\d+)\)", l) for l in ls]
        assert all(ns), ls
        body.append(f"    s_waitcnt vmcnt({min(int(m.group(1)) for m in ns)})")
    return body
def fresh(k):
    k.vmq = []; k.vm_done = 0; k.lgq = []; k.lg_done = 0

def poll(k, name, wg=True, layer=True):
    if wg: k(f"s_cmp_lg_u32 s20, 0\ns_cbranch_scc1 L_pollx_{name}")
    k(f"s_mov_b32 s57, {SPIN}" + ("\ns_add_u32 s56, s56, s51" if layer else ""))
    if envs("PP", "") and name in "abcde":
        k("buffer_load_dwordx2 v[252:253], v2, s[8:11], s56 offen sc1\ns_sleep 1")
        k.label(f"L_poll_{name}")
        k(f"buffer_load_dwordx2 v[254:255], v2, s[8:11], s56 offen sc1\ns_waitcnt vmcnt(1)\nv_cmp_eq_u64 vcc, s[100:101], v[252:253]\ns_cmp_eq_u64 vcc, -1\ns_cbranch_scc1 L_pollx_{name}")
        k(f"buffer_load_dwordx2 v[252:253], v2, s[8:11], s56 offen sc1\ns_sub_u32 s57, s57, 1\ns_waitcnt vmcnt(1)")
    else:
        k.label(f"L_poll_{name}")
        k(f"buffer_load_dwordx2 v[254:255], v2, s[8:11], s56 offen sc1\ns_sub_u32 s57, s57, 1\ns_waitcnt vmcnt(0)")
    k(f"v_cmp_eq_u64 vcc, s[100:101], v[254:255]\ns_cmp_eq_u32 s57, 0\ns_cbranch_scc1 L_pollx_{name}")
    k(f"s_cmp_eq_u64 vcc, -1\ns_cbranch_scc0 L_poll_{name}")
    k.label(f"L_pollx_{name}")
    if wg: k("s_barrier")
def spoll(k, name, n, wg=True):
    if wg: k(f"s_cmp_lg_u32 s20, 0\ns_cbranch_scc1 L_pollx_{name}")
    k(f"s_mov_b32 s57, {SPIN}\ns_add_u32 s56, s56, s51")
    for c in range(0, n, 8):
        k.label(f"L_poll_{name}{c}")
        k(f"s_load_dwordx16 s[84:99], s[4:5], s56 glc\ns_sub_u32 s57, s57, 1\ns_cmp_eq_u32 s57, 0\ns_waitcnt lgkmcnt(0)\ns_cbranch_scc1 L_pollx_{name}")
        for j in range(84, 100, 2): k(f"s_xor_b64 s[{j}:{j+1}], s[{j}:{j+1}], s[100:101]")
        for j in range(86, 100, 2): k(f"s_or_b64 s[84:85], s[84:85], s[{j}:{j+1}]")
        k(f"s_cbranch_scc0 2\ns_sleep {envs('SLP', '2')}\ns_branch L_poll_{name}{c}")
        if c + 8 < n: k("s_add_u32 s56, s56, 64")
    k.label(f"L_pollx_{name}")
    if wg: k("s_barrier")
def spoll16(k, name):
    k(f"s_cmp_lg_u32 s20, 0\ns_cbranch_scc1 L_pollx_{name}\ns_mov_b32 s57, {SPIN}\ns_add_u32 s56, s56, s51\ns_add_u32 s58, s56, 64")
    k.label(f"L_poll_{name}")
    k(f"s_load_dwordx16 s[68:83], s[4:5], s56 glc\ns_load_dwordx16 s[84:99], s[4:5], s58 glc\ns_sub_u32 s57, s57, 1\ns_cmp_eq_u32 s57, 0\ns_waitcnt lgkmcnt(0)\ns_cbranch_scc1 L_pollx_{name}")
    for j in range(68, 100, 2): k(f"s_xor_b64 s[{j}:{j+1}], s[{j}:{j+1}], s[100:101]")
    for j in range(70, 100, 2): k(f"s_or_b64 s[68:69], s[68:69], s[{j}:{j+1}]")
    k(f"s_cbranch_scc0 2\ns_sleep {envs('SLP', '2')}\ns_branch L_poll_{name}")
    k.label(f"L_pollx_{name}")
    k("s_barrier")
SP = envs("SPOLL", "qe")
def publish(k, addr="s56"):
    k("v_mov_b32 v254, s100\nv_mov_b32 v255, s101")
    k.vm(f"buffer_store_dwordx2 v[254:255], v13, s[8:11], {addr} offen sc1")
def signal(k):
    k(f"s_add_u32 s56, s56, s51\ns_cmp_eq_u32 s20, 0\ns_cselect_b32 s56, s56, {BIG}")
    k.wait_vm_all(); k("s_barrier")
    publish(k)
def token_load(k):
    k("v_mov_b32 v2, 0\nbuffer_load_dwordx2 v[254:255], v2, s[84:87], 0 offen sc1")
def token_get(k, name):
    k(f"s_mov_b32 s57, {SPIN}")
    k.label(f"L_tok_{name}")
    k("v_readfirstlane_b32 s100, v254\nv_readfirstlane_b32 s101, v255\ns_sub_u32 s57, s57, 1\ns_min_u32 s94, s100, s101\ns_cmp_eq_u32 s57, 0\ns_cselect_b32 s94, 1, s94")
    k(f"s_cmp_lg_u32 s94, 0\ns_cbranch_scc1 L_tokx_{name}")
    token_load(k)
    k(f"s_waitcnt vmcnt(0)\ns_branch L_tok_{name}")
    k.label(f"L_tokx_{name}")

def half_lanes(k, shb):
    k("v_bfe_u32 v4, v0, 4, 2\nv_bfe_u32 v5, v0, 3, 1\nv_and_b32 v6, 7, v0")
    k(f"s_and_b32 s21, s{shb}, 1\ns_lshr_b32 s22, s{shb}, 1\ns_lshl_b32 s23, s21, 7")
    k("v_lshlrev_b32 v7, 8, v4\nv_lshl_add_u32 v7, v5, 10, v7\nv_lshl_add_u32 v7, v6, 4, v7\nv_add_u32 v7, s23, v7")
    k(f"s_mul_i32 s24, s22, {18*KBY}")
def rowmajor(k, shb, v):
    k(f"v_mul_u32_u24 v{v}, 1152, v6\nv_lshl_add_u32 v{v}, v5, 6, v{v}\nv_and_b32 v9, 1, v4\nv_lshl_add_u32 v{v}, v9, 5, v{v}\nv_lshrrev_b32 v9, 1, v4\nv_lshl_add_u32 v{v}, v9, 4, v{v}")
    k(f"s_mul_i32 s33, s{shb}, 9216")
def row_sums(k, D, n, T):
    for i in range(4): k(f"v_mov_b32 v{T+i}, 0")
    for j in range(n): k(f"v_dot2c_f32_bf16 v{T+(j&1)}, s30, v{D+j}\nv_dot2c_f32_bf16 v{T+2+(j&1)}, v{D+j}, v{D+j}")
    k(f"s_nop 2\nv_add_f32 v{T}, v{T}, v{T+1}\nv_add_f32 v{T+1}, v{T+2}, v{T+3}\ns_nop 1")
    k(f"v_add_f32_dpp v{T}, v{T}, v{T} row_ror:8 row_mask:0xf bank_mask:0xf\nv_add_f32_dpp v{T+1}, v{T+1}, v{T+1} row_ror:8 row_mask:0xf bank_mask:0xf")
    red_rows(k, T, T + 2); red_rows(k, T + 1, T + 2)
def flag_a_addr(k):
    k(f"s_lshr_b32 s56, s28, 4\ns_lshl_b32 s56, s56, 7\ns_and_b32 s27, s28, 15\ns_lshl_b32 s27, s27, 3\ns_add_u32 s56, s56, s27\ns_add_u32 s56, s56, {FA}")

DST = 68
park = lambda u, i: (f"v[{128+16*u+4*i}:{131+16*u+4*i}]" if u < 3 else f"a[{160+16*(u-3)+4*i}:{163+16*(u-3)+4*i}]")
PK = 220
AMAP = int(envs("AMAP", "2"))
def att_ids(k):
    if AMAP == 2: k("s_lshl_b32 s21, s18, 3\ns_and_b32 s22, s17, 7\ns_add_u32 s21, s21, s22\ns_lshr_b32 s29, s17, 3\ns_lshl_b32 s22, s19, 2\ns_add_u32 s22, s22, s29")
    elif AMAP == 4: k("s_and_b32 s21, s16, 6\ns_lshl_b32 s21, s21, 1\ns_and_b32 s22, s17, 3\ns_add_u32 s21, s21, s22\ns_lshr_b32 s29, s17, 2\ns_and_b32 s22, s16, 1\ns_lshl_b32 s22, s22, 3\ns_add_u32 s22, s22, s29")
    else: k("s_lshl_b32 s21, s16, 1\ns_and_b32 s22, s17, 1\ns_add_u32 s21, s21, s22\ns_lshr_b32 s22, s17, 1")
def wq_base(k):
    att_ids(k)
    k(f"s_mul_i32 s25, s22, {126*KBY}\ns_add_u32 s25, s25, {OFF_WQ}")
def wq_fetch(k, name):
    k(f"s_and_b32 s23, s17, {7 if envs('ROT', '1') == '1' else 0}\ns_lshl_b32 s23, s23, 14\ns_mov_b32 s26, 32")
    k.label(f"L_wqf_{name}")
    k("s_mov_b32 m0, s23\ns_add_u32 s27, s25, s23")
    for c in range(4): k(f"buffer_load_dwordx4 v1, s[8:11], s27 offen offset:{c*1024} lds")
    k(f"s_add_u32 s23, s23, 4096\ns_and_b32 s23, s23, 0x1ffff\ns_sub_u32 s26, s26, 1\ns_waitcnt vmcnt({envs('WQF', '40')})\ns_cmp_lg_u32 s26, 0\ns_cbranch_scc1 L_wqf_{name}")
def stage_addr(k):
    k(f"s_lshl_b32 s66, s20, 13\ns_add_u32 s66, s66, {128*KBY}\nv_add_u32 v10, s66, v1")
    k("v_bfe_u32 v11, v0, 2, 4\nv_lshlrev_b32 v11, 7, v11\nv_and_b32 v252, 3, v0\nv_lshl_add_u32 v11, v252, 3, v11\nv_add_u32 v11, s66, v11")
def pack_block(k, n, nu, dst=lambda u, c: (f"s{DST+c}", (u % 4) * 1024), src=park, PK=220):
    k("s_waitcnt lgkmcnt(0)")
    if 2 <= n < nu + 2:
        u = n - 2
        for c in range(4):
            r, o = dst(u, c)
            k(f"buffer_store_dwordx4 v[{PK+16*(u&1)+4*c}:{PK+16*(u&1)+4*c+3}], v1, s[8:11], {r} offen offset:{o} sc1" + (f"\ns_add_u32 {r}, {r}, 4096" if o == 3072 else ""))
    if 1 <= n <= nu:
        u = n - 1
        for c in range(4):
            for hf in range(2): k(f"ds_read_b64_tr_b16 v[{PK+16*(u&1)+4*c+2*hf}:{PK+16*(u&1)+4*c+2*hf+1}], v11 offset:{(u&1)*4096 + hf*2048 + c*32}")
    if n < nu:
        for i in range(4): k(f"ds_write_b128 v10, {src(n, i)} offset:{(n&1)*4096 + i*1024}")
lpark = lambda u, i: f"a[{208+16*u+4*i}:{211+16*u+4*i}]"
def late_blocks(k):
    k("s_cmp_eq_u32 s67, 0\ns_cbranch_scc1 L_pks")
    stage_addr(k)
    for n in range(5): pack_block(k, n, 3, lambda u, c: (f"s{78+c}", u * 1024), lpark)
    k("s_mov_b32 s67, 0")
    k.label("L_pks")
EARLY = envs("EARLY", "b")
def early_blocks(k):
    k("s_cmp_eq_u32 s67, 0\ns_cbranch_scc1 L_pke")
    stage_addr(k)
    for n in range(8): pack_block(k, n, 6, PK=48)
    k.label("L_pke")
def publish_fp(k, base):
    k(f"s_mov_b32 s30, {-(-(1<<32)//27)}\ns_mul_hi_u32 s27, s2, s30\ns_mul_i32 s27, s27, 5\ns_add_u32 s27, s27, s2\ns_lshl_b32 s27, s27, 3\ns_add_u32 s27, s27, {base}")
    k(f"s_cmp_lt_u32 s2, 216\ns_cselect_b32 s27, s27, {BIG}\ns_cmp_eq_u32 s20, 0\ns_cselect_b32 s27, s27, {BIG}")
    k.vm("buffer_store_dwordx2 v[254:255], v13, s[8:11], s27 offen sc1")
def poll_fp(k, name, base):
    k(f"s_cmp_lg_u32 s50, 0\ns_cbranch_scc1 L_pollx_{name}\ns_lshl_b32 s56, s21, 8\ns_add_u32 s56, s56, {base}\nv_and_b32 v2, 31, v0\nv_min_u32 v2, 26, v2\nv_lshlrev_b32 v2, 3, v2")
    poll(k, name, wg=False)
def ptrs(k):
    srd(k, 8, 4, WS_USED); k("s_mov_b32 s86, 256\ns_mov_b32 s87, 0x00020000")
def p0(k):
    k("s_cmp_eq_u32 s20, 1\ns_cbranch_scc1 L_p0_wq\ns_cmp_lg_u32 s20, 0\ns_cbranch_scc1 L_p0_23")
    k("s_lshl_b32 s28, s16, 5\ns_add_u32 s28, s28, s17")
    half_lanes(k, 28); rowmajor(k, 28, 11)
    k("s_waitcnt lgkmcnt(0)")
    srd(k, 12, 36, 2048 * 1152)
    D = 16; T = D + 36; O = T + 8
    for i in range(9): k(f"buffer_load_dwordx4 v[{D+4*i}:{D+4*i+3}], v11, s[12:15], s33 offen offset:{128*i} nt")
    if envs("B0", "2") == "1": k("s_barrier")
    ptrs(k); ln_consts(k); flag_a_addr(k)
    stamp(k, 41)
    k(f"s_add_u32 s25, s24, {OFF_XF}")
    for i in range(9):
        k(f"s_waitcnt vmcnt(8)\nv_permlane16_swap_b32 v{D+4*i}, v{D+4*i+2}\nv_permlane16_swap_b32 v{D+4*i+1}, v{D+4*i+3}")
        k(f"buffer_store_dwordx4 v[{D+4*i}:{D+4*i+3}], v7, s[8:11], s25 offen offset:{(i&1)*2048} sc1" + ("\ns_add_u32 s25, s25, 4096" if i & 1 else ""))
    stamp(k, 42)
    token_load(k)
    row_sums(k, D, 36, T); ln_stats_finish(k, T, T + 1)
    k(f"s_add_u32 s23, s24, {OFF_XN}")
    for i in range(9):
        for j in range(4): ln_norm(k, D + 4 * i + j, O + 4 * (i & 1) + j, T, T + 1, T + 2 + 2 * (j & 1))
        k(f"buffer_store_dwordx4 v[{O+4*(i&1)}:{O+4*(i&1)+3}], v7, s[8:11], s23 offen offset:{(i&1)*2048} sc1" + ("\ns_add_u32 s23, s23, 4096" if i & 1 else ""))
    stamp(k, 43)
    if envs("B0", "2") == "2": k("s_barrier")
    k("s_waitcnt vmcnt(0)")
    token_get(k, "a")
    publish(k)
    k("s_branch L_p0_wait")
    k.label("L_p0_wq")
    att_ids(k)
    k("s_mul_i32 s33, s22, 72")
    k("v_bfe_u32 v10, v0, 1, 5\nv_mul_u32_u24 v10, 3456, v10\nv_and_b32 v11, 1, v0\nv_lshl_add_u32 v10, v11, 4, v10")
    k("v_mul_u32_u24 v12, 36, v11\nv_bfe_u32 v11, v0, 3, 3\nv_mul_u32_u24 v11, 3456, v11\nv_add_u32 v11, v11, v12\nv_bfe_u32 v12, v0, 1, 2\nv_cmp_eq_u32 vcc, 3, v12\nv_mul_u32_u24 v12, 1152, v12")
    k(f"v_add_u32 v11, v11, v12\nv_mov_b32 v12, {BIG}\nv_cndmask_b32 v11, v11, v12, vcc")
    k(f"s_lshl_b32 s80, s21, 3\ns_mov_b32 m0, {128*KBY}\ns_mov_b32 s82, 8\ns_mov_b32 s79, {-(-(1<<32)//5)}")
    k("s_waitcnt lgkmcnt(0)")
    srd(k, 60, 38, 576 * 3456)
    k.label("L_wq")
    k("s_mul_hi_u32 s81, s80, s79\ns_mul_i32 s30, s81, 5\ns_sub_u32 s30, s80, s30\ns_lshr_b32 s31, s30, 1\ns_add_u32 s31, s31, 1")
    k("s_sub_u32 s34, s80, 90\ns_lshr_b32 s35, s34, 1\ns_and_b32 s34, s34, 1\ns_cmp_ge_u32 s80, 90\ns_cselect_b32 s81, s35, s81\ns_cselect_b32 s30, s34, s30\ns_cselect_b32 s31, 0, s31")
    k(f"s_mul_i32 s34, s81, {32*3456}\ns_add_u32 s34, s34, s33\ns_cmp_eq_u32 s30, 4\ns_cbranch_scc1 L_wqb")
    k("s_mul_i32 s31, s31, 1152\ns_and_b32 s30, s30, 1\ns_mul_i32 s30, s30, 36\ns_add_u32 s34, s34, s31\ns_add_u32 s34, s34, s30")
    k("buffer_load_dwordx4 v10, s[60:63], s34 offen lds\ns_add_u32 m0, m0, 1024")
    k.label("L_wqj")
    k("s_add_u32 s80, s80, 1\ns_sub_u32 s82, s82, 1\ns_cmp_lg_u32 s82, 0\ns_cbranch_scc1 L_wq\ns_branch L_wqx")
    k.label("L_wqb")
    k("s_add_u32 s34, s34, 32")
    for q in range(4): k(f"buffer_load_dword v11, s[60:63], s34 offen lds\ns_add_u32 m0, m0, 256\ns_add_u32 s34, s34, {8*3456}")
    k("s_branch L_wqj")
    k.label("L_wqx")
    if envs("B0", "2") == "1": k("s_barrier")
    ptrs(k)
    wq_base(k)
    k(f"s_lshl_b32 s30, s21, 13\ns_add_u32 s30, s30, s25\ns_add_u32 s31, s30, 4096\nv_lshrrev_b32 v3, 1, v1\nv_add_u32 v3, {128*KBY}, v3")
    k(f"s_cmp_eq_u32 s21, 15\ns_cselect_b32 s32, {BIG}, s31")
    k(f"s_lshl_b32 s24, s22, 7\ns_add_u32 s24, s24, {FQ}\ns_lshl_b32 s27, s21, 3\ns_add_u32 s27, s27, s24\ns_waitcnt vmcnt(0)")
    stamp(k, 41)
    token_load(k)
    for sl in range(8):
        for hf in range(2): k(f"ds_read_b64_tr_b16 v[{16+4*sl+2*hf}:{17+4*sl+2*hf}], v3 offset:{sl*1024 + hf*512}")
    for sl in range(8): k(f"s_waitcnt lgkmcnt({14-2*sl})\nbuffer_store_dwordx4 v[{16+4*sl}:{19+4*sl}], v1, s[8:11], s{30 if sl < 4 else 31 if sl < 6 else 32} offen offset:{(sl%4)*1024} sc1")
    if envs("B0", "2") == "2": k("s_barrier")
    k("s_waitcnt vmcnt(0)")
    token_get(k, "b")
    publish(k, "s27")
    stamp(k, 42)
    k("s_mov_b32 s56, s24\nv_and_b32 v2, 15, v0\nv_lshlrev_b32 v2, 3, v2")
    if "q" in SP: spoll(k, "q", 16, wg=False)
    else: poll(k, "q", wg=False)
    stamp(k, 43)
    k("s_branch L_p0_fetch")
    k.label("L_p0_23")
    k("s_sub_u32 s21, s20, 2\nv_bfe_u32 v4, v0, 3, 3\nv_and_b32 v5, 7, v0\ns_memrealtime s[94:95]")
    k("s_lshl_b32 s23, s2, 1\ns_add_u32 s23, s23, s21")
    sdiv(k, 25, 23, 3, 30)
    k("s_mul_i32 s30, s25, 3\ns_sub_u32 s28, s23, s30\ns_mul_i32 s28, s28, 6")
    sdiv(k, 26, 25, 18, 30)
    k("s_mul_i32 s30, s26, 18\ns_sub_u32 s25, s25, s30\ns_cmp_ge_u32 s25, 9\ns_cselect_b32 s27, 18, 0\ns_cselect_b32 s30, 9, 0\ns_sub_u32 s25, s25, s30")
    k(f"s_mul_i32 s30, s26, 9\ns_add_u32 s25, s25, s30\ns_lshl_b32 s24, s25, 7\ns_mul_i32 s30, s28, {32*9216}\ns_add_u32 s24, s24, s30")
    k("v_mul_u32_u24 v6, 9216, v4\nv_lshl_add_u32 v6, v5, 4, v6\ns_waitcnt lgkmcnt(0)")
    ptrs(k)
    k(f"s_or_b32 s94, s94, 1\ns_or_b32 s95, s95, 0x80000000\nv_mov_b32 v16, s94\nv_mov_b32 v17, s95\ns_cmp_eq_u32 s23, 0\ns_cselect_b32 s30, 0, {BIG}")
    k("buffer_store_dwordx2 v[16:17], v13, s[84:87], s30 offen sc1")
    k(f"s_sub_u32 s30, s23, 486\ns_lshl_b32 s30, s30, 14\ns_add_u32 s30, s30, {OFF_FLAG}\ns_cmp_ge_u32 s23, 486\ns_cselect_b32 s30, s30, {BIG}\ns_add_u32 s31, s30, 8192\nv_lshlrev_b32 v2, 3, v1")
    k("buffer_load_dword v22, v2, s[8:11], s30 offen\nbuffer_load_dword v21, v2, s[8:11], s31 offen")
    k("s_cmp_ge_u32 s2, 216\ns_cbranch_scc1 L_p0_wo")
    k("s_add_u32 s29, s27, s28")
    for c in range(4):
        k(f"s_lshl_b32 s30, s25, 2\ns_add_u32 s30, s30, {c}")
        sdiv(k, 31, 30, 9, 33)
        k("s_mul_i32 s33, s31, 9\ns_sub_u32 s30, s30, s33\ns_mul_i32 s31, s31, 486\ns_mul_i32 s30, s30, 36\ns_add_u32 s30, s30, s31\ns_add_u32 s30, s30, s29")
        k(f"s_add_u32 s30, s30, {OFF_WF//KBY}\ns_lshl_b32 s{DST+c}, s30, 10")
    if EARLY == "p0":
        stage_addr(k)
        k("s_waitcnt vmcnt(0)")
        stamp(k, 43)
        for n in range(8): pack_block(k, n, 6)
    sdiv(k, 25, 2, 3, 30)
    k("s_mul_i32 s30, s25, 3\ns_sub_u32 s28, s2, s30\ns_mul_i32 s28, s28, 6\ns_mul_i32 s30, s21, 3\ns_add_u32 s28, s28, s30")
    k("s_mul_i32 s30, s26, 9\ns_sub_u32 s25, s25, s30")
    for c in range(4):
        k(f"s_lshl_b32 s31, s25, 1\ns_add_u32 s31, s31, {c >> 1}\ns_and_b32 s31, s31, 3\ns_and_b32 s30, s25, 14\ns_add_u32 s30, s30, {1 + (c & 1)}")
        k(f"s_cmp_eq_u32 s25, 8\ns_cselect_b32 s31, {c}, s31\ns_cselect_b32 s30, 0, s30\ns_lshl_b32 s33, s26, 2\ns_add_u32 s31, s31, s33\ns_mul_i32 s31, s31, 486")
        k(f"s_mul_i32 s30, s30, 18\ns_add_u32 s30, s30, s31\ns_add_u32 s30, s30, s28\ns_add_u32 s30, s30, {324 + OFF_WF//KBY}\ns_lshl_b32 s{78+c}, s30, 10")
    k("s_lshl_b32 s34, s25, 7\ns_mul_i32 s35, s26, 576")
    for u in range(3):
        k("s_lshr_b32 s30, s28, 2\ns_mul_i32 s30, s30, 144\ns_and_b32 s31, s28, 3\ns_lshl_b32 s31, s31, 5\ns_add_u32 s30, s30, s31")
        k("s_mul_i32 s31, s28, 288\ns_sub_u32 s31, s31, 4480\ns_cmp_ge_u32 s28, 16\ns_cselect_b32 s30, s31, s30\ns_cselect_b32 s37, 144, 16")
        k(f"s_add_u32 s30, s30, s35\ns_mul_i32 s30, s30, 1152\ns_add_u32 s{72+2*u}, s30, s34\ns_mul_i32 s37, s37, 1152\ns_add_u32 s{73+2*u}, s{72+2*u}, s37\ns_add_u32 s28, s28, 1")
    if envs("B0", "2") in "12": k("s_barrier")
    k(f"s_cmp_eq_u32 s27, 0\ns_cselect_b32 s60, s40, s42\ns_cselect_b32 s61, s41, s43\ns_mov_b32 s62, {576*9216}\ns_mov_b32 s63, 0x00020000")
    if envs("NOBG", ""): k("s_mov_b32 s62, 0")
    for u in range(6):
        for i in range(4): k(f"buffer_load_dwordx4 {park(u, i)}, v6, s[60:63], s24 offen nt\ns_add_u32 s24, s24, {8*9216}")
    if envs("CODEPF", "1") == "1":
        k("s_getpc_b64 s[12:13]")
        k.label("L_pc")
        k(f"s_mov_b32 s14, L_end-L_pc\ns_mov_b32 s15, 0x00020000\nv_lshlrev_b32 v2, 3, v1\ns_lshl_b32 s30, s17, 13\ns_cmp_eq_u32 s20, 3\ns_cselect_b32 s30, s30, {BIG}")
        k("buffer_load_dword v20, v2, s[12:15], s30 offen")
    token_load(k)
    srd(k, 60, 44, 4608 * 1152)
    k("s_mov_b32 s67, 1")
    if EARLY != "f":
        k("s_waitcnt vmcnt(0)"); token_get(k, "c")
    k("s_branch L_p0_wait")
    k.label("L_p0_wo")
    if envs("B0", "2") in "12": k("s_barrier")
    token_load(k)
    k("s_sub_u32 s23, s23, 432\ns_cmp_lt_u32 s23, 54\ns_cbranch_scc1 L_p0_wo2")
    k("s_waitcnt vmcnt(0)")
    token_get(k, "d")
    k("s_branch L_p0_wait")
    k.label("L_p0_wo2")
    srd(k, 12, 46, 576 * 1152)
    sdiv(k, 27, 23, 3, 30)
    k("s_mul_i32 s30, s27, 3\ns_sub_u32 s25, s23, s30\ns_mul_i32 s25, s25, 3")
    k("v_lshrrev_b32 v7, 1, v4\nv_mul_u32_u24 v7, 18, v7\nv_and_b32 v8, 1, v4\nv_add_u32 v7, v7, v8")
    k("s_mul_i32 s30, s27, 36\ns_sub_u32 s31, s27, 16\ns_mul_i32 s31, s31, 288\ns_add_u32 s31, s31, 16")
    k(f"s_cmp_lt_u32 s27, 16\ns_cselect_b32 s30, s30, s31\ns_mov_b32 s28, {18*1152}\ns_mov_b32 s29, {8*1152}\ns_cselect_b32 s28, s28, {144*1152}\ns_cselect_b32 s29, s29, {72*1152}\ns_cselect_b64 vcc, -1, 0")
    k("s_mul_i32 s32, s30, 1152\ns_lshl_b32 s31, s25, 7\ns_add_u32 s32, s32, s31")
    k("v_cndmask_b32 v8, v7, v4, vcc\nv_mul_u32_u24 v6, 1152, v8\nv_lshl_add_u32 v6, v5, 4, v6")
    k("s_add_u32 s33, s32, s29\ns_add_u32 s34, s32, s28\ns_add_u32 s35, s34, s29")
    for u in range(3):
        for i in range(4): k(f"buffer_load_dwordx4 {park(u, i)}, v6, s[12:15], s{32+i} offen offset:{128*u} nt")
    for u in range(3):
        for c in range(4):
            k(f"s_add_u32 s30, s25, {u}\ns_cmp_eq_u32 s30, 8\ns_mul_i32 s30, s30, 90\ns_cselect_b32 s30, {90*c + 4 - c}, s30")
            k(f"s_mul_i32 s31, s27, 5\ns_add_u32 s30, s30, s31\ns_add_u32 s30, s30, {OFF_WO//KBY + c}\ns_lshl_b32 s{72+4*u+c}, s30, 10")
    stage_addr(k)
    k("s_waitcnt vmcnt(0)")
    for n in range(5): pack_block(k, n, 3, lambda u, c: (f"s{72+4*u+c}", 0))
    token_get(k, "e")
    k(f"s_lshl_b32 s56, s23, 3\ns_add_u32 s56, s56, {FW}\ns_waitcnt vmcnt(0)")
    publish(k)
    k.label("L_p0_wait")
    stamp(k, 44)
    k.label("L_p0_fetch")
    wq_base(k)
    k("s_lshl_b32 s26, s20, 12\ns_add_u32 s25, s25, s26\ns_mov_b32 m0, s26\ns_barrier")
    for q in range(8):
        for c in range(4): k(f"buffer_load_dwordx4 v1, s[8:11], s25 offen offset:{c*1024} lds")
        k("s_add_u32 m0, m0, 16384\ns_add_u32 s25, s25, 16384")
    if EARLY == "f":
        k("s_cmp_eq_u32 s67, 0\ns_cbranch_scc1 L_layer")
        stage_addr(k)
        k("s_waitcnt vmcnt(32)")
        token_get(k, "c")
        for n in range(8): pack_block(k, n, 6)

def gemm_core(k, NTB, NS, loads, AHEAD, st0, tr, NBUF=2, wwait=None, last=None, more=None):
    ACC = 16; WB = ACC + 4 * NS * NTB
    pi = 0
    def take(n):
        nonlocal pi
        r = loads[pi:pi + n]; pi += len(r); return r
    nx = {}
    for f in loads: nx[f.tag] = nx.get(f.tag, 0) + 1
    for f in take(AHEAD): f.fn(k)
    if wwait: wwait(k)
    if tr: k("v_lshrrev_b32 v3, 1, v1\nv_add_u32 v2, 0x10000, v3")
    else: k("v_mov_b32 v3, v1\nv_add_u32 v2, 0x10000, v1")
    def rd(ks, sl):
        i = ks * NS + sl; r = WB + 4 * ((ks % NBUF) * NS + sl); a = f"v{3 if i < 64 else 2}"; o = (i % 64) * 1024
        if tr: return [lgl(f"ds_read_b64_tr_b16 v[{r}:{r+1}], {a} offset:{o}", ("r", ks)), lgl(f"ds_read_b64_tr_b16 v[{r+2}:{r+3}], {a} offset:{o+512}", ("r", ks))]
        return [lgl(f"ds_read_b128 v[{r}:{r+3}], {a} offset:{o}", ("r", ks))]
    for ks in range(NBUF - 1):
        for sl in range(NS):
            for f in rd(ks, sl): f.fn(k)
    treg = lambda n: WB + 4 * ((n + NS * ((18 - int(envs("TK", "6"))) & 1)) % (2 * NS))
    def trd(n):
        TKk = int(envs("TK", "6")); sl, j = divmod(n, TKk); i = (18 - TKk + j) * NS + sl
        return lgl(f"ds_read_b128 v[{treg(n)}:{treg(n)+3}], v{3 if i < 64 else 2} offset:{(i % 64) * 1024}", ("t", n))
    TK = int(envs("TK", "6")) if last else 0
    K1 = 18 - TK
    for ks in range(K1 if TK else 18):
        while k.vmq.count(("x", ks)) < nx[("x", ks)]: take(1)[0].fn(k)
        k.wait_vm(("x", ks)); k.wait_lg(("r", ks))
        if ks == 0: stamp(k, st0)
        mf = []
        for sl in range(NS):
            for tb in range(NTB):
                a = ACC + 4 * (sl * NTB + tb); w = WB + 4 * ((ks % NBUF) * NS + sl); x = 4 * (ks * NTB + tb)
                mf.append(f"{MF} v[{a}:{a+3}], v[{w}:{w+3}], a[{x}:{x+3}], " + ("0" if ks == 0 else f"v[{a}:{a+3}]"))
        fill = [f for sl in range(NS) for f in rd(ks + NBUF - 1, sl)] if ks + NBUF - 1 < (K1 if TK else 18) else []
        if TK and ks == K1 - 1: fill = [trd(n) for n in range(NS)]
        if NBUF == 2 and envs("FRONT", "1") == "1":
            for j, f in enumerate(fill): f.before = j + 1
        outstanding = len(k.vmq) - k.vm_done
        if ks == 17 and last:
            n = len(mf); j = 0
            for i, m in enumerate(mf):
                k(m)
                c = 0
                while j < len(last) and last[j].after <= i and c < 4: last[j].fn(k); j += 1; c += 1
            k("s_nop 3")
            for f in last[j:]: f.fn(k)
            continue
        tk = take(max(0, AHEAD + 2 - outstanding + (2 if TK else 0)))
        if more and pi == len(loads) and not tk:
            n = -(-len(more) // (18 - ks)); tk = more[:n]; more = more[n:]
        interleave(k, mf, [fill, tk], budget=8 if NTB == 2 else 12)
    if TK:
        for f in take(len(loads)): f.fn(k)
        per = len(last) // NS + 1
        for sl in range(NS):
            mf = []; pre = {}
            for j in range(TK):
                n = sl * TK + j; ks = K1 + j
                pre[len(mf)] = (lambda k, n=n, ks=ks: (k.wait_vm(("x", ks)), k.wait_lg(("t", n))))
                for tb in range(NTB):
                    a = ACC + 4 * (sl * NTB + tb); w = treg(n); x = 4 * (ks * NTB + tb)
                    mf.append(f"{MF} v[{a}:{a+3}], v[{w}:{w+3}], a[{x}:{x+3}], v[{a}:{a+3}]")
            fill = [trd(n) for n in range(sl * TK + NS, min((sl + 1) * TK + NS, NS * TK))]
            for j, f in enumerate(fill): f.after = NTB * j
            ep = [f for f in last if f.blk == sl - 1]
            for f in ep: f.after = 3
            interleave(k, mf, [fill, ep], pre=pre, budget=12)
        k("s_nop 5")
        for f in last:
            if f.blk == NS - 1: f.fn(k)
    assert pi == len(loads) and not more, (pi, len(loads))
def tl(s, tag, post="", cost=8):
    f = F(lambda k: (k.vm(s, tag), k(post) if post else None), cost); f.tag = tag; return f

def p1_addr(k):
    att_ids(k)
    k(f"s_lshl_b32 s56, s21, 7\ns_add_u32 s56, s56, {FA}\nv_and_b32 v2, 15, v0\nv_lshlrev_b32 v2, 3, v2")
    k(f"s_lshl_b32 s26, s21, 2\ns_add_u32 s26, s26, s20")
    k(f"s_mul_i32 s23, s26, {36*KBY}\ns_add_u32 s23, s23, {OFF_XN}\ns_add_u32 s24, s23, {18*KBY}")
QB = 60 * KBY
def p1_qkv(k):
    p1_addr(k)
    stamp(k, 0)
    k(f"s_add_u32 s56, s56, s51\ns_mov_b32 s57, {SPIN}\ns_cmp_eq_u32 s20, 0\ns_cselect_b32 s27, s56, {BIG}\nbuffer_load_dwordx2 v[254:255], v2, s[8:11], s27 offen sc1")
    p2_consts(k)
    k("s_cmp_lg_u32 s20, 0\ns_cbranch_scc1 L_pollx_w0\ns_branch L_look_a")
    k.label("L_poll_a")
    k("buffer_load_dwordx2 v[254:255], v2, s[8:11], s56 offen sc1")
    k.label("L_look_a")
    k("s_sub_u32 s57, s57, 1\ns_waitcnt vmcnt(0)\nv_cmp_eq_u64 vcc, s[100:101], v[254:255]\ns_cmp_eq_u32 s57, 0\ns_cbranch_scc1 L_pollx_a\ns_cmp_eq_u64 vcc, -1\ns_cbranch_scc0 L_poll_a")
    k.label("L_pollx_a")
    k.label("L_pollx_w0")
    k("s_barrier")
    stamp(k, 1)
    fresh(k)
    loads = [tl(f"buffer_load_dwordx4 a[{4*(2*ks+tb)}:{4*(2*ks+tb)+3}], v1, s[8:11], s{23+tb} offen offset:{(ks%4)*1024}{LD}", ("x", ks),
                f"s_add_u32 s{23+tb}, s{23+tb}, 4096" if ks % 4 == 3 else "") for ks in range(18) for tb in range(2)]
    ACC, WB, NR, LA = 16, 72, 14, 7
    AH = int(envs("AH1", "10")); TK = int(envs("TK", "6")); QK1 = int(envs("QK1", "0")); SIG = int(envs("SIG", "16"))
    for f in loads[:AH]: f.fn(k)
    pi = AH
    k(f"s_mul_i32 s30, s22, {5*65536}\ns_lshl_b32 s27, s26, 10\ns_add_u32 s30, s30, s27\ns_add_u32 s30, s30, s53")
    k(f"s_lshl_b32 s56, s22, 7\ns_lshl_b32 s27, s21, 3\ns_add_u32 s56, s56, s27\ns_add_u32 s56, s56, {FB}\ns_add_u32 s56, s56, s51\ns_cmp_eq_u32 s20, 0\ns_cselect_b32 s56, s56, {BIG}")
    k(f"s_mov_b32 s32, {fbits(18 ** -0.5 * LOG2E)}\ns_mov_b32 s33, s32\nv_cmp_eq_u32 vcc, 0, v4\nv_cmp_eq_u32 s[34:35], 3, v4\nv_mov_b32 v8, s32\nv_mov_b32 v10, 0x3f803f80")
    k("v_cndmask_b32 v8, 1.0, v8, vcc\nv_mov_b32 v9, v8")
    k(f"s_lshl_b32 s27, s20, 10\ns_add_u32 s28, s27, 8192\nv_add_u32 v6, s28, v1\nv_add_u32 v7, s28, v5\ns_add_u32 s27, s27, {QB}\nv_add_u32 v11, s27, v1")
    k(f"s_lshl_b32 s36, s20, 1\ns_lshl_b32 s37, s21, 2\ns_add_u32 s37, s37, s36\ns_sub_i32 s37, s37, 8\ns_lshl_b32 s25, s37, 10\ns_mul_i32 s27, s22, {5*65536}\ns_add_u32 s25, s25, s27\ns_add_u32 s25, s25, s53")
    k(f"s_cmp_lt_i32 s37, 0\ns_cselect_b32 s25, {BIG}, s25\ns_lshl_b32 s36, s36, 10\ns_ashr_i32 s37, s37, 2\ns_cmp_lt_i32 s37, 0\ns_cselect_b32 s37, s21, s37")
    k(f"s_lshl_b32 s37, s37, 3\ns_lshl_b32 s27, s22, 7\ns_add_u32 s37, s37, s27\ns_add_u32 s37, s37, {FB}\ns_add_u32 s38, s37, s51\nv_mov_b32 v12, 0")
    if EARLY == "f": k(f"s_cmp_eq_u32 s67, 0\ns_cbranch_scc1 2\ns_waitcnt vmcnt({AH + 24})\ns_branch 1")
    k(f"s_waitcnt vmcnt({AH})\ns_barrier\nv_mov_b32 v3, v1\nv_add_u32 v2, 0x10000, v1")
    K1 = 18 - TK
    units = [(sl, ks) for ks in range(K1) for sl in range(7 if ks < QK1 else 5)]
    units += [(sl, ks) for sl in range(5) for ks in range(K1, 18)]
    n2 = len(units)
    QS = int(envs("QS", "3"))
    units += [(sl, ks) for ks in range(QK1, 18 - QS) for sl in (5, 6)] + [(sl, ks) for sl in (5, 6) for ks in range(18 - QS, 18)]
    def rd(n):
        sl, ks = units[n]; i = ks * 5 + sl if sl < 5 else 90 + 2 * ks + sl - 5; r = WB + 4 * (n % NR)
        return lgl(f"ds_read_b128 v[{r}:{r+3}], v{3 if i < 64 else 2} offset:{(i % 64) * 1024}", ("w", n))
    def epi(sl):
        a = ACC + 8 * sl; L = []
        if sl >= 4: L += [line(f"v_pk_mul_f32 v[{a+i}:{a+i+1}], v[{a+i}:{a+i+1}], " + ("v[8:9]" if sl == 4 else "s[32:33]")) for i in (0, 2, 4, 6)]
        L += [line(f"v_cvt_pk_bf16_f32 v{a+i}, v{a+2*i}, v{a+2*i+1}") for i in range(4)]
        if sl == 4: L += [line(f"v_cndmask_b32 v{a+i}, v{a+i}, v10, s[34:35]") for i in range(4)]
        if sl < 5: L += [vml(f"buffer_store_dwordx4 v[{a}:{a+3}], v1, s[8:11], s30 offen sc1", cost=8)] + ([line("s_add_u32 s30, s30, 65536")] if sl < 4 else [])
        else: L += [lgl(f"ds_write_b128 v11, v[{a}:{a+3}] offset:{(sl - 5) * 4096}", cost=8)]
        return L
    own = [lgl(f"ds_write_b128 v{6 if sl < 2 else 7}, v[{ACC+8*sl}:{ACC+8*sl+3}] offset:{sl*12288}", cost=8) for sl in range(5)]
    for n in range(LA): rd(n).fn(k)
    seen = set(); side = []; lastu = {sl: max(n for n, u in enumerate(units) if u[0] == sl) for sl in range(7)}
    sig = min(n2 + SIG, len(units)); delay = 0
    for n, (sl, ks) in enumerate(units):
        if n == sig:
            assert not side
            stamp(k, 4)
            k.wait_vm_all(); k("s_barrier"); publish(k); side += own
            stamp(k, 5)
        if n == len(units) - int(envs("LOOK", "6")): k.vm("buffer_load_dwordx2 v[252:253], v12, s[8:11], s38 offen sc1", "look")
        if ks not in seen:
            while k.vmq.count(("x", ks)) < 2: loads[pi].fn(k); pi += 1
            k.wait_vm(("x", ks)); seen.add(ks)
        k.wait_lg(("w", n))
        if n == 0: stamp(k, 2)
        for tb in range(2):
            a = ACC + 4 * (2 * sl + tb); w = WB + 4 * (n % NR); x = 4 * (2 * ks + tb)
            k(f"{MF} v[{a}:{a+3}], v[{w}:{w+3}], a[{x}:{x+3}], " + ("0" if ks == 0 else f"v[{a}:{a+3}]"))
            left = 12
            if tb == 0 and n + LA < len(units): rd(n + LA).fn(k); left -= 4
            if pi < len(loads) and len(k.vmq) - k.vm_done < AH + 2 and tb == 1: loads[pi].fn(k); pi += 1; left -= 8
            while side and delay <= 0 and side[0].cost <= left: left -= side[0].cost; side.pop(0).fn(k)
        delay -= 1
        for s2, lu in lastu.items():
            if lu == n:
                assert s2 < 5 or n >= sig
                side += epi(s2); delay = 2
    assert pi == len(loads) and sig < len(units)
    k.wait_vm("look")
    k("v_cmp_eq_u64 vcc, s[100:101], v[252:253]\ns_mov_b32 s56, s37\nv_mov_b32 v2, 0\ns_cmp_eq_u64 vcc, -1\ns_cbranch_scc1 L_pollx_b")
    poll(k, "b", wg=False)
    stamp(k, 6)
    for b in (0, 1, 4, 2, 3):
        k(f"s_add_u32 m0, s36, {b*12288}\ns_add_u32 s28, s25, {b*65536}")
        for c in range(2): k(f"buffer_load_dwordx4 v{1 if b < 2 else 5}, s[8:11], s28 offen offset:{c*1024} lds")
    for f in side: f.fn(k)
    if EARLY in ("p0", "f"): publish_fp(k, FP)
    k.wait_lg_all(); k("s_barrier")
    stamp(k, 3)
    k(f"s_cmp_lg_u32 s20, 0\ns_cbranch_scc1 L_pollx_w1\ns_cmp_lg_u32 s50, 0\ns_cbranch_scc1 L_pollx_w1\ns_mov_b32 s56, {FW}\nv_min_u32 v2, 53, v0\nv_lshlrev_b32 v2, 3, v2")
    poll(k, "w1", wg=False)
    if EARLY == "b": early_blocks(k)

Q, M1, M2, L8, LO, HI, BP, KA, KB_, VA, VB, QA, QX, L4, OBV = 16, 232, 236, 240, 241, 242, 243, 244, 245, 246, 247, 248, 249, 250, 12
XW, XR, XB, OX = 251, 230, 231, 100 * KBY
def p2_consts(k):
    k("s_and_b32 s29, s20, 1\ns_lshr_b32 s30, s20, 1\ns_mul_i32 s36, s29, 12288\ns_lshl_b32 s37, s30, 11\ns_add_u32 s36, s36, s37\ns_add_u32 s37, s37, 49152")
    k(f"s_lshl_b32 s33, s29, 12\ns_lshl_b32 s34, s30, 11\ns_add_u32 s33, s33, s34\ns_add_u32 s33, s33, {QB}\nv_add_u32 v{QA}, s33, v1")
    k(f"v_bfe_u32 v4, v0, 4, 2\nv_and_b32 v5, 1, v4\nv_lshlrev_b32 v5, 7, v5\nv_xor_b32 v5, v5, v1")
    k(f"v_and_b32 v12, 15, v0\nv_lshlrev_b32 v3, 4, v12\ns_add_u32 s34, s37, 8192\nv_add_u32 v{QX}, s34, v3\nv_add_u32 v{KA}, s36, v1\nv_add_u32 v{KB_}, s37, v5")
    k("v_and_b32 v3, 63, v0\nv_and_b32 v6, 3, v3\nv_lshrrev_b32 v7, 2, v3\nv_and_b32 v8, 1, v3\nv_lshlrev_b32 v8, 3, v8\nv_xor_b32 v7, v7, v8\nv_lshl_add_u32 v7, v6, 4, v7\nv_lshlrev_b32 v7, 4, v7")
    k(f"s_add_u32 s36, s36, 24576\nv_add_u32 v{VA}, s36, v7\nv_add_u32 v{VB}, s37, v7")
    k("s_lshl_b32 s49, s21, 2\ns_lshl_b32 s33, s30, 1\ns_add_u32 s49, s49, s33")
    k(f"v_lshlrev_b32 v6, 2, v4\nv_mov_b32 v7, {fbits(-1e30)}")
    for i in range(4):
        k(f"v_add_u32 v8, {i}, v6\nv_cmp_gt_u32 vcc, v8, v12\ns_nop 1\nv_cndmask_b32 v{M1+i}, v7, 0, vcc\nv_cndmask_b32 v{M2+i}, 0, v7, vcc")
    k(f"v_cmp_eq_u32 s[38:39], 1, v4\nv_lshlrev_b32 v{BP}, 2, v12\nv_add_u32 v{BP}, 128, v{BP}")
    k("s_cmp_eq_u32 s29, 1\ns_cselect_b64 s[40:41], -1, 0")
    k("s_andn2_b64 s[42:43], s[38:39], s[40:41]\ns_and_b64 s[44:45], s[38:39], s[40:41]")
    k(f"s_lshl_b32 s36, s30, 12\ns_add_u32 s36, s36, {OX}\ns_lshl_b32 s37, s29, 3\ns_add_u32 s37, s37, s36\nv_add_u32 v{XW}, s37, v1\ns_lshl_b32 s37, s29, 11\ns_add_u32 s37, s37, s36\nv_add_u32 v{XR}, s37, v1")
    k(f"s_lshl_b32 s47, s49, 1\ns_mul_i32 s46, s47, {18*KBY}\ns_add_u32 s46, s46, {OFF_OF}\ns_mul_i32 s37, s29, {36*KBY}\ns_add_u32 s47, s46, s37\ns_lshl_b32 s37, s22, 10\ns_add_u32 s47, s47, s37\ns_add_u32 s48, s47, {18*KBY}")
    k(f"s_lshl_b32 s37, s22, 7\ns_add_u32 s46, s46, s37\ns_add_u32 s46, s46, {16*KBY}\ns_cmp_eq_u32 s29, 0\ns_cselect_b32 s46, s46, {BIG}")
    k(f"v_mul_u32_u24 v{L4}, {18*KBY}, v4\nv_lshl_add_u32 v{L4}, v12, 3, v{L4}\ns_lshl_b32 s36, s30, 9\ns_add_u32 s36, s36, {OX + 8192}\nv_lshrrev_b32 v{XB}, 1, v1\nv_add_u32 v{XB}, s36, v{XB}\ns_lshl_b32 s37, s29, 2\nv_add_u32 v{L8}, s37, v{XB}")
    k(f"v_mov_b32 v{LO}, {fbits(2.0**-30)}\nv_mov_b32 v{HI}, {fbits(2.0**30)}\ns_mov_b64 s[64:65], {-1 if FORCE_EXACT else 0}")
    k(f"s_lshr_b32 s58, s17, 2\ns_mul_i32 s58, s58, {90*KBY}\ns_add_u32 s58, s58, {OFF_WO}\ns_lshl_b32 s59, s20, 12\ns_add_u32 s58, s58, s59")
    k(f"s_lshl_b32 s39, s21, 7\ns_lshl_b32 s27, s22, 3\ns_add_u32 s39, s39, s27\ns_add_u32 s39, s39, {FC}")
def p2_attn(k):
    KR, VR = 0, 80
    for i in range(4):
        off = (i >> 1) * 1024 + (i & 1) * 8
        k.lg(f"ds_read_b64 v[{Q+4*i}:{Q+4*i+1}], v{QA} offset:{off}", "q"); k.lg(f"ds_read_b64 v[{Q+4*i+2}:{Q+4*i+3}], v{QX} offset:{off}", "q")
    def kread(kt):
        off = (kt >> 1) * 1024 + (kt & 1) * 8
        return [lgl(f"ds_read_b64 a[{KR+4*kt}:{KR+4*kt+1}], v{KA} offset:{off}", ("k", kt)), lgl(f"ds_read_b64 a[{KR+4*kt+2}:{KR+4*kt+3}], v{KB_} offset:{off}", ("k", kt))]
    def vread(p):
        return [lgl(f"ds_read_b64_tr_b16 a[{VR+8*p+4*b+2*hf}:{VR+8*p+4*b+2*hf+1}], v{VA+b} offset:{p*1024 + hf*8}", ("v", p)) for b in range(2) for hf in range(2)]
    for f in [f for kt in range(16, 20) for f in kread(kt)]: f.fn(k)
    k.wait_lg("q")
    for f in vread(8) + vread(9): f.fn(k)
    for i in range(4):
        k(f"v_cndmask_b32 v{Q+4*i+2}, 0, v{Q+4*i+2}, s[42:43]\nv_cndmask_b32 v{Q+4*i+3}, 0, v{Q+4*i+3}, s[44:45]")
    k("v_bfe_u32 v10, v0, 3, 3\nv_mul_u32_u24 v10, 1152, v10\nv_and_b32 v11, 7, v0\nv_lshl_add_u32 v10, v11, 4, v10\nv_add_u32 v11, 9216, v10")
    k("s_mov_b32 s56, s39\ns_waitcnt lgkmcnt(0)")
    stamp(k, 11)
    fresh(k)
    S0 = 48; OA = S0 + 144; TM = OA + 32
    def landed(k):
        if EARLY == "b": k("s_cmp_eq_u32 s67, 0\ns_cbranch_scc1 2\ns_waitcnt vmcnt(24)\ns_branch 1")
        k("s_waitcnt vmcnt(0)\ns_barrier")
        stamp(k, 7)
    def kv_read(k):
        k.wait_lg_all(); k("s_mov_b32 m0, s59\ns_waitcnt vmcnt(0)\ns_barrier")
        if EARLY == "b":
            k("v_mov_b32 v254, s100\nv_mov_b32 v255, s101")
            publish_fp(k, FP)
    def run(mf, valu, gap_first=0, frac=0.9):
        tot = sum(f.cost for f in valu); acc = 0; mi = 0
        for f in valu:
            while mi < len(mf) and acc >= gap_first + (tot - gap_first) * mi / max(len(mf), 1) * frac:
                mf[mi](k); mi += 1
            f.fn(k); acc += f.cost
        while mi < len(mf): mf[mi](k); mi += 1
    def epi(i, check):
        o = OA + 8 * i; t = TM + 2; l = TM + 4; z = TM + 5
        L = [line(f"v_mov_b32 v{l}, v{o+7}\nv_mov_b32 v{t}, v{o+7}", 8),
             line(f"v_cndmask_b32 v{o+4}, v{o+4}, v{o+6}, s[40:41]"), line(f"v_cndmask_b32 v{o+5}, v{o+5}, v{o+7}, s[40:41]"),
             line(f"v_permlane32_swap_b32 v{t}, v{l}\nv_mov_b32 v{t}, v{l}\ns_nop 1\nv_permlane16_swap_b32 v{t}, v{l}", 20), line(f"v_rcp_f32 v{t}, v{l}", 8)]
        if check:
            L += [line(f"v_med3_f32 v{z}, v{l}, v{LO}, v{HI}"), line(f"v_sub_f32 v{z}, v{z}, v{l}")]
            L += [line(f"v_fma_f32 v{z}, v{o+j}, 0, v{z}") for j in range(6)]
            L += [line(f"v_cmp_neq_f32 vcc, 0, v{z}")]
        else: L += [line("s_nop 0")]
        for j in (0, 2, 4): L.append(line(f"v_pk_mul_f32 v[{o+j}:{o+j+1}], v[{o+j}:{o+j+1}], v[{t}:{t+1}] op_sel_hi:[1,0]"))
        if check: L.append(line("s_or_b64 s[64:65], s[64:65], vcc"))
        for j in (2, 0, 1): L.append(line(f"v_cvt_pk_bf16_f32 v{o+(j if j < 2 else 6)}, v{o+2*j}, v{o+2*j+1}"))
        L.append(lgl(f"ds_bpermute_b32 v{TM+3}, v{BP}, v{o+6}", ("bp", i)))
        L.append(lgl(f"ds_write_b64 v{XW}, v[{o}:{o+1}] offset:{i*1024}"))
        L2 = [line(f"s_mov_b32 vcc_lo, {(0xffff, 0xffff0000, 0, 0)[i]}\ns_mov_b32 vcc_hi, {(0, 0, 0xffff, 0xffff0000)[i]}", 8),
              F(lambda k: (k.wait_lg(("bp", i)), k(f"v_cndmask_b32 v{OBV}, v{OBV}, v{TM+3}, vcc")), 8)]
        if i == 3: L2.append(lgl(f"ds_write_b32 v{L8}, v{OBV}"))
        return (L, L2) if check else L + L2
    def variant(lim, fast, first):
        nm = f"{'f' if fast else 'e'}{'' if first else 'r'}{lim}"
        k.label(f"L_attn_{nm}")
        k.lgq = []; k.lg_done = 0
        tiles = lambda i: list(range(max(i, lim), i + 17))
        pairs = lambda i: list(range(max(i, lim) >> 1, ((i + 16) >> 1) + 1))
        kreads, vreads, extra = [], [], []
        if first:
            kreads = [f for kt in range(lim, 16) for f in kread(kt)]
            vreads = [f for p in range(lim // 2, 8) for f in vread(p)]
            wo = [kv_read]
            for q in range(6):
                for c in range(4):
                    wo.append(lambda k, c=c: k(f"buffer_load_dwordx4 v1, s[8:11], s58 offen offset:{c*1024} lds" + ("\ns_add_u32 m0, m0, 16384\ns_add_u32 s58, s58, 16384" if c == 3 else "")))
            def pkl(u):
                def f(k):
                    k(f"s_cmp_eq_u32 s67, 0\ns_cbranch_scc1 L_pk_{nm}_{u}")
                    for i in range(4): k(f"buffer_load_dwordx4 {lpark(u, i)}, v{10 + (i & 1)}, s[60:63], s{72 + 2*u + (i >> 1)} offen nt")
                    k.label(f"L_pk_{nm}_{u}")
                return f
            extra = wo[:1] + [pkl(0), pkl(1), pkl(2)] + wo[1:]
            if envs("NOWO", ""): extra = extra[:4]
            if EARLY == "w":
                def pkb(n):
                    def f(k):
                        k(f"s_cmp_eq_u32 s67, 0\ns_cbranch_scc1 L_pb_{nm}_{n}")
                        if n == 0: stage_addr(k)
                        pack_block(k, n, 6)
                        k.label(f"L_pb_{nm}_{n}")
                    return f
                extra = [pkl(0), pkl(1), pkl(2), pkb(0), pkb(1), wo[0]]
                for n in range(6): extra += [pkb(2 + n)] + wo[1 + 28 * n // 6: 1 + 28 * (n + 1) // 6]
        def qk1(i, kt, s):
            c = f"v[{M2}:{M2+3}]" if kt == i + 16 else f"v[{M1}:{M1+3}]" if kt == i else "0"
            def f(k):
                if first and kt < 16: k.wait_lg(("k", kt))
                k(f"{MF} v[{s}:{s+3}], a[{KR+4*kt}:{KR+4*kt+3}], v[{Q+4*i}:{Q+4*i+3}], {c}")
            return f
        def pv1(i, p, b, s, zero):
            o = OA + 8 * i + 4 * b
            def f(k):
                if first and p < 8: k.wait_lg(("v", p))
                k(f"{MF} v[{o}:{o+3}], a[{VR+8*p+4*b}:{VR+8*p+4*b+3}], v[{s}:{s+3}], " + ("0" if zero else f"v[{o}:{o+3}]"))
            return f
        if fast:
            steps = [(i, p) for i in range(4) for p in pairs(i) if p >= 8]; NL = len(steps)
            steps += [(i, p) for i in range(4) for p in pairs(i) if p < 8]
            QL = 2; NB = 10; SPC = int(envs("SP", "14"))
            buf = lambda s: S0 + 8 * (s % NB)
            def qks(s):
                if s >= len(steps): return []
                i, p = steps[s]
                return [qk1(i, 2 * p + hf, buf(s) + 4 * hf) for hf in range(2) if 2 * p + hf in tiles(i)]
            def pvs(s):
                if not 0 <= s < len(steps): return []
                return [pv1(*steps[s], b, buf(s), all(steps[t][0] != steps[s][0] for t in range(s))) for b in range(2)]
            def exps(s):
                if s >= len(steps): return []
                i, p = steps[s]; b = buf(s); va, vb = 2 * p in tiles(i), 2 * p + 1 in tiles(i)
                E = lambda r: line(f"v_exp_f32 v{r}, v{r}", 8); C = lambda d, r: line(f"v_cvt_pk_bf16_f32 v{d}, v{r}, v{r+1}")
                Z = lambda d: line(f"v_mov_b32 v{d}, 0")
                if va and vb: return [E(b), E(b+1), E(b+2), E(b+3), E(b+4), C(b, b), E(b+5), C(b+1, b+2), E(b+6), E(b+7), C(b+2, b+4), C(b+3, b+6)]
                if va: return [E(b), E(b+1), E(b+2), E(b+3), C(b, b), C(b+1, b+2), Z(b+2), Z(b+3)]
                return [E(b+4), E(b+5), E(b+6), E(b+7), Z(b), Z(b+1), C(b+2, b+4), C(b+3, b+6)]
            SB = int(envs("SB", "3"))
            side = [landed] + [f.fn for f in kreads + vreads]
            for s in range(NL):
                for m in qks(s): m(k)
            k("s_nop 2")
            last = {i: max(s for s, (ii, p) in enumerate(steps) if ii == i) for i in range(4)}
            pend = []; pend2 = []; pvp = 0; qp = NL; s = 0; nsteps = len(steps) + 2
            issued = lambda tag: tag in k.lgq
            while pvp < len(steps):
                if s in (NL, NL + 10, NL + 20): stamp(k, 8 + (s - NL) // 10)
                todo = []
                while pvp < min(s, len(steps)) and len(todo) < 2 and not (todo and todo[-1] in last.values()) and (steps[pvp][1] >= 8 or issued(("v", steps[pvp][1]))):
                    todo.append(pvp); pvp += 1
                qs = []
                while qp < min(s + QL + 1, len(steps)) and len(qs) < 2 and issued(("k", 2 * steps[qp][1] + 1)):
                    assert qp - NB < pvp - len(todo) or qp < NB, (qp, pvp)
                    qs.append(qp); qp += 1
                assert qp > s + 1 or qp == len(steps), (lim, s, qp)
                mf = [m for t in todo for m in pvs(t)] + [m for t in qs for m in qks(t)]
                sd = []
                while s >= SB and side and (len(sd) < SPC): sd.append(side.pop(0))
                if s > SB and not side and not sd and extra:
                    q = -(-len(extra) // max(1, nsteps - 2 - s)); sd = extra[:q]; extra = extra[q:]
                va = exps(s)
                if pend and len(va) < 12: va = va + [line("s_nop 7", 32)]
                va = va + pend2 + pend; pend2 = []
                if pend: pend2 = later
                pend = []
                for i in range(4):
                    if last[i] in todo: pend, later = epi(i, True)
                mix = []
                a, b2 = list(mf), list(sd)
                while a or b2:
                    if b2:
                        for _ in range(-(-len(b2) // max(1, len(a)))): mix.append(b2.pop(0))
                    if a: mix.append(a.pop(0))
                if not va: va = [line("s_nop 1")]
                run(mix, va, 9, 0.85)
                s += 1
            for f in side: f(k)
            side = []
            for f in extra: f(k)
            assert not side
            for f in pend2: f.fn(k)
            k("s_nop 7")
            for f in pend + later: f.fn(k)
            k("s_cmp_eq_u64 s[64:65], 0\ns_cbranch_scc1 L_attn_done")
            k(f"s_waitcnt lgkmcnt(0)\ns_branch L_attn_er{lim}")
            return
        sreg = lambda i, kt: S0 + 72 * (i & 1) + 4 * (kt - 2 * (i >> 1))
        qk = lambda i: [qk1(i, kt, sreg(i, kt)) for kt in tiles(i)]
        pv = lambda i: [pv1(i, p, b, sreg(i, 2 * p), p == pairs(i)[0]) for b in range(2) for p in pairs(i)]
        def softmax(i):
            L = []
            regs = [sreg(i, kt) + j for kt in tiles(i) for j in range(4)]
            m = TM; t = TM + 1
            ch = [regs[0::2], regs[1::2]]
            for c in range(2): L.append(line(f"v_max_f32 v{m+c}, v{ch[c][0]}, v{ch[c][1]}"))
            for j in range(2, len(ch[0]), 2):
                for c in range(2): L.append(line(f"v_max3_f32 v{m+c}, v{m+c}, v{ch[c][j]}, v{ch[c][j+1]}"))
            L.append(line(f"v_max_f32 v{m}, v{m}, v{t}"))
            for sw in ("v_permlane16_swap_b32", "v_permlane32_swap_b32"):
                L.append(line(f"v_mov_b32 v{t}, v{m}\ns_nop 1\n{sw} v{m}, v{t}\nv_max_f32 v{m}, v{m}, v{t}", 16))
            for p in pairs(i):
                base = sreg(i, 2 * p)
                for hf in range(2):
                    kt = 2 * p + hf; s = sreg(i, kt)
                    if kt in tiles(i):
                        for j in range(4): L.append(line(f"v_sub_f32 v{s+j}, v{s+j}, v{m}"))
                        for j in range(4): L.append(line(f"v_exp_f32 v{s+j}, v{s+j}", 8))
                for hf in range(2):
                    kt = 2 * p + hf; s = sreg(i, kt)
                    for j in range(2):
                        if kt in tiles(i): L.append(line(f"v_cvt_pk_bf16_f32 v{base+2*hf+j}, v{s+2*j}, v{s+2*j+1}"))
                        else: L.append(line(f"v_mov_b32 v{base+2*hf+j}, 0"))
            return L
        if first: landed(k)
        for f in kreads: f.fn(k)
        for m in qk(0): m(k)
        k("s_nop 7")
        for i in range(4):
            mf = (pv(i - 1) if i >= 1 else []) + (qk(i + 1) if i < 3 else [])
            if i == 0: mf = mf + [f.fn for f in vreads]
            if i == 1: mf = extra + mf
            va = softmax(i)
            if i >= 2: va = epi(i - 2, False) + va
            run(mf, va, 8 if i else 0)
            k("s_nop 1")
        run(pv(3), epi(2, False))
        k("s_nop 7")
        for f in epi(3, False): f.fn(k)
        k("s_branch L_attn_done")
    v = "f" if FAST else "e"
    for lim in (16, 12, 8, 4): k(f"s_cmp_eq_u32 s49, {(16 - lim) // 2}\ns_cbranch_scc1 L_attn_{v}{lim}")
    for lim in (0, 4, 8, 12, 16): variant(lim, FAST, True)
    if FAST:
        for lim in (0, 4, 8, 12, 16): variant(lim, False, False)
    k.label("L_attn_done")
    k(f"s_waitcnt lgkmcnt(0)\ns_barrier\nds_read_b128 v[{OA}:{OA+3}], v{XR}\nds_read_b128 v[{OA+4}:{OA+7}], v{XR} offset:1024\nds_read_b64 v[{OA+8}:{OA+9}], v{XB}")
    k(f"s_waitcnt lgkmcnt(2)\nbuffer_store_dwordx4 v[{OA}:{OA+3}], v1, s[8:11], s47 offen sc1\ns_waitcnt lgkmcnt(1)\nbuffer_store_dwordx4 v[{OA+4}:{OA+7}], v1, s[8:11], s48 offen sc1")
    k(f"s_waitcnt lgkmcnt(0)\nbuffer_store_dwordx2 v[{OA+8}:{OA+9}], v{L4}, s[8:11], s46 offen sc1")
    stamp(k, 12)
    signal(k)
    late_blocks(k)
    stamp(k, 13)

AG, AU, T1, T2, XV, RING = 16, 32, 48, 64, 80, 112
WQR = [RING + 4 * i for i in range(21, 35)] + [RING + 4 * i for i in range(6)] + [AU + 4 * i for i in range(4)] + [RING + 4 * i for i in range(6, 14)]
RESID = RING + 4 * 18
G = 3; LEAD = 36 - G
def wload(p):
    r = RING + 4 * (p % 36)
    if p >= 486: return []
    s = f"buffer_load_dwordx4 v[{r}:{r+3}], v1, s[12:15], s25 offen offset:{(p%4)*1024}"
    return [vml(s, ("w", p), cost=int(envs("LC", "8")))] + ([line("s_add_u32 s25, s25, 4096")] if p % 4 == 3 else [])

PRE = int(envs("PRE", "12")); PRE3 = int(envs("PRE3", "0"))
def ffn_stream(k):
    if envs("FMAP", "2") == "2": k("s_lshl_b32 s21, s19, 1\ns_and_b32 s22, s17, 1\ns_add_u32 s21, s21, s22")
    else: k("s_and_b32 s21, s16, 1\ns_lshl_b32 s21, s21, 2\ns_and_b32 s22, s17, 3\ns_add_u32 s21, s21, s22")
    k(f"s_lshl_b32 s24, s21, 2\ns_add_u32 s24, s24, s20\ns_mul_i32 s24, s24, {486*KBY}\ns_add_u32 s24, s24, {OFF_WF}")
    k(f"s_add_u32 s12, s4, s24\ns_addc_u32 s13, s5, 0\ns_mov_b32 s14, {486*KBY}\ns_mov_b32 s15, 0x00020000\ns_mov_b32 s25, 0")
    k("s_cmp_lg_u32 s20, 0\ns_cbranch_scc1 L_pollx_p")
    poll_fp(k, "p", FP)
def p3_wo(k):
    NS = 5; ACC = 16; NB3 = int(envs('NB3', '3')); RES = 240
    ffn_stream(k)
    k("s_lshl_b32 s21, s16, 2\ns_and_b32 s22, s17, 3\ns_add_u32 s26, s21, s22")
    k("s_lshr_b32 s22, s17, 2")
    k("s_lshl_b32 s21, s26, 2\ns_add_u32 s21, s21, s20")
    k(f"s_mul_i32 s23, s21, {18*KBY}\ns_add_u32 s23, s23, {OFF_OF}")
    k(f"s_mul_i32 s28, s21, {18*KBY}\ns_lshl_b32 s27, s22, 11\ns_add_u32 s27, s27, s28\ns_add_u32 s40, s27, {OFF_XF}\ns_add_u32 s41, s27, {OFF_X1}")
    k(f"s_lshr_b32 s29, s22, 2\ns_lshr_b32 s30, s22, 1\ns_lshl_b32 s30, s30, 10\ns_and_b32 s31, s22, 1\ns_lshl_b32 s31, s31, 3\ns_add_u32 s30, s30, s31\ns_add_u32 s30, s30, s28\ns_add_u32 s42, s30, {OFF_XF + 16*KBY}")
    k(f"s_lshl_b32 s30, s22, 9\ns_add_u32 s30, s30, s28\ns_add_u32 s43, s30, {OFF_X1 + 16*KBY}")
    k("v_lshrrev_b32 v10, 1, v1")
    k(f"s_lshr_b32 s56, s26, 1\ns_lshl_b32 s56, s56, 7\ns_add_u32 s56, s56, {FC}\nv_and_b32 v2, 15, v0\nv_lshlrev_b32 v2, 3, v2")
    if "c" in SP: spoll16(k, "c")
    else: poll(k, "c")
    stamp(k, 14)
    fresh(k)
    loads = []
    for ks in range(16):
        loads.append(tl(f"buffer_load_dwordx4 a[{4*ks}:{4*ks+3}], v1, s[8:11], s23 offen offset:{(ks%4)*1024}{LD}", ("x", ks), "s_add_u32 s23, s23, 4096" if ks % 4 == 3 else ""))
    for ks in (16, 17):
        for h in range(2): loads.append(tl(f"buffer_load_dwordx2 a[{4*ks+2*h}:{4*ks+2*h+1}], v10, s[8:11], s23 offen offset:{(ks%4)*1024 + 512*h}{LD}", ("x", ks)))
    for pr in range(2): loads.append(tl(f"buffer_load_dwordx4 v[{RES+4*pr}:{RES+4*pr+3}], v1, s[8:11], s40 offen offset:{pr*1024}{LD}", "res"))
    loads.append(tl(f"buffer_load_dwordx2 v[{RES+8}:{RES+9}], v1, s[8:11], s42 offen{LD}", "res"))
    if envs("T3", "0") == "1":
        k(f"v_lshlrev_b32 v4, 3, v1\nv_cmp_gt_u32 vcc, 256, v1\nv_mov_b32 v5, {BIG}\ns_lshl_b32 s30, s22, 11\ns_add_u32 s30, s30, s23\nv_cndmask_b32 v4, v5, v4, vcc")
        k.vm(f"buffer_load_dword v5, v4, s[8:11], s30 offen{LD}", "touch")
    gemm_core(k, 1, NS, loads, int(envs("AH3", "12")), 15, False, NB3, more=[f for p in range(PRE3) for f in wload(p)])
    k.wait_vm("res")
    stamp(k, 16)
    k("s_mov_b32 s31, 0xffff0000\ns_mov_b32 s32, 0x3f803f80\nv_mov_b32 v8, 0\nv_mov_b32 v9, 0\nv_mov_b32 v6, v10\nv_mov_b32 v10, 0\ns_add_u32 s33, s100, s50")
    k(f"v_cmp_gt_u32 vcc, 256, v1\nv_mov_b32 v7, {BIG}\nv_mov_b32 v11, s33\ns_cmp_lg_u32 s29, 0\ns_cbranch_scc1 L_p3_two")
    for pr in (2, 0, 1):
        n = 2 if pr == 2 else 4
        for h in range(n):
            a = ACC + 8 * pr + 2 * h; r = RES + 4 * pr + h
            k(f"v_lshlrev_b32 v4, 16, v{r}\nv_and_b32 v5, s31, v{r}\nv_pk_add_f32 v[4:5], v[4:5], v[{a}:{a+1}]\nv_cvt_pk_bf16_f32 v{r}, v4, v5")
        if pr == 2: k(f"buffer_store_dwordx2 v[{RES+8}:{RES+9}], v6, s[8:11], s43 offen sc1")
        else: k(f"buffer_store_dwordx4 v[{RES+4*pr}:{RES+4*pr+3}], v1, s[8:11], s41 offen offset:{pr*1024} sc1")
        for h in range(n): k(f"v_dot2c_f32_bf16 v8, s32, v{RES+4*pr+h}\nv_dot2c_f32_bf16 v9, v{RES+4*pr+h}, v{RES+4*pr+h}")
        for h in range(0, n, 2): k(f"v_bitop3_b32 v10, v10, v{RES+4*pr+h}, v{RES+4*pr+h+1} bitop3:0x96")
        if pr == 2: k.label("L_p3_two")
    k(f"v_cndmask_b32 v7, v7, v1, vcc\ns_lshl_b32 s30, s21, 11\ns_lshl_b32 s31, s22, 8\ns_add_u32 s30, s30, s31\ns_add_u32 s30, s30, {OFF_STAT}")
    for sw in ("v_permlane16_swap_b32", "v_permlane32_swap_b32"):
        k(f"v_mov_b32 v4, v10\nv_mov_b32 v5, v8\nv_mov_b32 v6, v9\n{sw} v10, v4\n{sw} v8, v5\n{sw} v9, v6\nv_xor_b32 v10, v10, v4\nv_add_f32 v8, v8, v5\nv_add_f32 v9, v9, v6")
    k("v_bitop3_b32 v10, v10, v8, v9 bitop3:0x96")
    k.vm(f"buffer_store_dwordx4 v[8:11], v7, s[8:11], s30 offen sc1")
    if envs("HINT", "1") == "1":
        k(f"s_lshl_b32 s56, s26, 7\ns_lshl_b32 s27, s22, 3\ns_add_u32 s56, s56, s27\ns_add_u32 s56, s56, {FD}\ns_add_u32 s56, s56, s51\ns_cmp_eq_u32 s20, 0\ns_cselect_b32 s56, s56, {BIG}\ns_barrier")
        publish(k)
    stamp(k, 17)
    if not CKD:
        k(f"s_lshl_b32 s56, s26, 7\ns_lshl_b32 s27, s22, 3\ns_add_u32 s56, s56, s27\ns_add_u32 s56, s56, {FE2}")
        signal(k)
    stamp(k, 18)

def p4_ffn(k):
    xreg = lambda ks, tb: (ar(4 * (ks * 4 + tb), 4) if ks < 16 else vr(XV + 4 * (ks * 4 + tb - 64), 4))
    if envs("FMAP", "2") == "2":
        k("s_lshl_b32 s21, s19, 1\ns_and_b32 s22, s17, 1\ns_add_u32 s21, s21, s22")
        k("s_lshl_b32 s22, s18, 4\ns_lshr_b32 s23, s17, 1\ns_add_u32 s22, s22, s23")
    else:
        k("s_and_b32 s21, s16, 1\ns_lshl_b32 s21, s21, 2\ns_and_b32 s22, s17, 3\ns_add_u32 s21, s21, s22")
        k("s_lshr_b32 s22, s16, 1\ns_lshl_b32 s22, s22, 3\ns_lshr_b32 s23, s17, 2\ns_add_u32 s22, s22, s23")
    FILL = int(envs("FILL", "24")); MID = (FILL + LEAD) // 2
    for p in range(PRE3, PRE):
        for f in wload(p): f.fn(k)
    k(f"s_lshl_b32 s23, s22, 2\ns_add_u32 s23, s23, s20\ns_lshl_b32 s44, s23, 11\ns_add_u32 s44, s44, {OFF_STAT}\ns_mul_i32 s45, s23, {18*KBY}\ns_add_u32 s45, s45, {OFF_X1}")
    ln_consts(k)
    k("v_and_b32 v12, 15, v0\nv_lshlrev_b32 v12, 4, v12\nv_bfe_u32 v5, v0, 4, 2\nv_lshl_add_u32 v12, v5, 9, v12\ns_add_u32 s46, s100, s50")
    X = 16; T = 88; CK = T + 12
    k("v_bfe_u32 v4, v0, 2, 2\nv_cmp_eq_u32 vcc, v4, v5\nv_and_b32 v4, 1, v0\nv_lshlrev_b32 v4, 4, v4\nv_mov_b32 v244, 0x3f80\nv_lshlrev_b32 v4, v4, v244\nv_cndmask_b32 v4, 0, v4, vcc")
    k("v_and_b32 v245, 2, v0\nv_cmp_eq_u32 vcc, 0, v245\nv_mov_b32 v244, 0\nv_mov_b32 v245, 0\nv_mov_b32 v248, 0\nv_mov_b32 v249, 0\nv_cndmask_b32 v246, 0, v4, vcc\nv_cndmask_b32 v247, v4, 0, vcc")
    if not CKD:
        k(f"s_lshl_b32 s56, s22, 7\ns_add_u32 s56, s56, {FE2}\nv_and_b32 v2, 7, v0\nv_lshlrev_b32 v2, 3, v2")
        poll(k, "d")
    k(f"s_mov_b32 s57, {SPIN}\ns_lshl_b32 s26, s20, 10\nv_add_u32 v2, s26, v1\nv_add_u32 v3, 0x10000, v2\ns_mov_b32 s47, {1 if FORCE_RETRY else 0}")
    if CKD:
        if envs("HINT", "1") == "1":
            k(f"s_lshl_b32 s56, s22, 7\ns_add_u32 s56, s56, {FD}")
            spoll(k, "d", 8)
            k(f"s_mov_b32 s57, {SPIN}")
        else:
            k(f"s_cmp_lg_u32 s20, 0\ns_cbranch_scc1 L_p4_bar\nv_lshlrev_b32 v4, 4, v1\nv_and_b32 v4, 0x1fff, v4")
            k.label("L_p4_in")
            k(f"buffer_load_dword v5, v4, s[8:11], s44 offen offset:12{LD}\ns_sub_u32 s57, s57, 1\ns_waitcnt vmcnt(0)\nv_cmp_eq_u32 vcc, s46, v5\ns_cmp_eq_u32 s57, 0\ns_cbranch_scc1 L_p4_bar")
            k("s_cmp_eq_u64 vcc, -1\ns_cbranch_scc0 L_p4_in")
            k.label("L_p4_bar")
            k("s_barrier")
    k("v_mov_b32 v254, s100\nv_mov_b32 v255, s101")
    publish_fp(k, FP2)
    k(f"s_mov_b32 s30, 0x3f803f80\ns_lshl_b32 s56, s21, 8\ns_add_u32 s56, s56, {FP2}\nv_and_b32 v6, 31, v0\nv_min_u32 v6, 26, v6\nv_lshlrev_b32 v6, 3, v6")
    k.label("L_p4_go")
    if STAMP: k("v_readlane_b32 s90, v15, 46\ns_add_u32 s90, s90, 1\ns_nop 1\nv_writelane_b32 v15, s90, 46")
    k(f"buffer_load_dwordx4 v[{T}:{T+3}], v12, s[8:11], s44 offen{LD}\nbuffer_load_dwordx4 v[{T+4}:{T+7}], v12, s[8:11], s44 offen offset:256{LD}")
    stamp(k, 19)
    k.vmq.append("st")
    k("s_mov_b32 s23, s45")
    k("v_lshrrev_b32 v7, 1, v1")
    for ks in range(18):
        if ks < 16: k.vm(f"buffer_load_dwordx4 v[{X+4*ks}:{X+4*ks+3}], v1, s[8:11], s23 offen offset:{(ks%4)*1024}{LD}", ("x", ks))
        else:
            for h in range(2): k.vm(f"buffer_load_dwordx2 v[{X+4*ks+2*h}:{X+4*ks+2*h+1}], v7, s[8:11], s23 offen offset:{(ks%4)*1024 + 512*h}{LD}", ("x", ks))
        if ks % 4 == 3: k("s_add_u32 s23, s23, 4096")
    k.wait_vm("st")
    k(f"v_bitop3_b32 v{CK}, v{T}, v{T+1}, v{T+2} bitop3:0x96\nv_bitop3_b32 v{T+2}, v{T+4}, v{T+5}, v{T+6} bitop3:0x96\nv_xor_b32 v{CK}, v{CK}, v{T+2}")
    k(f"v_xor_b32 v{CK+1}, s46, v{T+3}\nv_bitop3_b32 v{CK+1}, v{CK+1}, v{T+7}, s46 bitop3:0xf6")
    k(f"v_add_f32 v{T}, v{T}, v{T+4}\nv_add_f32 v{T+1}, v{T+1}, v{T+5}")
    red_rows(k, T, T + 2)
    k(f"v_mul_f32 v{T}, s31, v{T}\nv_sub_f32 v{T+3}, 0, v{T}\ns_mov_b32 s26, 0x00003f80\ns_mov_b32 s27, 0x3f800000")
    kk = KB(); red_rows(kk, T + 1, T + 2)
    kk(f"v_mul_f32 v{T+1}, s31, v{T+1}\nv_fma_f32 v{T+1}, -v{T}, v{T}, v{T+1}\nv_max_f32 v{T+1}, 0, v{T+1}\nv_add_f32 v{T+1}, {fbits(1e-5)}, v{T+1}")
    kk(f"v_and_b32 v4, 15, v0\nv_lshlrev_b32 v4, 2, v4\nv_add_u32 v4, {144*KBY}, v4\ns_lshl_b32 s33, s20, 6\nv_add_u32 v5, s33, v4")
    MC = envs("MC", "1") == "1"; DD, CQ4, SEL = 224, 240, 244
    assert FILL <= 28
    def fin1(ks):
        src = (lambda i: DD + 8 * (ks & 1) + 2 * i) if MC else (lambda i: T + 4 + 2 * i)
        for i in range(4): k(f"v_cvt_pk_bf16_f32 v{X+4*ks+i}, v{src(i)}, v{src(i)+1}")
        k.lg(f"ds_write_b128 v{2 if ks < 16 else 3}, v[{X+4*ks}:{X+4*ks+3}] offset:{(ks % 16) * 4096}")
    if MC:
        assert CKD
        for i in range(4): k(f"v_mov_b32 v{CQ4+i}, v{T+3}")
        k("s_nop 0")
    for ks in range(18):
        k.wait_vm(("x", ks))
        if MC:
            d = DD + 8 * (ks & 1)
            k(f"{MF} v[{d}:{d+3}], v[{SEL+2}:{SEL+5}], v[{X+4*ks}:{X+4*ks+3}], v[{CQ4}:{CQ4+3}]")
            k(f"v_bitop3_b32 v{CK}, v{CK}, v{X+4*ks}, v{X+4*ks+1} bitop3:0x96\nv_bitop3_b32 v{CK}, v{CK}, v{X+4*ks+2}, v{X+4*ks+3} bitop3:0x96")
            k(f"{MF} v[{d+4}:{d+7}], v[{SEL}:{SEL+3}], v[{X+4*ks}:{X+4*ks+3}], v[{CQ4}:{CQ4+3}]")
            if ks: fin1(ks - 1)
        else:
            for i in range(4): k(f"v_dot2_f32_bf16 v{T+4+2*i}, v{X+4*ks+i}, s26, v{T+3}\nv_dot2_f32_bf16 v{T+5+2*i}, v{X+4*ks+i}, s27, v{T+3}")
            if CKD:
                for i in (0, 2): k(f"v_bitop3_b32 v{CK}, v{CK}, v{X+4*ks+i}, v{X+4*ks+i+1} bitop3:0x96")
            fin1(ks)
        if ks == 0:
            k.lines += kk.lines
            k.lg(f"ds_write_b32 v5, v{T+1}")
        if ks == 12: k.vm(f"buffer_load_dwordx2 v[{T+14}:{T+15}], v6, s[8:11], s56 offen sc1", "fp2")
    post = (lambda: fin1(17)) if MC else (lambda: None)
    if CKD:
        red_rows(k, CK, T + 2, "v_xor_b32")
        post()
        k(f"v_or_b32 v{CK}, v{CK}, v{CK+1}\nv_cmp_ne_u32 vcc, s47, v{CK}\ns_mov_b32 s47, 0\ns_cmp_eq_u32 s57, 0\ns_cbranch_scc1 L_p4_ok\ns_sub_u32 s57, s57, 1\ns_cmp_eq_u64 vcc, 0\ns_cbranch_scc0 L_p4_go")
        k.label("L_p4_ok")
    for p in range(PRE, FILL):
        for f in wload(p): f.fn(k)
    k("v_mov_b32 v2, v1\nv_add_u32 v3, 0x10000, v1")
    HB = 72 * KBY
    k(f"s_mov_b32 s33, {fbits(-LOG2E)}")
    k(f"s_lshl_b32 s29, s20, 14\ns_add_u32 s29, s29, {HB}\ns_mov_b32 s28, 8")
    k("s_mov_b32 s34, 7")
    stamp(k, 20)
    k.wait_lg_all(); k("s_barrier")
    fp2 = [F(lambda k: (k.wait_vm("fp2"), k(f"v_cmp_eq_u64 s[48:49], s[100:101], v[{T+14}:{T+15}]")), 8, after=2, before=6)]

    for tb in range(4): k.lg(f"ds_read_b32 v{9+tb}, v4 offset:{64*tb}", "var")
    consts = [F(lambda k: k.wait_lg("var"), 4, after=4)]
    consts += [line(f"v_rsq_f32 v{5+tb}, v{9+tb}", 8) for tb in range(4)] + [line(f"v_sqrt_f32 v{9+tb}, v{9+tb}", 8) for tb in range(4)]
    consts += [line(f"v_mul_f32 v{5+j}, s33, v{5+j}") for j in range(8)]
    def xreads(lo, hi):
        return [lgl(f"ds_read_b128 {xreg(ks, tb)}, v{2 if ks < 16 else 3} offset:{((ks * 4 + tb) % 64) * 1024}", ("xr", ks)) for ks in range(lo, hi) for tb in range(4)]
    def phase(p0, acc, streams, xr=None, pre_extra=None, budget=8, xwait=None, lead=(LEAD, LEAD)):
        mf = []; pre = {}; loads = []
        for g in range(18 // G):
            def p(k, g=g):
                if pre_extra and g in pre_extra: pre_extra[g](k)
                k.wait_vm(("w", p0 + g * G + G - 1), force=True)
                if xr is not None or xwait: k.wait_lg(("xr", g * G + G - 1))
            pre[len(mf)] = p
            n = 18 + lead[1] - lead[0]
            for q in range(p0 + lead[0] + n * g // 6, p0 + lead[0] + n * (g + 1) // 6):
                assert q < p0 + g * G + 36
                for f in wload(q):
                    f.after = len(mf); f.before = len(mf) + 4 * G; loads.append(f)
            for tb in range(4):
                for j in range(G):
                    ks = g * G + j; r = RING + 4 * ((p0 + ks) % 36); a = acc + 4 * tb
                    mf.append(f"{MF} v[{a}:{a+3}], v[{r}:{r+3}], {xreg(ks, tb)}, " + ("0" if ks == 0 else f"v[{a}:{a+3}]"))
        st = [loads] + streams
        if xr:
            for j, f in enumerate(xr):
                g = j // (4 * G); f.after = max(f.after, 4 * G * g - 4); f.before = 4 * G * (g + 1) - 3
            st.append(xr)
        interleave(k, mf, st, pre=pre, budget=budget)
    def finish():
        L = [line("v_add_u32 v4, s29, v1")]
        for tb in range(4):
            for i in range(4): L.append(line(f"v_mul_f32 v{T1+4*tb+i}, v{T1+4*tb+i}, v{AU+4*tb+i}", after=3))
            for i in range(4): L.append(line(f"v_mul_f32 v{T1+4*tb+i}, v{T1+4*tb+i}, v{T2+4*tb+i}"))
            for i in range(2): L.append(line(f"v_cvt_pk_bf16_f32 v{T2+4*tb+i}, v{T1+4*tb+2*i}, v{T1+4*tb+2*i+1}"))
            L.append(lgl(f"ds_write_b64 v4, v[{T2+4*tb}:{T2+4*tb+1}] offset:{tb*1024}", "hw"))
        L += [line("s_add_u32 s29, s29, s28"), line("s_sub_u32 s28, 4096, s28"), line("s_sub_u32 s34, s34, 1")]
        return L
    def expo():
        L = []
        for tb in range(4):
            for i in range(4): L.append(line(f"v_mul_f32 v{T1+4*tb+i}, v{5+tb}, v{AG+4*tb+i}", after=2))
            for i in range(4): L.append(line(f"v_exp_f32 v{T2+4*tb+i}, v{T1+4*tb+i}", 8))
            for i in range(4): L.append(line(f"v_fma_f32 v{T2+4*tb+i}, v{T2+4*tb+i}, v{9+tb}, v{9+tb}"))
            for i in range(4): L.append(line(f"v_rcp_f32 v{T2+4*tb+i}, v{T2+4*tb+i}", 8))
        return L
    xr = xreads(0, 18)
    for f in xr[:4 * G]: f.fn(k)
    stamp(k, 21); stamp(k, 30, True)
    phase(0, AG, [consts, fp2], xr=xr[4 * G:], lead=(FILL, MID), budget=12)
    phase(18, AU, [expo()], lead=(MID, LEAD), budget=12)
    k(f"v_add_u32 v2, {HB}, v1\nv_add_u32 v3, {HB + 0x10000}, v1")
    its = []
    for fb in range(1, 8):
        m0 = k.mark()
        phase(36 * fb, AG, [finish()])
        phase(36 * fb + 18, AU, [expo()])
        its.append(k.lines[m0:]); del k.lines[m0:]
    k.label("L_ffn_gu")
    k.lines += fold(its)
    k("s_cmp_lg_u32 s34, 0\ns_cbranch_scc1 L_ffn_gu")
    k("v_mov_b32 v4, v2\ns_cmp_eq_u64 s[48:49], -1\ns_cbranch_scc1 L_pollx_p2")
    poll_fp(k, "p2", FP2)
    k("v_mov_b32 v2, v4")
    phase(288, AG, [finish()[:-3]])
    k.wait_lg_all(); k("s_barrier")
    k.lgq = []; k.lg_done = 0
    hr = xreads(0, 15)
    for j, f in enumerate(hr): f.after = 12 * (j // 12 + 1)
    phase(306, AU, [expo(), hr], budget=int(envs("TB", "12")))
    stamp(k, 22); stamp(k, 31, True)
    k(f"s_lshr_b32 s29, s20, 1\ns_lshl_b32 s29, s29, 12\ns_and_b32 s35, s20, 1\ns_lshl_b32 s36, s35, 3\ns_add_u32 s29, s29, s36")
    k(f"v_add_u32 v9, s29, v1\ns_add_u32 s29, s29, {HB + 64*KBY}\ns_lshl_b32 s41, s20, 11\nv_add_u32 v10, s41, v1")
    k(f"s_lshl_b32 s37, s21, 7\ns_lshl_b32 s38, s22, 2\ns_add_u32 s37, s37, s38\ns_mul_i32 s37, s37, {18*KBY}\ns_add_u32 s37, s37, {OFF_PART}")
    k(f"s_lshr_b32 s39, s20, 1\ns_add_u32 s39, s39, 16\ns_lshl_b32 s39, s39, 10\ns_mul_i32 s40, s35, {36*KBY}\ns_add_u32 s39, s39, s40\ns_add_u32 s39, s39, s37")
    k("s_lshl_b32 s38, s20, 10\ns_add_u32 s38, s38, s37")
    k(f"s_lshl_b32 s56, s22, 7\ns_lshl_b32 s27, s21, 3\ns_add_u32 s56, s56, s27\ns_add_u32 s56, s56, {FE}")
    for tb in range(4): k(f"v_add_u32 v{5+tb}, {tb*18*KBY}, v1")
    k(f"s_lshr_b32 s44, s21, 1\ns_lshl_b32 s45, s35, 1\ns_sub_u32 s45, s44, s45\ns_sub_u32 s30, s38, s37\ns_add_u32 s30, s30, {130*KBY}\nv_add_u32 v11, s30, v1")
    k(f"s_sub_u32 s30, s39, s37\ns_sub_u32 s30, s30, s40\ns_add_u32 s30, s30, {130*KBY}\nv_add_u32 v12, s30, v1")
    fin = finish()[:-3]
    NG = 18 // G
    for f in fin: f.before = 4 * G * (NG - 3)
    def late(k):
        k.wait_lg_all(); k("s_barrier")
        for f in xreads(15, 18): f.fn(k)
    phase(324, AG, [fin], pre_extra={NG - 3: late}, xwait=True)
    def cv(acc, dst, hi, after=0):
        return [line(f"v_cvt_pk_bf16_f32 v{dst+4*tb+2*hi+i}, v{acc+4*tb+2*i}, v{acc+4*tb+2*i+1}", after=after) for tb in range(4) for i in range(2)]
    OWN = envs("OWN", "1") == "1"
    uid = [0]
    def keep(src, tb, cmp, vaddr):
        def f(k):
            uid[0] += 1
            k(f"s_cmp_lg_u32 {cmp}, {tb}\ns_cbranch_scc1 2\nds_write_b128 {vaddr}, v[{src+4*tb}:{src+4*tb+3}]")
        if envs("KEEPV", "1") == "1":
            return [line(f"ds_write_b128 v{KA[vaddr] + tb}, v[{src+4*tb}:{src+4*tb+3}]", 8)] if False else [F(f, 8)]
        return [F(f, 8)] if OWN else []
    def st4(src, tb, after, addr="s38", tag=None):
        if envs("NOST", ""): return line("s_nop 0", after=after)
        return vml(f"buffer_store_dwordx4 v[{src+4*tb}:{src+4*tb+3}], v{5+tb}, s[8:11], {addr} offen{envs('PST', ' sc1').replace('_', ' ')}", tag, after=after, cost=8)
    c = cv(AG, T2, 0, 8); join = []
    for tb in range(4): join += c[2*tb:2*tb+2] + [lgl(f"ds_write_b64 v9, v[{T2+4*tb}:{T2+4*tb+1}] offset:{tb*1024}")]
    for f in join: f.before = 36
    def joined(k):
        k.wait_lg_all(); k("s_barrier")
        k.lg(f"ds_read_b128 v[{T2}:{T2+3}], v10", "j"); k.lg(f"ds_read_b128 v[{T2+4}:{T2+7}], v10 offset:1024", "j")
    phase(342, AU, [join, [F(lambda k: k.wait_lg("j"), 4, after=50), st4(T2, 0, 52, "s39"), st4(T2, 1, 62, "s39")] + keep(T2, 0, "s45", "v12") + keep(T2, 1, "s45", "v12")], pre_extra={3: joined})
    kk = KB()
    kk("s_lshl_b32 s28, s22, 3\ns_add_u32 s28, s28, s21\ns_mov_b32 s42, s22\ns_mov_b32 s47, s21")
    kk("v_bfe_u32 v9, v0, 4, 2\nv_lshlrev_b32 v9, 8, v9\nv_bfe_u32 v10, v0, 3, 1\nv_lshl_add_u32 v9, v10, 10, v9\nv_and_b32 v10, 7, v0\nv_lshl_add_u32 v9, v10, 4, v9")
    kk(f"s_and_b32 s31, s28, 1\ns_lshl_b32 s31, s31, 7\ns_lshl_b32 s26, s20, 11\ns_add_u32 s31, s31, s26\nv_add_u32 v9, s31, v9\nv_lshlrev_b32 v4, 3, v10\nv_and_b32 v10, 0x3ff, v9\nv_lshrrev_b32 v10, 1, v10\nv_and_b32 v3, 0x400, v9\nv_add_u32 v10, v10, v3")
    kk(f"s_lshr_b32 s24, s28, 1\ns_mul_i32 s24, s24, {18*KBY}\ns_add_u32 s30, s24, {OFF_X1}")
    kk(f"s_add_u32 s31, s30, 16384\ns_cmp_eq_u32 s20, 0\ns_cselect_b32 s31, s31, {BIG}\ns_add_u32 s32, s30, 8192")
    kk(f"s_add_u32 s46, s56, {FE1 - FE}\ns_add_u32 s46, s46, s51\ns_and_b32 s48, s46, 0xffffff80\ns_cmp_eq_u32 s20, 0\ns_cselect_b32 s46, s46, {BIG}")
    for src in range(7):
        kk(f"s_cmp_gt_u32 s47, {src}\ns_cselect_b32 s26, {src}, {src + 1}\ns_mul_i32 s26, s26, {2304*KBY}\ns_add_u32 s26, s26, s24\ns_add_u32 s{72+src}, s26, {OFF_PART}")
    setup = []; ls = [l.strip() for l in kk.lines]; j = 0
    while j < len(ls):
        n = 2 if (ls[j].startswith("s_cmp") or j + 1 >= len(ls) or not ls[j + 1].startswith("s_cmp")) else 1
        setup.append(line("\n".join(ls[j:j + n]), 8)); j += n
    phase(360, AG, [cv(AU, T1, 0, 8), setup])
    k("s_mov_b32 s34, 2")
    stamp(k, 23); stamp(k, 32, True)
    E2 = envs("E2", "1") == "1"; TBM = E2 and envs("TBM", "1") == "1"
    SCL = int(envs("SCL", "0"))
    def first_half():
        L = []
        for tb in range(4):
            L += [line(f"v_mov_b32 v{T2+4*tb}, v{T1+4*tb}"), line(f"v_mov_b32 v{T2+4*tb+1}, v{T1+4*tb+1}")]
        if SCL: return cv(AG, T1, 1, 8) + [st4(T1, tb, SCL) for tb in range(4)]
        return L + cv(AG, T2, 1, 8) + [f for tb in range(4) for f in keep(T2, tb, "s44", "v11")] + [line("v_add_u32 v11, 0x1000, v11")] + [st4(T2, 0, 30), st4(T2, 1, 60)]
    def pair(p, x0=[], x1=[], pre=None, pre1=None):
        fh = first_half()
        if p == 3 and E2:
            fh = fh[:-2]
            if envs("CMP", "1") == "1":
                for f in fh: f.before = 26
            for tb in range(4):
                fh.append(st4(T2, tb, 26 + 8 * tb, tag=("ps", 3)))
                if envs("CMP", "1") == "1": fh[-1].before = 28 + 8 * tb
        phase(342 + 36 * p, AU, [fh, x0], pre_extra=pre)
        if p == 3: stamp(k, 35, True)
        c0 = cv(AU, T1, 0, 8)
        if p == 3 and TBM:
            p0 = 342 + 36 * p + 18
            mf = [f"{MF} v[{AG+4*tb}:{AG+4*tb+3}], v[{RING+4*((p0+ks)%36)}:{RING+4*((p0+ks)%36)+3}], {xreg(ks, tb)}, " + ("0" if ks == 0 else f"v[{AG+4*tb}:{AG+4*tb+3}]") for tb in range(4) for ks in range(18)]
            for f in c0: f.before = 24
            c1 = cv(AG, T1, 1); out = [line("s_add_u32 s38, s38, 4096")]
            for tb in range(3):
                c1[2*tb].after = 18 * (tb + 1) + 7
                out += c1[2*tb:2*tb+2] + [st4(T1, tb, 0)] + keep(T1, tb, "s44", "v11")
                for f in out[-4:]: f.before = 18 * (tb + 1) + 14
            pre = {0: lambda k: k.wait_vm(("w", 485))}
            for g, fn in pre1.items(): pre[12 * g] = fn
            interleave(k, mf, [c0, out, x1], pre=pre)
            return
        phase(342 + 36 * p + 18, AG, [c0, ([] if SCL or (p == 3 and E2) else [st4(T2, 2, 20), st4(T2, 3, 52, tag=("ps", p))]) + [line("s_add_u32 s38, s38, 4096"), line("s_sub_u32 s34, s34, 1")], x1], pre_extra=pre1)
    its = []
    for p in range(1, 3):
        m0 = k.mark(); pair(p); its.append(k.lines[m0:]); del k.lines[m0:]
    k.label("L_ffn_dn")
    k.lines += fold(its)
    k("s_cmp_lg_u32 s34, 0\ns_cbranch_scc1 L_ffn_dn")
    stamp(k, 24); stamp(k, 33, True)
    tail = [vml(f"buffer_load_dwordx4 v[{RESID+4*i}:{RESID+4*i+3}], v9, s[8:11], s{30+i} offen{LD}", after=14, cost=8) for i in (0, 2)]
    tail += [vml(f"buffer_load_dwordx2 v[{RESID+4+2*h}:{RESID+5+2*h}], v10, s[8:11], s31 offen offset:{512*h}{LD}", after=14, cost=8) for h in range(2)]
    def early(k):
        k.wait_vm(("ps", 2)); k("s_barrier\nv_mov_b32 v2, s100\nv_mov_b32 v3, s101")
        k.vm("buffer_store_dwordx2 v[2:3], v13, s[8:11], s46 offen sc1")
    def early2(k):
        k.wait_vm(("ps", 3)); k(f"s_barrier\ns_sub_u32 s46, s46, {FE1 - FE2}")
        k.vm("buffer_store_dwordx2 v[2:3], v13, s[8:11], s46 offen sc1")
    pair(3, tail, [vml("buffer_load_dwordx2 v[2:3], v4, s[8:11], s48 offen sc1", "e1", after=int(envs("E1AT", "62")), cost=8)], {int(envs("EAT", "5")): early}, {int(envs("E2AT", "5")): early2} if E2 else None)
    stamp(k, 36, True)
    k("s_nop 7" if TBM else "s_nop 5")
    c = cv(AG, T1, 1)
    for tb in range(3 if TBM else 0, 4):
        c[2 * tb].fn(k); c[2 * tb + 1].fn(k); st4(T1, tb, 0).fn(k)
    for tb in range(3 if TBM else 0, 4):
        for f in keep(T1, tb, "s44", "v11"): f.fn(k)
    stamp(k, 25); stamp(k, 34, True)
    k.wait_vm("e1")
    k(f"v_cmp_eq_u64 vcc, s[100:101], v[2:3]\ns_add_u32 s56, s56, s51\ns_cmp_eq_u32 s20, 0\ns_cselect_b32 s56, s56, {BIG}")
    k(f"s_cmp_eq_u64 vcc, {-1 if not envs('NOE1', '') else 5}\ns_cselect_b32 s49, 1, 0\ns_cbranch_scc0 L_ffn_noe")
    for src in range(7): k(f"buffer_load_dwordx4 v[{P5R[0]+4*src}:{P5R[0]+4*src+3}], v9, s[8:11], s{72+src} offen{LD}")
    k("s_waitcnt vmcnt(7) lgkmcnt(0)\ns_branch L_ffn_sig")
    k.label("L_ffn_noe")
    k("s_waitcnt vmcnt(0) lgkmcnt(0)")
    k.label("L_ffn_sig")
    k("s_barrier")
    publish(k)
    stamp(k, 26)

P5R = (48, 76, 16)
def p5_reduce(k, nlayers):
    k(f"v_mov_b32 v8, v9\nv_add_u32 v10, 0x2000, v9\ns_cmp_eq_u32 s20, 0\ns_cselect_b32 s35, 16384, {BIG}\nv_add_u32 v9, s35, v9")
    def ld(i):
        for src in range(7): k.vm(f"buffer_load_dwordx4 v[{P5R[i]+4*src}:{P5R[i]+4*src+3}], v{8+i}, s[8:11], s{72+src} offen{LD}", (src, i))
    k("s_cmp_eq_u32 s49, 1\ns_cbranch_scc1 L_p5_e1\ns_mov_b32 s56, s48\nv_mov_b32 v2, v4")
    poll(k, "e1", wg=False, layer=False)
    ld(0)
    k.label("L_p5_e1")
    k("s_cmp_lg_u32 s20, 0\ns_cbranch_scc1 L_p5_n1")
    ld(1)
    k.label("L_p5_n1")
    k("v_bfe_u32 v4, v0, 4, 2\nv_bfe_u32 v5, v0, 3, 1\nv_and_b32 v6, 7, v0")
    ln_consts(k)
    k("s_mov_b32 s26, 0x00003f80\ns_mov_b32 s27, 0x3f800000")
    D = 136; ACC = 112
    k(f"v_min_u32 v12, 0x4800, v9\nv_add_u32 v11, {130*KBY}, v8\nv_add_u32 v12, {130*KBY}, v12\ns_waitcnt lgkmcnt(0)")
    k(f"ds_read_b128 v[{D}:{D+3}], v11\nds_read_b128 v[{D+4}:{D+7}], v12\nds_read_b128 v[{D+8}:{D+11}], v11 offset:8192")
    k(f"s_lshl_b32 s56, s42, 7\ns_add_u32 s56, s56, {FE}\nv_lshlrev_b32 v2, 3, v6")
    for j in range(12): k(f"v_lshlrev_b32 v{ACC+2*j}, 16, v{RESID+j}\nv_and_b32 v{ACC+2*j+1}, s32, v{RESID+j}")
    k("s_waitcnt lgkmcnt(0)")
    for j in range(12): k(f"v_dot2c_f32_bf16 v{ACC+2*j}, s26, v{D+j}\nv_dot2c_f32_bf16 v{ACC+2*j+1}, s27, v{D+j}")
    if envs("E2", "1") == "1":
        k(f"s_cmp_lt_u32 s20, 2\ns_cselect_b32 s23, {FE - FE2}, 0\ns_sub_u32 s56, s56, s23")
        spoll(k, "e", 8, wg=False)
    elif "e" in SP: spoll(k, "e", 8)
    else: poll(k, "e")
    stamp(k, 27)
    fresh(k)
    ld(2)
    def add(src, i):
        for j in range(4):
            r = P5R[i] + 4 * src + j; a = ACC + 8 * i + 2 * j
            k(f"v_dot2c_f32_bf16 v{a}, s26, v{r}\nv_dot2c_f32_bf16 v{a+1}, s27, v{r}")
    k("s_waitcnt vmcnt(7)")
    for src in range(7): add(src, 0)
    k("s_cmp_lg_u32 s20, 0\ns_cbranch_scc1 L_p5_n2")
    for src in range(7): add(src, 1)
    k.label("L_p5_n2")
    T = D + 16; O = T + 8
    k("s_nop 1")
    for j in range(8): k(f"v_cvt_pk_bf16_f32 v{D+j}, v{ACC+2*j}, v{ACC+2*j+1}")
    k(f"s_add_u32 s25, s24, {OFF_XF}\ns_cmp_eq_u32 s50, 1\ns_cbranch_scc1 L_p5_final")
    saved = (list(k.vmq), k.vm_done)
    for i in range(2): k.vm(f"buffer_store_dwordx4 v[{D+4*i}:{D+4*i+3}], v{8+i}, s[8:11], s25 offen sc1")
    k("s_cmp_eq_u32 s20, 0\ns_cbranch_scc1 L_p5_w0")
    for j in range(4): k(f"v_mov_b32 v{D+4+j}, 0")
    k.label("L_p5_w0")
    for i in range(4): k(f"v_mov_b32 v{T+i}, 0")
    for j in range(8): k(f"v_dot2c_f32_bf16 v{T+(j&1)}, s30, v{D+j}\nv_dot2c_f32_bf16 v{T+2+(j&1)}, v{D+j}, v{D+j}")
    for src in range(7): k.wait_vm((src, 2)); add(src, 2)
    stamp(k, 28)
    k("s_nop 2")
    for j in range(8, 12): k(f"v_cvt_pk_bf16_f32 v{D+j}, v{ACC+2*j}, v{ACC+2*j+1}")
    k(f"buffer_store_dwordx4 v[{D+8}:{D+11}], v10, s[8:11], s25 offen sc1")
    for j in range(8, 12): k(f"v_dot2c_f32_bf16 v{T+(j&1)}, s30, v{D+j}\nv_dot2c_f32_bf16 v{T+2+(j&1)}, v{D+j}, v{D+j}")
    k(f"s_nop 2\nv_add_f32 v{T}, v{T}, v{T+1}\nv_add_f32 v{T+1}, v{T+2}, v{T+3}\ns_nop 1")
    k(f"v_add_f32_dpp v{T}, v{T}, v{T} row_ror:8 row_mask:0xf bank_mask:0xf\nv_add_f32_dpp v{T+1}, v{T+1}, v{T+1} row_ror:8 row_mask:0xf bank_mask:0xf")
    for sw in ("v_permlane16_swap_b32", "v_permlane32_swap_b32"):
        k(f"v_mov_b32 v{T+2}, v{T}\nv_mov_b32 v{T+3}, v{T+1}\ns_nop 0\n{sw} v{T}, v{T+2}\n{sw} v{T+1}, v{T+3}\nv_pk_add_f32 v[{T}:{T+1}], v[{T}:{T+1}], v[{T+2}:{T+3}]")
    k(f"v_lshlrev_b32 v11, 3, v6\nv_add_u32 v11, {150*KBY}, v11\ns_lshl_b32 s23, s20, 6\nv_add_u32 v12, s23, v11")
    k(f"ds_write_b64 v12, v[{T}:{T+1}]\ns_waitcnt lgkmcnt(0)\ns_barrier")
    for w in range(4): k(f"ds_read_b64 v[{T+2*w}:{T+2*w+1}], v11 offset:{64*w}")
    k(f"s_add_u32 s23, s24, {OFF_XN}\ns_waitcnt lgkmcnt(0)")
    k(f"v_pk_add_f32 v[{T}:{T+1}], v[{T}:{T+1}], v[{T+2}:{T+3}]\nv_pk_add_f32 v[{T+4}:{T+5}], v[{T+4}:{T+5}], v[{T+6}:{T+7}]\nv_pk_add_f32 v[{T}:{T+1}], v[{T}:{T+1}], v[{T+4}:{T+5}]")
    ln_stats_finish(k, T, T + 1)
    for i in range(3):
        for j in range(4): ln_norm(k, D + 4 * i + j, O + 4 * i + j, T, T + 1, T + 2 + 2 * (j & 1))
        k(f"buffer_store_dwordx4 v[{O+4*i}:{O+4*i+3}], v{8+i}, s[8:11], s23 offen sc1")
    flag_a_addr(k)
    stamp(k, 29)
    k(f"s_add_u32 s50, s50, 1\ns_add_u32 s51, s51, 32768\ns_mov_b32 s53, {OFF_QKV2}")
    signal(k)
    if STAMP: k("v_mov_b32 v14, v15")
    k("s_branch L_p0_fetch" if nlayers == 2 else "s_branch L_main_fin")
    k.label("L_p5_final")
    srd(k, 12, 6, 2048 * 1152)
    rowmajor(k, 28, 7)
    k(f"s_add_u32 s35, s33, 1024\ns_cmp_eq_u32 s20, 0\ns_cselect_b32 s35, s35, {BIG}\ns_lshl_b32 s25, s20, 7\ns_add_u32 s34, s33, s25\ns_add_u32 s36, s34, 512")
    k.vmq, k.vm_done = saved
    for i in range(3):
        if i == 2:
            for src in range(7): k.wait_vm((src, 2)); add(src, 2)
            stamp(k, 28)
            k("s_nop 2")
            for j in range(8, 12): k(f"v_cvt_pk_bf16_f32 v{D+j}, v{ACC+2*j}, v{ACC+2*j+1}")
            k("s_nop 0")
        k(f"v_permlane16_swap_b32 v{D+4*i}, v{D+4*i+2}\nv_permlane16_swap_b32 v{D+4*i+1}, v{D+4*i+3}")
        k.vm(f"buffer_store_dwordx4 v[{D+4*i}:{D+4*i+3}], v7, s[12:15], s{34+i} offen{FL[envs('OUTST', 's')]}")
    k.label("L_main_fin")
    if DIAG:
        k("s_waitcnt vmcnt(0)"); stamp(k, 50)
        k("s_cmp_lg_u32 s20, 0\ns_cbranch_scc1 L_end\ns_cmp_lg_u32 s2, 100\ns_cbranch_scc1 L_end\ns_sub_u32 s90, s90, s88\ns_mul_i32 s90, s90, 3\ns_min_u32 s90, s90, 100000\ns_memrealtime s[88:89]\ns_waitcnt lgkmcnt(0)")
        k.label("L_dgs")
        k("s_memrealtime s[94:95]\ns_waitcnt lgkmcnt(0)\ns_sub_u32 s94, s94, s88\ns_cmp_lt_u32 s94, s90\ns_cbranch_scc1 L_dgs")
    if STAMP:
        k.wait_vm_all(); stamp(k, 29)
        k(f"s_add_u32 s84, s4, {OFF_STAMP}\ns_addc_u32 s85, s5, 0\ns_mov_b32 s86, 0x2000000\ns_mov_b32 s87, 0x00020000")
        k("s_lshl_b32 s88, s2, 2\ns_add_u32 s88, s88, s20\ns_lshl_b32 s88, s88, 9\nv_lshrrev_b32 v2, 2, v1")
        k("buffer_store_dword v14, v2, s[84:87], s88 offen\nbuffer_store_dword v15, v2, s[84:87], s88 offen offset:256")

def main_k(name, nlayers=2):
    k = KB()
    k.raw(f".globl {name}\n.p2align 8\n.type {name},@function")
    k.label(name)
    k("s_cmp_ge_u32 s2, 256\ns_cbranch_scc1 L_end")
    if STAMP: k("v_mov_b32 v14, 0\nv_mov_b32 v15, 0"); stamp(k, 40)
    if DIAG: k("s_memrealtime s[88:89]\ns_waitcnt lgkmcnt(0)\ns_mov_b32 s90, s88")
    k("s_load_dwordx4 s[36:39], s[0:1], 0\ns_load_dwordx2 s[46:47], s[0:1], 16\ns_load_dwordx4 s[40:43], s[0:1], 32")
    k("s_load_dwordx2 s[44:45], s[0:1], 48\ns_load_dwordx2 s[6:7], s[0:1], 56\ns_load_dwordx2 s[84:85], s[0:1], 64\ns_load_dwordx2 s[4:5], s[0:1], 72")
    k("v_lshrrev_b32 v2, 6, v0\nv_and_b32 v1, 63, v0\nv_readfirstlane_b32 s20, v2\nv_cmp_eq_u32 vcc, 0, v1\nv_lshlrev_b32 v1, 4, v1")
    k("s_and_b32 s16, s2, 7\ns_lshr_b32 s17, s2, 3\ns_bfe_u32 s18, s2, 0x10002\ns_and_b32 s19, s2, 3")
    k(f"v_mov_b32 v13, {BIG}\ns_mov_b32 s50, 0\ns_mov_b32 s51, 0\ns_mov_b32 s53, {OFF_QKV}\ns_mov_b32 s67, 0\nv_cndmask_b32 v13, v13, 0, vcc")
    p0(k)
    k.label("L_layer")
    fresh(k)
    p1_qkv(k); p2_attn(k); p3_wo(k); p4_ffn(k); p5_reduce(k, nlayers)
    k.label("L_end")
    k("s_endpgm")
    return k

def desc(n, vgpr, accum):
    return f""".p2align 6
.amdhsa_kernel {n}
  .amdhsa_next_free_vgpr {vgpr}
  .amdhsa_next_free_sgpr 102
  .amdhsa_accum_offset {accum}
  .amdhsa_group_segment_fixed_size 0
  .amdhsa_kernarg_size 80
  .amdhsa_user_sgpr_count 2
  .amdhsa_user_sgpr_kernarg_segment_ptr 1
  .amdhsa_system_sgpr_workgroup_id_x 1
  .amdhsa_float_denorm_mode_32 3
.end_amdhsa_kernel"""
def build(nlayers=2):
    name = "interleave_layers__sliding_block__swiglu_ffn__prompt_kernel"
    out = ["; x += attn(LN x); x += swiglu(LN x); twice. One persistent kernel, 256 workgroups. Generated by my own script (work/genq.py)."]
    if STAMP:
        if not envs("NOSLEEP", ""): out.append("; @launch kernel=sleep_kernel grid=(1,1,1) block=(64,1,1) lds=0")
        out.append(f"; @launch kernel={name} grid=(256,1,1) block=(256,1,1) lds=163840")
    else: out.append("; @launch grid=(256,1,1) block=(256,1,1) lds=163840")
    out.append('.amdgcn_target "amdgcn-amd-amdhsa--gfx950"\n.text')
    out.append(main_k(name, nlayers).text())
    if STAMP:
        out.append(""".globl sleep_kernel
.p2align 8
.type sleep_kernel,@function
sleep_kernel:
    s_mov_b32 s4, 2000
L_sleep:
    s_sleep 8
    s_sub_u32 s4, s4, 1
    s_cmp_lg_u32 s4, 0
    s_cbranch_scc1 L_sleep
    s_endpgm""")
    out.append('.section .rodata,"a"')
    out.append(desc(name, 512, 256))
    if STAMP: out.append(desc("sleep_kernel", 8, 8))
    return "\n".join(out) + "\n"

if __name__ == "__main__":
    STAMP = "stamp" in sys.argv[2:]
    open(sys.argv[1], "w").write(build(1 if "one" in sys.argv[2:] else 2))
```

```python
import re, sys, os, struct
from kb import *
KBY = 1024
OFF_XF, OFF_XN, OFF_OF, OFF_X1 = 0, 2304*KBY, 4608*KBY, 6912*KBY
OFF_OB = OFF_OF + 2048*KBY
OFF_QKV = 9216*KBY
OFF_PART = 16128*KBY
OFF_WO = 34560*KBY
OFF_WF = 37376*KBY
OFF_STAT = 53248*KBY
OFF_FLAG = 53376*KBY
OFF_QKV2 = 53408*KBY
OFF_WQ = OFF_QKV2 + 6912*KBY
OFF_FLAG = OFF_WQ + 2048*KBY
OFF_STAT = OFF_FLAG + 64*KBY
WS_USED = OFF_STAT + 256*KBY
FA, FB, FC, FE2, FE, FP, FP2, FW, FQ, FE1 = [OFF_FLAG + o for o in (0, 2048, 10240, 12288, 16384, 20480, 22528, 24576, 25600, 27648)]
FD = FB + 2048
BIG = 0x40000000
LOG2E = 1.4426950408889634
def fbits(x): return "0x%08x" % struct.unpack("<I", struct.pack("<f", x))[0]
def envs(n, d): return os.environ.get(n, d)
FL = {"s": " sc1", "p": "", "n": " nt"}
MF = "v_mfma_f32_16x16x32_bf16"
LD = " sc1"
SPIN = 300000
STAMP = False
OFF_STAMP = 200 << 20
POLL1 = envs("POLL1", "1") == "1"
CKD = envs("CKD", "1") == "1"
FORCE_RETRY = envs("FORCE_RETRY", "") == "1"
FAST = envs("FAST", "1") == "1"
FORCE_EXACT = envs("FORCE_EXACT", "") == "1"

DIAG = envs("DIAG", "")
def stamp(k, i, cyc=False):
    if DIAG and not cyc and i == int(DIAG.split(",")[1]):
        n = len(k.lines)
        k(f"s_cmp_lg_u32 s50, {DIAG.split(',')[0]}\ns_cbranch_scc1 L_dg{n}\ns_memrealtime s[90:91]"); k("s_waitcnt lgkmcnt(0)"); k.label(f"L_dg{n}")
    if STAMP:
        k(f"{'s_memtime' if cyc else 's_memrealtime'} s[98:99]"); k.wait_lg_all(); k(f"v_writelane_b32 v15, s98, {i}")
def srd(k, d, base, nbytes):
    k(f"s_mov_b32 s{d}, s{base}\ns_mov_b32 s{d+1}, s{base+1}\ns_mov_b32 s{d+2}, {nbytes}\ns_mov_b32 s{d+3}, 0x00020000")
def sdiv(k, dst, src, D, tmp):
    k(f"s_mov_b32 s{tmp}, {-(-(1<<32)//D)}\ns_mul_hi_u32 s{dst}, s{src}, s{tmp}")
def red_rows(k, v, t, op="v_add_f32"):
    for sw in ("v_permlane16_swap_b32", "v_permlane32_swap_b32"):
        k(f"v_mov_b32 v{t}, v{v}\ns_nop 1\n{sw} v{v}, v{t}\n{op} v{v}, v{v}, v{t}")
def ln_stats_finish(k, s, q):
    k(f"v_mul_f32 v{s}, s31, v{s}\nv_mul_f32 v{q}, s31, v{q}\nv_fma_f32 v{q}, -v{s}, v{s}, v{q}\nv_max_f32 v{q}, 0, v{q}")
    k(f"v_add_f32 v{q}, {fbits(1e-5)}, v{q}\nv_rsq_f32 v{q}, v{q}\ns_nop 0\nv_mul_f32 v{s}, v{s}, v{q}\nv_sub_f32 v{s}, 0, v{s}")
def ln_norm(k, x, dst, s, q, t):
    if envs("PKF", "1") == "1":
        assert q == s + 1 and s % 2 == 0 and t % 2 == 0
        k(f"v_lshlrev_b32 v{t}, 16, v{x}\nv_and_b32 v{t+1}, s32, v{x}\nv_pk_fma_f32 v[{t}:{t+1}], v[{t}:{t+1}], v[{s}:{q}], v[{s}:{q}] op_sel:[0,1,0] op_sel_hi:[1,1,0]\nv_cvt_pk_bf16_f32 v{dst}, v{t}, v{t+1}")
    else: k(f"v_lshlrev_b32 v{t}, 16, v{x}\nv_and_b32 v{t+1}, s32, v{x}\nv_fma_f32 v{t}, v{t}, v{q}, v{s}\nv_fma_f32 v{t+1}, v{t+1}, v{q}, v{s}\nv_cvt_pk_bf16_f32 v{dst}, v{t}, v{t+1}")
def ln_consts(k):
    k(f"s_mov_b32 s30, 0x3f803f80\ns_mov_b32 s31, {fbits(1/576)}\ns_mov_b32 s32, 0xffff0000")
def fold(iters):
    body = []
    assert len({len(x) for x in iters}) == 1, [len(x) for x in iters]
    for ls in zip(*iters):
        if len(set(ls)) == 1: body.append(ls[0]); continue
        ns = [re.fullmatch(r"\s*s_waitcnt vmcnt\((\d+)\)", l) for l in ls]
        assert all(ns), ls
        body.append(f"    s_waitcnt vmcnt({min(int(m.group(1)) for m in ns)})")
    return body
def fresh(k):
    k.vmq = []; k.vm_done = 0; k.lgq = []; k.lg_done = 0

def poll(k, name, wg=True, layer=True):
    if wg: k(f"s_cmp_lg_u32 s20, 0\ns_cbranch_scc1 L_pollx_{name}")
    k(f"s_mov_b32 s57, {SPIN}" + ("\ns_add_u32 s56, s56, s51" if layer else ""))
    if envs("PP", "") and name in "abcde":
        k("buffer_load_dwordx2 v[252:253], v2, s[8:11], s56 offen sc1\ns_sleep 1")
        k.label(f"L_poll_{name}")
        k(f"buffer_load_dwordx2 v[254:255], v2, s[8:11], s56 offen sc1\ns_waitcnt vmcnt(1)\nv_cmp_eq_u64 vcc, s[100:101], v[252:253]\ns_cmp_eq_u64 vcc, -1\ns_cbranch_scc1 L_pollx_{name}")
        k(f"buffer_load_dwordx2 v[252:253], v2, s[8:11], s56 offen sc1\ns_sub_u32 s57, s57, 1\ns_waitcnt vmcnt(1)")
    else:
        k.label(f"L_poll_{name}")
        k(f"buffer_load_dwordx2 v[254:255], v2, s[8:11], s56 offen sc1\ns_sub_u32 s57, s57, 1\ns_waitcnt vmcnt(0)")
    k(f"v_cmp_eq_u64 vcc, s[100:101], v[254:255]\ns_cmp_eq_u32 s57, 0\ns_cbranch_scc1 L_pollx_{name}")
    k(f"s_cmp_eq_u64 vcc, -1\ns_cbranch_scc0 L_poll_{name}")
    k.label(f"L_pollx_{name}")
    if wg: k("s_barrier")
def spoll(k, name, n, wg=True):
    if wg: k(f"s_cmp_lg_u32 s20, 0\ns_cbranch_scc1 L_pollx_{name}")
    k(f"s_mov_b32 s57, {SPIN}\ns_add_u32 s56, s56, s51")
    for c in range(0, n, 8):
        k.label(f"L_poll_{name}{c}")
        k(f"s_load_dwordx16 s[84:99], s[4:5], s56 glc\ns_sub_u32 s57, s57, 1\ns_cmp_eq_u32 s57, 0\ns_waitcnt lgkmcnt(0)\ns_cbranch_scc1 L_pollx_{name}")
        for j in range(84, 100, 2): k(f"s_xor_b64 s[{j}:{j+1}], s[{j}:{j+1}], s[100:101]")
        for j in range(86, 100, 2): k(f"s_or_b64 s[84:85], s[84:85], s[{j}:{j+1}]")
        k(f"s_cbranch_scc0 2\ns_sleep {envs('SLP', '2')}\ns_branch L_poll_{name}{c}")
        if c + 8 < n: k("s_add_u32 s56, s56, 64")
    k.label(f"L_pollx_{name}")
    if wg: k("s_barrier")
SP = envs("SPOLL", "qe")
def publish(k, addr="s56"):
    k("v_mov_b32 v254, s100\nv_mov_b32 v255, s101")
    k.vm(f"buffer_store_dwordx2 v[254:255], v13, s[8:11], {addr} offen sc1")
def signal(k):
    k(f"s_add_u32 s56, s56, s51\ns_cmp_eq_u32 s20, 0\ns_cselect_b32 s56, s56, {BIG}")
    k.wait_vm_all(); k("s_barrier")
    publish(k)
def token_load(k):
    k("v_mov_b32 v2, 0\nbuffer_load_dwordx2 v[254:255], v2, s[84:87], 0 offen sc1")
def token_get(k, name):
    k(f"s_mov_b32 s57, {SPIN}")
    k.label(f"L_tok_{name}")
    k("v_readfirstlane_b32 s100, v254\nv_readfirstlane_b32 s101, v255\ns_sub_u32 s57, s57, 1\ns_min_u32 s94, s100, s101\ns_cmp_eq_u32 s57, 0\ns_cselect_b32 s94, 1, s94")
    k(f"s_cmp_lg_u32 s94, 0\ns_cbranch_scc1 L_tokx_{name}")
    token_load(k)
    k(f"s_waitcnt vmcnt(0)\ns_branch L_tok_{name}")
    k.label(f"L_tokx_{name}")

def half_lanes(k, shb):
    k("v_bfe_u32 v4, v0, 4, 2\nv_bfe_u32 v5, v0, 3, 1\nv_and_b32 v6, 7, v0")
    k(f"s_and_b32 s21, s{shb}, 1\ns_lshr_b32 s22, s{shb}, 1\ns_lshl_b32 s23, s21, 7")
    k("v_lshlrev_b32 v7, 8, v4\nv_lshl_add_u32 v7, v5, 10, v7\nv_lshl_add_u32 v7, v6, 4, v7\nv_add_u32 v7, s23, v7")
    k(f"s_mul_i32 s24, s22, {18*KBY}")
def rowmajor(k, shb, v):
    k(f"v_mul_u32_u24 v{v}, 1152, v6\nv_lshl_add_u32 v{v}, v5, 6, v{v}\nv_and_b32 v9, 1, v4\nv_lshl_add_u32 v{v}, v9, 5, v{v}\nv_lshrrev_b32 v9, 1, v4\nv_lshl_add_u32 v{v}, v9, 4, v{v}")
    k(f"s_mul_i32 s33, s{shb}, 9216")
def row_sums(k, D, n, T):
    for i in range(4): k(f"v_mov_b32 v{T+i}, 0")
    for j in range(n): k(f"v_dot2c_f32_bf16 v{T+(j&1)}, s30, v{D+j}\nv_dot2c_f32_bf16 v{T+2+(j&1)}, v{D+j}, v{D+j}")
    k(f"s_nop 2\nv_add_f32 v{T}, v{T}, v{T+1}\nv_add_f32 v{T+1}, v{T+2}, v{T+3}\ns_nop 1")
    k(f"v_add_f32_dpp v{T}, v{T}, v{T} row_ror:8 row_mask:0xf bank_mask:0xf\nv_add_f32_dpp v{T+1}, v{T+1}, v{T+1} row_ror:8 row_mask:0xf bank_mask:0xf")
    red_rows(k, T, T + 2); red_rows(k, T + 1, T + 2)
def flag_a_addr(k):
    k(f"s_lshr_b32 s56, s28, 4\ns_lshl_b32 s56, s56, 7\ns_and_b32 s27, s28, 15\ns_lshl_b32 s27, s27, 3\ns_add_u32 s56, s56, s27\ns_add_u32 s56, s56, {FA}")

DST = 68
park = lambda u, i: (f"v[{128+16*u+4*i}:{131+16*u+4*i}]" if u < 3 else f"a[{160+16*(u-3)+4*i}:{163+16*(u-3)+4*i}]")
PK = 220
AMAP = int(envs("AMAP", "2"))
def att_ids(k):
    if AMAP == 2: k("s_lshl_b32 s21, s18, 3\ns_and_b32 s22, s17, 7\ns_add_u32 s21, s21, s22\ns_lshr_b32 s29, s17, 3\ns_lshl_b32 s22, s19, 2\ns_add_u32 s22, s22, s29")
    elif AMAP == 4: k("s_and_b32 s21, s16, 6\ns_lshl_b32 s21, s21, 1\ns_and_b32 s22, s17, 3\ns_add_u32 s21, s21, s22\ns_lshr_b32 s29, s17, 2\ns_and_b32 s22, s16, 1\ns_lshl_b32 s22, s22, 3\ns_add_u32 s22, s22, s29")
    else: k("s_lshl_b32 s21, s16, 1\ns_and_b32 s22, s17, 1\ns_add_u32 s21, s21, s22\ns_lshr_b32 s22, s17, 1")
def wq_base(k):
    att_ids(k)
    k(f"s_mul_i32 s25, s22, {126*KBY}\ns_add_u32 s25, s25, {OFF_WQ}")
def wq_fetch(k, name):
    k(f"s_and_b32 s23, s17, {7 if envs('ROT', '1') == '1' else 0}\ns_lshl_b32 s23, s23, 14\ns_mov_b32 s26, 32")
    k.label(f"L_wqf_{name}")
    k("s_mov_b32 m0, s23\ns_add_u32 s27, s25, s23")
    for c in range(4): k(f"buffer_load_dwordx4 v1, s[8:11], s27 offen offset:{c*1024} lds")
    k(f"s_add_u32 s23, s23, 4096\ns_and_b32 s23, s23, 0x1ffff\ns_sub_u32 s26, s26, 1\ns_waitcnt vmcnt({envs('WQF', '40')})\ns_cmp_lg_u32 s26, 0\ns_cbranch_scc1 L_wqf_{name}")
def stage_addr(k):
    k(f"s_lshl_b32 s66, s20, 13\ns_add_u32 s66, s66, {128*KBY}\nv_add_u32 v10, s66, v1")
    k("v_bfe_u32 v11, v0, 2, 4\nv_lshlrev_b32 v11, 7, v11\nv_and_b32 v252, 3, v0\nv_lshl_add_u32 v11, v252, 3, v11\nv_add_u32 v11, s66, v11")
def pack_block(k, n, nu, dst=lambda u, c: (f"s{DST+c}", (u % 4) * 1024), src=park, PK=220):
    k("s_waitcnt lgkmcnt(0)")
    if 2 <= n < nu + 2:
        u = n - 2
        for c in range(4):
            r, o = dst(u, c)
            k(f"buffer_store_dwordx4 v[{PK+16*(u&1)+4*c}:{PK+16*(u&1)+4*c+3}], v1, s[8:11], {r} offen offset:{o} sc1" + (f"\ns_add_u32 {r}, {r}, 4096" if o == 3072 else ""))
    if 1 <= n <= nu:
        u = n - 1
        for c in range(4):
            for hf in range(2): k(f"ds_read_b64_tr_b16 v[{PK+16*(u&1)+4*c+2*hf}:{PK+16*(u&1)+4*c+2*hf+1}], v11 offset:{(u&1)*4096 + hf*2048 + c*32}")
    if n < nu:
        for i in range(4): k(f"ds_write_b128 v10, {src(n, i)} offset:{(n&1)*4096 + i*1024}")
lpark = lambda u, i: f"a[{208+16*u+4*i}:{211+16*u+4*i}]"
def late_blocks(k):
    k("s_cmp_eq_u32 s67, 0\ns_cbranch_scc1 L_pks")
    stage_addr(k)
    for n in range(5): pack_block(k, n, 3, lambda u, c: (f"s{78+c}", u * 1024), lpark)
    k("s_mov_b32 s67, 0")
    k.label("L_pks")
EARLY = envs("EARLY", "b")
def early_blocks(k):
    k("s_cmp_eq_u32 s67, 0\ns_cbranch_scc1 L_pke")
    stage_addr(k)
    for n in range(8): pack_block(k, n, 6, PK=48)
    k.label("L_pke")
def publish_fp(k, base):
    k(f"s_mov_b32 s30, {-(-(1<<32)//27)}\ns_mul_hi_u32 s27, s2, s30\ns_mul_i32 s27, s27, 5\ns_add_u32 s27, s27, s2\ns_lshl_b32 s27, s27, 3\ns_add_u32 s27, s27, {base}")
    k(f"s_cmp_lt_u32 s2, 216\ns_cselect_b32 s27, s27, {BIG}\ns_cmp_eq_u32 s20, 0\ns_cselect_b32 s27, s27, {BIG}")
    k.vm("buffer_store_dwordx2 v[254:255], v13, s[8:11], s27 offen sc1")
def poll_fp(k, name, base):
    k(f"s_cmp_lg_u32 s50, 0\ns_cbranch_scc1 L_pollx_{name}\ns_lshl_b32 s56, s21, 8\ns_add_u32 s56, s56, {base}\nv_and_b32 v2, 31, v0\nv_min_u32 v2, 26, v2\nv_lshlrev_b32 v2, 3, v2")
    poll(k, name, wg=False)
def ptrs(k):
    srd(k, 8, 4, WS_USED); k("s_mov_b32 s86, 256\ns_mov_b32 s87, 0x00020000")
def p0(k):
    k("s_cmp_eq_u32 s20, 1\ns_cbranch_scc1 L_p0_wq\ns_cmp_lg_u32 s20, 0\ns_cbranch_scc1 L_p0_23")
    k("s_lshl_b32 s28, s16, 5\ns_add_u32 s28, s28, s17")
    half_lanes(k, 28); rowmajor(k, 28, 11)
    k("s_waitcnt lgkmcnt(0)")
    srd(k, 12, 36, 2048 * 1152)
    D = 16; T = D + 36; O = T + 8
    for i in range(9): k(f"buffer_load_dwordx4 v[{D+4*i}:{D+4*i+3}], v11, s[12:15], s33 offen offset:{128*i} nt")
    if envs("B0", "2") == "1": k("s_barrier")
    ptrs(k); ln_consts(k); flag_a_addr(k)
    stamp(k, 41)
    k(f"s_add_u32 s25, s24, {OFF_XF}")
    for i in range(9):
        k(f"s_waitcnt vmcnt(8)\nv_permlane16_swap_b32 v{D+4*i}, v{D+4*i+2}\nv_permlane16_swap_b32 v{D+4*i+1}, v{D+4*i+3}")
        k(f"buffer_store_dwordx4 v[{D+4*i}:{D+4*i+3}], v7, s[8:11], s25 offen offset:{(i&1)*2048} sc1" + ("\ns_add_u32 s25, s25, 4096" if i & 1 else ""))
    stamp(k, 42)
    token_load(k)
    row_sums(k, D, 36, T); ln_stats_finish(k, T, T + 1)
    k(f"s_add_u32 s23, s24, {OFF_XN}")
    for i in range(9):
        for j in range(4): ln_norm(k, D + 4 * i + j, O + 4 * (i & 1) + j, T, T + 1, T + 2 + 2 * (j & 1))
        k(f"buffer_store_dwordx4 v[{O+4*(i&1)}:{O+4*(i&1)+3}], v7, s[8:11], s23 offen offset:{(i&1)*2048} sc1" + ("\ns_add_u32 s23, s23, 4096" if i & 1 else ""))
    stamp(k, 43)
    if envs("B0", "2") == "2": k("s_barrier")
    k("s_waitcnt vmcnt(0)")
    token_get(k, "a")
    publish(k)
    k("s_branch L_p0_wait")
    k.label("L_p0_wq")
    att_ids(k)
    k("s_mul_i32 s33, s22, 72")
    k("v_bfe_u32 v10, v0, 1, 5\nv_mul_u32_u24 v10, 3456, v10\nv_and_b32 v11, 1, v0\nv_lshl_add_u32 v10, v11, 4, v10")
    k("v_mul_u32_u24 v12, 36, v11\nv_bfe_u32 v11, v0, 3, 3\nv_mul_u32_u24 v11, 3456, v11\nv_add_u32 v11, v11, v12\nv_bfe_u32 v12, v0, 1, 2\nv_cmp_eq_u32 vcc, 3, v12\nv_mul_u32_u24 v12, 1152, v12")
    k(f"v_add_u32 v11, v11, v12\nv_mov_b32 v12, {BIG}\nv_cndmask_b32 v11, v11, v12, vcc")
    k(f"s_lshl_b32 s80, s21, 3\ns_mov_b32 m0, {128*KBY}\ns_mov_b32 s82, 8\ns_mov_b32 s79, {-(-(1<<32)//5)}")
    k("s_waitcnt lgkmcnt(0)")
    srd(k, 60, 38, 576 * 3456)
    k.label("L_wq")
    k("s_mul_hi_u32 s81, s80, s79\ns_mul_i32 s30, s81, 5\ns_sub_u32 s30, s80, s30\ns_lshr_b32 s31, s30, 1\ns_add_u32 s31, s31, 1")
    k("s_sub_u32 s34, s80, 90\ns_lshr_b32 s35, s34, 1\ns_and_b32 s34, s34, 1\ns_cmp_ge_u32 s80, 90\ns_cselect_b32 s81, s35, s81\ns_cselect_b32 s30, s34, s30\ns_cselect_b32 s31, 0, s31")
    k(f"s_mul_i32 s34, s81, {32*3456}\ns_add_u32 s34, s34, s33\ns_cmp_eq_u32 s30, 4\ns_cbranch_scc1 L_wqb")
    k("s_mul_i32 s31, s31, 1152\ns_and_b32 s30, s30, 1\ns_mul_i32 s30, s30, 36\ns_add_u32 s34, s34, s31\ns_add_u32 s34, s34, s30")
    k("buffer_load_dwordx4 v10, s[60:63], s34 offen lds\ns_add_u32 m0, m0, 1024")
    k.label("L_wqj")
    k("s_add_u32 s80, s80, 1\ns_sub_u32 s82, s82, 1\ns_cmp_lg_u32 s82, 0\ns_cbranch_scc1 L_wq\ns_branch L_wqx")
    k.label("L_wqb")
    k("s_add_u32 s34, s34, 32")
    for q in range(4): k(f"buffer_load_dword v11, s[60:63], s34 offen lds\ns_add_u32 m0, m0, 256\ns_add_u32 s34, s34, {8*3456}")
    k("s_branch L_wqj")
    k.label("L_wqx")
    if envs("B0", "2") == "1": k("s_barrier")
    ptrs(k)
    wq_base(k)
    k(f"s_lshl_b32 s30, s21, 13\ns_add_u32 s30, s30, s25\ns_add_u32 s31, s30, 4096\nv_lshrrev_b32 v3, 1, v1\nv_add_u32 v3, {128*KBY}, v3")
    k(f"s_cmp_eq_u32 s21, 15\ns_cselect_b32 s32, {BIG}, s31")
    k(f"s_lshl_b32 s24, s22, 7\ns_add_u32 s24, s24, {FQ}\ns_lshl_b32 s27, s21, 3\ns_add_u32 s27, s27, s24\ns_waitcnt vmcnt(0)")
    stamp(k, 41)
    token_load(k)
    for sl in range(8):
        for hf in range(2): k(f"ds_read_b64_tr_b16 v[{16+4*sl+2*hf}:{17+4*sl+2*hf}], v3 offset:{sl*1024 + hf*512}")
    for sl in range(8): k(f"s_waitcnt lgkmcnt({14-2*sl})\nbuffer_store_dwordx4 v[{16+4*sl}:{19+4*sl}], v1, s[8:11], s{30 if sl < 4 else 31 if sl < 6 else 32} offen offset:{(sl%4)*1024} sc1")
    if envs("B0", "2") == "2": k("s_barrier")
    k("s_waitcnt vmcnt(0)")
    token_get(k, "b")
    publish(k, "s27")
    stamp(k, 42)
    k("s_mov_b32 s56, s24\nv_and_b32 v2, 15, v0\nv_lshlrev_b32 v2, 3, v2")
    if "q" in SP: spoll(k, "q", 16, wg=False)
    else: poll(k, "q", wg=False)
    stamp(k, 43)
    k("s_branch L_p0_fetch")
    k.label("L_p0_23")
    k("s_sub_u32 s21, s20, 2\nv_bfe_u32 v4, v0, 3, 3\nv_and_b32 v5, 7, v0\ns_memrealtime s[94:95]")
    k("s_lshl_b32 s23, s2, 1\ns_add_u32 s23, s23, s21")
    sdiv(k, 25, 23, 3, 30)
    k("s_mul_i32 s30, s25, 3\ns_sub_u32 s28, s23, s30\ns_mul_i32 s28, s28, 6")
    sdiv(k, 26, 25, 18, 30)
    k("s_mul_i32 s30, s26, 18\ns_sub_u32 s25, s25, s30\ns_cmp_ge_u32 s25, 9\ns_cselect_b32 s27, 18, 0\ns_cselect_b32 s30, 9, 0\ns_sub_u32 s25, s25, s30")
    k(f"s_mul_i32 s30, s26, 9\ns_add_u32 s25, s25, s30\ns_lshl_b32 s24, s25, 7\ns_mul_i32 s30, s28, {32*9216}\ns_add_u32 s24, s24, s30")
    k("v_mul_u32_u24 v6, 9216, v4\nv_lshl_add_u32 v6, v5, 4, v6\ns_waitcnt lgkmcnt(0)")
    ptrs(k)
    k(f"s_or_b32 s94, s94, 1\ns_or_b32 s95, s95, 0x80000000\nv_mov_b32 v16, s94\nv_mov_b32 v17, s95\ns_cmp_eq_u32 s23, 0\ns_cselect_b32 s30, 0, {BIG}")
    k("buffer_store_dwordx2 v[16:17], v13, s[84:87], s30 offen sc1")
    k(f"s_sub_u32 s30, s23, 486\ns_lshl_b32 s30, s30, 14\ns_add_u32 s30, s30, {OFF_FLAG}\ns_cmp_ge_u32 s23, 486\ns_cselect_b32 s30, s30, {BIG}\ns_add_u32 s31, s30, 8192\nv_lshlrev_b32 v2, 3, v1")
    k("buffer_load_dword v22, v2, s[8:11], s30 offen\nbuffer_load_dword v21, v2, s[8:11], s31 offen")
    k("s_cmp_ge_u32 s2, 216\ns_cbranch_scc1 L_p0_wo")
    k("s_add_u32 s29, s27, s28\ns_cmp_eq_u32 s27, 0\ns_cselect_b32 s35, 0, 6\ns_lshl_b32 s34, s28, 1\ns_add_u32 s35, s35, s34")
    for c in range(4):
        k(f"s_lshl_b32 s30, s25, 2\ns_add_u32 s30, s30, {c}")
        sdiv(k, 31, 30, 9, 33)
        k("s_mul_i32 s33, s31, 9\ns_sub_u32 s30, s30, s33\ns_cmp_eq_u32 s30, 0\ns_cselect_b32 s33, s35, s29\ns_mul_i32 s31, s31, 486\ns_mul_i32 s30, s30, 36\ns_add_u32 s30, s30, s31\ns_add_u32 s30, s30, s33")
        k(f"s_add_u32 s30, s30, {OFF_WF//KBY}\ns_lshl_b32 s{DST+c}, s30, 10")
    if EARLY == "p0":
        stage_addr(k)
        k("s_waitcnt vmcnt(0)")
        stamp(k, 43)
        for n in range(8): pack_block(k, n, 6)
    sdiv(k, 25, 2, 3, 30)
    k("s_mul_i32 s30, s25, 3\ns_sub_u32 s28, s2, s30\ns_mul_i32 s28, s28, 6\ns_mul_i32 s30, s21, 3\ns_add_u32 s28, s28, s30")
    k("s_mul_i32 s30, s26, 9\ns_sub_u32 s25, s25, s30")
    for c in range(4):
        k(f"s_lshl_b32 s31, s25, 1\ns_add_u32 s31, s31, {c >> 1}\ns_and_b32 s31, s31, 3\ns_and_b32 s30, s25, 14\ns_add_u32 s30, s30, {1 + (c & 1)}")
        k(f"s_cmp_eq_u32 s25, 8\ns_cselect_b32 s31, {c}, s31\ns_cselect_b32 s30, 0, s30\ns_lshl_b32 s33, s26, 2\ns_add_u32 s31, s31, s33\ns_mul_i32 s31, s31, 486")
        k(f"s_mul_i32 s30, s30, 18\ns_add_u32 s30, s30, s31\ns_add_u32 s30, s30, s28\ns_add_u32 s30, s30, {324 + OFF_WF//KBY}\ns_lshl_b32 s{78+c}, s30, 10")
    k("s_lshl_b32 s34, s25, 7\ns_mul_i32 s35, s26, 576")
    for u in range(3):
        k("s_lshr_b32 s30, s28, 2\ns_mul_i32 s30, s30, 144\ns_and_b32 s31, s28, 3\ns_lshl_b32 s31, s31, 5\ns_add_u32 s30, s30, s31")
        k("s_mul_i32 s31, s28, 288\ns_sub_u32 s31, s31, 4480\ns_cmp_ge_u32 s28, 16\ns_cselect_b32 s30, s31, s30\ns_cselect_b32 s37, 144, 16")
        k(f"s_add_u32 s30, s30, s35\ns_mul_i32 s30, s30, 1152\ns_add_u32 s{72+2*u}, s30, s34\ns_mul_i32 s37, s37, 1152\ns_add_u32 s{73+2*u}, s{72+2*u}, s37\ns_add_u32 s28, s28, 1")
    if envs("B0", "2") in "12": k("s_barrier")
    k(f"s_cmp_eq_u32 s27, 0\ns_cselect_b32 s60, s40, s42\ns_cselect_b32 s61, s41, s43\ns_mov_b32 s62, {576*9216}\ns_mov_b32 s63, 0x00020000")
    if envs("NOBG", ""): k("s_mov_b32 s62, 0")
    for u in range(6):
        for i in range(4): k(f"buffer_load_dwordx4 {park(u, i)}, v6, s[60:63], s24 offen nt\ns_add_u32 s24, s24, {8*9216}")
    if envs("CODEPF", "1") == "1":
        k("s_getpc_b64 s[12:13]")
        k.label("L_pc")
        k(f"s_mov_b32 s14, L_end-L_pc\ns_mov_b32 s15, 0x00020000\nv_lshlrev_b32 v2, 3, v1\ns_lshl_b32 s30, s17, 13\ns_cmp_eq_u32 s20, 3\ns_cselect_b32 s30, s30, {BIG}")
        k("buffer_load_dword v20, v2, s[12:15], s30 offen")
    token_load(k)
    srd(k, 60, 44, 4608 * 1152)
    k("s_mov_b32 s67, 1")
    if EARLY != "f":
        k("s_waitcnt vmcnt(0)"); token_get(k, "c")
    k("s_branch L_p0_wait")
    k.label("L_p0_wo")
    if envs("B0", "2") in "12": k("s_barrier")
    token_load(k)
    k("s_sub_u32 s23, s23, 432\ns_cmp_lt_u32 s23, 54\ns_cbranch_scc1 L_p0_wo2")
    k("s_waitcnt vmcnt(0)")
    token_get(k, "d")
    k("s_branch L_p0_wait")
    k.label("L_p0_wo2")
    srd(k, 12, 46, 576 * 1152)
    sdiv(k, 27, 23, 3, 30)
    k("s_mul_i32 s30, s27, 3\ns_sub_u32 s25, s23, s30\ns_mul_i32 s25, s25, 3")
    k("v_lshrrev_b32 v7, 1, v4\nv_mul_u32_u24 v7, 18, v7\nv_and_b32 v8, 1, v4\nv_add_u32 v7, v7, v8")
    k("s_mul_i32 s30, s27, 36\ns_sub_u32 s31, s27, 16\ns_mul_i32 s31, s31, 288\ns_add_u32 s31, s31, 16")
    k(f"s_cmp_lt_u32 s27, 16\ns_cselect_b32 s30, s30, s31\ns_mov_b32 s28, {18*1152}\ns_mov_b32 s29, {8*1152}\ns_cselect_b32 s28, s28, {144*1152}\ns_cselect_b32 s29, s29, {72*1152}\ns_cselect_b64 vcc, -1, 0")
    k("s_mul_i32 s32, s30, 1152\ns_lshl_b32 s31, s25, 7\ns_add_u32 s32, s32, s31")
    k("v_cndmask_b32 v8, v7, v4, vcc\nv_mul_u32_u24 v6, 1152, v8\nv_lshl_add_u32 v6, v5, 4, v6")
    k("s_add_u32 s33, s32, s29\ns_add_u32 s34, s32, s28\ns_add_u32 s35, s34, s29")
    for u in range(3):
        for i in range(4): k(f"buffer_load_dwordx4 {park(u, i)}, v6, s[12:15], s{32+i} offen offset:{128*u} nt")
    for u in range(3):
        for c in range(4):
            k(f"s_add_u32 s30, s25, {u}\ns_cmp_eq_u32 s30, 8\ns_mul_i32 s30, s30, 90\ns_cselect_b32 s30, {90*c + 4 - c}, s30")
            k(f"s_mul_i32 s31, s27, 5\ns_add_u32 s30, s30, s31\ns_add_u32 s30, s30, {OFF_WO//KBY + c}\ns_lshl_b32 s{72+4*u+c}, s30, 10")
    stage_addr(k)
    k("s_waitcnt vmcnt(0)")
    for n in range(5): pack_block(k, n, 3, lambda u, c: (f"s{72+4*u+c}", 0))
    token_get(k, "e")
    k(f"s_lshl_b32 s56, s23, 3\ns_add_u32 s56, s56, {FW}\ns_waitcnt vmcnt(0)")
    publish(k)
    k.label("L_p0_wait")
    stamp(k, 44)
    k.label("L_p0_fetch")
    wq_base(k)
    k("s_lshl_b32 s26, s20, 12\ns_add_u32 s25, s25, s26\ns_mov_b32 m0, s26\ns_barrier")
    for q in range(8):
        for c in range(4): k(f"buffer_load_dwordx4 v1, s[8:11], s25 offen offset:{c*1024} lds")
        k("s_add_u32 m0, m0, 16384\ns_add_u32 s25, s25, 16384")
    if EARLY == "f":
        k("s_cmp_eq_u32 s67, 0\ns_cbranch_scc1 L_layer")
        stage_addr(k)
        k("s_waitcnt vmcnt(32)")
        token_get(k, "c")
        for n in range(8): pack_block(k, n, 6)

def gemm_core(k, NTB, NS, loads, AHEAD, st0, tr, NBUF=2, wwait=None, last=None, more=None):
    ACC = 16; WB = ACC + 4 * NS * NTB
    pi = 0
    def take(n):
        nonlocal pi
        r = loads[pi:pi + n]; pi += len(r); return r
    nx = {}
    for f in loads: nx[f.tag] = nx.get(f.tag, 0) + 1
    for f in take(AHEAD): f.fn(k)
    if wwait: wwait(k)
    if tr: k("v_lshrrev_b32 v3, 1, v1\nv_add_u32 v2, 0x10000, v3")
    else: k("v_mov_b32 v3, v1\nv_add_u32 v2, 0x10000, v1")
    def rd(ks, sl):
        i = ks * NS + sl; r = WB + 4 * ((ks % NBUF) * NS + sl); a = f"v{3 if i < 64 else 2}"; o = (i % 64) * 1024
        if tr: return [lgl(f"ds_read_b64_tr_b16 v[{r}:{r+1}], {a} offset:{o}", ("r", ks)), lgl(f"ds_read_b64_tr_b16 v[{r+2}:{r+3}], {a} offset:{o+512}", ("r", ks))]
        return [lgl(f"ds_read_b128 v[{r}:{r+3}], {a} offset:{o}", ("r", ks))]
    for ks in range(NBUF - 1):
        for sl in range(NS):
            for f in rd(ks, sl): f.fn(k)
    treg = lambda n: WB + 4 * ((n + NS * ((18 - int(envs("TK", "6"))) & 1)) % (2 * NS))
    def trd(n):
        TKk = int(envs("TK", "6")); sl, j = divmod(n, TKk); i = (18 - TKk + j) * NS + sl
        return lgl(f"ds_read_b128 v[{treg(n)}:{treg(n)+3}], v{3 if i < 64 else 2} offset:{(i % 64) * 1024}", ("t", n))
    TK = int(envs("TK", "6")) if last else 0
    K1 = 18 - TK
    for ks in range(K1 if TK else 18):
        while k.vmq.count(("x", ks)) < nx[("x", ks)]: take(1)[0].fn(k)
        k.wait_vm(("x", ks)); k.wait_lg(("r", ks))
        if ks == 0: stamp(k, st0)
        mf = []
        for sl in range(NS):
            for tb in range(NTB):
                a = ACC + 4 * (sl * NTB + tb); w = WB + 4 * ((ks % NBUF) * NS + sl); x = 4 * (ks * NTB + tb)
                mf.append(f"{MF} v[{a}:{a+3}], v[{w}:{w+3}], a[{x}:{x+3}], " + ("0" if ks == 0 else f"v[{a}:{a+3}]"))
        fill = [f for sl in range(NS) for f in rd(ks + NBUF - 1, sl)] if ks + NBUF - 1 < (K1 if TK else 18) else []
        if TK and ks == K1 - 1: fill = [trd(n) for n in range(NS)]
        if NBUF == 2 and envs("FRONT", "1") == "1":
            for j, f in enumerate(fill): f.before = j + 1
        outstanding = len(k.vmq) - k.vm_done
        if ks == 17 and last:
            n = len(mf); j = 0
            for i, m in enumerate(mf):
                k(m)
                c = 0
                while j < len(last) and last[j].after <= i and c < 4: last[j].fn(k); j += 1; c += 1
            k("s_nop 3")
            for f in last[j:]: f.fn(k)
            continue
        tk = take(max(0, AHEAD + 2 - outstanding + (2 if TK else 0)))
        if more and pi == len(loads) and not tk:
            n = -(-len(more) // (18 - ks)); tk = more[:n]; more = more[n:]
        interleave(k, mf, [fill, tk], budget=8 if NTB == 2 else 12)
    if TK:
        for f in take(len(loads)): f.fn(k)
        per = len(last) // NS + 1
        for sl in range(NS):
            mf = []; pre = {}
            for j in range(TK):
                n = sl * TK + j; ks = K1 + j
                pre[len(mf)] = (lambda k, n=n, ks=ks: (k.wait_vm(("x", ks)), k.wait_lg(("t", n))))
                for tb in range(NTB):
                    a = ACC + 4 * (sl * NTB + tb); w = treg(n); x = 4 * (ks * NTB + tb)
                    mf.append(f"{MF} v[{a}:{a+3}], v[{w}:{w+3}], a[{x}:{x+3}], v[{a}:{a+3}]")
            fill = [trd(n) for n in range(sl * TK + NS, min((sl + 1) * TK + NS, NS * TK))]
            for j, f in enumerate(fill): f.after = NTB * j
            ep = [f for f in last if f.blk == sl - 1]
            for f in ep: f.after = 3
            interleave(k, mf, [fill, ep], pre=pre, budget=12)
        k("s_nop 5")
        for f in last:
            if f.blk == NS - 1: f.fn(k)
    assert pi == len(loads) and not more, (pi, len(loads))
def tl(s, tag, post="", cost=8):
    f = F(lambda k: (k.vm(s, tag), k(post) if post else None), cost); f.tag = tag; return f

def p1_addr(k):
    att_ids(k)
    k(f"s_lshl_b32 s56, s21, 7\ns_add_u32 s56, s56, {FA}\nv_and_b32 v2, 15, v0\nv_lshlrev_b32 v2, 3, v2")
    k(f"s_lshl_b32 s26, s21, 2\ns_add_u32 s26, s26, s20")
    k(f"s_mul_i32 s23, s26, {36*KBY}\ns_add_u32 s23, s23, {OFF_XN}\ns_add_u32 s24, s23, {18*KBY}")
QB = 60 * KBY
def p1_qkv(k):
    p1_addr(k)
    stamp(k, 0)
    k(f"s_add_u32 s56, s56, s51\ns_mov_b32 s57, {SPIN}\ns_cmp_eq_u32 s20, 0\ns_cselect_b32 s27, s56, {BIG}\nbuffer_load_dwordx2 v[254:255], v2, s[8:11], s27 offen sc1")
    p2_consts(k)
    k("s_cmp_lg_u32 s20, 0\ns_cbranch_scc1 L_pollx_w0\ns_branch L_look_a")
    k.label("L_poll_a")
    k("buffer_load_dwordx2 v[254:255], v2, s[8:11], s56 offen sc1")
    k.label("L_look_a")
    k("s_sub_u32 s57, s57, 1\ns_waitcnt vmcnt(0)\nv_cmp_eq_u64 vcc, s[100:101], v[254:255]\ns_cmp_eq_u32 s57, 0\ns_cbranch_scc1 L_pollx_a\ns_cmp_eq_u64 vcc, -1\ns_cbranch_scc0 L_poll_a")
    k.label("L_pollx_a")
    k.label("L_pollx_w0")
    k("s_barrier")
    stamp(k, 1)
    fresh(k)
    loads = [tl(f"buffer_load_dwordx4 a[{4*(2*ks+tb)}:{4*(2*ks+tb)+3}], v1, s[8:11], s{23+tb} offen offset:{(ks%4)*1024}{LD}", ("x", ks),
                f"s_add_u32 s{23+tb}, s{23+tb}, 4096" if ks % 4 == 3 else "") for ks in range(18) for tb in range(2)]
    ACC, WB, NR, LA = 16, 72, 14, 7
    AH = int(envs("AH1", "10")); TK = int(envs("TK", "6")); QK1 = int(envs("QK1", "0")); SIG = int(envs("SIG", "16"))
    for f in loads[:AH]: f.fn(k)
    pi = AH
    k(f"s_mul_i32 s30, s22, {5*65536}\ns_lshl_b32 s27, s26, 10\ns_add_u32 s30, s30, s27\ns_add_u32 s30, s30, s53")
    k(f"s_lshl_b32 s56, s22, 7\ns_lshl_b32 s27, s21, 3\ns_add_u32 s56, s56, s27\ns_add_u32 s56, s56, {FB}\ns_add_u32 s56, s56, s51\ns_cmp_eq_u32 s20, 0\ns_cselect_b32 s56, s56, {BIG}")
    k(f"s_mov_b32 s32, {fbits(18 ** -0.5 * LOG2E)}\ns_mov_b32 s33, s32\nv_cmp_eq_u32 vcc, 0, v4\nv_cmp_eq_u32 s[34:35], 3, v4\nv_mov_b32 v8, s32\nv_mov_b32 v10, 0x3f803f80")
    k("v_cndmask_b32 v8, 1.0, v8, vcc\nv_mov_b32 v9, v8")
    k(f"s_lshl_b32 s27, s20, 10\ns_add_u32 s28, s27, 8192\nv_add_u32 v6, s28, v1\nv_add_u32 v7, s28, v5\ns_add_u32 s27, s27, {QB}\nv_add_u32 v11, s27, v1")
    k(f"s_lshl_b32 s36, s20, 1\ns_lshl_b32 s37, s21, 2\ns_add_u32 s37, s37, s36\ns_sub_i32 s37, s37, 8\ns_lshl_b32 s25, s37, 10\ns_mul_i32 s27, s22, {5*65536}\ns_add_u32 s25, s25, s27\ns_add_u32 s25, s25, s53")
    k(f"s_cmp_lt_i32 s37, 0\ns_cselect_b32 s25, {BIG}, s25\ns_lshl_b32 s36, s36, 10\ns_ashr_i32 s37, s37, 2\ns_cmp_lt_i32 s37, 0\ns_cselect_b32 s37, s21, s37")
    k(f"s_lshl_b32 s37, s37, 3\ns_lshl_b32 s27, s22, 7\ns_add_u32 s37, s37, s27\ns_add_u32 s37, s37, {FB}\ns_add_u32 s38, s37, s51\nv_mov_b32 v12, 0")
    if EARLY == "f": k(f"s_cmp_eq_u32 s67, 0\ns_cbranch_scc1 2\ns_waitcnt vmcnt({AH + 24})\ns_branch 1")
    k(f"s_waitcnt vmcnt({AH})\ns_barrier\nv_mov_b32 v3, v1\nv_add_u32 v2, 0x10000, v1")
    K1 = 18 - TK
    units = [(sl, ks) for ks in range(K1) for sl in range(7 if ks < QK1 else 5)]
    units += [(sl, ks) for sl in range(5) for ks in range(K1, 18)]
    n2 = len(units)
    QS = int(envs("QS", "3"))
    units += [(sl, ks) for ks in range(QK1, 18 - QS) for sl in (5, 6)] + [(sl, ks) for sl in (5, 6) for ks in range(18 - QS, 18)]
    def rd(n):
        sl, ks = units[n]; i = ks * 5 + sl if sl < 5 else 90 + 2 * ks + sl - 5; r = WB + 4 * (n % NR)
        return lgl(f"ds_read_b128 v[{r}:{r+3}], v{3 if i < 64 else 2} offset:{(i % 64) * 1024}", ("w", n))
    def epi(sl):
        a = ACC + 8 * sl; L = []
        if sl >= 4: L += [line(f"v_pk_mul_f32 v[{a+i}:{a+i+1}], v[{a+i}:{a+i+1}], " + ("v[8:9]" if sl == 4 else "s[32:33]")) for i in (0, 2, 4, 6)]
        L += [line(f"v_cvt_pk_bf16_f32 v{a+i}, v{a+2*i}, v{a+2*i+1}") for i in range(4)]
        if sl == 4: L += [line(f"v_cndmask_b32 v{a+i}, v{a+i}, v10, s[34:35]") for i in range(4)]
        if sl < 5: L += [vml(f"buffer_store_dwordx4 v[{a}:{a+3}], v1, s[8:11], s30 offen sc1", cost=8)] + ([line("s_add_u32 s30, s30, 65536")] if sl < 4 else [])
        else: L += [lgl(f"ds_write_b128 v11, v[{a}:{a+3}] offset:{(sl - 5) * 4096}", cost=8)]
        return L
    own = [lgl(f"ds_write_b128 v{6 if sl < 2 else 7}, v[{ACC+8*sl}:{ACC+8*sl+3}] offset:{sl*12288}", cost=8) for sl in range(5)]
    for n in range(LA): rd(n).fn(k)
    seen = set(); side = []; lastu = {sl: max(n for n, u in enumerate(units) if u[0] == sl) for sl in range(7)}
    sig = min(n2 + SIG, len(units)); delay = 0
    for n, (sl, ks) in enumerate(units):
        if n == sig:
            assert not side
            stamp(k, 4)
            k.wait_vm_all(); k("s_barrier"); publish(k); side += own
            stamp(k, 5)
        if n == len(units) - int(envs("LOOK", "6")): k.vm("buffer_load_dwordx2 v[252:253], v12, s[8:11], s38 offen sc1", "look")
        if ks not in seen:
            while k.vmq.count(("x", ks)) < 2: loads[pi].fn(k); pi += 1
            k.wait_vm(("x", ks)); seen.add(ks)
        k.wait_lg(("w", n))
        if n == 0: stamp(k, 2)
        for tb in range(2):
            a = ACC + 4 * (2 * sl + tb); w = WB + 4 * (n % NR); x = 4 * (2 * ks + tb)
            k(f"{MF} v[{a}:{a+3}], v[{w}:{w+3}], a[{x}:{x+3}], " + ("0" if ks == 0 else f"v[{a}:{a+3}]"))
            left = 12
            if tb == 0 and n + LA < len(units): rd(n + LA).fn(k); left -= 4
            if pi < len(loads) and len(k.vmq) - k.vm_done < AH + 2 and tb == 1: loads[pi].fn(k); pi += 1; left -= 8
            while side and delay <= 0 and side[0].cost <= left: left -= side[0].cost; side.pop(0).fn(k)
        delay -= 1
        for s2, lu in lastu.items():
            if lu == n:
                assert s2 < 5 or n >= sig
                side += epi(s2); delay = 2
    assert pi == len(loads) and sig < len(units)
    k.wait_vm("look")
    k("v_cmp_eq_u64 vcc, s[100:101], v[252:253]\ns_mov_b32 s56, s37\nv_mov_b32 v2, 0\ns_cmp_eq_u64 vcc, -1\ns_cbranch_scc1 L_pollx_b")
    poll(k, "b", wg=False)
    stamp(k, 6)
    for b in (0, 1, 4, 2, 3):
        k(f"s_add_u32 m0, s36, {b*12288}\ns_add_u32 s28, s25, {b*65536}")
        for c in range(2): k(f"buffer_load_dwordx4 v{1 if b < 2 else 5}, s[8:11], s28 offen offset:{c*1024} lds")
    for f in side: f.fn(k)
    if EARLY in ("p0", "f"): publish_fp(k, FP)
    k.wait_lg_all(); k("s_barrier")
    stamp(k, 3)
    k(f"s_cmp_lg_u32 s20, 0\ns_cbranch_scc1 L_pollx_w1\ns_cmp_lg_u32 s50, 0\ns_cbranch_scc1 L_pollx_w1\ns_mov_b32 s56, {FW}\nv_min_u32 v2, 53, v0\nv_lshlrev_b32 v2, 3, v2")
    poll(k, "w1", wg=False)
    if EARLY == "b": early_blocks(k)

Q, M1, M2, L8, LO, HI, BP, KA, KB_, VA, VB, QA, QX, L4, OBV = 16, 232, 236, 240, 241, 242, 243, 244, 245, 246, 247, 248, 249, 250, 12
XW, XR, XB, OX = 251, 230, 231, 100 * KBY
def p2_consts(k):
    k("s_and_b32 s29, s20, 1\ns_lshr_b32 s30, s20, 1\ns_mul_i32 s36, s29, 12288\ns_lshl_b32 s37, s30, 11\ns_add_u32 s36, s36, s37\ns_add_u32 s37, s37, 49152")
    k(f"s_lshl_b32 s33, s29, 12\ns_lshl_b32 s34, s30, 11\ns_add_u32 s33, s33, s34\ns_add_u32 s33, s33, {QB}\nv_add_u32 v{QA}, s33, v1")
    k(f"v_bfe_u32 v4, v0, 4, 2\nv_and_b32 v5, 1, v4\nv_lshlrev_b32 v5, 7, v5\nv_xor_b32 v5, v5, v1")
    k(f"v_and_b32 v12, 15, v0\nv_lshlrev_b32 v3, 4, v12\ns_add_u32 s34, s37, 8192\nv_add_u32 v{QX}, s34, v3\nv_add_u32 v{KA}, s36, v1\nv_add_u32 v{KB_}, s37, v5")
    k("v_and_b32 v3, 63, v0\nv_and_b32 v6, 3, v3\nv_lshrrev_b32 v7, 2, v3\nv_and_b32 v8, 1, v3\nv_lshlrev_b32 v8, 3, v8\nv_xor_b32 v7, v7, v8\nv_lshl_add_u32 v7, v6, 4, v7\nv_lshlrev_b32 v7, 4, v7")
    k(f"s_add_u32 s36, s36, 24576\nv_add_u32 v{VA}, s36, v7\nv_add_u32 v{VB}, s37, v7")
    k("s_lshl_b32 s49, s21, 2\ns_lshl_b32 s33, s30, 1\ns_add_u32 s49, s49, s33")
    k(f"v_lshlrev_b32 v6, 2, v4\nv_mov_b32 v7, {fbits(-1e30)}")
    for i in range(4):
        k(f"v_add_u32 v8, {i}, v6\nv_cmp_gt_u32 vcc, v8, v12\ns_nop 1\nv_cndmask_b32 v{M1+i}, v7, 0, vcc\nv_cndmask_b32 v{M2+i}, 0, v7, vcc")
    k(f"v_cmp_eq_u32 s[38:39], 1, v4\nv_lshlrev_b32 v{BP}, 2, v12\nv_add_u32 v{BP}, 128, v{BP}")
    k("s_cmp_eq_u32 s29, 1\ns_cselect_b64 s[40:41], -1, 0")
    k("s_andn2_b64 s[42:43], s[38:39], s[40:41]\ns_and_b64 s[44:45], s[38:39], s[40:41]")
    k(f"s_lshl_b32 s36, s30, 12\ns_add_u32 s36, s36, {OX}\ns_lshl_b32 s37, s29, 3\ns_add_u32 s37, s37, s36\nv_add_u32 v{XW}, s37, v1\ns_lshl_b32 s37, s29, 11\ns_add_u32 s37, s37, s36\nv_add_u32 v{XR}, s37, v1")
    k(f"s_lshl_b32 s47, s49, 1\ns_mul_i32 s46, s47, {18*KBY}\ns_add_u32 s46, s46, {OFF_OF}\ns_mul_i32 s37, s29, {36*KBY}\ns_add_u32 s47, s46, s37\ns_lshl_b32 s37, s22, 10\ns_add_u32 s47, s47, s37\ns_add_u32 s48, s47, {18*KBY}")
    k(f"s_lshl_b32 s37, s22, 7\ns_add_u32 s46, s46, s37\ns_add_u32 s46, s46, {16*KBY}\ns_cmp_eq_u32 s29, 0\ns_cselect_b32 s46, s46, {BIG}")
    k(f"v_mul_u32_u24 v{L4}, {18*KBY}, v4\nv_lshl_add_u32 v{L4}, v12, 3, v{L4}\ns_lshl_b32 s36, s30, 9\ns_add_u32 s36, s36, {OX + 8192}\nv_lshrrev_b32 v{XB}, 1, v1\nv_add_u32 v{XB}, s36, v{XB}\ns_lshl_b32 s37, s29, 2\nv_add_u32 v{L8}, s37, v{XB}")
    k(f"v_mov_b32 v{LO}, {fbits(2.0**-30)}\nv_mov_b32 v{HI}, {fbits(2.0**30)}\ns_mov_b64 s[64:65], {-1 if FORCE_EXACT else 0}")
    k(f"s_lshr_b32 s58, s17, 2\ns_mul_i32 s58, s58, {90*KBY}\ns_add_u32 s58, s58, {OFF_WO}\ns_lshl_b32 s59, s20, 12\ns_add_u32 s58, s58, s59")
    k(f"s_lshl_b32 s39, s21, 7\ns_lshl_b32 s27, s22, 3\ns_add_u32 s39, s39, s27\ns_add_u32 s39, s39, {FC}")
def p2_attn(k):
    KR, VR = 0, 80
    for i in range(4):
        off = (i >> 1) * 1024 + (i & 1) * 8
        k.lg(f"ds_read_b64 v[{Q+4*i}:{Q+4*i+1}], v{QA} offset:{off}", "q"); k.lg(f"ds_read_b64 v[{Q+4*i+2}:{Q+4*i+3}], v{QX} offset:{off}", "q")
    def kread(kt):
        off = (kt >> 1) * 1024 + (kt & 1) * 8
        return [lgl(f"ds_read_b64 a[{KR+4*kt}:{KR+4*kt+1}], v{KA} offset:{off}", ("k", kt)), lgl(f"ds_read_b64 a[{KR+4*kt+2}:{KR+4*kt+3}], v{KB_} offset:{off}", ("k", kt))]
    def vread(p):
        return [lgl(f"ds_read_b64_tr_b16 a[{VR+8*p+4*b+2*hf}:{VR+8*p+4*b+2*hf+1}], v{VA+b} offset:{p*1024 + hf*8}", ("v", p)) for b in range(2) for hf in range(2)]
    for f in [f for kt in range(16, 20) for f in kread(kt)]: f.fn(k)
    k.wait_lg("q")
    for f in vread(8) + vread(9): f.fn(k)
    for i in range(4):
        k(f"v_cndmask_b32 v{Q+4*i+2}, 0, v{Q+4*i+2}, s[42:43]\nv_cndmask_b32 v{Q+4*i+3}, 0, v{Q+4*i+3}, s[44:45]")
    k("v_bfe_u32 v10, v0, 3, 3\nv_mul_u32_u24 v10, 1152, v10\nv_and_b32 v11, 7, v0\nv_lshl_add_u32 v10, v11, 4, v10\nv_add_u32 v11, 9216, v10")
    k("s_mov_b32 s56, s39\ns_waitcnt lgkmcnt(0)")
    stamp(k, 11)
    fresh(k)
    S0 = 48; OA = S0 + 144; TM = OA + 32
    def landed(k):
        if EARLY == "b": k("s_cmp_eq_u32 s67, 0\ns_cbranch_scc1 2\ns_waitcnt vmcnt(24)\ns_branch 1")
        k("s_waitcnt vmcnt(0)\ns_barrier")
        stamp(k, 7)
    def kv_read(k):
        k.wait_lg_all(); k("s_mov_b32 m0, s59\ns_waitcnt vmcnt(0)\ns_barrier")
        if EARLY == "b":
            k("v_mov_b32 v254, s100\nv_mov_b32 v255, s101")
            publish_fp(k, FP)
    def run(mf, valu, gap_first=0, frac=0.9):
        tot = sum(f.cost for f in valu); acc = 0; mi = 0
        for f in valu:
            while mi < len(mf) and acc >= gap_first + (tot - gap_first) * mi / max(len(mf), 1) * frac:
                mf[mi](k); mi += 1
            f.fn(k); acc += f.cost
        while mi < len(mf): mf[mi](k); mi += 1
    def epi(i, check):
        o = OA + 8 * i; t = TM + 2; l = TM + 4; z = TM + 5
        L = [line(f"v_mov_b32 v{l}, v{o+7}\nv_mov_b32 v{t}, v{o+7}", 8),
             line(f"v_cndmask_b32 v{o+4}, v{o+4}, v{o+6}, s[40:41]"), line(f"v_cndmask_b32 v{o+5}, v{o+5}, v{o+7}, s[40:41]"),
             line(f"v_permlane32_swap_b32 v{t}, v{l}\nv_mov_b32 v{t}, v{l}\ns_nop 1\nv_permlane16_swap_b32 v{t}, v{l}", 20), line(f"v_rcp_f32 v{t}, v{l}", 8)]
        if check:
            L += [line(f"v_med3_f32 v{z}, v{l}, v{LO}, v{HI}"), line(f"v_sub_f32 v{z}, v{z}, v{l}")]
            L += [line(f"v_fma_f32 v{z}, v{o+j}, 0, v{z}") for j in range(6)]
            L += [line(f"v_cmp_neq_f32 vcc, 0, v{z}")]
        else: L += [line("s_nop 0")]
        for j in (0, 2, 4): L.append(line(f"v_pk_mul_f32 v[{o+j}:{o+j+1}], v[{o+j}:{o+j+1}], v[{t}:{t+1}] op_sel_hi:[1,0]"))
        if check: L.append(line("s_or_b64 s[64:65], s[64:65], vcc"))
        for j in (2, 0, 1): L.append(line(f"v_cvt_pk_bf16_f32 v{o+(j if j < 2 else 6)}, v{o+2*j}, v{o+2*j+1}"))
        L.append(lgl(f"ds_bpermute_b32 v{TM+3}, v{BP}, v{o+6}", ("bp", i)))
        L.append(lgl(f"ds_write_b64 v{XW}, v[{o}:{o+1}] offset:{i*1024}"))
        L2 = [line(f"s_mov_b32 vcc_lo, {(0xffff, 0xffff0000, 0, 0)[i]}\ns_mov_b32 vcc_hi, {(0, 0, 0xffff, 0xffff0000)[i]}", 8),
              F(lambda k: (k.wait_lg(("bp", i)), k(f"v_cndmask_b32 v{OBV}, v{OBV}, v{TM+3}, vcc")), 8)]
        if i == 3: L2.append(lgl(f"ds_write_b32 v{L8}, v{OBV}"))
        return (L, L2) if check else L + L2
    def variant(lim, fast, first):
        nm = f"{'f' if fast else 'e'}{'' if first else 'r'}{lim}"
        k.label(f"L_attn_{nm}")
        k.lgq = []; k.lg_done = 0
        tiles = lambda i: list(range(max(i, lim), i + 17))
        pairs = lambda i: list(range(max(i, lim) >> 1, ((i + 16) >> 1) + 1))
        kreads, vreads, extra = [], [], []
        if first:
            kreads = [f for kt in range(lim, 16) for f in kread(kt)]
            vreads = [f for p in range(lim // 2, 8) for f in vread(p)]
            wo = [kv_read]
            for q in range(6):
                for c in range(4):
                    wo.append(lambda k, c=c: k(f"buffer_load_dwordx4 v1, s[8:11], s58 offen offset:{c*1024} lds" + ("\ns_add_u32 m0, m0, 16384\ns_add_u32 s58, s58, 16384" if c == 3 else "")))
            def pkl(u):
                def f(k):
                    k(f"s_cmp_eq_u32 s67, 0\ns_cbranch_scc1 L_pk_{nm}_{u}")
                    for i in range(4): k(f"buffer_load_dwordx4 {lpark(u, i)}, v{10 + (i & 1)}, s[60:63], s{72 + 2*u + (i >> 1)} offen nt")
                    k.label(f"L_pk_{nm}_{u}")
                return f
            extra = wo[:1] + [pkl(0), pkl(1), pkl(2)] + wo[1:]
            if envs("NOWO", ""): extra = extra[:4]
            if EARLY == "w":
                def pkb(n):
                    def f(k):
                        k(f"s_cmp_eq_u32 s67, 0\ns_cbranch_scc1 L_pb_{nm}_{n}")
                        if n == 0: stage_addr(k)
                        pack_block(k, n, 6)
                        k.label(f"L_pb_{nm}_{n}")
                    return f
                extra = [pkl(0), pkl(1), pkl(2), pkb(0), pkb(1), wo[0]]
                for n in range(6): extra += [pkb(2 + n)] + wo[1 + 28 * n // 6: 1 + 28 * (n + 1) // 6]
        def qk1(i, kt, s):
            c = f"v[{M2}:{M2+3}]" if kt == i + 16 else f"v[{M1}:{M1+3}]" if kt == i else "0"
            def f(k):
                if first and kt < 16: k.wait_lg(("k", kt))
                k(f"{MF} v[{s}:{s+3}], a[{KR+4*kt}:{KR+4*kt+3}], v[{Q+4*i}:{Q+4*i+3}], {c}")
            return f
        def pv1(i, p, b, s, zero):
            o = OA + 8 * i + 4 * b
            def f(k):
                if first and p < 8: k.wait_lg(("v", p))
                k(f"{MF} v[{o}:{o+3}], a[{VR+8*p+4*b}:{VR+8*p+4*b+3}], v[{s}:{s+3}], " + ("0" if zero else f"v[{o}:{o+3}]"))
            return f
        if fast:
            steps = [(i, p) for i in range(4) for p in pairs(i) if p >= 8]; NL = len(steps)
            steps += [(i, p) for i in range(4) for p in pairs(i) if p < 8]
            QL = 2; NB = 10; SPC = int(envs("SP", "14"))
            buf = lambda s: S0 + 8 * (s % NB)
            def qks(s):
                if s >= len(steps): return []
                i, p = steps[s]
                return [qk1(i, 2 * p + hf, buf(s) + 4 * hf) for hf in range(2) if 2 * p + hf in tiles(i)]
            def pvs(s):
                if not 0 <= s < len(steps): return []
                return [pv1(*steps[s], b, buf(s), all(steps[t][0] != steps[s][0] for t in range(s))) for b in range(2)]
            def exps(s):
                if s >= len(steps): return []
                i, p = steps[s]; b = buf(s); va, vb = 2 * p in tiles(i), 2 * p + 1 in tiles(i)
                E = lambda r: line(f"v_exp_f32 v{r}, v{r}", 8); C = lambda d, r: line(f"v_cvt_pk_bf16_f32 v{d}, v{r}, v{r+1}")
                Z = lambda d: line(f"v_mov_b32 v{d}, 0")
                if va and vb: return [E(b), E(b+1), E(b+2), E(b+3), E(b+4), C(b, b), E(b+5), C(b+1, b+2), E(b+6), E(b+7), C(b+2, b+4), C(b+3, b+6)]
                if va: return [E(b), E(b+1), E(b+2), E(b+3), C(b, b), C(b+1, b+2), Z(b+2), Z(b+3)]
                return [E(b+4), E(b+5), E(b+6), E(b+7), Z(b), Z(b+1), C(b+2, b+4), C(b+3, b+6)]
            SB = int(envs("SB", "3"))
            side = [landed] + [f.fn for f in kreads + vreads]
            for s in range(NL):
                for m in qks(s): m(k)
            k("s_nop 2")
            last = {i: max(s for s, (ii, p) in enumerate(steps) if ii == i) for i in range(4)}
            pend = []; pend2 = []; pvp = 0; qp = NL; s = 0; nsteps = len(steps) + 2
            issued = lambda tag: tag in k.lgq
            while pvp < len(steps):
                if s in (NL, NL + 10, NL + 20): stamp(k, 8 + (s - NL) // 10)
                todo = []
                while pvp < min(s, len(steps)) and len(todo) < 2 and not (todo and todo[-1] in last.values()) and (steps[pvp][1] >= 8 or issued(("v", steps[pvp][1]))):
                    todo.append(pvp); pvp += 1
                qs = []
                while qp < min(s + QL + 1, len(steps)) and len(qs) < 2 and issued(("k", 2 * steps[qp][1] + 1)):
                    assert qp - NB < pvp - len(todo) or qp < NB, (qp, pvp)
                    qs.append(qp); qp += 1
                assert qp > s + 1 or qp == len(steps), (lim, s, qp)
                mf = [m for t in todo for m in pvs(t)] + [m for t in qs for m in qks(t)]
                sd = []
                while s >= SB and side and (len(sd) < SPC): sd.append(side.pop(0))
                if s > SB and not side and not sd and extra:
                    q = -(-len(extra) // max(1, nsteps - 2 - s)); sd = extra[:q]; extra = extra[q:]
                va = exps(s)
                if pend and len(va) < 12: va = va + [line("s_nop 7", 32)]
                va = va + pend2 + pend; pend2 = []
                if pend: pend2 = later
                pend = []
                for i in range(4):
                    if last[i] in todo: pend, later = epi(i, True)
                mix = []
                a, b2 = list(mf), list(sd)
                while a or b2:
                    if b2:
                        for _ in range(-(-len(b2) // max(1, len(a)))): mix.append(b2.pop(0))
                    if a: mix.append(a.pop(0))
                if not va: va = [line("s_nop 1")]
                run(mix, va, 9, 0.85)
                s += 1
            for f in side: f(k)
            side = []
            for f in extra: f(k)
            assert not side
            for f in pend2: f.fn(k)
            k("s_nop 7")
            for f in pend + later: f.fn(k)
            k("s_cmp_eq_u64 s[64:65], 0\ns_cbranch_scc1 L_attn_done")
            k(f"s_waitcnt lgkmcnt(0)\ns_branch L_attn_er{lim}")
            return
        sreg = lambda i, kt: S0 + 72 * (i & 1) + 4 * (kt - 2 * (i >> 1))
        qk = lambda i: [qk1(i, kt, sreg(i, kt)) for kt in tiles(i)]
        pv = lambda i: [pv1(i, p, b, sreg(i, 2 * p), p == pairs(i)[0]) for b in range(2) for p in pairs(i)]
        def softmax(i):
            L = []
            regs = [sreg(i, kt) + j for kt in tiles(i) for j in range(4)]
            m = TM; t = TM + 1
            ch = [regs[0::2], regs[1::2]]
            for c in range(2): L.append(line(f"v_max_f32 v{m+c}, v{ch[c][0]}, v{ch[c][1]}"))
            for j in range(2, len(ch[0]), 2):
                for c in range(2): L.append(line(f"v_max3_f32 v{m+c}, v{m+c}, v{ch[c][j]}, v{ch[c][j+1]}"))
            L.append(line(f"v_max_f32 v{m}, v{m}, v{t}"))
            for sw in ("v_permlane16_swap_b32", "v_permlane32_swap_b32"):
                L.append(line(f"v_mov_b32 v{t}, v{m}\ns_nop 1\n{sw} v{m}, v{t}\nv_max_f32 v{m}, v{m}, v{t}", 16))
            for p in pairs(i):
                base = sreg(i, 2 * p)
                for hf in range(2):
                    kt = 2 * p + hf; s = sreg(i, kt)
                    if kt in tiles(i):
                        for j in range(4): L.append(line(f"v_sub_f32 v{s+j}, v{s+j}, v{m}"))
                        for j in range(4): L.append(line(f"v_exp_f32 v{s+j}, v{s+j}", 8))
                for hf in range(2):
                    kt = 2 * p + hf; s = sreg(i, kt)
                    for j in range(2):
                        if kt in tiles(i): L.append(line(f"v_cvt_pk_bf16_f32 v{base+2*hf+j}, v{s+2*j}, v{s+2*j+1}"))
                        else: L.append(line(f"v_mov_b32 v{base+2*hf+j}, 0"))
            return L
        if first: landed(k)
        for f in kreads: f.fn(k)
        for m in qk(0): m(k)
        k("s_nop 7")
        for i in range(4):
            mf = (pv(i - 1) if i >= 1 else []) + (qk(i + 1) if i < 3 else [])
            if i == 0: mf = mf + [f.fn for f in vreads]
            if i == 1: mf = extra + mf
            va = softmax(i)
            if i >= 2: va = epi(i - 2, False) + va
            run(mf, va, 8 if i else 0)
            k("s_nop 1")
        run(pv(3), epi(2, False))
        k("s_nop 7")
        for f in epi(3, False): f.fn(k)
        k("s_branch L_attn_done")
    v = "f" if FAST else "e"
    for lim in (16, 12, 8, 4): k(f"s_cmp_eq_u32 s49, {(16 - lim) // 2}\ns_cbranch_scc1 L_attn_{v}{lim}")
    for lim in (0, 4, 8, 12, 16): variant(lim, FAST, True)
    if FAST:
        for lim in (0, 4, 8, 12, 16): variant(lim, False, False)
    k.label("L_attn_done")
    k(f"s_waitcnt lgkmcnt(0)\ns_barrier\nds_read_b128 v[{OA}:{OA+3}], v{XR}\nds_read_b128 v[{OA+4}:{OA+7}], v{XR} offset:1024\nds_read_b64 v[{OA+8}:{OA+9}], v{XB}")
    k(f"s_waitcnt lgkmcnt(2)\nbuffer_store_dwordx4 v[{OA}:{OA+3}], v1, s[8:11], s47 offen sc1\ns_waitcnt lgkmcnt(1)\nbuffer_store_dwordx4 v[{OA+4}:{OA+7}], v1, s[8:11], s48 offen sc1")
    k(f"s_waitcnt lgkmcnt(0)\nbuffer_store_dwordx2 v[{OA+8}:{OA+9}], v{L4}, s[8:11], s46 offen sc1")
    stamp(k, 12)
    signal(k)
    late_blocks(k)
    stamp(k, 13)

AG, AU, T1, T2, XV, RING = 16, 32, 48, 64, 80, 112
WQR = [RING + 4 * i for i in range(21, 35)] + [RING + 4 * i for i in range(6)] + [AU + 4 * i for i in range(4)] + [RING + 4 * i for i in range(6, 14)]
RESID = RING + 4 * 18
G = 3; LEAD = 36 - G
def wload(p):
    r = RING + 4 * (p % 36)
    if p >= 486: return []
    s = f"buffer_load_dwordx4 v[{r}:{r+3}], v1, s[12:15], s25 offen offset:{(p%4)*1024}"
    return [vml(s, ("w", p), cost=int(envs("LC", "8")))] + ([line("s_add_u32 s25, s25, 4096")] if p % 4 == 3 else [])

PRE = int(envs("PRE", "12")); PRE3 = int(envs("PRE3", "0"))
def ffn_stream(k):
    if envs("FMAP", "2") == "2": k("s_lshl_b32 s21, s19, 1\ns_and_b32 s22, s17, 1\ns_add_u32 s21, s21, s22")
    else: k("s_and_b32 s21, s16, 1\ns_lshl_b32 s21, s21, 2\ns_and_b32 s22, s17, 3\ns_add_u32 s21, s21, s22")
    k(f"s_lshl_b32 s24, s21, 2\ns_add_u32 s24, s24, s20\ns_mul_i32 s24, s24, {486*KBY}\ns_add_u32 s24, s24, {OFF_WF}")
    k(f"s_add_u32 s12, s4, s24\ns_addc_u32 s13, s5, 0\ns_mov_b32 s14, {486*KBY}\ns_mov_b32 s15, 0x00020000\ns_mov_b32 s25, 0")
    k("s_cmp_lg_u32 s20, 0\ns_cbranch_scc1 L_p3_nt")
    poll_fp(k, "p", FP)
    if envs("WT", "1") == "1":
        k(f"v_bfe_u32 v4, v0, 4, 2\nv_mul_u32_u24 v4, {486*KBY}, v4\nv_and_b32 v5, 15, v0\nv_lshl_add_u32 v4, v5, 7, v4\ns_lshr_b32 s30, s17, 1\ns_lshl_b32 s30, s30, 11\ns_add_u32 s30, s30, s24")
        k("buffer_load_dword v6, v4, s[8:11], s30 offen")
    k.label("L_p3_nt")
def p3_wo(k):
    NS = 5; ACC = 16; NB3 = int(envs('NB3', '3')); RES = 240
    ffn_stream(k)
    k("s_lshl_b32 s21, s16, 2\ns_and_b32 s22, s17, 3\ns_add_u32 s26, s21, s22")
    k("s_lshr_b32 s22, s17, 2")
    k("s_lshl_b32 s21, s26, 2\ns_add_u32 s21, s21, s20")
    k(f"s_mul_i32 s23, s21, {18*KBY}\ns_add_u32 s23, s23, {OFF_OF}")
    k(f"s_mul_i32 s28, s21, {18*KBY}\ns_lshl_b32 s27, s22, 11\ns_add_u32 s27, s27, s28\ns_add_u32 s40, s27, {OFF_XF}\ns_add_u32 s41, s27, {OFF_X1}")
    k(f"s_lshr_b32 s29, s22, 2\ns_lshr_b32 s30, s22, 1\ns_lshl_b32 s30, s30, 10\ns_and_b32 s31, s22, 1\ns_lshl_b32 s31, s31, 3\ns_add_u32 s30, s30, s31\ns_add_u32 s30, s30, s28\ns_add_u32 s42, s30, {OFF_XF + 16*KBY}")
    k(f"s_lshl_b32 s30, s22, 9\ns_add_u32 s30, s30, s28\ns_add_u32 s43, s30, {OFF_X1 + 16*KBY}")
    k("v_lshrrev_b32 v10, 1, v1")
    k(f"s_lshr_b32 s56, s26, 1\ns_lshl_b32 s56, s56, 7\ns_add_u32 s56, s56, {FC}\nv_and_b32 v2, 15, v0\nv_lshlrev_b32 v2, 3, v2")
    poll(k, "c")
    stamp(k, 14)
    fresh(k)
    loads = []
    for ks in range(16):
        loads.append(tl(f"buffer_load_dwordx4 a[{4*ks}:{4*ks+3}], v1, s[8:11], s23 offen offset:{(ks%4)*1024}{LD}", ("x", ks), "s_add_u32 s23, s23, 4096" if ks % 4 == 3 else ""))
    for ks in (16, 17):
        for h in range(2): loads.append(tl(f"buffer_load_dwordx2 a[{4*ks+2*h}:{4*ks+2*h+1}], v10, s[8:11], s23 offen offset:{(ks%4)*1024 + 512*h}{LD}", ("x", ks)))
    for pr in range(2): loads.append(tl(f"buffer_load_dwordx4 v[{RES+4*pr}:{RES+4*pr+3}], v1, s[8:11], s40 offen offset:{pr*1024}{LD}", "res"))
    loads.append(tl(f"buffer_load_dwordx2 v[{RES+8}:{RES+9}], v1, s[8:11], s42 offen{LD}", "res"))
    if envs("T3", "0") == "1":
        k(f"v_lshlrev_b32 v4, 3, v1\nv_cmp_gt_u32 vcc, 256, v1\nv_mov_b32 v5, {BIG}\ns_lshl_b32 s30, s22, 11\ns_add_u32 s30, s30, s23\nv_cndmask_b32 v4, v5, v4, vcc")
        k.vm(f"buffer_load_dword v5, v4, s[8:11], s30 offen{LD}", "touch")
    gemm_core(k, 1, NS, loads, int(envs("AH3", "12")), 15, False, NB3, more=[f for p in range(PRE3) for f in wload(p)])
    k.wait_vm("res")
    stamp(k, 16)
    k("s_mov_b32 s31, 0xffff0000\ns_mov_b32 s32, 0x3f803f80\nv_mov_b32 v8, 0\nv_mov_b32 v9, 0\nv_mov_b32 v6, v10\nv_mov_b32 v10, 0\ns_add_u32 s33, s100, s50")
    k(f"v_cmp_gt_u32 vcc, 256, v1\nv_mov_b32 v7, {BIG}\nv_mov_b32 v11, s33\ns_cmp_lg_u32 s29, 0\ns_cbranch_scc1 L_p3_two")
    for pr in (2, 0, 1):
        n = 2 if pr == 2 else 4
        for h in range(n):
            a = ACC + 8 * pr + 2 * h; r = RES + 4 * pr + h
            k(f"v_lshlrev_b32 v4, 16, v{r}\nv_and_b32 v5, s31, v{r}\nv_pk_add_f32 v[4:5], v[4:5], v[{a}:{a+1}]\nv_cvt_pk_bf16_f32 v{r}, v4, v5")
        if pr == 2: k(f"buffer_store_dwordx2 v[{RES+8}:{RES+9}], v6, s[8:11], s43 offen sc1")
        else: k(f"buffer_store_dwordx4 v[{RES+4*pr}:{RES+4*pr+3}], v1, s[8:11], s41 offen offset:{pr*1024} sc1")
        for h in range(n): k(f"v_dot2c_f32_bf16 v8, s32, v{RES+4*pr+h}\nv_dot2c_f32_bf16 v9, v{RES+4*pr+h}, v{RES+4*pr+h}")
        for h in range(0, n, 2): k(f"v_bitop3_b32 v10, v10, v{RES+4*pr+h}, v{RES+4*pr+h+1} bitop3:0x96")
        if pr == 2: k.label("L_p3_two")
    k(f"v_cndmask_b32 v7, v7, v1, vcc\ns_lshl_b32 s30, s21, 11\ns_lshl_b32 s31, s22, 8\ns_add_u32 s30, s30, s31\ns_add_u32 s30, s30, {OFF_STAT}")
    for sw in ("v_permlane16_swap_b32", "v_permlane32_swap_b32"):
        k(f"v_mov_b32 v4, v10\nv_mov_b32 v5, v8\nv_mov_b32 v6, v9\n{sw} v10, v4\n{sw} v8, v5\n{sw} v9, v6\nv_xor_b32 v10, v10, v4\nv_add_f32 v8, v8, v5\nv_add_f32 v9, v9, v6")
    k("v_bitop3_b32 v10, v10, v8, v9 bitop3:0x96")
    k.vm(f"buffer_store_dwordx4 v[8:11], v7, s[8:11], s30 offen sc1")
    if envs("HINT", "1") == "1":
        k(f"s_lshl_b32 s56, s26, 7\ns_lshl_b32 s27, s22, 3\ns_add_u32 s56, s56, s27\ns_add_u32 s56, s56, {FD}\ns_add_u32 s56, s56, s51\ns_cmp_eq_u32 s20, 0\ns_cselect_b32 s56, s56, {BIG}\ns_barrier")
        publish(k)
    stamp(k, 17)
    if not CKD:
        k(f"s_lshl_b32 s56, s26, 7\ns_lshl_b32 s27, s22, 3\ns_add_u32 s56, s56, s27\ns_add_u32 s56, s56, {FE2}")
        signal(k)
    stamp(k, 18)

def p4_ffn(k):
    xreg = lambda ks, tb: (ar(4 * (ks * 4 + tb), 4) if ks < 16 else vr(XV + 4 * (ks * 4 + tb - 64), 4))
    if envs("FMAP", "2") == "2":
        k("s_lshl_b32 s21, s19, 1\ns_and_b32 s22, s17, 1\ns_add_u32 s21, s21, s22")
        k("s_lshl_b32 s22, s18, 4\ns_lshr_b32 s23, s17, 1\ns_add_u32 s22, s22, s23")
    else:
        k("s_and_b32 s21, s16, 1\ns_lshl_b32 s21, s21, 2\ns_and_b32 s22, s17, 3\ns_add_u32 s21, s21, s22")
        k("s_lshr_b32 s22, s16, 1\ns_lshl_b32 s22, s22, 3\ns_lshr_b32 s23, s17, 2\ns_add_u32 s22, s22, s23")
    assert PRE3 == 0 and PRE >= 12
    k(f"s_mov_b32 s59, 64\ns_mov_b32 s47, {1 if FORCE_RETRY else 0}")
    k.label("L_p4_again")
    fresh(k)
    for p in range(PRE):
        for f in wload(p): f.fn(k)
    k(f"s_lshl_b32 s23, s22, 2\ns_add_u32 s23, s23, s20\ns_lshl_b32 s44, s23, 11\ns_add_u32 s44, s44, {OFF_STAT}\ns_mul_i32 s23, s23, {18*KBY}\ns_add_u32 s23, s23, {OFF_X1}")
    ln_consts(k)
    k("v_and_b32 v12, 15, v0\nv_lshlrev_b32 v12, 4, v12\nv_bfe_u32 v5, v0, 4, 2\nv_lshl_add_u32 v12, v5, 9, v12\ns_add_u32 s46, s100, s50")
    SEL, CK, T, CQ4 = 96, 102, 104, 8
    land = lambda ks: (16 if ks < 6 else 24) + 4 * ks
    k(f"v_bfe_u32 v4, v0, 2, 2\nv_cmp_eq_u32 vcc, v4, v5\nv_and_b32 v4, 1, v0\nv_lshlrev_b32 v4, 4, v4\nv_mov_b32 v{SEL}, 0x3f80\nv_lshlrev_b32 v4, v4, v{SEL}\nv_cndmask_b32 v4, 0, v4, vcc")
    k(f"v_and_b32 v{SEL+1}, 2, v0\nv_cmp_eq_u32 vcc, 0, v{SEL+1}\nv_mov_b32 v{SEL}, 0\nv_mov_b32 v{SEL+1}, 0\nv_mov_b32 v{SEL+4}, 0\nv_mov_b32 v{SEL+5}, 0\nv_cndmask_b32 v{SEL+2}, 0, v4, vcc\nv_cndmask_b32 v{SEL+3}, v4, 0, vcc")
    k(f"s_lshl_b32 s26, s20, 10\nv_mov_b32 v2, v1\nv_add_u32 v3, 0x10000, v1\nv_lshrrev_b32 v7, 1, v1")
    k(f"v_and_b32 v4, 15, v0\nv_lshlrev_b32 v4, 2, v4\nv_add_u32 v4, {144*KBY}, v4\ns_lshl_b32 s33, s20, 6\nv_add_u32 v5, s33, v4")
    HB = 72 * KBY
    k(f"s_mov_b32 s33, {fbits(-LOG2E)}\ns_lshl_b32 s29, s20, 14\ns_add_u32 s29, s29, {HB}\ns_mov_b32 s28, 8\ns_mov_b32 s34, 6")
    k(f"s_lshl_b32 s56, s22, 7\ns_add_u32 s56, s56, {FD}")
    spoll(k, "d", 8)
    k(f"buffer_load_dwordx4 v[{T}:{T+3}], v12, s[8:11], s44 offen{LD}"); k.vmq.append("st")
    k.vm(f"buffer_load_dwordx4 v[{T+4}:{T+7}], v12, s[8:11], s44 offen offset:256{LD}", "st")
    def xload(ks):
        post = [line("s_add_u32 s23, s23, 4096")] if ks % 4 == 3 else []
        if ks < 16: return [vml(f"buffer_load_dwordx4 v[{land(ks)}:{land(ks)+3}], v1, s[8:11], s23 offen offset:{(ks%4)*1024}{LD}", ("x", ks), cost=8)] + post
        return [vml(f"buffer_load_dwordx2 v[{land(ks)+2*h}:{land(ks)+2*h+1}], v7, s[8:11], s23 offen offset:{(ks%4)*1024 + 512*h}{LD}", ("x", ks), cost=8) for h in range(2)]
    k("v_add_u32 v12, s26, v1")
    XA = int(envs("XA", "10"))
    for ks in range(XA):
        for f in xload(ks): f.fn(k)
    k("v_mov_b32 v254, s100\nv_mov_b32 v255, s101")
    publish_fp(k, FP2)
    k(f"s_lshl_b32 s56, s21, 8\ns_add_u32 s56, s56, {FP2}\nv_and_b32 v6, 31, v0\nv_min_u32 v6, 26, v6\nv_lshlrev_b32 v6, 3, v6")
    if STAMP: k("v_readlane_b32 s90, v15, 46\ns_add_u32 s90, s90, 1\ns_nop 1\nv_writelane_b32 v15, s90, 46")
    stamp(k, 19)
    k.wait_vm("st")
    k(f"v_bitop3_b32 v{CK}, v{T}, v{T+1}, v{T+2} bitop3:0x96\nv_bitop3_b32 v{T+2}, v{T+4}, v{T+5}, v{T+6} bitop3:0x96\nv_xor_b32 v{CK}, v{CK}, v{T+2}")
    k(f"v_xor_b32 v{CK+1}, s46, v{T+3}\nv_bitop3_b32 v{CK+1}, v{CK+1}, v{T+7}, s46 bitop3:0xf6")
    k(f"v_add_f32 v{T}, v{T}, v{T+4}\nv_add_f32 v{T+1}, v{T+1}, v{T+5}")
    red_rows(k, T, T + 2)
    k(f"v_mul_f32 v{T}, s31, v{T}\nv_sub_f32 v{CQ4}, 0, v{T}\nv_sub_f32 v{CQ4+1}, 0, v{T}\nv_sub_f32 v{CQ4+2}, 0, v{T}\nv_sub_f32 v{CQ4+3}, 0, v{T}\ns_nop 0")
    def cen_a(ks, d):
        def f(k):
            x = land(ks); k.wait_vm(("x", ks))
            k(f"{MF} v[{d}:{d+3}], v[{SEL+2}:{SEL+5}], v[{x}:{x+3}], v[{CQ4}:{CQ4+3}]")
            k(f"v_bitop3_b32 v{CK}, v{CK}, v{x}, v{x+1} bitop3:0x96\nv_bitop3_b32 v{CK}, v{CK}, v{x+2}, v{x+3} bitop3:0x96")
            k(f"{MF} v[{d+4}:{d+7}], v[{SEL}:{SEL+3}], v[{x}:{x+3}], v[{CQ4}:{CQ4+3}]")
        return f
    def cen_b(ks, d):
        def f(k):
            x = land(ks)
            if ks >= 6: k("s_nop 2")
            for i in range(4): k(f"v_cvt_pk_bf16_f32 v{x+i}, v{d+2*i}, v{d+2*i+1}")
            k.lg(f"ds_write_b128 v12, v[{x}:{x+3}] offset:{(ks % 16) * 4096}")
            if ks == 15: k("v_add_u32 v12, 0x10000, v12")
        return f
    WN = int(envs("WN", "12"))
    rest = [f for ks in range(XA, 12) for f in xload(ks)] + [f for q in range(PRE, PRE + WN) for f in wload(q)] + [f for ks in range(12, 18) for f in xload(ks)]
    rest.append(vml("buffer_load_dwordx2 v[6:7], v6, s[8:11], s56 offen sc1", "fp2", cost=8))
    wq = PRE
    for ks in range(6):
        cen_a(ks, T if ks & 1 else 40)(k)
        if ks == 0:
            red_rows(k, T + 1, T + 2)
            k(f"v_mul_f32 v{T+1}, s31, v{T+1}\nv_fma_f32 v{T+1}, -v{T}, v{T}, v{T+1}\nv_max_f32 v{T+1}, 0, v{T+1}\nv_add_f32 v{T+1}, {fbits(1e-5)}, v{T+1}")
            k.lg(f"ds_write_b32 v5, v{T+1}")
        else: cen_b(ks - 1, 40 if ks & 1 else T)(k)
        for _ in range(int(envs("RP", "2"))):
            if rest: rest.pop(0).fn(k)
    k("s_nop 1")
    cen_b(5, T)(k)
    stamp(k, 20)
    k.wait_lg_all(); k("s_barrier")
    def xreads(lo, hi):
        return [lgl(f"ds_read_b128 {xreg(ks, tb)}, v{2 if ks < 16 else 3} offset:{((ks * 4 + tb) % 64) * 1024}", ("xr", ks)) for ks in range(lo, hi) for tb in range(4)]
    def phase(p0, acc, streams, xr=None, pre_extra=None, budget=8, xwait=None, lead=(LEAD, LEAD)):
        mf = []; pre = {}; loads = []
        for g in range(18 // G):
            def p(k, g=g):
                if pre_extra and g in pre_extra: pre_extra[g](k)
                k.wait_vm(("w", p0 + g * G + G - 1), force=True)
                if xr is not None or xwait: k.wait_lg(("xr", g * G + G - 1))
            pre[len(mf)] = p
            n = 18 + lead[1] - lead[0]
            for q in range(p0 + lead[0] + n * g // 6, p0 + lead[0] + n * (g + 1) // 6):
                assert q < p0 + g * G + 36
                for f in wload(q):
                    f.after = len(mf); f.before = len(mf) + 4 * G; loads.append(f)
            for tb in range(4):
                for j in range(G):
                    ks = g * G + j; r = RING + 4 * ((p0 + ks) % 36); a = acc + 4 * tb
                    mf.append(f"{MF} v[{a}:{a+3}], v[{r}:{r+3}], {xreg(ks, tb)}, " + ("0" if ks == 0 else f"v[{a}:{a+3}]"))
        st = [loads] + streams
        if xr:
            for j, f in enumerate(xr):
                g = j // (4 * G); f.after = max(f.after, 4 * G * g - 4); f.before = 4 * G * (g + 1) - 3
            st.append(xr)
        interleave(k, mf, st, pre=pre, budget=budget)
    def finish():
        L = [line("v_add_u32 v4, s29, v1")]
        for tb in range(4):
            for i in range(4): L.append(line(f"v_mul_f32 v{T1+4*tb+i}, v{T1+4*tb+i}, v{AU+4*tb+i}", after=3))
            for i in range(4): L.append(line(f"v_mul_f32 v{T1+4*tb+i}, v{T1+4*tb+i}, v{T2+4*tb+i}"))
            for i in range(2): L.append(line(f"v_cvt_pk_bf16_f32 v{T2+4*tb+i}, v{T1+4*tb+2*i}, v{T1+4*tb+2*i+1}"))
            L.append(lgl(f"ds_write_b64 v4, v[{T2+4*tb}:{T2+4*tb+1}] offset:{tb*1024}", "hw"))
        L += [line("s_add_u32 s29, s29, s28"), line("s_sub_u32 s28, 4096, s28"), line("s_sub_u32 s34, s34, 1")]
        return L
    def expo():
        L = []
        for tb in range(4):
            for i in range(4): L.append(line(f"v_mul_f32 v{T1+4*tb+i}, v{5+tb}, v{AG+4*tb+i}", after=2))
            for i in range(4): L.append(line(f"v_exp_f32 v{T2+4*tb+i}, v{T1+4*tb+i}", 8))
            for i in range(4): L.append(line(f"v_fma_f32 v{T2+4*tb+i}, v{T2+4*tb+i}, v{9+tb}, v{9+tb}"))
            for i in range(4): L.append(line(f"v_rcp_f32 v{T2+4*tb+i}, v{T2+4*tb+i}", 8))
        for j, f in enumerate(L): f.head = j % 16 < 4
        return L
    for f in xreads(0, 3): f.fn(k)
    stamp(k, 21); stamp(k, 30, True)
    L0 = int(envs("L0", "24"))
    mf = []; pre = {}; loads = list(rest); reads = []; cen = []; misc = []
    for j, f in enumerate(loads): f.before = 2 + 2 * j
    P1_ = PRE + WN; nw = 36 + L0 - P1_; G0 = 2 if WN else 0
    def bar(k): k.wait_lg_all(); k("s_barrier")
    for g in range(12):
        c, mat, h = g >> 2, (g >> 1) & 1, g & 1
        def p(k, g=g, c=c, mat=mat, h=h):
            if g in (3, 7): bar(k)
            k.wait_vm(("w", 3 * g + 2))
            if not mat: k.wait_lg(("xr", 6 * c + 3 * h + 2))
        pre[12 * g] = p
        for q in range(P1_ + nw * max(0, g - G0) // (12 - G0), P1_ + nw * max(0, g + 1 - G0) // (12 - G0)):
            assert q < 3 * g + 36
            for f in wload(q):
                f.after = 12 * g; f.before = 12 * (g + 1); loads.append(f)
        for tb in range(4):
            for j in range(3):
                ks = 6 * c + 3 * h + j; r = RING + 4 * (3 * g + j); a = (AU if mat else AG) + 4 * tb
                mf.append(f"{MF} v[{a}:{a+3}], v[{r}:{r+3}], {xreg(ks, tb)}, " + ("0" if ks == 0 else f"v[{a}:{a+3}]"))
        if (g & 3) in (0, 3) and g != 11:
            lo = 6 * c + 3 if (g & 3) == 0 else 6 * c + 6
            for f in xreads(lo, lo + 3):
                f.after = 12 * g + (2 if g == 8 else 0); f.before = 12 * (g + 1) - 3; reads.append(f)
    for c in (1, 2):
        for j in range(6):
            at = 48 * (c - 1) + (5 if c == 2 else 6) * j
            cen += [F(cen_a(6 * c + j, T), 8, after=at, before=at + 1), F(cen_b(6 * c + j, T), 8, after=at + 4, before=at + 5)]
    def verdict(k):
        red_rows(k, CK, T, "v_xor_b32")
        k(f"v_or_b32 v{CK}, v{CK}, v{CK+1}\nv_cmp_ne_u32 vcc, s47, v{CK}\ns_lshl_b32 s30, s20, 2\ns_add_u32 s30, s30, {144*KBY + 256}\nv_mov_b32 v{T}, s30\ns_cmp_lg_u64 vcc, 0\ns_cselect_b32 s30, 1, 0\nv_mov_b32 v{T+1}, s30")
        k.lg(f"ds_write_b32 v{T}, v{T+1}")
        k.wait_vm("fp2"); k("v_cmp_eq_u64 s[48:49], s[100:101], v[6:7]")
    cen.append(F(verdict, 8, after=80, before=82))
    misc.append(F(lambda k: (k(f"v_mov_b32 v{T+4}, {144*KBY + 256}"), k.lg(f"ds_read_b128 v[{T}:{T+3}], v{T+4}", "bad"), [k.lg(f"ds_read_b32 v{9+tb}, v4 offset:{64*tb}", "var") for tb in range(4)]), 8, after=84, before=86))
    misc.append(F(lambda k: (k.wait_lg("var"), k(f"v_or3_b32 v{T}, v{T}, v{T+1}, v{T+2}\nv_or_b32 v{T}, v{T}, v{T+3}\ns_nop 0\nv_readfirstlane_b32 s47, v{T}")), 8, after=94, before=97))
    misc += [line(f"v_rsq_f32 v{5+tb}, v{9+tb}", 8) for tb in range(4)] + [line(f"v_sqrt_f32 v{9+tb}, v{9+tb}", 8) for tb in range(4)]
    misc += [line(f"v_mul_f32 v{5+j}, s33, v{5+j}") for j in range(8)]
    ex = expo()
    muls = [f for f in ex if f.head]
    for f in muls: f.after = 123
    interleave(k, mf, [loads, reads, cen, misc + muls], pre=pre, budget=12)
    k(f"s_cmp_lg_u32 s47, 0\ns_cbranch_scc1 L_p4_redo")
    k.label("L_p4_ok")
    k(f"v_add_u32 v2, {HB}, v1\nv_add_u32 v3, {HB + 0x10000}, v1")
    mid = (L0 + LEAD) // 2
    late_ex = [f for f in ex if not f.head]; fi = finish()
    both = fi[:1]
    for tb in range(4): both += late_ex[12*tb:12*tb+12] + fi[1+11*tb:12+11*tb]
    phase(36, AG, [both + fi[45:47]], lead=(L0, mid), budget=12)
    phase(54, AU, [expo()], lead=(mid, LEAD), budget=12)
    its = []
    for fb in range(2, 8):
        m0 = k.mark()
        phase(36 * fb, AG, [finish()])
        phase(36 * fb + 18, AU, [expo()])
        its.append(k.lines[m0:]); del k.lines[m0:]
    k.label("L_ffn_gu")
    k.lines += fold(its)
    k("s_cmp_lg_u32 s34, 0\ns_cbranch_scc1 L_ffn_gu")
    k("v_mov_b32 v4, v2\ns_cmp_eq_u64 s[48:49], -1\ns_cbranch_scc1 L_pollx_p2")
    poll_fp(k, "p2", FP2)
    k("v_mov_b32 v2, v4")
    phase(288, AG, [finish()[:-3]])
    k.wait_lg_all(); k("s_barrier")
    k.lgq = []; k.lg_done = 0
    hr = xreads(0, 15)
    for j, f in enumerate(hr): f.after = 12 * (j // 12 + 1)
    phase(306, AU, [expo(), hr], budget=int(envs("TB", "12")))
    stamp(k, 22); stamp(k, 31, True)
    k(f"s_lshr_b32 s29, s20, 1\ns_lshl_b32 s29, s29, 12\ns_and_b32 s35, s20, 1\ns_lshl_b32 s36, s35, 3\ns_add_u32 s29, s29, s36")
    k(f"v_add_u32 v9, s29, v1\ns_add_u32 s29, s29, {HB + 64*KBY}\ns_lshl_b32 s41, s20, 11\nv_add_u32 v10, s41, v1")
    k(f"s_lshl_b32 s37, s21, 7\ns_lshl_b32 s38, s22, 2\ns_add_u32 s37, s37, s38\ns_mul_i32 s37, s37, {18*KBY}\ns_add_u32 s37, s37, {OFF_PART}")
    k(f"s_lshr_b32 s39, s20, 1\ns_add_u32 s39, s39, 16\ns_lshl_b32 s39, s39, 10\ns_mul_i32 s40, s35, {36*KBY}\ns_add_u32 s39, s39, s40\ns_add_u32 s39, s39, s37")
    k("s_lshl_b32 s38, s20, 10\ns_add_u32 s38, s38, s37")
    k(f"s_lshl_b32 s56, s22, 7\ns_lshl_b32 s27, s21, 3\ns_add_u32 s56, s56, s27\ns_add_u32 s56, s56, {FE}")
    for tb in range(4): k(f"v_add_u32 v{5+tb}, {tb*18*KBY}, v1")
    k(f"s_lshr_b32 s44, s21, 1\ns_lshl_b32 s45, s35, 1\ns_sub_u32 s45, s44, s45\ns_sub_u32 s30, s38, s37\ns_add_u32 s30, s30, {130*KBY}\nv_add_u32 v11, s30, v1")
    k(f"s_sub_u32 s30, s39, s37\ns_sub_u32 s30, s30, s40\ns_add_u32 s30, s30, {130*KBY}\nv_add_u32 v12, s30, v1")
    fin = finish()[:-3]
    NG = 18 // G
    for f in fin: f.before = 4 * G * (NG - 3)
    def late(k):
        k.wait_lg_all(); k("s_barrier")
        for f in xreads(15, 18): f.fn(k)
    phase(324, AG, [fin], pre_extra={NG - 3: late}, xwait=True)
    def cv(acc, dst, hi, after=0):
        return [line(f"v_cvt_pk_bf16_f32 v{dst+4*tb+2*hi+i}, v{acc+4*tb+2*i}, v{acc+4*tb+2*i+1}", after=after) for tb in range(4) for i in range(2)]
    OWN = envs("OWN", "1") == "1"
    uid = [0]
    def keep(src, tb, cmp, vaddr):
        def f(k):
            uid[0] += 1
            k(f"s_cmp_lg_u32 {cmp}, {tb}\ns_cbranch_scc1 2\nds_write_b128 {vaddr}, v[{src+4*tb}:{src+4*tb+3}]")
        if envs("KEEPV", "1") == "1":
            return [line(f"ds_write_b128 v{KA[vaddr] + tb}, v[{src+4*tb}:{src+4*tb+3}]", 8)] if False else [F(f, 8)]
        return [F(f, 8)] if OWN else []
    def st4(src, tb, after, addr="s38", tag=None):
        if envs("NOST", ""): return line("s_nop 0", after=after)
        return vml(f"buffer_store_dwordx4 v[{src+4*tb}:{src+4*tb+3}], v{5+tb}, s[8:11], {addr} offen{envs('PST', ' sc1').replace('_', ' ')}", tag, after=after, cost=8)
    c = cv(AG, T2, 0, 8); join = []
    for tb in range(4): join += c[2*tb:2*tb+2] + [lgl(f"ds_write_b64 v9, v[{T2+4*tb}:{T2+4*tb+1}] offset:{tb*1024}")]
    for f in join: f.before = 36
    def joined(k):
        k.wait_lg_all(); k("s_barrier")
        k.lg(f"ds_read_b128 v[{T2}:{T2+3}], v10", "j"); k.lg(f"ds_read_b128 v[{T2+4}:{T2+7}], v10 offset:1024", "j")
    phase(342, AU, [join, [F(lambda k: k.wait_lg("j"), 4, after=50), st4(T2, 0, 52, "s39"), st4(T2, 1, 62, "s39")] + keep(T2, 0, "s45", "v12") + keep(T2, 1, "s45", "v12")], pre_extra={3: joined})
    kk = KB()
    kk("s_lshl_b32 s28, s22, 3\ns_add_u32 s28, s28, s21\ns_mov_b32 s42, s22\ns_mov_b32 s47, s21")
    kk("v_bfe_u32 v9, v0, 4, 2\nv_lshlrev_b32 v9, 8, v9\nv_bfe_u32 v10, v0, 3, 1\nv_lshl_add_u32 v9, v10, 10, v9\nv_and_b32 v10, 7, v0\nv_lshl_add_u32 v9, v10, 4, v9")
    kk(f"s_and_b32 s31, s28, 1\ns_lshl_b32 s31, s31, 7\ns_lshl_b32 s26, s20, 11\ns_add_u32 s31, s31, s26\nv_add_u32 v9, s31, v9\nv_lshlrev_b32 v4, 3, v10\nv_and_b32 v10, 0x3ff, v9\nv_lshrrev_b32 v10, 1, v10\nv_and_b32 v3, 0x400, v9\nv_add_u32 v10, v10, v3")
    kk(f"s_lshr_b32 s24, s28, 1\ns_mul_i32 s24, s24, {18*KBY}\ns_add_u32 s30, s24, {OFF_X1}")
    kk(f"s_add_u32 s31, s30, 16384\ns_cmp_eq_u32 s20, 0\ns_cselect_b32 s31, s31, {BIG}\ns_add_u32 s32, s30, 8192")
    kk(f"s_add_u32 s46, s56, {FE1 - FE}\ns_add_u32 s46, s46, s51\ns_and_b32 s48, s46, 0xffffff80\ns_cmp_eq_u32 s20, 0\ns_cselect_b32 s46, s46, {BIG}")
    for src in range(7):
        kk(f"s_cmp_gt_u32 s47, {src}\ns_cselect_b32 s26, {src}, {src + 1}\ns_mul_i32 s26, s26, {2304*KBY}\ns_add_u32 s26, s26, s24\ns_add_u32 s{72+src}, s26, {OFF_PART}")
    setup = []; ls = [l.strip() for l in kk.lines]; j = 0
    while j < len(ls):
        n = 2 if (ls[j].startswith("s_cmp") or j + 1 >= len(ls) or not ls[j + 1].startswith("s_cmp")) else 1
        setup.append(line("\n".join(ls[j:j + n]), 8)); j += n
    phase(360, AG, [cv(AU, T1, 0, 8), setup])
    k("s_mov_b32 s34, 2")
    stamp(k, 23); stamp(k, 32, True)
    E2 = envs("E2", "1") == "1"; TBM = E2 and envs("TBM", "1") == "1"
    SCL = int(envs("SCL", "0"))
    def first_half():
        L = []
        for tb in range(4):
            L += [line(f"v_mov_b32 v{T2+4*tb}, v{T1+4*tb}"), line(f"v_mov_b32 v{T2+4*tb+1}, v{T1+4*tb+1}")]
        if SCL: return cv(AG, T1, 1, 8) + [st4(T1, tb, SCL) for tb in range(4)]
        return L + cv(AG, T2, 1, 8) + [f for tb in range(4) for f in keep(T2, tb, "s44", "v11")] + [line("v_add_u32 v11, 0x1000, v11")] + [st4(T2, 0, 30), st4(T2, 1, 60)]
    def pair(p, x0=[], x1=[], pre=None, pre1=None):
        fh = first_half()
        if p == 3 and E2:
            fh = fh[:-2]
            if envs("CMP", "1") == "1":
                for f in fh: f.before = 26
            for tb in range(4):
                fh.append(st4(T2, tb, 26 + 8 * tb, tag=("ps", 3)))
                if envs("CMP", "1") == "1": fh[-1].before = 28 + 8 * tb
        phase(342 + 36 * p, AU, [fh, x0], pre_extra=pre)
        if p == 3: stamp(k, 35, True)
        c0 = cv(AU, T1, 0, 8)
        if p == 3 and TBM:
            p0 = 342 + 36 * p + 18
            mf = [f"{MF} v[{AG+4*tb}:{AG+4*tb+3}], v[{RING+4*((p0+ks)%36)}:{RING+4*((p0+ks)%36)+3}], {xreg(ks, tb)}, " + ("0" if ks == 0 else f"v[{AG+4*tb}:{AG+4*tb+3}]") for tb in range(4) for ks in range(18)]
            for f in c0: f.before = 24
            c1 = cv(AG, T1, 1); out = [line("s_add_u32 s38, s38, 4096")]
            for tb in range(3):
                c1[2*tb].after = 18 * (tb + 1) + 7
                out += c1[2*tb:2*tb+2] + [st4(T1, tb, 0)] + keep(T1, tb, "s44", "v11")
                for f in out[-4:]: f.before = 18 * (tb + 1) + 14
            pre = {0: lambda k: k.wait_vm(("w", 485))}
            for g, fn in pre1.items(): pre[12 * g] = fn
            interleave(k, mf, [c0, out, x1], pre=pre)
            return
        phase(342 + 36 * p + 18, AG, [c0, ([] if SCL or (p == 3 and E2) else [st4(T2, 2, 20), st4(T2, 3, 52, tag=("ps", p))]) + [line("s_add_u32 s38, s38, 4096"), line("s_sub_u32 s34, s34, 1")], x1], pre_extra=pre1)
    its = []
    for p in range(1, 3):
        m0 = k.mark(); pair(p); its.append(k.lines[m0:]); del k.lines[m0:]
    k.label("L_ffn_dn")
    k.lines += fold(its)
    k("s_cmp_lg_u32 s34, 0\ns_cbranch_scc1 L_ffn_dn")
    stamp(k, 24); stamp(k, 33, True)
    tail = [vml(f"buffer_load_dwordx4 v[{RESID+4*i}:{RESID+4*i+3}], v9, s[8:11], s{30+i} offen{LD}", after=14, cost=8) for i in (0, 2)]
    tail += [vml(f"buffer_load_dwordx2 v[{RESID+4+2*h}:{RESID+5+2*h}], v10, s[8:11], s31 offen offset:{512*h}{LD}", after=14, cost=8) for h in range(2)]
    def early(k):
        k.wait_vm(("ps", 2)); k("s_barrier\nv_mov_b32 v2, s100\nv_mov_b32 v3, s101")
        k.vm("buffer_store_dwordx2 v[2:3], v13, s[8:11], s46 offen sc1")
    def early2(k):
        k.wait_vm(("ps", 3)); k(f"s_barrier\ns_sub_u32 s46, s46, {FE1 - FE2}")
        k.vm("buffer_store_dwordx2 v[2:3], v13, s[8:11], s46 offen sc1")
    pair(3, tail, [vml("buffer_load_dwordx2 v[2:3], v4, s[8:11], s48 offen sc1", "e1", after=int(envs("E1AT", "62")), cost=8)], {int(envs("EAT", "5")): early}, {int(envs("E2AT", "5")): early2} if E2 else None)
    stamp(k, 36, True)
    k("s_nop 7" if TBM else "s_nop 5")
    c = cv(AG, T1, 1)
    for tb in range(3 if TBM else 0, 4):
        c[2 * tb].fn(k); c[2 * tb + 1].fn(k); st4(T1, tb, 0).fn(k)
    for tb in range(3 if TBM else 0, 4):
        for f in keep(T1, tb, "s44", "v11"): f.fn(k)
    stamp(k, 25); stamp(k, 34, True)
    k.wait_vm("e1")
    k(f"v_cmp_eq_u64 vcc, s[100:101], v[2:3]\ns_add_u32 s56, s56, s51\ns_cmp_eq_u32 s20, 0\ns_cselect_b32 s56, s56, {BIG}")
    k(f"s_cmp_eq_u64 vcc, {-1 if not envs('NOE1', '') else 5}\ns_cselect_b32 s49, 1, 0\ns_cbranch_scc0 L_ffn_noe")
    for src in range(7): k(f"buffer_load_dwordx4 v[{P5R[0]+4*src}:{P5R[0]+4*src+3}], v9, s[8:11], s{72+src} offen{LD}")
    k("s_waitcnt vmcnt(7) lgkmcnt(0)\ns_branch L_ffn_sig")
    k.label("L_ffn_noe")
    k("s_waitcnt vmcnt(0) lgkmcnt(0)")
    k.label("L_ffn_sig")
    k("s_barrier")
    publish(k)
    stamp(k, 26)

P5R = (48, 76, 16)
def p5_reduce(k, nlayers):
    k(f"v_mov_b32 v8, v9\nv_add_u32 v10, 0x2000, v9\ns_cmp_eq_u32 s20, 0\ns_cselect_b32 s35, 16384, {BIG}\nv_add_u32 v9, s35, v9")
    def ld(i):
        for src in range(7): k.vm(f"buffer_load_dwordx4 v[{P5R[i]+4*src}:{P5R[i]+4*src+3}], v{8+i}, s[8:11], s{72+src} offen{LD}", (src, i))
    k("s_cmp_eq_u32 s49, 1\ns_cbranch_scc1 L_p5_e1\ns_mov_b32 s56, s48\nv_mov_b32 v2, v4")
    poll(k, "e1", wg=False, layer=False)
    ld(0)
    k.label("L_p5_e1")
    k("s_cmp_lg_u32 s20, 0\ns_cbranch_scc1 L_p5_n1")
    ld(1)
    k.label("L_p5_n1")
    k("v_bfe_u32 v4, v0, 4, 2\nv_bfe_u32 v5, v0, 3, 1\nv_and_b32 v6, 7, v0")
    ln_consts(k)
    k("s_mov_b32 s26, 0x00003f80\ns_mov_b32 s27, 0x3f800000")
    D = 136; ACC = 112
    k(f"v_min_u32 v12, 0x4800, v9\nv_add_u32 v11, {130*KBY}, v8\nv_add_u32 v12, {130*KBY}, v12\ns_waitcnt lgkmcnt(0)")
    k(f"ds_read_b128 v[{D}:{D+3}], v11\nds_read_b128 v[{D+4}:{D+7}], v12\nds_read_b128 v[{D+8}:{D+11}], v11 offset:8192")
    k(f"s_lshl_b32 s56, s42, 7\ns_add_u32 s56, s56, {FE}\nv_lshlrev_b32 v2, 3, v6")
    for j in range(12): k(f"v_lshlrev_b32 v{ACC+2*j}, 16, v{RESID+j}\nv_and_b32 v{ACC+2*j+1}, s32, v{RESID+j}")
    k("s_waitcnt lgkmcnt(0)")
    for j in range(12): k(f"v_dot2c_f32_bf16 v{ACC+2*j}, s26, v{D+j}\nv_dot2c_f32_bf16 v{ACC+2*j+1}, s27, v{D+j}")
    if envs("E2", "1") == "1":
        k(f"s_cmp_lt_u32 s20, 2\ns_cselect_b32 s23, {FE - FE2}, 0\ns_sub_u32 s56, s56, s23")
        spoll(k, "e", 8, wg=False)
    elif "e" in SP: spoll(k, "e", 8)
    else: poll(k, "e")
    stamp(k, 27)
    fresh(k)
    ld(2)
    def add(src, i):
        for j in range(4):
            r = P5R[i] + 4 * src + j; a = ACC + 8 * i + 2 * j
            k(f"v_dot2c_f32_bf16 v{a}, s26, v{r}\nv_dot2c_f32_bf16 v{a+1}, s27, v{r}")
    k("s_waitcnt vmcnt(7)")
    for src in range(7): add(src, 0)
    k("s_cmp_lg_u32 s20, 0\ns_cbranch_scc1 L_p5_n2")
    for src in range(7): add(src, 1)
    k.label("L_p5_n2")
    T = D + 16; O = T + 8
    k("s_nop 1")
    for j in range(8): k(f"v_cvt_pk_bf16_f32 v{D+j}, v{ACC+2*j}, v{ACC+2*j+1}")
    k(f"s_add_u32 s25, s24, {OFF_XF}\ns_cmp_eq_u32 s50, 1\ns_cbranch_scc1 L_p5_final")
    saved = (list(k.vmq), k.vm_done)
    for i in range(2): k.vm(f"buffer_store_dwordx4 v[{D+4*i}:{D+4*i+3}], v{8+i}, s[8:11], s25 offen sc1")
    k("s_cmp_eq_u32 s20, 0\ns_cbranch_scc1 L_p5_w0")
    for j in range(4): k(f"v_mov_b32 v{D+4+j}, 0")
    k.label("L_p5_w0")
    for i in range(4): k(f"v_mov_b32 v{T+i}, 0")
    for j in range(8): k(f"v_dot2c_f32_bf16 v{T+(j&1)}, s30, v{D+j}\nv_dot2c_f32_bf16 v{T+2+(j&1)}, v{D+j}, v{D+j}")
    for src in range(7): k.wait_vm((src, 2)); add(src, 2)
    stamp(k, 28)
    k("s_nop 2")
    for j in range(8, 12): k(f"v_cvt_pk_bf16_f32 v{D+j}, v{ACC+2*j}, v{ACC+2*j+1}")
    k(f"buffer_store_dwordx4 v[{D+8}:{D+11}], v10, s[8:11], s25 offen sc1")
    for j in range(8, 12): k(f"v_dot2c_f32_bf16 v{T+(j&1)}, s30, v{D+j}\nv_dot2c_f32_bf16 v{T+2+(j&1)}, v{D+j}, v{D+j}")
    k(f"s_nop 2\nv_add_f32 v{T}, v{T}, v{T+1}\nv_add_f32 v{T+1}, v{T+2}, v{T+3}\ns_nop 1")
    k(f"v_add_f32_dpp v{T}, v{T}, v{T} row_ror:8 row_mask:0xf bank_mask:0xf\nv_add_f32_dpp v{T+1}, v{T+1}, v{T+1} row_ror:8 row_mask:0xf bank_mask:0xf")
    for sw in ("v_permlane16_swap_b32", "v_permlane32_swap_b32"):
        k(f"v_mov_b32 v{T+2}, v{T}\nv_mov_b32 v{T+3}, v{T+1}\ns_nop 0\n{sw} v{T}, v{T+2}\n{sw} v{T+1}, v{T+3}\nv_pk_add_f32 v[{T}:{T+1}], v[{T}:{T+1}], v[{T+2}:{T+3}]")
    k(f"v_lshlrev_b32 v11, 3, v6\nv_add_u32 v11, {150*KBY}, v11\ns_lshl_b32 s23, s20, 6\nv_add_u32 v12, s23, v11")
    k(f"ds_write_b64 v12, v[{T}:{T+1}]\ns_waitcnt lgkmcnt(0)\ns_barrier")
    for w in range(4): k(f"ds_read_b64 v[{T+2*w}:{T+2*w+1}], v11 offset:{64*w}")
    k(f"s_add_u32 s23, s24, {OFF_XN}\ns_waitcnt lgkmcnt(0)")
    k(f"v_pk_add_f32 v[{T}:{T+1}], v[{T}:{T+1}], v[{T+2}:{T+3}]\nv_pk_add_f32 v[{T+4}:{T+5}], v[{T+4}:{T+5}], v[{T+6}:{T+7}]\nv_pk_add_f32 v[{T}:{T+1}], v[{T}:{T+1}], v[{T+4}:{T+5}]")
    ln_stats_finish(k, T, T + 1)
    for i in range(3):
        for j in range(4): ln_norm(k, D + 4 * i + j, O + 4 * i + j, T, T + 1, T + 2 + 2 * (j & 1))
        k(f"buffer_store_dwordx4 v[{O+4*i}:{O+4*i+3}], v{8+i}, s[8:11], s23 offen sc1")
    flag_a_addr(k)
    stamp(k, 29)
    k(f"s_add_u32 s50, s50, 1\ns_add_u32 s51, s51, 32768\ns_mov_b32 s53, {OFF_QKV2}")
    signal(k)
    if STAMP: k("v_mov_b32 v14, v15")
    k("s_branch L_p0_fetch" if nlayers == 2 else "s_branch L_main_fin")
    k.label("L_p4_redo")
    k("s_sub_u32 s59, s59, 1\ns_cmp_eq_u32 s59, 0\ns_cbranch_scc1 L_p4_ok\ns_waitcnt vmcnt(0) lgkmcnt(0)\ns_barrier\ns_mov_b32 s25, 0\ns_mov_b32 s47, 0\ns_branch L_p4_again")
    k.label("L_p5_final")
    srd(k, 12, 6, 2048 * 1152)
    rowmajor(k, 28, 7)
    k(f"s_add_u32 s35, s33, 1024\ns_cmp_eq_u32 s20, 0\ns_cselect_b32 s35, s35, {BIG}\ns_lshl_b32 s25, s20, 7\ns_add_u32 s34, s33, s25\ns_add_u32 s36, s34, 512")
    k.vmq, k.vm_done = saved
    for i in range(3):
        if i == 2:
            for src in range(7): k.wait_vm((src, 2)); add(src, 2)
            stamp(k, 28)
            k("s_nop 2")
            for j in range(8, 12): k(f"v_cvt_pk_bf16_f32 v{D+j}, v{ACC+2*j}, v{ACC+2*j+1}")
            k("s_nop 0")
        k(f"v_permlane16_swap_b32 v{D+4*i}, v{D+4*i+2}\nv_permlane16_swap_b32 v{D+4*i+1}, v{D+4*i+3}")
        k.vm(f"buffer_store_dwordx4 v[{D+4*i}:{D+4*i+3}], v7, s[12:15], s{34+i} offen{FL[envs('OUTST', 's')]}")
    k.label("L_main_fin")
    if DIAG:
        k("s_waitcnt vmcnt(0)"); stamp(k, 50)
        k("s_cmp_lg_u32 s20, 0\ns_cbranch_scc1 L_end\ns_cmp_lg_u32 s2, 100\ns_cbranch_scc1 L_end\ns_sub_u32 s90, s90, s88\ns_mul_i32 s90, s90, 3\ns_min_u32 s90, s90, 100000\ns_memrealtime s[88:89]\ns_waitcnt lgkmcnt(0)")
        k.label("L_dgs")
        k("s_memrealtime s[94:95]\ns_waitcnt lgkmcnt(0)\ns_sub_u32 s94, s94, s88\ns_cmp_lt_u32 s94, s90\ns_cbranch_scc1 L_dgs")
    if STAMP:
        k.wait_vm_all(); stamp(k, 29)
        k(f"s_add_u32 s84, s4, {OFF_STAMP}\ns_addc_u32 s85, s5, 0\ns_mov_b32 s86, 0x2000000\ns_mov_b32 s87, 0x00020000")
        k("s_lshl_b32 s88, s2, 2\ns_add_u32 s88, s88, s20\ns_lshl_b32 s88, s88, 9\nv_lshrrev_b32 v2, 2, v1")
        k("buffer_store_dword v14, v2, s[84:87], s88 offen\nbuffer_store_dword v15, v2, s[84:87], s88 offen offset:256")

def main_k(name, nlayers=2):
    k = KB()
    k.raw(f".globl {name}\n.p2align 8\n.type {name},@function")
    k.label(name)
    k("s_cmp_ge_u32 s2, 256\ns_cbranch_scc1 L_end")
    if STAMP: k("v_mov_b32 v14, 0\nv_mov_b32 v15, 0"); stamp(k, 40)
    if DIAG: k("s_memrealtime s[88:89]\ns_waitcnt lgkmcnt(0)\ns_mov_b32 s90, s88")
    k("s_load_dwordx4 s[36:39], s[0:1], 0\ns_load_dwordx2 s[46:47], s[0:1], 16\ns_load_dwordx4 s[40:43], s[0:1], 32")
    k("s_load_dwordx2 s[44:45], s[0:1], 48\ns_load_dwordx2 s[6:7], s[0:1], 56\ns_load_dwordx2 s[84:85], s[0:1], 64\ns_load_dwordx2 s[4:5], s[0:1], 72")
    k("v_lshrrev_b32 v2, 6, v0\nv_and_b32 v1, 63, v0\nv_readfirstlane_b32 s20, v2\nv_cmp_eq_u32 vcc, 0, v1\nv_lshlrev_b32 v1, 4, v1")
    k("s_and_b32 s16, s2, 7\ns_lshr_b32 s17, s2, 3\ns_bfe_u32 s18, s2, 0x10002\ns_and_b32 s19, s2, 3")
    k(f"v_mov_b32 v13, {BIG}\ns_mov_b32 s50, 0\ns_mov_b32 s51, 0\ns_mov_b32 s53, {OFF_QKV}\ns_mov_b32 s67, 0\nv_cndmask_b32 v13, v13, 0, vcc")
    p0(k)
    k.label("L_layer")
    fresh(k)
    p1_qkv(k); p2_attn(k); p3_wo(k); p4_ffn(k); p5_reduce(k, nlayers)
    k.label("L_end")
    k("s_endpgm")
    return k

def desc(n, vgpr, accum):
    return f""".p2align 6
.amdhsa_kernel {n}
  .amdhsa_next_free_vgpr {vgpr}
  .amdhsa_next_free_sgpr 102
  .amdhsa_accum_offset {accum}
  .amdhsa_group_segment_fixed_size 0
  .amdhsa_kernarg_size 80
  .amdhsa_user_sgpr_count 2
  .amdhsa_user_sgpr_kernarg_segment_ptr 1
  .amdhsa_system_sgpr_workgroup_id_x 1
  .amdhsa_float_denorm_mode_32 3
.end_amdhsa_kernel"""
def build(nlayers=2):
    name = "interleave_layers__sliding_block__swiglu_ffn__prompt_kernel"
    out = ["; x += attn(LN x); x += swiglu(LN x); twice. One persistent kernel, 256 workgroups. Generated by my own script (work/genq.py)."]
    if STAMP:
        if not envs("NOSLEEP", ""): out.append("; @launch kernel=sleep_kernel grid=(1,1,1) block=(64,1,1) lds=0")
        out.append(f"; @launch kernel={name} grid=(256,1,1) block=(256,1,1) lds=163840")
    else: out.append("; @launch grid=(256,1,1) block=(256,1,1) lds=163840")
    out.append('.amdgcn_target "amdgcn-amd-amdhsa--gfx950"\n.text')
    out.append(main_k(name, nlayers).text())
    if STAMP:
        out.append(""".globl sleep_kernel
.p2align 8
.type sleep_kernel,@function
sleep_kernel:
    s_mov_b32 s4, 2000
L_sleep:
    s_sleep 8
    s_sub_u32 s4, s4, 1
    s_cmp_lg_u32 s4, 0
    s_cbranch_scc1 L_sleep
    s_endpgm""")
    out.append('.section .rodata,"a"')
    out.append(desc(name, 512, 256))
    if STAMP: out.append(desc("sleep_kernel", 8, 8))
    return "\n".join(out) + "\n"

if __name__ == "__main__":
    STAMP = "stamp" in sys.argv[2:]
    open(sys.argv[1], "w").write(build(1 if "one" in sys.argv[2:] else 2))
```

```python
import re, sys, os, struct
from kb import *
KBY = 1024
OFF_XF, OFF_XN, OFF_OF, OFF_X1 = 0, 2304*KBY, 4608*KBY, 6912*KBY
OFF_OB = OFF_OF + 2048*KBY
OFF_QKV = 9216*KBY
OFF_PART = 16128*KBY
OFF_WO = 34560*KBY
OFF_WF = 37376*KBY
OFF_STAT = 53248*KBY
OFF_FLAG = 53376*KBY
OFF_QKV2 = 53408*KBY
OFF_WQ = OFF_QKV2 + 6912*KBY
OFF_FLAG = OFF_WQ + 2048*KBY
OFF_STAT = OFF_FLAG + 64*KBY
WS_USED = OFF_STAT + 256*KBY
FA, FB, FC, FE2, FE, FP, FP2, FW, FQ, FE1 = [OFF_FLAG + o for o in (0, 2048, 10240, 12288, 16384, 20480, 22528, 24576, 25600, 27648)]
FD = FB + 2048
BIG = 0x40000000
LOG2E = 1.4426950408889634
def fbits(x): return "0x%08x" % struct.unpack("<I", struct.pack("<f", x))[0]
def envs(n, d): return os.environ.get(n, d)
FL = {"s": " sc1", "p": "", "n": " nt"}
MF = "v_mfma_f32_16x16x32_bf16"
LD = " sc1"
SPIN = 300000
STAMP = False
OFF_STAMP = 200 << 20
POLL1 = envs("POLL1", "1") == "1"
CKD = envs("CKD", "1") == "1"
FORCE_RETRY = envs("FORCE_RETRY", "") == "1"
FAST = envs("FAST", "1") == "1"
FORCE_EXACT = envs("FORCE_EXACT", "") == "1"

DIAG = envs("DIAG", "")
def stamp(k, i, cyc=False):
    if DIAG and not cyc and i == int(DIAG.split(",")[1]):
        n = len(k.lines)
        k(f"s_cmp_lg_u32 s50, {DIAG.split(',')[0]}\ns_cbranch_scc1 L_dg{n}\ns_memrealtime s[90:91]"); k("s_waitcnt lgkmcnt(0)"); k.label(f"L_dg{n}")
    if STAMP:
        k(f"{'s_memtime' if cyc else 's_memrealtime'} s[98:99]"); k.wait_lg_all(); k(f"v_writelane_b32 v15, s98, {i}")
def srd(k, d, base, nbytes):
    k(f"s_mov_b32 s{d}, s{base}\ns_mov_b32 s{d+1}, s{base+1}\ns_mov_b32 s{d+2}, {nbytes}\ns_mov_b32 s{d+3}, 0x00020000")
def sdiv(k, dst, src, D, tmp):
    k(f"s_mov_b32 s{tmp}, {-(-(1<<32)//D)}\ns_mul_hi_u32 s{dst}, s{src}, s{tmp}")
def red_rows(k, v, t, op="v_add_f32"):
    for sw in ("v_permlane16_swap_b32", "v_permlane32_swap_b32"):
        k(f"v_mov_b32 v{t}, v{v}\ns_nop 1\n{sw} v{v}, v{t}\n{op} v{v}, v{v}, v{t}")
def ln_stats_finish(k, s, q):
    k(f"v_mul_f32 v{s}, s31, v{s}\nv_mul_f32 v{q}, s31, v{q}\nv_fma_f32 v{q}, -v{s}, v{s}, v{q}\nv_max_f32 v{q}, 0, v{q}")
    k(f"v_add_f32 v{q}, {fbits(1e-5)}, v{q}\nv_rsq_f32 v{q}, v{q}\ns_nop 0\nv_mul_f32 v{s}, v{s}, v{q}\nv_sub_f32 v{s}, 0, v{s}")
def ln_norm(k, x, dst, s, q, t):
    if envs("PKF", "1") == "1":
        assert q == s + 1 and s % 2 == 0 and t % 2 == 0
        k(f"v_lshlrev_b32 v{t}, 16, v{x}\nv_and_b32 v{t+1}, s32, v{x}\nv_pk_fma_f32 v[{t}:{t+1}], v[{t}:{t+1}], v[{s}:{q}], v[{s}:{q}] op_sel:[0,1,0] op_sel_hi:[1,1,0]\nv_cvt_pk_bf16_f32 v{dst}, v{t}, v{t+1}")
    else: k(f"v_lshlrev_b32 v{t}, 16, v{x}\nv_and_b32 v{t+1}, s32, v{x}\nv_fma_f32 v{t}, v{t}, v{q}, v{s}\nv_fma_f32 v{t+1}, v{t+1}, v{q}, v{s}\nv_cvt_pk_bf16_f32 v{dst}, v{t}, v{t+1}")
def ln_consts(k):
    k(f"s_mov_b32 s30, 0x3f803f80\ns_mov_b32 s31, {fbits(1/576)}\ns_mov_b32 s32, 0xffff0000")
def fold(iters):
    body = []
    assert len({len(x) for x in iters}) == 1, [len(x) for x in iters]
    for ls in zip(*iters):
        if len(set(ls)) == 1: body.append(ls[0]); continue
        ns = [re.fullmatch(r"\s*s_waitcnt vmcnt\((\d+)\)", l) for l in ls]
        assert all(ns), ls
        body.append(f"    s_waitcnt vmcnt({min(int(m.group(1)) for m in ns)})")
    return body
def fresh(k):
    k.vmq = []; k.vm_done = 0; k.lgq = []; k.lg_done = 0

def poll(k, name, wg=True, layer=True):
    if wg: k(f"s_cmp_lg_u32 s20, 0\ns_cbranch_scc1 L_pollx_{name}")
    k(f"s_mov_b32 s57, {SPIN}" + ("\ns_add_u32 s56, s56, s51" if layer else ""))
    if envs("PP", "") and name in "abcde":
        k("buffer_load_dwordx2 v[252:253], v2, s[8:11], s56 offen sc1\ns_sleep 1")
        k.label(f"L_poll_{name}")
        k(f"buffer_load_dwordx2 v[254:255], v2, s[8:11], s56 offen sc1\ns_waitcnt vmcnt(1)\nv_cmp_eq_u64 vcc, s[100:101], v[252:253]\ns_cmp_eq_u64 vcc, -1\ns_cbranch_scc1 L_pollx_{name}")
        k(f"buffer_load_dwordx2 v[252:253], v2, s[8:11], s56 offen sc1\ns_sub_u32 s57, s57, 1\ns_waitcnt vmcnt(1)")
    else:
        k.label(f"L_poll_{name}")
        k(f"buffer_load_dwordx2 v[254:255], v2, s[8:11], s56 offen sc1\ns_sub_u32 s57, s57, 1\ns_waitcnt vmcnt(0)")
    k(f"v_cmp_eq_u64 vcc, s[100:101], v[254:255]\ns_cmp_eq_u32 s57, 0\ns_cbranch_scc1 L_pollx_{name}")
    k(f"s_cmp_eq_u64 vcc, -1\ns_cbranch_scc0 L_poll_{name}")
    k.label(f"L_pollx_{name}")
    if wg: k("s_barrier")
def spoll(k, name, n, wg=True):
    if wg: k(f"s_cmp_lg_u32 s20, 0\ns_cbranch_scc1 L_pollx_{name}")
    k(f"s_mov_b32 s57, {SPIN}\ns_add_u32 s56, s56, s51")
    for c in range(0, n, 8):
        k.label(f"L_poll_{name}{c}")
        k(f"s_load_dwordx16 s[84:99], s[4:5], s56 glc\ns_sub_u32 s57, s57, 1\ns_cmp_eq_u32 s57, 0\ns_waitcnt lgkmcnt(0)\ns_cbranch_scc1 L_pollx_{name}")
        for j in range(84, 100, 2): k(f"s_xor_b64 s[{j}:{j+1}], s[{j}:{j+1}], s[100:101]")
        for j in range(86, 100, 2): k(f"s_or_b64 s[84:85], s[84:85], s[{j}:{j+1}]")
        k(f"s_cbranch_scc0 2\ns_sleep {envs('SLP', '2')}\ns_branch L_poll_{name}{c}")
        if c + 8 < n: k("s_add_u32 s56, s56, 64")
    k.label(f"L_pollx_{name}")
    if wg: k("s_barrier")
def spoll16(k, name):
    k(f"s_cmp_lg_u32 s20, 0\ns_cbranch_scc1 L_pollx_{name}\ns_mov_b32 s57, {SPIN}\ns_add_u32 s56, s56, s51\ns_add_u32 s58, s56, 64")
    k.label(f"L_poll_{name}")
    k(f"s_load_dwordx16 s[68:83], s[4:5], s56 glc\ns_load_dwordx16 s[84:99], s[4:5], s58 glc\ns_sub_u32 s57, s57, 1\ns_cmp_eq_u32 s57, 0\ns_waitcnt lgkmcnt(0)\ns_cbranch_scc1 L_pollx_{name}")
    for j in range(68, 100, 2): k(f"s_xor_b64 s[{j}:{j+1}], s[{j}:{j+1}], s[100:101]")
    for j in range(70, 100, 2): k(f"s_or_b64 s[68:69], s[68:69], s[{j}:{j+1}]")
    k(f"s_cbranch_scc0 2\ns_sleep {envs('SLP', '2')}\ns_branch L_poll_{name}")
    k.label(f"L_pollx_{name}")
    k("s_barrier")
SP = envs("SPOLL", "qe")
def publish(k, addr="s56"):
    k("v_mov_b32 v254, s100\nv_mov_b32 v255, s101")
    k.vm(f"buffer_store_dwordx2 v[254:255], v13, s[8:11], {addr} offen sc1")
def signal(k):
    k(f"s_add_u32 s56, s56, s51\ns_cmp_eq_u32 s20, 0\ns_cselect_b32 s56, s56, {BIG}")
    k.wait_vm_all(); k("s_barrier")
    publish(k)
def token_load(k):
    k("v_mov_b32 v2, 0\nbuffer_load_dwordx2 v[254:255], v2, s[84:87], 0 offen sc1")
def token_get(k, name):
    k(f"s_mov_b32 s57, {SPIN}")
    k.label(f"L_tok_{name}")
    k("v_readfirstlane_b32 s100, v254\nv_readfirstlane_b32 s101, v255\ns_sub_u32 s57, s57, 1\ns_min_u32 s94, s100, s101\ns_cmp_eq_u32 s57, 0\ns_cselect_b32 s94, 1, s94")
    k(f"s_cmp_lg_u32 s94, 0\ns_cbranch_scc1 L_tokx_{name}")
    token_load(k)
    k(f"s_waitcnt vmcnt(0)\ns_branch L_tok_{name}")
    k.label(f"L_tokx_{name}")

def half_lanes(k, shb):
    k("v_bfe_u32 v4, v0, 4, 2\nv_bfe_u32 v5, v0, 3, 1\nv_and_b32 v6, 7, v0")
    k(f"s_and_b32 s21, s{shb}, 1\ns_lshr_b32 s22, s{shb}, 1\ns_lshl_b32 s23, s21, 7")
    k("v_lshlrev_b32 v7, 8, v4\nv_lshl_add_u32 v7, v5, 10, v7\nv_lshl_add_u32 v7, v6, 4, v7\nv_add_u32 v7, s23, v7")
    k(f"s_mul_i32 s24, s22, {18*KBY}")
def rowmajor(k, shb, v):
    k(f"v_mul_u32_u24 v{v}, 1152, v6\nv_lshl_add_u32 v{v}, v5, 6, v{v}\nv_and_b32 v9, 1, v4\nv_lshl_add_u32 v{v}, v9, 5, v{v}\nv_lshrrev_b32 v9, 1, v4\nv_lshl_add_u32 v{v}, v9, 4, v{v}")
    k(f"s_mul_i32 s33, s{shb}, 9216")
def row_sums(k, D, n, T):
    for i in range(4): k(f"v_mov_b32 v{T+i}, 0")
    for j in range(n): k(f"v_dot2c_f32_bf16 v{T+(j&1)}, s30, v{D+j}\nv_dot2c_f32_bf16 v{T+2+(j&1)}, v{D+j}, v{D+j}")
    k(f"s_nop 2\nv_add_f32 v{T}, v{T}, v{T+1}\nv_add_f32 v{T+1}, v{T+2}, v{T+3}\ns_nop 1")
    k(f"v_add_f32_dpp v{T}, v{T}, v{T} row_ror:8 row_mask:0xf bank_mask:0xf\nv_add_f32_dpp v{T+1}, v{T+1}, v{T+1} row_ror:8 row_mask:0xf bank_mask:0xf")
    red_rows(k, T, T + 2); red_rows(k, T + 1, T + 2)
def flag_a_addr(k):
    k(f"s_lshr_b32 s56, s28, 4\ns_lshl_b32 s56, s56, 7\ns_and_b32 s27, s28, 15\ns_lshl_b32 s27, s27, 3\ns_add_u32 s56, s56, s27\ns_add_u32 s56, s56, {FA}")

DST = 68
park = lambda u, i: (f"v[{128+16*u+4*i}:{131+16*u+4*i}]" if u < 3 else f"a[{160+16*(u-3)+4*i}:{163+16*(u-3)+4*i}]")
PK = 220
AMAP = int(envs("AMAP", "2"))
def att_ids(k):
    if AMAP == 2: k("s_lshl_b32 s21, s18, 3\ns_and_b32 s22, s17, 7\ns_add_u32 s21, s21, s22\ns_lshr_b32 s29, s17, 3\ns_lshl_b32 s22, s19, 2\ns_add_u32 s22, s22, s29")
    elif AMAP == 4: k("s_and_b32 s21, s16, 6\ns_lshl_b32 s21, s21, 1\ns_and_b32 s22, s17, 3\ns_add_u32 s21, s21, s22\ns_lshr_b32 s29, s17, 2\ns_and_b32 s22, s16, 1\ns_lshl_b32 s22, s22, 3\ns_add_u32 s22, s22, s29")
    else: k("s_lshl_b32 s21, s16, 1\ns_and_b32 s22, s17, 1\ns_add_u32 s21, s21, s22\ns_lshr_b32 s22, s17, 1")
def wq_base(k):
    att_ids(k)
    k(f"s_mul_i32 s25, s22, {126*KBY}\ns_add_u32 s25, s25, {OFF_WQ}")
def wq_fetch(k, name):
    k(f"s_and_b32 s23, s17, {7 if envs('ROT', '1') == '1' else 0}\ns_lshl_b32 s23, s23, 14\ns_mov_b32 s26, 32")
    k.label(f"L_wqf_{name}")
    k("s_mov_b32 m0, s23\ns_add_u32 s27, s25, s23")
    for c in range(4): k(f"buffer_load_dwordx4 v1, s[8:11], s27 offen offset:{c*1024} lds")
    k(f"s_add_u32 s23, s23, 4096\ns_and_b32 s23, s23, 0x1ffff\ns_sub_u32 s26, s26, 1\ns_waitcnt vmcnt({envs('WQF', '40')})\ns_cmp_lg_u32 s26, 0\ns_cbranch_scc1 L_wqf_{name}")
def stage_addr(k):
    k(f"s_lshl_b32 s66, s20, 13\ns_add_u32 s66, s66, {128*KBY}\nv_add_u32 v10, s66, v1")
    k("v_bfe_u32 v11, v0, 2, 4\nv_lshlrev_b32 v11, 7, v11\nv_and_b32 v252, 3, v0\nv_lshl_add_u32 v11, v252, 3, v11\nv_add_u32 v11, s66, v11")
def pack_block(k, n, nu, dst=lambda u, c: (f"s{DST+c}", (u % 4) * 1024), src=park, PK=220):
    k("s_waitcnt lgkmcnt(0)")
    if 2 <= n < nu + 2:
        u = n - 2
        for c in range(4):
            r, o = dst(u, c)
            k(f"buffer_store_dwordx4 v[{PK+16*(u&1)+4*c}:{PK+16*(u&1)+4*c+3}], v1, s[8:11], {r} offen offset:{o} sc1" + (f"\ns_add_u32 {r}, {r}, 4096" if o == 3072 else ""))
    if 1 <= n <= nu:
        u = n - 1
        for c in range(4):
            for hf in range(2): k(f"ds_read_b64_tr_b16 v[{PK+16*(u&1)+4*c+2*hf}:{PK+16*(u&1)+4*c+2*hf+1}], v11 offset:{(u&1)*4096 + hf*2048 + c*32}")
    if n < nu:
        for i in range(4): k(f"ds_write_b128 v10, {src(n, i)} offset:{(n&1)*4096 + i*1024}")
lpark = lambda u, i: f"a[{208+16*u+4*i}:{211+16*u+4*i}]"
def late_blocks(k):
    k("s_cmp_eq_u32 s67, 0\ns_cbranch_scc1 L_pks")
    stage_addr(k)
    for n in range(5): pack_block(k, n, 3, lambda u, c: (f"s{78+c}", u * 1024), lpark)
    k("s_mov_b32 s67, 0")
    k.label("L_pks")
EARLY = envs("EARLY", "b")
def early_blocks(k):
    k("s_cmp_eq_u32 s67, 0\ns_cbranch_scc1 L_pke")
    stage_addr(k)
    for n in range(8): pack_block(k, n, 6, PK=48)
    k.label("L_pke")
def publish_fp(k, base):
    k(f"s_mov_b32 s30, {-(-(1<<32)//27)}\ns_mul_hi_u32 s27, s2, s30\ns_mul_i32 s27, s27, 5\ns_add_u32 s27, s27, s2\ns_lshl_b32 s27, s27, 3\ns_add_u32 s27, s27, {base}")
    k(f"s_cmp_lt_u32 s2, 216\ns_cselect_b32 s27, s27, {BIG}\ns_cmp_eq_u32 s20, 0\ns_cselect_b32 s27, s27, {BIG}")
    k.vm("buffer_store_dwordx2 v[254:255], v13, s[8:11], s27 offen sc1")
def poll_fp(k, name, base):
    k(f"s_cmp_lg_u32 s50, 0\ns_cbranch_scc1 L_pollx_{name}\ns_lshl_b32 s56, s21, 8\ns_add_u32 s56, s56, {base}\nv_and_b32 v2, 31, v0\nv_min_u32 v2, 26, v2\nv_lshlrev_b32 v2, 3, v2")
    poll(k, name, wg=False)
BG1 = int(envs("BG1", "1"))
BG2 = int(envs("BG2", "3"))
def bg(k, u):
    for i in range(4): k(f"buffer_load_dwordx4 {park(u, i)}, v6, s[60:63], s24 offen nt\ns_add_u32 s24, s24, {8*9216}")
def ptrs(k):
    srd(k, 8, 4, WS_USED); k("s_mov_b32 s86, 256\ns_mov_b32 s87, 0x00020000")
def p0(k):
    k("s_cmp_eq_u32 s20, 1\ns_cbranch_scc1 L_p0_wq\ns_cmp_lg_u32 s20, 0\ns_cbranch_scc1 L_p0_23")
    k("s_lshl_b32 s28, s16, 5\ns_add_u32 s28, s28, s17")
    half_lanes(k, 28); rowmajor(k, 28, 11)
    k("s_waitcnt lgkmcnt(0)")
    srd(k, 12, 36, 2048 * 1152)
    D = 16; T = D + 36; O = T + 8
    for i in range(9): k(f"buffer_load_dwordx4 v[{D+4*i}:{D+4*i+3}], v11, s[12:15], s33 offen offset:{128*i} nt")
    if envs("B0", "2") == "1" or BG1: k("s_barrier")
    ptrs(k); ln_consts(k); flag_a_addr(k)
    stamp(k, 41)
    k(f"s_add_u32 s25, s24, {OFF_XF}")
    for i in range(9):
        k(f"s_waitcnt vmcnt(8)\nv_permlane16_swap_b32 v{D+4*i}, v{D+4*i+2}\nv_permlane16_swap_b32 v{D+4*i+1}, v{D+4*i+3}")
        k(f"buffer_store_dwordx4 v[{D+4*i}:{D+4*i+3}], v7, s[8:11], s25 offen offset:{(i&1)*2048} sc1" + ("\ns_add_u32 s25, s25, 4096" if i & 1 else ""))
    stamp(k, 42)
    token_load(k)
    row_sums(k, D, 36, T); ln_stats_finish(k, T, T + 1)
    k(f"s_add_u32 s23, s24, {OFF_XN}")
    for i in range(9):
        for j in range(4): ln_norm(k, D + 4 * i + j, O + 4 * (i & 1) + j, T, T + 1, T + 2 + 2 * (j & 1))
        k(f"buffer_store_dwordx4 v[{O+4*(i&1)}:{O+4*(i&1)+3}], v7, s[8:11], s23 offen offset:{(i&1)*2048} sc1" + ("\ns_add_u32 s23, s23, 4096" if i & 1 else ""))
    stamp(k, 43)
    if envs("B0", "2") == "2": k("s_barrier")
    k("s_waitcnt vmcnt(0)")
    token_get(k, "a")
    publish(k)
    k("s_branch L_p0_wait")
    k.label("L_p0_wq")
    att_ids(k)
    k("s_mul_i32 s33, s22, 72")
    k("v_bfe_u32 v10, v0, 1, 5\nv_mul_u32_u24 v10, 3456, v10\nv_and_b32 v11, 1, v0\nv_lshl_add_u32 v10, v11, 4, v10")
    k("v_mul_u32_u24 v12, 36, v11\nv_bfe_u32 v11, v0, 3, 3\nv_mul_u32_u24 v11, 3456, v11\nv_add_u32 v11, v11, v12\nv_bfe_u32 v12, v0, 1, 2\nv_cmp_eq_u32 vcc, 3, v12\nv_mul_u32_u24 v12, 1152, v12")
    k(f"v_add_u32 v11, v11, v12\nv_mov_b32 v12, {BIG}\nv_cndmask_b32 v11, v11, v12, vcc")
    k(f"s_lshl_b32 s80, s21, 3\ns_mov_b32 m0, {128*KBY}\ns_mov_b32 s82, 8\ns_mov_b32 s79, {-(-(1<<32)//5)}")
    k("s_waitcnt lgkmcnt(0)")
    srd(k, 60, 38, 576 * 3456)
    k.label("L_wq")
    k("s_mul_hi_u32 s81, s80, s79\ns_mul_i32 s30, s81, 5\ns_sub_u32 s30, s80, s30\ns_lshr_b32 s31, s30, 1\ns_add_u32 s31, s31, 1")
    k("s_sub_u32 s34, s80, 90\ns_lshr_b32 s35, s34, 1\ns_and_b32 s34, s34, 1\ns_cmp_ge_u32 s80, 90\ns_cselect_b32 s81, s35, s81\ns_cselect_b32 s30, s34, s30\ns_cselect_b32 s31, 0, s31")
    k(f"s_mul_i32 s34, s81, {32*3456}\ns_add_u32 s34, s34, s33\ns_cmp_eq_u32 s30, 4\ns_cbranch_scc1 L_wqb")
    k("s_mul_i32 s31, s31, 1152\ns_and_b32 s30, s30, 1\ns_mul_i32 s30, s30, 36\ns_add_u32 s34, s34, s31\ns_add_u32 s34, s34, s30")
    k("buffer_load_dwordx4 v10, s[60:63], s34 offen lds\ns_add_u32 m0, m0, 1024")
    k.label("L_wqj")
    k("s_add_u32 s80, s80, 1\ns_sub_u32 s82, s82, 1\ns_cmp_lg_u32 s82, 0\ns_cbranch_scc1 L_wq\ns_branch L_wqx")
    k.label("L_wqb")
    k("s_add_u32 s34, s34, 32")
    for q in range(4): k(f"buffer_load_dword v11, s[60:63], s34 offen lds\ns_add_u32 m0, m0, 256\ns_add_u32 s34, s34, {8*3456}")
    k("s_branch L_wqj")
    k.label("L_wqx")
    if envs("B0", "2") == "1" or BG1: k("s_barrier")
    ptrs(k)
    wq_base(k)
    k(f"s_lshl_b32 s30, s21, 13\ns_add_u32 s30, s30, s25\ns_add_u32 s31, s30, 4096\nv_lshrrev_b32 v3, 1, v1\nv_add_u32 v3, {128*KBY}, v3")
    k(f"s_cmp_eq_u32 s21, 15\ns_cselect_b32 s32, {BIG}, s31")
    k(f"s_lshl_b32 s24, s22, 7\ns_add_u32 s24, s24, {FQ}\ns_lshl_b32 s27, s21, 3\ns_add_u32 s27, s27, s24\ns_waitcnt vmcnt(0)")
    stamp(k, 41)
    token_load(k)
    for sl in range(8):
        for hf in range(2): k(f"ds_read_b64_tr_b16 v[{16+4*sl+2*hf}:{17+4*sl+2*hf}], v3 offset:{sl*1024 + hf*512}")
    for sl in range(8): k(f"s_waitcnt lgkmcnt({14-2*sl})\nbuffer_store_dwordx4 v[{16+4*sl}:{19+4*sl}], v1, s[8:11], s{30 if sl < 4 else 31 if sl < 6 else 32} offen offset:{(sl%4)*1024} sc1")
    if envs("B0", "2") == "2": k("s_barrier")
    k("s_waitcnt vmcnt(0)")
    token_get(k, "b")
    publish(k, "s27")
    stamp(k, 42)
    k("s_mov_b32 s56, s24\nv_and_b32 v2, 15, v0\nv_lshlrev_b32 v2, 3, v2")
    if "q" in SP: spoll(k, "q", 16, wg=False)
    else: poll(k, "q", wg=False)
    stamp(k, 43)
    k("s_branch L_p0_fetch")
    k.label("L_p0_23")
    k("s_sub_u32 s21, s20, 2\nv_bfe_u32 v4, v0, 3, 3\nv_and_b32 v5, 7, v0\ns_memrealtime s[94:95]")
    k("s_lshl_b32 s23, s2, 1\ns_add_u32 s23, s23, s21")
    sdiv(k, 25, 23, 3, 30)
    k("s_mul_i32 s30, s25, 3\ns_sub_u32 s28, s23, s30\ns_mul_i32 s28, s28, 6")
    sdiv(k, 26, 25, 18, 30)
    k("s_mul_i32 s30, s26, 18\ns_sub_u32 s25, s25, s30\ns_cmp_ge_u32 s25, 9\ns_cselect_b32 s27, 18, 0\ns_cselect_b32 s30, 9, 0\ns_sub_u32 s25, s25, s30")
    k(f"s_mul_i32 s30, s26, 9\ns_add_u32 s25, s25, s30\ns_lshl_b32 s24, s25, 7\ns_mul_i32 s30, s28, {32*9216}\ns_add_u32 s24, s24, s30")
    k("v_mul_u32_u24 v6, 9216, v4\nv_lshl_add_u32 v6, v5, 4, v6\ns_waitcnt lgkmcnt(0)")
    ptrs(k)
    k(f"s_or_b32 s94, s94, 1\ns_or_b32 s95, s95, 0x80000000\nv_mov_b32 v16, s94\nv_mov_b32 v17, s95\ns_cmp_eq_u32 s23, 0\ns_cselect_b32 s30, 0, {BIG}")
    k("buffer_store_dwordx2 v[16:17], v13, s[84:87], s30 offen sc1")
    k(f"s_sub_u32 s30, s23, 486\ns_lshl_b32 s30, s30, 14\ns_add_u32 s30, s30, {OFF_FLAG}\ns_cmp_ge_u32 s23, 486\ns_cselect_b32 s30, s30, {BIG}\ns_add_u32 s31, s30, 8192\nv_lshlrev_b32 v2, 3, v1")
    k("buffer_load_dword v22, v2, s[8:11], s30 offen\nbuffer_load_dword v21, v2, s[8:11], s31 offen")
    k("s_cmp_ge_u32 s2, 216\ns_cbranch_scc1 L_p0_wo")
    k("s_add_u32 s29, s27, s28")
    for c in range(4):
        k(f"s_lshl_b32 s30, s25, 2\ns_add_u32 s30, s30, {c}")
        sdiv(k, 31, 30, 9, 33)
        k("s_mul_i32 s33, s31, 9\ns_sub_u32 s30, s30, s33\ns_mul_i32 s31, s31, 486\ns_mul_i32 s30, s30, 36\ns_add_u32 s30, s30, s31\ns_add_u32 s30, s30, s29")
        k(f"s_add_u32 s30, s30, {OFF_WF//KBY}\ns_lshl_b32 s{DST+c}, s30, 10")
    if EARLY == "p0":
        stage_addr(k)
        k("s_waitcnt vmcnt(0)")
        stamp(k, 43)
        for n in range(8): pack_block(k, n, 6)
    sdiv(k, 25, 2, 3, 30)
    k("s_mul_i32 s30, s25, 3\ns_sub_u32 s28, s2, s30\ns_mul_i32 s28, s28, 6\ns_mul_i32 s30, s21, 3\ns_add_u32 s28, s28, s30")
    k("s_mul_i32 s30, s26, 9\ns_sub_u32 s25, s25, s30")
    for c in range(4):
        k(f"s_lshl_b32 s31, s25, 1\ns_add_u32 s31, s31, {c >> 1}\ns_and_b32 s31, s31, 3\ns_and_b32 s30, s25, 14\ns_add_u32 s30, s30, {1 + (c & 1)}")
        k(f"s_cmp_eq_u32 s25, 8\ns_cselect_b32 s31, {c}, s31\ns_cselect_b32 s30, 0, s30\ns_lshl_b32 s33, s26, 2\ns_add_u32 s31, s31, s33\ns_mul_i32 s31, s31, 486")
        k(f"s_mul_i32 s30, s30, 18\ns_add_u32 s30, s30, s31\ns_add_u32 s30, s30, s28\ns_add_u32 s30, s30, {324 + OFF_WF//KBY}\ns_lshl_b32 s{78+c}, s30, 10")
    k("s_lshl_b32 s34, s25, 7\ns_mul_i32 s35, s26, 576")
    for u in range(3):
        k("s_lshr_b32 s30, s28, 2\ns_mul_i32 s30, s30, 144\ns_and_b32 s31, s28, 3\ns_lshl_b32 s31, s31, 5\ns_add_u32 s30, s30, s31")
        k("s_mul_i32 s31, s28, 288\ns_sub_u32 s31, s31, 4480\ns_cmp_ge_u32 s28, 16\ns_cselect_b32 s30, s31, s30\ns_cselect_b32 s37, 144, 16")
        k(f"s_add_u32 s30, s30, s35\ns_mul_i32 s30, s30, 1152\ns_add_u32 s{72+2*u}, s30, s34\ns_mul_i32 s37, s37, 1152\ns_add_u32 s{73+2*u}, s{72+2*u}, s37\ns_add_u32 s28, s28, 1")
    if envs("B0", "2") in "12": k("s_barrier")
    k(f"s_cmp_eq_u32 s27, 0\ns_cselect_b32 s60, s40, s42\ns_cselect_b32 s61, s41, s43\ns_mov_b32 s62, {576*9216}\ns_mov_b32 s63, 0x00020000")
    if envs("NOBG", ""): k("s_mov_b32 s62, 0")
    for u in range(BG2):
        if BG1 and u == BG1: k("s_barrier")
        bg(k, u)
    if envs("CODEPF", "1") == "1":
        k("s_getpc_b64 s[12:13]")
        k.label("L_pc")
        k(f"s_mov_b32 s14, L_end-L_pc\ns_mov_b32 s15, 0x00020000\nv_lshlrev_b32 v2, 3, v1\ns_lshl_b32 s30, s17, 13\ns_cmp_eq_u32 s20, 3\ns_cselect_b32 s30, s30, {BIG}")
        k("buffer_load_dword v20, v2, s[12:15], s30 offen")
    token_load(k)
    k("s_mov_b32 s67, 1")
    k("s_branch L_p0_wait")
    k.label("L_p0_wo")
    if BG1: k("s_barrier")
    if envs("B0", "2") in "12": k("s_barrier")
    token_load(k)
    k("s_sub_u32 s23, s23, 432\ns_cmp_lt_u32 s23, 54\ns_cbranch_scc1 L_p0_wo2")
    k("s_waitcnt vmcnt(0)")
    token_get(k, "d")
    k("s_branch L_p0_wait")
    k.label("L_p0_wo2")
    srd(k, 12, 46, 576 * 1152)
    sdiv(k, 27, 23, 3, 30)
    k("s_mul_i32 s30, s27, 3\ns_sub_u32 s25, s23, s30\ns_mul_i32 s25, s25, 3")
    k("v_lshrrev_b32 v7, 1, v4\nv_mul_u32_u24 v7, 18, v7\nv_and_b32 v8, 1, v4\nv_add_u32 v7, v7, v8")
    k("s_mul_i32 s30, s27, 36\ns_sub_u32 s31, s27, 16\ns_mul_i32 s31, s31, 288\ns_add_u32 s31, s31, 16")
    k(f"s_cmp_lt_u32 s27, 16\ns_cselect_b32 s30, s30, s31\ns_mov_b32 s28, {18*1152}\ns_mov_b32 s29, {8*1152}\ns_cselect_b32 s28, s28, {144*1152}\ns_cselect_b32 s29, s29, {72*1152}\ns_cselect_b64 vcc, -1, 0")
    k("s_mul_i32 s32, s30, 1152\ns_lshl_b32 s31, s25, 7\ns_add_u32 s32, s32, s31")
    k("v_cndmask_b32 v8, v7, v4, vcc\nv_mul_u32_u24 v6, 1152, v8\nv_lshl_add_u32 v6, v5, 4, v6")
    k("s_add_u32 s33, s32, s29\ns_add_u32 s34, s32, s28\ns_add_u32 s35, s34, s29")
    for u in range(3):
        for i in range(4): k(f"buffer_load_dwordx4 {park(u, i)}, v6, s[12:15], s{32+i} offen offset:{128*u} nt")
    for u in range(3):
        for c in range(4):
            k(f"s_add_u32 s30, s25, {u}\ns_cmp_eq_u32 s30, 8\ns_mul_i32 s30, s30, 90\ns_cselect_b32 s30, {90*c + 4 - c}, s30")
            k(f"s_mul_i32 s31, s27, 5\ns_add_u32 s30, s30, s31\ns_add_u32 s30, s30, {OFF_WO//KBY + c}\ns_lshl_b32 s{72+4*u+c}, s30, 10")
    stage_addr(k)
    k("s_waitcnt vmcnt(0)")
    for n in range(5): pack_block(k, n, 3, lambda u, c: (f"s{72+4*u+c}", 0))
    token_get(k, "e")
    k(f"s_lshl_b32 s56, s23, 3\ns_add_u32 s56, s56, {FW}\ns_waitcnt vmcnt(0)")
    publish(k)
    k.label("L_p0_wait")
    stamp(k, 44)
    k.label("L_p0_fetch")
    wq_base(k)
    k("s_lshl_b32 s26, s20, 12\ns_add_u32 s25, s25, s26\ns_mov_b32 m0, s26\ns_barrier")
    for q in range(8):
        for c in range(4): k(f"buffer_load_dwordx4 v1, s[8:11], s25 offen offset:{c*1024} lds")
        k("s_add_u32 m0, m0, 16384\ns_add_u32 s25, s25, 16384")
    assert EARLY == "b"
    k("s_cmp_eq_u32 s67, 0\ns_cbranch_scc1 L_layer")
    for u in range(BG2, 6): bg(k, u)
    srd(k, 60, 44, 4608 * 1152)
    k(f"s_waitcnt vmcnt({32 + 4 * (6 - BG2)})")
    token_get(k, "c")

def gemm_core(k, NTB, NS, loads, AHEAD, st0, tr, NBUF=2, wwait=None, last=None, more=None):
    ACC = 16; WB = ACC + 4 * NS * NTB
    pi = 0
    def take(n):
        nonlocal pi
        r = loads[pi:pi + n]; pi += len(r); return r
    nx = {}
    for f in loads: nx[f.tag] = nx.get(f.tag, 0) + 1
    for f in take(AHEAD): f.fn(k)
    if wwait: wwait(k)
    if tr: k("v_lshrrev_b32 v3, 1, v1\nv_add_u32 v2, 0x10000, v3")
    else: k("v_mov_b32 v3, v1\nv_add_u32 v2, 0x10000, v1")
    def rd(ks, sl):
        i = ks * NS + sl; r = WB + 4 * ((ks % NBUF) * NS + sl); a = f"v{3 if i < 64 else 2}"; o = (i % 64) * 1024
        if tr: return [lgl(f"ds_read_b64_tr_b16 v[{r}:{r+1}], {a} offset:{o}", ("r", ks)), lgl(f"ds_read_b64_tr_b16 v[{r+2}:{r+3}], {a} offset:{o+512}", ("r", ks))]
        return [lgl(f"ds_read_b128 v[{r}:{r+3}], {a} offset:{o}", ("r", ks))]
    for ks in range(NBUF - 1):
        for sl in range(NS):
            for f in rd(ks, sl): f.fn(k)
    treg = lambda n: WB + 4 * ((n + NS * ((18 - int(envs("TK", "6"))) & 1)) % (2 * NS))
    def trd(n):
        TKk = int(envs("TK", "6")); sl, j = divmod(n, TKk); i = (18 - TKk + j) * NS + sl
        return lgl(f"ds_read_b128 v[{treg(n)}:{treg(n)+3}], v{3 if i < 64 else 2} offset:{(i % 64) * 1024}", ("t", n))
    TK = int(envs("TK", "6")) if last else 0
    K1 = 18 - TK
    for ks in range(K1 if TK else 18):
        while k.vmq.count(("x", ks)) < nx[("x", ks)]: take(1)[0].fn(k)
        k.wait_vm(("x", ks)); k.wait_lg(("r", ks))
        if ks == 0: stamp(k, st0)
        mf = []
        for sl in range(NS):
            for tb in range(NTB):
                a = ACC + 4 * (sl * NTB + tb); w = WB + 4 * ((ks % NBUF) * NS + sl); x = 4 * (ks * NTB + tb)
                mf.append(f"{MF} v[{a}:{a+3}], v[{w}:{w+3}], a[{x}:{x+3}], " + ("0" if ks == 0 else f"v[{a}:{a+3}]"))
        fill = [f for sl in range(NS) for f in rd(ks + NBUF - 1, sl)] if ks + NBUF - 1 < (K1 if TK else 18) else []
        if TK and ks == K1 - 1: fill = [trd(n) for n in range(NS)]
        if NBUF == 2 and envs("FRONT", "1") == "1":
            for j, f in enumerate(fill): f.before = j + 1
        outstanding = len(k.vmq) - k.vm_done
        if ks == 17 and last:
            n = len(mf); j = 0
            for i, m in enumerate(mf):
                k(m)
                c = 0
                while j < len(last) and last[j].after <= i and c < 4: last[j].fn(k); j += 1; c += 1
            k("s_nop 3")
            for f in last[j:]: f.fn(k)
            continue
        tk = take(max(0, AHEAD + 2 - outstanding + (2 if TK else 0)))
        if more and pi == len(loads) and not tk:
            n = -(-len(more) // (18 - ks)); tk = more[:n]; more = more[n:]
        interleave(k, mf, [fill, tk], budget=8 if NTB == 2 else 12)
    if TK:
        for f in take(len(loads)): f.fn(k)
        per = len(last) // NS + 1
        for sl in range(NS):
            mf = []; pre = {}
            for j in range(TK):
                n = sl * TK + j; ks = K1 + j
                pre[len(mf)] = (lambda k, n=n, ks=ks: (k.wait_vm(("x", ks)), k.wait_lg(("t", n))))
                for tb in range(NTB):
                    a = ACC + 4 * (sl * NTB + tb); w = treg(n); x = 4 * (ks * NTB + tb)
                    mf.append(f"{MF} v[{a}:{a+3}], v[{w}:{w+3}], a[{x}:{x+3}], v[{a}:{a+3}]")
            fill = [trd(n) for n in range(sl * TK + NS, min((sl + 1) * TK + NS, NS * TK))]
            for j, f in enumerate(fill): f.after = NTB * j
            ep = [f for f in last if f.blk == sl - 1]
            for f in ep: f.after = 3
            interleave(k, mf, [fill, ep], pre=pre, budget=12)
        k("s_nop 5")
        for f in last:
            if f.blk == NS - 1: f.fn(k)
    assert pi == len(loads) and not more, (pi, len(loads))
def tl(s, tag, post="", cost=8):
    f = F(lambda k: (k.vm(s, tag), k(post) if post else None), cost); f.tag = tag; return f

def p1_addr(k):
    att_ids(k)
    k(f"s_lshl_b32 s56, s21, 7\ns_add_u32 s56, s56, {FA}\nv_and_b32 v2, 15, v0\nv_lshlrev_b32 v2, 3, v2")
    k(f"s_lshl_b32 s26, s21, 2\ns_add_u32 s26, s26, s20")
    k(f"s_mul_i32 s23, s26, {36*KBY}\ns_add_u32 s23, s23, {OFF_XN}\ns_add_u32 s24, s23, {18*KBY}")
QB = 60 * KBY
def p1_qkv(k):
    p1_addr(k)
    stamp(k, 0)
    k(f"s_add_u32 s56, s56, s51\ns_mov_b32 s57, {SPIN}\ns_cmp_eq_u32 s20, 0\ns_cselect_b32 s27, s56, {BIG}\nbuffer_load_dwordx2 v[254:255], v2, s[8:11], s27 offen sc1")
    p2_consts(k)
    k("s_cmp_lg_u32 s20, 0\ns_cbranch_scc1 L_pollx_w0\ns_branch L_look_a")
    k.label("L_poll_a")
    k("buffer_load_dwordx2 v[254:255], v2, s[8:11], s56 offen sc1")
    k.label("L_look_a")
    k("s_sub_u32 s57, s57, 1\ns_waitcnt vmcnt(0)\nv_cmp_eq_u64 vcc, s[100:101], v[254:255]\ns_cmp_eq_u32 s57, 0\ns_cbranch_scc1 L_pollx_a\ns_cmp_eq_u64 vcc, -1\ns_cbranch_scc0 L_poll_a")
    k.label("L_pollx_a")
    k.label("L_pollx_w0")
    k("s_barrier")
    stamp(k, 1)
    fresh(k)
    loads = [tl(f"buffer_load_dwordx4 a[{4*(2*ks+tb)}:{4*(2*ks+tb)+3}], v1, s[8:11], s{23+tb} offen offset:{(ks%4)*1024}{LD}", ("x", ks),
                f"s_add_u32 s{23+tb}, s{23+tb}, 4096" if ks % 4 == 3 else "") for ks in range(18) for tb in range(2)]
    ACC, WB, NR, LA = 16, 72, 14, 7
    AH = int(envs("AH1", "10")); TK = int(envs("TK", "6")); QK1 = int(envs("QK1", "0")); SIG = int(envs("SIG", "16"))
    for f in loads[:AH]: f.fn(k)
    pi = AH
    k(f"s_mul_i32 s30, s22, {5*65536}\ns_lshl_b32 s27, s26, 10\ns_add_u32 s30, s30, s27\ns_add_u32 s30, s30, s53")
    k(f"s_lshl_b32 s56, s22, 7\ns_lshl_b32 s27, s21, 3\ns_add_u32 s56, s56, s27\ns_add_u32 s56, s56, {FB}\ns_add_u32 s56, s56, s51\ns_cmp_eq_u32 s20, 0\ns_cselect_b32 s56, s56, {BIG}")
    k(f"s_mov_b32 s32, {fbits(18 ** -0.5 * LOG2E)}\ns_mov_b32 s33, s32\nv_cmp_eq_u32 vcc, 0, v4\nv_cmp_eq_u32 s[34:35], 3, v4\nv_mov_b32 v8, s32\nv_mov_b32 v10, 0x3f803f80")
    k("v_cndmask_b32 v8, 1.0, v8, vcc\nv_mov_b32 v9, v8")
    k(f"s_lshl_b32 s27, s20, 10\ns_add_u32 s28, s27, 8192\nv_add_u32 v6, s28, v1\nv_add_u32 v7, s28, v5\ns_add_u32 s27, s27, {QB}\nv_add_u32 v11, s27, v1")
    k(f"s_lshl_b32 s36, s20, 1\ns_lshl_b32 s37, s21, 2\ns_add_u32 s37, s37, s36\ns_sub_i32 s37, s37, 8\ns_lshl_b32 s25, s37, 10\ns_mul_i32 s27, s22, {5*65536}\ns_add_u32 s25, s25, s27\ns_add_u32 s25, s25, s53")
    k(f"s_cmp_lt_i32 s37, 0\ns_cselect_b32 s25, {BIG}, s25\ns_lshl_b32 s36, s36, 10\ns_ashr_i32 s37, s37, 2\ns_cmp_lt_i32 s37, 0\ns_cselect_b32 s37, s21, s37")
    k(f"s_lshl_b32 s37, s37, 3\ns_lshl_b32 s27, s22, 7\ns_add_u32 s37, s37, s27\ns_add_u32 s37, s37, {FB}\ns_add_u32 s38, s37, s51\nv_mov_b32 v12, 0")
    if EARLY == "f": k(f"s_cmp_eq_u32 s67, 0\ns_cbranch_scc1 2\ns_waitcnt vmcnt({AH + 24})\ns_branch 1")
    k(f"s_waitcnt vmcnt({AH})\ns_barrier\nv_mov_b32 v3, v1\nv_add_u32 v2, 0x10000, v1")
    K1 = 18 - TK
    units = [(sl, ks) for ks in range(K1) for sl in range(7 if ks < QK1 else 5)]
    units += [(sl, ks) for sl in range(5) for ks in range(K1, 18)]
    n2 = len(units)
    QS = int(envs("QS", "3"))
    units += [(sl, ks) for ks in range(QK1, 18 - QS) for sl in (5, 6)] + [(sl, ks) for sl in (5, 6) for ks in range(18 - QS, 18)]
    def rd(n):
        sl, ks = units[n]; i = ks * 5 + sl if sl < 5 else 90 + 2 * ks + sl - 5; r = WB + 4 * (n % NR)
        return lgl(f"ds_read_b128 v[{r}:{r+3}], v{3 if i < 64 else 2} offset:{(i % 64) * 1024}", ("w", n))
    def epi(sl):
        a = ACC + 8 * sl; L = []
        if sl >= 4: L += [line(f"v_pk_mul_f32 v[{a+i}:{a+i+1}], v[{a+i}:{a+i+1}], " + ("v[8:9]" if sl == 4 else "s[32:33]")) for i in (0, 2, 4, 6)]
        L += [line(f"v_cvt_pk_bf16_f32 v{a+i}, v{a+2*i}, v{a+2*i+1}") for i in range(4)]
        if sl == 4: L += [line(f"v_cndmask_b32 v{a+i}, v{a+i}, v10, s[34:35]") for i in range(4)]
        if sl < 5: L += [vml(f"buffer_store_dwordx4 v[{a}:{a+3}], v1, s[8:11], s30 offen sc1", cost=8)] + ([line("s_add_u32 s30, s30, 65536")] if sl < 4 else [])
        else: L += [lgl(f"ds_write_b128 v11, v[{a}:{a+3}] offset:{(sl - 5) * 4096}", cost=8)]
        return L
    own = [lgl(f"ds_write_b128 v{6 if sl < 2 else 7}, v[{ACC+8*sl}:{ACC+8*sl+3}] offset:{sl*12288}", cost=8) for sl in range(5)]
    for n in range(LA): rd(n).fn(k)
    seen = set(); side = []; lastu = {sl: max(n for n, u in enumerate(units) if u[0] == sl) for sl in range(7)}
    sig = min(n2 + SIG, len(units)); delay = 0
    for n, (sl, ks) in enumerate(units):
        if n == sig:
            assert not side
            stamp(k, 4)
            k.wait_vm_all(); k("s_barrier"); publish(k); side += own
            stamp(k, 5)
        if n == len(units) - int(envs("LOOK", "6")): k.vm("buffer_load_dwordx2 v[252:253], v12, s[8:11], s38 offen sc1", "look")
        if ks not in seen:
            while k.vmq.count(("x", ks)) < 2: loads[pi].fn(k); pi += 1
            k.wait_vm(("x", ks)); seen.add(ks)
        k.wait_lg(("w", n))
        if n == 0: stamp(k, 2)
        for tb in range(2):
            a = ACC + 4 * (2 * sl + tb); w = WB + 4 * (n % NR); x = 4 * (2 * ks + tb)
            k(f"{MF} v[{a}:{a+3}], v[{w}:{w+3}], a[{x}:{x+3}], " + ("0" if ks == 0 else f"v[{a}:{a+3}]"))
            left = 12
            if tb == 0 and n + LA < len(units): rd(n + LA).fn(k); left -= 4
            if pi < len(loads) and len(k.vmq) - k.vm_done < AH + 2 and tb == 1: loads[pi].fn(k); pi += 1; left -= 8
            while side and delay <= 0 and side[0].cost <= left: left -= side[0].cost; side.pop(0).fn(k)
        delay -= 1
        for s2, lu in lastu.items():
            if lu == n:
                assert s2 < 5 or n >= sig
                side += epi(s2); delay = 2
    assert pi == len(loads) and sig < len(units)
    k("s_nop 3")
    for f in side: f.fn(k)
    if EARLY in ("p0", "f"): publish_fp(k, FP)
    k.wait_lg_all(); k("s_barrier")
    stamp(k, 3)

Q, M1, M2, L8, LO, HI, BP, KA, KB_, VA, VB, QA, QX, L4, OBV = 16, 232, 236, 240, 241, 242, 243, 244, 245, 246, 247, 248, 249, 250, 12
XW, XR, XB, OX = 251, 230, 231, 100 * KBY
def p2_consts(k):
    k("s_and_b32 s29, s20, 1\ns_lshr_b32 s30, s20, 1\ns_mul_i32 s36, s29, 12288\ns_lshl_b32 s37, s30, 11\ns_add_u32 s36, s36, s37\ns_add_u32 s37, s37, 49152")
    k(f"s_lshl_b32 s33, s29, 12\ns_lshl_b32 s34, s30, 11\ns_add_u32 s33, s33, s34\ns_add_u32 s33, s33, {QB}\nv_add_u32 v{QA}, s33, v1")
    k(f"v_bfe_u32 v4, v0, 4, 2\nv_and_b32 v5, 1, v4\nv_lshlrev_b32 v5, 7, v5\nv_xor_b32 v5, v5, v1")
    k(f"v_and_b32 v12, 15, v0\nv_lshlrev_b32 v3, 4, v12\ns_add_u32 s34, s37, 8192\nv_add_u32 v{QX}, s34, v3\nv_add_u32 v{KA}, s36, v1\nv_add_u32 v{KB_}, s37, v5")
    k("v_and_b32 v3, 63, v0\nv_and_b32 v6, 3, v3\nv_lshrrev_b32 v7, 2, v3\nv_and_b32 v8, 1, v3\nv_lshlrev_b32 v8, 3, v8\nv_xor_b32 v7, v7, v8\nv_lshl_add_u32 v7, v6, 4, v7\nv_lshlrev_b32 v7, 4, v7")
    k(f"s_add_u32 s36, s36, 24576\nv_add_u32 v{VA}, s36, v7\nv_add_u32 v{VB}, s37, v7")
    k("s_lshl_b32 s49, s21, 2\ns_lshl_b32 s33, s30, 1\ns_add_u32 s49, s49, s33")
    k(f"v_lshlrev_b32 v6, 2, v4\nv_mov_b32 v7, {fbits(-1e30)}")
    for i in range(4):
        k(f"v_add_u32 v8, {i}, v6\nv_cmp_gt_u32 vcc, v8, v12\ns_nop 1\nv_cndmask_b32 v{M1+i}, v7, 0, vcc\nv_cndmask_b32 v{M2+i}, 0, v7, vcc")
    k(f"v_cmp_eq_u32 s[38:39], 1, v4\nv_lshlrev_b32 v{BP}, 2, v12\nv_add_u32 v{BP}, 128, v{BP}")
    k("s_cmp_eq_u32 s29, 1\ns_cselect_b64 s[40:41], -1, 0")
    k("s_andn2_b64 s[42:43], s[38:39], s[40:41]\ns_and_b64 s[44:45], s[38:39], s[40:41]")
    k(f"s_lshl_b32 s36, s30, 12\ns_add_u32 s36, s36, {OX}\ns_lshl_b32 s37, s29, 3\ns_add_u32 s37, s37, s36\nv_add_u32 v{XW}, s37, v1\ns_lshl_b32 s37, s29, 11\ns_add_u32 s37, s37, s36\nv_add_u32 v{XR}, s37, v1")
    k(f"s_lshl_b32 s47, s49, 1\ns_mul_i32 s46, s47, {18*KBY}\ns_add_u32 s46, s46, {OFF_OF}\ns_mul_i32 s37, s29, {36*KBY}\ns_add_u32 s47, s46, s37\ns_lshl_b32 s37, s22, 10\ns_add_u32 s47, s47, s37\ns_add_u32 s48, s47, {18*KBY}")
    k(f"s_lshl_b32 s37, s22, 7\ns_add_u32 s46, s46, s37\ns_add_u32 s46, s46, {16*KBY}\ns_cmp_eq_u32 s29, 0\ns_cselect_b32 s46, s46, {BIG}")
    k(f"v_mul_u32_u24 v{L4}, {18*KBY}, v4\nv_lshl_add_u32 v{L4}, v12, 3, v{L4}\ns_lshl_b32 s36, s30, 9\ns_add_u32 s36, s36, {OX + 8192}\nv_lshrrev_b32 v{XB}, 1, v1\nv_add_u32 v{XB}, s36, v{XB}\ns_lshl_b32 s37, s29, 2\nv_add_u32 v{L8}, s37, v{XB}")
    k(f"v_mov_b32 v{LO}, {fbits(2.0**-30)}\nv_mov_b32 v{HI}, {fbits(2.0**30)}\ns_mov_b64 s[64:65], {-1 if FORCE_EXACT else 0}")
    k(f"s_lshr_b32 s58, s17, 2\ns_mul_i32 s58, s58, {90*KBY}\ns_add_u32 s58, s58, {OFF_WO}\ns_lshl_b32 s59, s20, 12\ns_add_u32 s58, s58, s59")
    k(f"s_lshl_b32 s39, s21, 7\ns_lshl_b32 s27, s22, 3\ns_add_u32 s39, s39, s27\ns_add_u32 s39, s39, {FC}")
def p2_attn(k):
    KR, VR = 0, 80
    for i in range(4):
        off = (i >> 1) * 1024 + (i & 1) * 8
        k.lg(f"ds_read_b64 v[{Q+4*i}:{Q+4*i+1}], v{QA} offset:{off}", "q"); k.lg(f"ds_read_b64 v[{Q+4*i+2}:{Q+4*i+3}], v{QX} offset:{off}", "q")
    def kread(kt):
        off = (kt >> 1) * 1024 + (kt & 1) * 8
        return [lgl(f"ds_read_b64 a[{KR+4*kt}:{KR+4*kt+1}], v{KA} offset:{off}", ("k", kt)), lgl(f"ds_read_b64 a[{KR+4*kt+2}:{KR+4*kt+3}], v{KB_} offset:{off}", ("k", kt))]
    def vread(p):
        return [lgl(f"ds_read_b64_tr_b16 a[{VR+8*p+4*b+2*hf}:{VR+8*p+4*b+2*hf+1}], v{VA+b} offset:{p*1024 + hf*8}", ("v", p)) for b in range(2) for hf in range(2)]
    for f in [f for kt in range(16, 20) for f in kread(kt)]: f.fn(k)
    for f in vread(8) + vread(9): f.fn(k)
    k.wait_vm("look")
    k("v_cmp_eq_u64 vcc, s[100:101], v[252:253]\ns_mov_b32 s56, s37\nv_mov_b32 v2, 0\ns_cmp_eq_u64 vcc, -1\ns_cbranch_scc1 L_pollx_b")
    poll(k, "b", wg=False)
    stamp(k, 6)
    for b in (0, 1, 4, 2, 3):
        k(f"s_add_u32 m0, s36, {b*12288}\ns_add_u32 s28, s25, {b*65536}")
        for c in range(2): k(f"buffer_load_dwordx4 v{1 if b < 2 else 5}, s[8:11], s28 offen offset:{c*1024} lds")
    k(f"s_cmp_lg_u32 s20, 0\ns_cbranch_scc1 L_pollx_w1\ns_cmp_lg_u32 s50, 0\ns_cbranch_scc1 L_pollx_w1\ns_mov_b32 s56, {FW}\nv_min_u32 v2, 53, v0\nv_lshlrev_b32 v2, 3, v2")
    poll(k, "w1", wg=False)
    if EARLY == "b": early_blocks(k)
    k("s_waitcnt lgkmcnt(0)")
    for i in range(4):
        k(f"v_cndmask_b32 v{Q+4*i+2}, 0, v{Q+4*i+2}, s[42:43]\nv_cndmask_b32 v{Q+4*i+3}, 0, v{Q+4*i+3}, s[44:45]")
    k("v_bfe_u32 v10, v0, 3, 3\nv_mul_u32_u24 v10, 1152, v10\nv_and_b32 v11, 7, v0\nv_lshl_add_u32 v10, v11, 4, v10\nv_add_u32 v11, 9216, v10")
    k("s_mov_b32 s56, s39")
    stamp(k, 11)
    fresh(k)
    S0 = 48; OA = S0 + 144; TM = OA + 32
    def landed(k):
        stamp(k, 37)
        if EARLY == "b": k("s_cmp_eq_u32 s67, 0\ns_cbranch_scc1 2\ns_waitcnt vmcnt(24)\ns_branch 1")
        k("s_waitcnt vmcnt(0)\ns_barrier")
        stamp(k, 7)
    def kv_read(k):
        k.wait_lg_all(); k("s_mov_b32 m0, s59\ns_waitcnt vmcnt(0)\ns_barrier")
        if EARLY == "b":
            k("v_mov_b32 v254, s100\nv_mov_b32 v255, s101")
            publish_fp(k, FP)
    def run(mf, valu, gap_first=0, frac=0.9):
        tot = sum(f.cost for f in valu); acc = 0; mi = 0
        for f in valu:
            while mi < len(mf) and acc >= gap_first + (tot - gap_first) * mi / max(len(mf), 1) * frac:
                mf[mi](k); mi += 1
            f.fn(k); acc += f.cost
        while mi < len(mf): mf[mi](k); mi += 1
    def epi(i, check):
        o = OA + 8 * i; t = TM + 2; l = TM + 4; z = TM + 5
        L = [line(f"v_mov_b32 v{l}, v{o+7}\nv_mov_b32 v{t}, v{o+7}", 8),
             line(f"v_cndmask_b32 v{o+4}, v{o+4}, v{o+6}, s[40:41]"), line(f"v_cndmask_b32 v{o+5}, v{o+5}, v{o+7}, s[40:41]"),
             line(f"v_permlane32_swap_b32 v{t}, v{l}\nv_mov_b32 v{t}, v{l}\ns_nop 1\nv_permlane16_swap_b32 v{t}, v{l}", 20), line(f"v_rcp_f32 v{t}, v{l}", 8)]
        if check:
            L += [line(f"v_med3_f32 v{z}, v{l}, v{LO}, v{HI}"), line(f"v_sub_f32 v{z}, v{z}, v{l}")]
            L += [line(f"v_fma_f32 v{z}, v{o+j}, 0, v{z}") for j in range(6)]
            L += [line(f"v_cmp_neq_f32 vcc, 0, v{z}")]
        else: L += [line("s_nop 0")]
        for j in (0, 2, 4): L.append(line(f"v_pk_mul_f32 v[{o+j}:{o+j+1}], v[{o+j}:{o+j+1}], v[{t}:{t+1}] op_sel_hi:[1,0]"))
        if check: L.append(line("s_or_b64 s[64:65], s[64:65], vcc"))
        for j in (2, 0, 1): L.append(line(f"v_cvt_pk_bf16_f32 v{o+(j if j < 2 else 6)}, v{o+2*j}, v{o+2*j+1}"))
        L.append(lgl(f"ds_bpermute_b32 v{TM+3}, v{BP}, v{o+6}", ("bp", i)))
        L.append(lgl(f"ds_write_b64 v{XW}, v[{o}:{o+1}] offset:{i*1024}"))
        L2 = [line(f"s_mov_b32 vcc_lo, {(0xffff, 0xffff0000, 0, 0)[i]}\ns_mov_b32 vcc_hi, {(0, 0, 0xffff, 0xffff0000)[i]}", 8),
              F(lambda k: (k.wait_lg(("bp", i)), k(f"v_cndmask_b32 v{OBV}, v{OBV}, v{TM+3}, vcc")), 8)]
        if i == 3: L2.append(lgl(f"ds_write_b32 v{L8}, v{OBV}"))
        return (L, L2) if check else L + L2
    def variant(lim, fast, first):
        nm = f"{'f' if fast else 'e'}{'' if first else 'r'}{lim}"
        k.label(f"L_attn_{nm}")
        k.lgq = []; k.lg_done = 0
        tiles = lambda i: list(range(max(i, lim), i + 17))
        pairs = lambda i: list(range(max(i, lim) >> 1, ((i + 16) >> 1) + 1))
        kreads, vreads, extra = [], [], []
        if first:
            kreads = [f for kt in range(lim, 16) for f in kread(kt)]
            vreads = [f for p in range(lim // 2, 8) for f in vread(p)]
            wo = [kv_read]
            for q in range(6):
                for c in range(4):
                    wo.append(lambda k, c=c: k(f"buffer_load_dwordx4 v1, s[8:11], s58 offen offset:{c*1024} lds" + ("\ns_add_u32 m0, m0, 16384\ns_add_u32 s58, s58, 16384" if c == 3 else "")))
            def pkl(u):
                def f(k):
                    k(f"s_cmp_eq_u32 s67, 0\ns_cbranch_scc1 L_pk_{nm}_{u}")
                    for i in range(4): k(f"buffer_load_dwordx4 {lpark(u, i)}, v{10 + (i & 1)}, s[60:63], s{72 + 2*u + (i >> 1)} offen nt")
                    k.label(f"L_pk_{nm}_{u}")
                return f
            extra = wo[:1] + [pkl(0), pkl(1), pkl(2)] + wo[1:]
            if envs("NOWO", ""): extra = extra[:4]
            if EARLY == "w":
                def pkb(n):
                    def f(k):
                        k(f"s_cmp_eq_u32 s67, 0\ns_cbranch_scc1 L_pb_{nm}_{n}")
                        if n == 0: stage_addr(k)
                        pack_block(k, n, 6)
                        k.label(f"L_pb_{nm}_{n}")
                    return f
                extra = [pkl(0), pkl(1), pkl(2), pkb(0), pkb(1), wo[0]]
                for n in range(6): extra += [pkb(2 + n)] + wo[1 + 28 * n // 6: 1 + 28 * (n + 1) // 6]
        def qk1(i, kt, s):
            c = f"v[{M2}:{M2+3}]" if kt == i + 16 else f"v[{M1}:{M1+3}]" if kt == i else "0"
            def f(k):
                if first and kt < 16: k.wait_lg(("k", kt))
                k(f"{MF} v[{s}:{s+3}], a[{KR+4*kt}:{KR+4*kt+3}], v[{Q+4*i}:{Q+4*i+3}], {c}")
            return f
        def pv1(i, p, b, s, zero):
            o = OA + 8 * i + 4 * b
            def f(k):
                if first and p < 8: k.wait_lg(("v", p))
                k(f"{MF} v[{o}:{o+3}], a[{VR+8*p+4*b}:{VR+8*p+4*b+3}], v[{s}:{s+3}], " + ("0" if zero else f"v[{o}:{o+3}]"))
            return f
        if fast:
            steps = [(i, p) for i in range(4) for p in pairs(i) if p >= 8]; NL = len(steps)
            steps += [(i, p) for i in range(4) for p in pairs(i) if p < 8]
            QL = 2; NB = 10; SPC = int(envs("SP", "14"))
            buf = lambda s: S0 + 8 * (s % NB)
            def qks(s):
                if s >= len(steps): return []
                i, p = steps[s]
                return [qk1(i, 2 * p + hf, buf(s) + 4 * hf) for hf in range(2) if 2 * p + hf in tiles(i)]
            def pvs(s):
                if not 0 <= s < len(steps): return []
                return [pv1(*steps[s], b, buf(s), all(steps[t][0] != steps[s][0] for t in range(s))) for b in range(2)]
            def exps(s):
                if s >= len(steps): return []
                i, p = steps[s]; b = buf(s); va, vb = 2 * p in tiles(i), 2 * p + 1 in tiles(i)
                E = lambda r: line(f"v_exp_f32 v{r}, v{r}", 8); C = lambda d, r: line(f"v_cvt_pk_bf16_f32 v{d}, v{r}, v{r+1}")
                Z = lambda d: line(f"v_mov_b32 v{d}, 0")
                if va and vb: return [E(b), E(b+1), E(b+2), E(b+3), E(b+4), C(b, b), E(b+5), C(b+1, b+2), E(b+6), E(b+7), C(b+2, b+4), C(b+3, b+6)]
                if va: return [E(b), E(b+1), E(b+2), E(b+3), C(b, b), C(b+1, b+2), Z(b+2), Z(b+3)]
                return [E(b+4), E(b+5), E(b+6), E(b+7), Z(b), Z(b+1), C(b+2, b+4), C(b+3, b+6)]
            SB = int(envs("SB", "4"))
            side = [landed] + [f.fn for f in kreads + vreads]
            for s in range(NL):
                for m in qks(s): m(k)
            k("s_nop 2")
            last = {i: max(s for s, (ii, p) in enumerate(steps) if ii == i) for i in range(4)}
            pend = []; pend2 = []; pvp = 0; qp = NL; s = 0; nsteps = len(steps) + 2
            issued = lambda tag: tag in k.lgq
            while pvp < len(steps):
                if s in (NL, NL + 10, NL + 20): stamp(k, 8 + (s - NL) // 10)
                todo = []
                while pvp < min(s, len(steps)) and len(todo) < 2 and not (todo and todo[-1] in last.values()) and (steps[pvp][1] >= 8 or issued(("v", steps[pvp][1]))):
                    todo.append(pvp); pvp += 1
                qs = []
                while qp < min(s + QL + 1, len(steps)) and len(qs) < 2 and issued(("k", 2 * steps[qp][1] + 1)):
                    assert qp - NB < pvp - len(todo) or qp < NB, (qp, pvp)
                    qs.append(qp); qp += 1
                assert qp > s + 1 or qp == len(steps), (lim, s, qp)
                mf = [m for t in todo for m in pvs(t)] + [m for t in qs for m in qks(t)]
                sd = []
                while s >= SB and side and (len(sd) < SPC): sd.append(side.pop(0))
                if s > SB and not side and not sd and extra:
                    q = -(-len(extra) // max(1, nsteps - 2 - s)); sd = extra[:q]; extra = extra[q:]
                va = exps(s)
                if pend and len(va) < 12: va = va + [line("s_nop 7", 32)]
                va = va + pend2 + pend; pend2 = []
                if pend: pend2 = later
                pend = []
                for i in range(4):
                    if last[i] in todo: pend, later = epi(i, True)
                mix = []
                a, b2 = list(mf), list(sd)
                while a or b2:
                    if b2:
                        for _ in range(-(-len(b2) // max(1, len(a)))): mix.append(b2.pop(0))
                    if a: mix.append(a.pop(0))
                if not va: va = [line("s_nop 1")]
                run(mix, va, 9, 0.85)
                s += 1
            for f in side: f(k)
            side = []
            for f in extra: f(k)
            assert not side
            for f in pend2: f.fn(k)
            k("s_nop 7")
            for f in pend + later: f.fn(k)
            k("s_cmp_eq_u64 s[64:65], 0\ns_cbranch_scc1 L_attn_done")
            k(f"s_waitcnt lgkmcnt(0)\ns_branch L_attn_er{lim}")
            return
        sreg = lambda i, kt: S0 + 72 * (i & 1) + 4 * (kt - 2 * (i >> 1))
        qk = lambda i: [qk1(i, kt, sreg(i, kt)) for kt in tiles(i)]
        pv = lambda i: [pv1(i, p, b, sreg(i, 2 * p), p == pairs(i)[0]) for b in range(2) for p in pairs(i)]
        def softmax(i):
            L = []
            regs = [sreg(i, kt) + j for kt in tiles(i) for j in range(4)]
            m = TM; t = TM + 1
            ch = [regs[0::2], regs[1::2]]
            for c in range(2): L.append(line(f"v_max_f32 v{m+c}, v{ch[c][0]}, v{ch[c][1]}"))
            for j in range(2, len(ch[0]), 2):
                for c in range(2): L.append(line(f"v_max3_f32 v{m+c}, v{m+c}, v{ch[c][j]}, v{ch[c][j+1]}"))
            L.append(line(f"v_max_f32 v{m}, v{m}, v{t}"))
            for sw in ("v_permlane16_swap_b32", "v_permlane32_swap_b32"):
                L.append(line(f"v_mov_b32 v{t}, v{m}\ns_nop 1\n{sw} v{m}, v{t}\nv_max_f32 v{m}, v{m}, v{t}", 16))
            for p in pairs(i):
                base = sreg(i, 2 * p)
                for hf in range(2):
                    kt = 2 * p + hf; s = sreg(i, kt)
                    if kt in tiles(i):
                        for j in range(4): L.append(line(f"v_sub_f32 v{s+j}, v{s+j}, v{m}"))
                        for j in range(4): L.append(line(f"v_exp_f32 v{s+j}, v{s+j}", 8))
                for hf in range(2):
                    kt = 2 * p + hf; s = sreg(i, kt)
                    for j in range(2):
                        if kt in tiles(i): L.append(line(f"v_cvt_pk_bf16_f32 v{base+2*hf+j}, v{s+2*j}, v{s+2*j+1}"))
                        else: L.append(line(f"v_mov_b32 v{base+2*hf+j}, 0"))
            return L
        if first: landed(k)
        for f in kreads: f.fn(k)
        for m in qk(0): m(k)
        k("s_nop 7")
        for i in range(4):
            mf = (pv(i - 1) if i >= 1 else []) + (qk(i + 1) if i < 3 else [])
            if i == 0: mf = mf + [f.fn for f in vreads]
            if i == 1: mf = extra + mf
            va = softmax(i)
            if i >= 2: va = epi(i - 2, False) + va
            run(mf, va, 8 if i else 0)
            k("s_nop 1")
        run(pv(3), epi(2, False))
        k("s_nop 7")
        for f in epi(3, False): f.fn(k)
        k("s_branch L_attn_done")
    v = "f" if FAST else "e"
    for lim in (16, 12, 8, 4): k(f"s_cmp_eq_u32 s49, {(16 - lim) // 2}\ns_cbranch_scc1 L_attn_{v}{lim}")
    for lim in (0, 4, 8, 12, 16): variant(lim, FAST, True)
    if FAST:
        for lim in (0, 4, 8, 12, 16): variant(lim, False, False)
    k.label("L_attn_done")
    k(f"s_waitcnt lgkmcnt(0)\ns_barrier\nds_read_b128 v[{OA}:{OA+3}], v{XR}\nds_read_b128 v[{OA+4}:{OA+7}], v{XR} offset:1024\nds_read_b64 v[{OA+8}:{OA+9}], v{XB}")
    k(f"s_waitcnt lgkmcnt(2)\nbuffer_store_dwordx4 v[{OA}:{OA+3}], v1, s[8:11], s47 offen sc1\ns_waitcnt lgkmcnt(1)\nbuffer_store_dwordx4 v[{OA+4}:{OA+7}], v1, s[8:11], s48 offen sc1")
    k(f"s_waitcnt lgkmcnt(0)\nbuffer_store_dwordx2 v[{OA+8}:{OA+9}], v{L4}, s[8:11], s46 offen sc1")
    stamp(k, 12)
    signal(k)
    late_blocks(k)
    stamp(k, 13)

AG, AU, T1, T2, XV, RING = 16, 32, 48, 64, 80, 112
WQR = [RING + 4 * i for i in range(21, 35)] + [RING + 4 * i for i in range(6)] + [AU + 4 * i for i in range(4)] + [RING + 4 * i for i in range(6, 14)]
RESID = RING + 4 * 18
G = 3; LEAD = 36 - G
def wload(p):
    r = RING + 4 * (p % 36)
    if p >= 486: return []
    s = f"buffer_load_dwordx4 v[{r}:{r+3}], v1, s[12:15], s25 offen offset:{(p%4)*1024}"
    return [vml(s, ("w", p), cost=int(envs("LC", "8")))] + ([line("s_add_u32 s25, s25, 4096")] if p % 4 == 3 else [])

PRE = int(envs("PRE", "12")); PRE3 = int(envs("PRE3", "0"))
def ffn_stream(k):
    if envs("FMAP", "2") == "2": k("s_lshl_b32 s21, s19, 1\ns_and_b32 s22, s17, 1\ns_add_u32 s21, s21, s22")
    else: k("s_and_b32 s21, s16, 1\ns_lshl_b32 s21, s21, 2\ns_and_b32 s22, s17, 3\ns_add_u32 s21, s21, s22")
    k(f"s_lshl_b32 s24, s21, 2\ns_add_u32 s24, s24, s20\ns_mul_i32 s24, s24, {486*KBY}\ns_add_u32 s24, s24, {OFF_WF}")
    k(f"s_add_u32 s12, s4, s24\ns_addc_u32 s13, s5, 0\ns_mov_b32 s14, {486*KBY}\ns_mov_b32 s15, 0x00020000\ns_mov_b32 s25, 0")
    k("s_cmp_lg_u32 s20, 0\ns_cbranch_scc1 L_pollx_p")
    poll_fp(k, "p", FP)
def p3_wo(k):
    NS = 5; ACC = 16; NB3 = int(envs('NB3', '3')); RES = 240
    ffn_stream(k)
    k("s_lshl_b32 s21, s16, 2\ns_and_b32 s22, s17, 3\ns_add_u32 s26, s21, s22")
    k("s_lshr_b32 s22, s17, 2")
    k("s_lshl_b32 s21, s26, 2\ns_add_u32 s21, s21, s20")
    k(f"s_mul_i32 s23, s21, {18*KBY}\ns_add_u32 s23, s23, {OFF_OF}")
    k(f"s_mul_i32 s28, s21, {18*KBY}\ns_lshl_b32 s27, s22, 11\ns_add_u32 s27, s27, s28\ns_add_u32 s40, s27, {OFF_XF}\ns_add_u32 s41, s27, {OFF_X1}")
    k(f"s_lshr_b32 s29, s22, 2\ns_lshr_b32 s30, s22, 1\ns_lshl_b32 s30, s30, 10\ns_and_b32 s31, s22, 1\ns_lshl_b32 s31, s31, 3\ns_add_u32 s30, s30, s31\ns_add_u32 s30, s30, s28\ns_add_u32 s42, s30, {OFF_XF + 16*KBY}")
    k(f"s_lshl_b32 s30, s22, 9\ns_add_u32 s30, s30, s28\ns_add_u32 s43, s30, {OFF_X1 + 16*KBY}")
    k("v_lshrrev_b32 v10, 1, v1")
    k(f"s_lshr_b32 s56, s26, 1\ns_lshl_b32 s56, s56, 7\ns_add_u32 s56, s56, {FC}\nv_and_b32 v2, 15, v0\nv_lshlrev_b32 v2, 3, v2")
    if "c" in SP: spoll16(k, "c")
    else: poll(k, "c")
    stamp(k, 14)
    fresh(k)
    loads = []
    for ks in range(16):
        loads.append(tl(f"buffer_load_dwordx4 a[{4*ks}:{4*ks+3}], v1, s[8:11], s23 offen offset:{(ks%4)*1024}{LD}", ("x", ks), "s_add_u32 s23, s23, 4096" if ks % 4 == 3 else ""))
    for ks in (16, 17):
        for h in range(2): loads.append(tl(f"buffer_load_dwordx2 a[{4*ks+2*h}:{4*ks+2*h+1}], v10, s[8:11], s23 offen offset:{(ks%4)*1024 + 512*h}{LD}", ("x", ks)))
    for pr in range(2): loads.append(tl(f"buffer_load_dwordx4 v[{RES+4*pr}:{RES+4*pr+3}], v1, s[8:11], s40 offen offset:{pr*1024}{LD}", "res"))
    loads.append(tl(f"buffer_load_dwordx2 v[{RES+8}:{RES+9}], v1, s[8:11], s42 offen{LD}", "res"))
    if envs("T3", "0") == "1":
        k(f"v_lshlrev_b32 v4, 3, v1\nv_cmp_gt_u32 vcc, 256, v1\nv_mov_b32 v5, {BIG}\ns_lshl_b32 s30, s22, 11\ns_add_u32 s30, s30, s23\nv_cndmask_b32 v4, v5, v4, vcc")
        k.vm(f"buffer_load_dword v5, v4, s[8:11], s30 offen{LD}", "touch")
    gemm_core(k, 1, NS, loads, int(envs("AH3", "12")), 15, False, NB3, more=[f for p in range(PRE3) for f in wload(p)])
    k.wait_vm("res")
    stamp(k, 16)
    k("s_mov_b32 s31, 0xffff0000\ns_mov_b32 s32, 0x3f803f80\nv_mov_b32 v8, 0\nv_mov_b32 v9, 0\nv_mov_b32 v6, v10\nv_mov_b32 v10, 0\ns_add_u32 s33, s100, s50")
    k(f"v_cmp_gt_u32 vcc, 256, v1\nv_mov_b32 v7, {BIG}\nv_mov_b32 v11, s33\ns_cmp_lg_u32 s29, 0\ns_cbranch_scc1 L_p3_two")
    for pr in (2, 0, 1):
        n = 2 if pr == 2 else 4
        for h in range(n):
            a = ACC + 8 * pr + 2 * h; r = RES + 4 * pr + h
            k(f"v_lshlrev_b32 v4, 16, v{r}\nv_and_b32 v5, s31, v{r}\nv_pk_add_f32 v[4:5], v[4:5], v[{a}:{a+1}]\nv_cvt_pk_bf16_f32 v{r}, v4, v5")
        if pr == 2: k(f"buffer_store_dwordx2 v[{RES+8}:{RES+9}], v6, s[8:11], s43 offen sc1")
        else: k(f"buffer_store_dwordx4 v[{RES+4*pr}:{RES+4*pr+3}], v1, s[8:11], s41 offen offset:{pr*1024} sc1")
        for h in range(n): k(f"v_dot2c_f32_bf16 v8, s32, v{RES+4*pr+h}\nv_dot2c_f32_bf16 v9, v{RES+4*pr+h}, v{RES+4*pr+h}")
        for h in range(0, n, 2): k(f"v_bitop3_b32 v10, v10, v{RES+4*pr+h}, v{RES+4*pr+h+1} bitop3:0x96")
        if pr == 2: k.label("L_p3_two")
    k(f"v_cndmask_b32 v7, v7, v1, vcc\ns_lshl_b32 s30, s21, 11\ns_lshl_b32 s31, s22, 8\ns_add_u32 s30, s30, s31\ns_add_u32 s30, s30, {OFF_STAT}")
    for sw in ("v_permlane16_swap_b32", "v_permlane32_swap_b32"):
        k(f"v_mov_b32 v4, v10\nv_mov_b32 v5, v8\nv_mov_b32 v6, v9\n{sw} v10, v4\n{sw} v8, v5\n{sw} v9, v6\nv_xor_b32 v10, v10, v4\nv_add_f32 v8, v8, v5\nv_add_f32 v9, v9, v6")
    k("v_bitop3_b32 v10, v10, v8, v9 bitop3:0x96")
    k.vm(f"buffer_store_dwordx4 v[8:11], v7, s[8:11], s30 offen sc1")
    if envs("HINT", "1") == "1":
        k(f"s_lshl_b32 s56, s26, 7\ns_lshl_b32 s27, s22, 3\ns_add_u32 s56, s56, s27\ns_add_u32 s56, s56, {FD}\ns_add_u32 s56, s56, s51\ns_cmp_eq_u32 s20, 0\ns_cselect_b32 s56, s56, {BIG}\ns_barrier")
        publish(k)
    stamp(k, 17)
    if not CKD:
        k(f"s_lshl_b32 s56, s26, 7\ns_lshl_b32 s27, s22, 3\ns_add_u32 s56, s56, s27\ns_add_u32 s56, s56, {FE2}")
        signal(k)
    stamp(k, 18)

def p4_ffn(k):
    xreg = lambda ks, tb: (ar(4 * (ks * 4 + tb), 4) if ks < 16 else vr(XV + 4 * (ks * 4 + tb - 64), 4))
    if envs("FMAP", "2") == "2":
        k("s_lshl_b32 s21, s19, 1\ns_and_b32 s22, s17, 1\ns_add_u32 s21, s21, s22")
        k("s_lshl_b32 s22, s18, 4\ns_lshr_b32 s23, s17, 1\ns_add_u32 s22, s22, s23")
    else:
        k("s_and_b32 s21, s16, 1\ns_lshl_b32 s21, s21, 2\ns_and_b32 s22, s17, 3\ns_add_u32 s21, s21, s22")
        k("s_lshr_b32 s22, s16, 1\ns_lshl_b32 s22, s22, 3\ns_lshr_b32 s23, s17, 2\ns_add_u32 s22, s22, s23")
    FILL = int(envs("FILL", "24")); MID = (FILL + LEAD) // 2
    for p in range(PRE3, PRE):
        for f in wload(p): f.fn(k)
    k(f"s_lshl_b32 s23, s22, 2\ns_add_u32 s23, s23, s20\ns_lshl_b32 s44, s23, 11\ns_add_u32 s44, s44, {OFF_STAT}\ns_mul_i32 s45, s23, {18*KBY}\ns_add_u32 s45, s45, {OFF_X1}")
    ln_consts(k)
    k("v_and_b32 v12, 15, v0\nv_lshlrev_b32 v12, 4, v12\nv_bfe_u32 v5, v0, 4, 2\nv_lshl_add_u32 v12, v5, 9, v12\ns_add_u32 s46, s100, s50")
    X = 16; T = 88; CK = T + 12
    k("v_bfe_u32 v4, v0, 2, 2\nv_cmp_eq_u32 vcc, v4, v5\nv_and_b32 v4, 1, v0\nv_lshlrev_b32 v4, 4, v4\nv_mov_b32 v244, 0x3f80\nv_lshlrev_b32 v4, v4, v244\nv_cndmask_b32 v4, 0, v4, vcc")
    k("v_and_b32 v245, 2, v0\nv_cmp_eq_u32 vcc, 0, v245\nv_mov_b32 v244, 0\nv_mov_b32 v245, 0\nv_mov_b32 v248, 0\nv_mov_b32 v249, 0\nv_cndmask_b32 v246, 0, v4, vcc\nv_cndmask_b32 v247, v4, 0, vcc")
    if not CKD:
        k(f"s_lshl_b32 s56, s22, 7\ns_add_u32 s56, s56, {FE2}\nv_and_b32 v2, 7, v0\nv_lshlrev_b32 v2, 3, v2")
        poll(k, "d")
    k(f"s_mov_b32 s57, {SPIN}\ns_lshl_b32 s26, s20, 10\nv_add_u32 v2, s26, v1\nv_add_u32 v3, 0x10000, v2\ns_mov_b32 s47, {1 if FORCE_RETRY else 0}")
    if CKD:
        if envs("HINT", "1") == "1":
            k(f"s_lshl_b32 s56, s22, 7\ns_add_u32 s56, s56, {FD}")
            spoll(k, "d", 8)
            k(f"s_mov_b32 s57, {SPIN}")
        else:
            k(f"s_cmp_lg_u32 s20, 0\ns_cbranch_scc1 L_p4_bar\nv_lshlrev_b32 v4, 4, v1\nv_and_b32 v4, 0x1fff, v4")
            k.label("L_p4_in")
            k(f"buffer_load_dword v5, v4, s[8:11], s44 offen offset:12{LD}\ns_sub_u32 s57, s57, 1\ns_waitcnt vmcnt(0)\nv_cmp_eq_u32 vcc, s46, v5\ns_cmp_eq_u32 s57, 0\ns_cbranch_scc1 L_p4_bar")
            k("s_cmp_eq_u64 vcc, -1\ns_cbranch_scc0 L_p4_in")
            k.label("L_p4_bar")
            k("s_barrier")
    k("v_mov_b32 v254, s100\nv_mov_b32 v255, s101")
    publish_fp(k, FP2)
    k(f"s_mov_b32 s30, 0x3f803f80\ns_lshl_b32 s56, s21, 8\ns_add_u32 s56, s56, {FP2}\nv_and_b32 v6, 31, v0\nv_min_u32 v6, 26, v6\nv_lshlrev_b32 v6, 3, v6")
    k.label("L_p4_go")
    if STAMP: k("v_readlane_b32 s90, v15, 46\ns_add_u32 s90, s90, 1\ns_nop 1\nv_writelane_b32 v15, s90, 46")
    k(f"buffer_load_dwordx4 v[{T}:{T+3}], v12, s[8:11], s44 offen{LD}\nbuffer_load_dwordx4 v[{T+4}:{T+7}], v12, s[8:11], s44 offen offset:256{LD}")
    stamp(k, 19)
    k.vmq.append("st")
    k("s_mov_b32 s23, s45")
    k("v_lshrrev_b32 v7, 1, v1")
    for ks in range(18):
        if ks < 16: k.vm(f"buffer_load_dwordx4 v[{X+4*ks}:{X+4*ks+3}], v1, s[8:11], s23 offen offset:{(ks%4)*1024}{LD}", ("x", ks))
        else:
            for h in range(2): k.vm(f"buffer_load_dwordx2 v[{X+4*ks+2*h}:{X+4*ks+2*h+1}], v7, s[8:11], s23 offen offset:{(ks%4)*1024 + 512*h}{LD}", ("x", ks))
        if ks % 4 == 3: k("s_add_u32 s23, s23, 4096")
    k.wait_vm("st")
    k(f"v_bitop3_b32 v{CK}, v{T}, v{T+1}, v{T+2} bitop3:0x96\nv_bitop3_b32 v{T+2}, v{T+4}, v{T+5}, v{T+6} bitop3:0x96\nv_xor_b32 v{CK}, v{CK}, v{T+2}")
    k(f"v_xor_b32 v{CK+1}, s46, v{T+3}\nv_bitop3_b32 v{CK+1}, v{CK+1}, v{T+7}, s46 bitop3:0xf6")
    k(f"v_add_f32 v{T}, v{T}, v{T+4}\nv_add_f32 v{T+1}, v{T+1}, v{T+5}")
    red_rows(k, T, T + 2)
    k(f"v_mul_f32 v{T}, s31, v{T}\nv_sub_f32 v{T+3}, 0, v{T}\ns_mov_b32 s26, 0x00003f80\ns_mov_b32 s27, 0x3f800000")
    kk = KB(); red_rows(kk, T + 1, T + 2)
    kk(f"v_mul_f32 v{T+1}, s31, v{T+1}\nv_fma_f32 v{T+1}, -v{T}, v{T}, v{T+1}\nv_max_f32 v{T+1}, 0, v{T+1}\nv_add_f32 v{T+1}, {fbits(1e-5)}, v{T+1}")
    kk(f"v_and_b32 v4, 15, v0\nv_lshlrev_b32 v4, 2, v4\nv_add_u32 v4, {144*KBY}, v4\ns_lshl_b32 s33, s20, 6\nv_add_u32 v5, s33, v4")
    MC = envs("MC", "1") == "1"; DD, CQ4, SEL = 224, 240, 244
    assert FILL <= 28
    def fin1(ks):
        src = (lambda i: DD + 8 * (ks & 1) + 2 * i) if MC else (lambda i: T + 4 + 2 * i)
        for i in range(4): k(f"v_cvt_pk_bf16_f32 v{X+4*ks+i}, v{src(i)}, v{src(i)+1}")
        k.lg(f"ds_write_b128 v{2 if ks < 16 else 3}, v[{X+4*ks}:{X+4*ks+3}] offset:{(ks % 16) * 4096}")
    if MC:
        assert CKD
        for i in range(4): k(f"v_mov_b32 v{CQ4+i}, v{T+3}")
        k("s_nop 0")
    for ks in range(18):
        k.wait_vm(("x", ks))
        if MC:
            d = DD + 8 * (ks & 1)
            k(f"{MF} v[{d}:{d+3}], v[{SEL+2}:{SEL+5}], v[{X+4*ks}:{X+4*ks+3}], v[{CQ4}:{CQ4+3}]")
            k(f"v_bitop3_b32 v{CK}, v{CK}, v{X+4*ks}, v{X+4*ks+1} bitop3:0x96\nv_bitop3_b32 v{CK}, v{CK}, v{X+4*ks+2}, v{X+4*ks+3} bitop3:0x96")
            k(f"{MF} v[{d+4}:{d+7}], v[{SEL}:{SEL+3}], v[{X+4*ks}:{X+4*ks+3}], v[{CQ4}:{CQ4+3}]")
            if ks: fin1(ks - 1)
        else:
            for i in range(4): k(f"v_dot2_f32_bf16 v{T+4+2*i}, v{X+4*ks+i}, s26, v{T+3}\nv_dot2_f32_bf16 v{T+5+2*i}, v{X+4*ks+i}, s27, v{T+3}")
            if CKD:
                for i in (0, 2): k(f"v_bitop3_b32 v{CK}, v{CK}, v{X+4*ks+i}, v{X+4*ks+i+1} bitop3:0x96")
            fin1(ks)
        if ks == 0:
            k.lines += kk.lines
            k.lg(f"ds_write_b32 v5, v{T+1}")
        if ks == 12: k.vm(f"buffer_load_dwordx2 v[{T+14}:{T+15}], v6, s[8:11], s56 offen sc1", "fp2")
    post = (lambda: fin1(17)) if MC else (lambda: None)
    if CKD:
        red_rows(k, CK, T + 2, "v_xor_b32")
        post()
        k(f"v_or_b32 v{CK}, v{CK}, v{CK+1}\nv_cmp_ne_u32 vcc, s47, v{CK}\ns_mov_b32 s47, 0\ns_cmp_eq_u32 s57, 0\ns_cbranch_scc1 L_p4_ok\ns_sub_u32 s57, s57, 1\ns_cmp_eq_u64 vcc, 0\ns_cbranch_scc0 L_p4_go")
        k.label("L_p4_ok")
    for p in range(PRE, FILL):
        for f in wload(p): f.fn(k)
    k("v_mov_b32 v2, v1\nv_add_u32 v3, 0x10000, v1")
    HB = 72 * KBY
    k(f"s_mov_b32 s33, {fbits(-LOG2E)}")
    k(f"s_lshl_b32 s29, s20, 14\ns_add_u32 s29, s29, {HB}\ns_mov_b32 s28, 8")
    k("s_mov_b32 s34, 7")
    stamp(k, 20)
    k.wait_lg_all(); k("s_barrier")
    fp2 = [F(lambda k: (k.wait_vm("fp2"), k(f"v_cmp_eq_u64 s[48:49], s[100:101], v[{T+14}:{T+15}]")), 8, after=2, before=6)]

    for tb in range(4): k.lg(f"ds_read_b32 v{9+tb}, v4 offset:{64*tb}", "var")
    consts = [F(lambda k: k.wait_lg("var"), 4, after=4)]
    consts += [line(f"v_rsq_f32 v{5+tb}, v{9+tb}", 8) for tb in range(4)] + [line(f"v_sqrt_f32 v{9+tb}, v{9+tb}", 8) for tb in range(4)]
    consts += [line(f"v_mul_f32 v{5+j}, s33, v{5+j}") for j in range(8)]
    def xreads(lo, hi):
        return [lgl(f"ds_read_b128 {xreg(ks, tb)}, v{2 if ks < 16 else 3} offset:{((ks * 4 + tb) % 64) * 1024}", ("xr", ks)) for ks in range(lo, hi) for tb in range(4)]
    def phase(p0, acc, streams, xr=None, pre_extra=None, budget=8, xwait=None, lead=(LEAD, LEAD)):
        mf = []; pre = {}; loads = []
        for g in range(18 // G):
            def p(k, g=g):
                if pre_extra and g in pre_extra: pre_extra[g](k)
                k.wait_vm(("w", p0 + g * G + G - 1), force=True)
                if xr is not None or xwait: k.wait_lg(("xr", g * G + G - 1))
            pre[len(mf)] = p
            n = 18 + lead[1] - lead[0]
            for q in range(p0 + lead[0] + n * g // 6, p0 + lead[0] + n * (g + 1) // 6):
                assert q < p0 + g * G + 36
                for f in wload(q):
                    f.after = len(mf); f.before = len(mf) + 4 * G; loads.append(f)
            for tb in range(4):
                for j in range(G):
                    ks = g * G + j; r = RING + 4 * ((p0 + ks) % 36); a = acc + 4 * tb
                    mf.append(f"{MF} v[{a}:{a+3}], v[{r}:{r+3}], {xreg(ks, tb)}, " + ("0" if ks == 0 else f"v[{a}:{a+3}]"))
        st = [loads] + streams
        if xr:
            for j, f in enumerate(xr):
                g = j // (4 * G); f.after = max(f.after, 4 * G * g - 4); f.before = 4 * G * (g + 1) - 3
            st.append(xr)
        interleave(k, mf, st, pre=pre, budget=budget)
    def finish():
        L = [line("v_add_u32 v4, s29, v1")]
        for tb in range(4):
            for i in range(4): L.append(line(f"v_mul_f32 v{T1+4*tb+i}, v{T1+4*tb+i}, v{AU+4*tb+i}", after=3))
            for i in range(4): L.append(line(f"v_mul_f32 v{T1+4*tb+i}, v{T1+4*tb+i}, v{T2+4*tb+i}"))
            for i in range(2): L.append(line(f"v_cvt_pk_bf16_f32 v{T2+4*tb+i}, v{T1+4*tb+2*i}, v{T1+4*tb+2*i+1}"))
            L.append(lgl(f"ds_write_b64 v4, v[{T2+4*tb}:{T2+4*tb+1}] offset:{tb*1024}", "hw"))
        L += [line("s_add_u32 s29, s29, s28"), line("s_sub_u32 s28, 4096, s28"), line("s_sub_u32 s34, s34, 1")]
        return L
    def expo():
        L = []
        for tb in range(4):
            for i in range(4): L.append(line(f"v_mul_f32 v{T1+4*tb+i}, v{5+tb}, v{AG+4*tb+i}", after=2))
            for i in range(4): L.append(line(f"v_exp_f32 v{T2+4*tb+i}, v{T1+4*tb+i}", 8))
            for i in range(4): L.append(line(f"v_fma_f32 v{T2+4*tb+i}, v{T2+4*tb+i}, v{9+tb}, v{9+tb}"))
            for i in range(4): L.append(line(f"v_rcp_f32 v{T2+4*tb+i}, v{T2+4*tb+i}", 8))
        return L
    xr = xreads(0, 18)
    for f in xr[:4 * G]: f.fn(k)
    stamp(k, 21); stamp(k, 30, True)
    phase(0, AG, [consts, fp2], xr=xr[4 * G:], lead=(FILL, MID), budget=12)
    phase(18, AU, [expo()], lead=(MID, LEAD), budget=12)
    k(f"v_add_u32 v2, {HB}, v1\nv_add_u32 v3, {HB + 0x10000}, v1")
    its = []
    for fb in range(1, 8):
        m0 = k.mark()
        phase(36 * fb, AG, [finish()])
        phase(36 * fb + 18, AU, [expo()])
        its.append(k.lines[m0:]); del k.lines[m0:]
    k.label("L_ffn_gu")
    k.lines += fold(its)
    k("s_cmp_lg_u32 s34, 0\ns_cbranch_scc1 L_ffn_gu")
    k("v_mov_b32 v4, v2\ns_cmp_eq_u64 s[48:49], -1\ns_cbranch_scc1 L_pollx_p2")
    poll_fp(k, "p2", FP2)
    k("v_mov_b32 v2, v4")
    phase(288, AG, [finish()[:-3]])
    k.wait_lg_all(); k("s_barrier")
    k.lgq = []; k.lg_done = 0
    hr = xreads(0, 15)
    for j, f in enumerate(hr): f.after = 12 * (j // 12 + 1)
    phase(306, AU, [expo(), hr], budget=int(envs("TB", "12")))
    stamp(k, 22); stamp(k, 31, True)
    k(f"s_lshr_b32 s29, s20, 1\ns_lshl_b32 s29, s29, 12\ns_and_b32 s35, s20, 1\ns_lshl_b32 s36, s35, 3\ns_add_u32 s29, s29, s36")
    k(f"v_add_u32 v9, s29, v1\ns_add_u32 s29, s29, {HB + 64*KBY}\ns_lshl_b32 s41, s20, 11\nv_add_u32 v10, s41, v1")
    k(f"s_lshl_b32 s37, s21, 7\ns_lshl_b32 s38, s22, 2\ns_add_u32 s37, s37, s38\ns_mul_i32 s37, s37, {18*KBY}\ns_add_u32 s37, s37, {OFF_PART}")
    k(f"s_lshr_b32 s39, s20, 1\ns_add_u32 s39, s39, 16\ns_lshl_b32 s39, s39, 10\ns_mul_i32 s40, s35, {36*KBY}\ns_add_u32 s39, s39, s40\ns_add_u32 s39, s39, s37")
    k("s_lshl_b32 s38, s20, 10\ns_add_u32 s38, s38, s37")
    k(f"s_lshl_b32 s56, s22, 7\ns_lshl_b32 s27, s21, 3\ns_add_u32 s56, s56, s27\ns_add_u32 s56, s56, {FE}")
    for tb in range(4): k(f"v_add_u32 v{5+tb}, {tb*18*KBY}, v1")
    k(f"s_lshr_b32 s44, s21, 1\ns_lshl_b32 s45, s35, 1\ns_sub_u32 s45, s44, s45\ns_sub_u32 s30, s38, s37\ns_add_u32 s30, s30, {130*KBY}\nv_add_u32 v11, s30, v1")
    k(f"s_sub_u32 s30, s39, s37\ns_sub_u32 s30, s30, s40\ns_add_u32 s30, s30, {130*KBY}\nv_add_u32 v12, s30, v1")
    fin = finish()[:-3]
    NG = 18 // G
    for f in fin: f.before = 4 * G * (NG - 3)
    def late(k):
        k.wait_lg_all(); k("s_barrier")
        for f in xreads(15, 18): f.fn(k)
    phase(324, AG, [fin], pre_extra={NG - 3: late}, xwait=True)
    def cv(acc, dst, hi, after=0):
        return [line(f"v_cvt_pk_bf16_f32 v{dst+4*tb+2*hi+i}, v{acc+4*tb+2*i}, v{acc+4*tb+2*i+1}", after=after) for tb in range(4) for i in range(2)]
    OWN = envs("OWN", "1") == "1"
    uid = [0]
    def keep(src, tb, cmp, vaddr):
        def f(k):
            uid[0] += 1
            k(f"s_cmp_lg_u32 {cmp}, {tb}\ns_cbranch_scc1 2\nds_write_b128 {vaddr}, v[{src+4*tb}:{src+4*tb+3}]")
        if envs("KEEPV", "1") == "1":
            return [line(f"ds_write_b128 v{KA[vaddr] + tb}, v[{src+4*tb}:{src+4*tb+3}]", 8)] if False else [F(f, 8)]
        return [F(f, 8)] if OWN else []
    def st4(src, tb, after, addr="s38", tag=None):
        if envs("NOST", ""): return line("s_nop 0", after=after)
        return vml(f"buffer_store_dwordx4 v[{src+4*tb}:{src+4*tb+3}], v{5+tb}, s[8:11], {addr} offen{envs('PST', ' sc1').replace('_', ' ')}", tag, after=after, cost=8)
    c = cv(AG, T2, 0, 8); join = []
    for tb in range(4): join += c[2*tb:2*tb+2] + [lgl(f"ds_write_b64 v9, v[{T2+4*tb}:{T2+4*tb+1}] offset:{tb*1024}")]
    for f in join: f.before = 36
    def joined(k):
        k.wait_lg_all(); k("s_barrier")
        k.lg(f"ds_read_b128 v[{T2}:{T2+3}], v10", "j"); k.lg(f"ds_read_b128 v[{T2+4}:{T2+7}], v10 offset:1024", "j")
    phase(342, AU, [join, [F(lambda k: k.wait_lg("j"), 4, after=50), st4(T2, 0, 52, "s39"), st4(T2, 1, 62, "s39")] + keep(T2, 0, "s45", "v12") + keep(T2, 1, "s45", "v12")], pre_extra={3: joined})
    kk = KB()
    kk("s_lshl_b32 s28, s22, 3\ns_add_u32 s28, s28, s21\ns_mov_b32 s42, s22\ns_mov_b32 s47, s21")
    kk("v_bfe_u32 v9, v0, 4, 2\nv_lshlrev_b32 v9, 8, v9\nv_bfe_u32 v10, v0, 3, 1\nv_lshl_add_u32 v9, v10, 10, v9\nv_and_b32 v10, 7, v0\nv_lshl_add_u32 v9, v10, 4, v9")
    kk(f"s_and_b32 s31, s28, 1\ns_lshl_b32 s31, s31, 7\ns_lshl_b32 s26, s20, 11\ns_add_u32 s31, s31, s26\nv_add_u32 v9, s31, v9\nv_lshlrev_b32 v4, 3, v10\nv_and_b32 v10, 0x3ff, v9\nv_lshrrev_b32 v10, 1, v10\nv_and_b32 v3, 0x400, v9\nv_add_u32 v10, v10, v3")
    kk(f"s_lshr_b32 s24, s28, 1\ns_mul_i32 s24, s24, {18*KBY}\ns_add_u32 s30, s24, {OFF_X1}")
    kk(f"s_add_u32 s31, s30, 16384\ns_cmp_eq_u32 s20, 0\ns_cselect_b32 s31, s31, {BIG}\ns_add_u32 s32, s30, 8192")
    kk(f"s_add_u32 s46, s56, {FE1 - FE}\ns_add_u32 s46, s46, s51\ns_and_b32 s48, s46, 0xffffff80\ns_cmp_eq_u32 s20, 0\ns_cselect_b32 s46, s46, {BIG}")
    for src in range(7):
        kk(f"s_cmp_gt_u32 s47, {src}\ns_cselect_b32 s26, {src}, {src + 1}\ns_mul_i32 s26, s26, {2304*KBY}\ns_add_u32 s26, s26, s24\ns_add_u32 s{72+src}, s26, {OFF_PART}")
    setup = []; ls = [l.strip() for l in kk.lines]; j = 0
    while j < len(ls):
        n = 2 if (ls[j].startswith("s_cmp") or j + 1 >= len(ls) or not ls[j + 1].startswith("s_cmp")) else 1
        setup.append(line("\n".join(ls[j:j + n]), 8)); j += n
    phase(360, AG, [cv(AU, T1, 0, 8), setup])
    k("s_mov_b32 s34, 2")
    stamp(k, 23); stamp(k, 32, True)
    E2 = envs("E2", "1") == "1"; TBM = E2 and envs("TBM", "1") == "1"
    SCL = int(envs("SCL", "0"))
    def first_half():
        L = []
        for tb in range(4):
            L += [line(f"v_mov_b32 v{T2+4*tb}, v{T1+4*tb}"), line(f"v_mov_b32 v{T2+4*tb+1}, v{T1+4*tb+1}")]
        if SCL: return cv(AG, T1, 1, 8) + [st4(T1, tb, SCL) for tb in range(4)]
        return L + cv(AG, T2, 1, 8) + [f for tb in range(4) for f in keep(T2, tb, "s44", "v11")] + [line("v_add_u32 v11, 0x1000, v11")] + [st4(T2, 0, 30), st4(T2, 1, 60)]
    def pair(p, x0=[], x1=[], pre=None, pre1=None):
        fh = first_half()
        if p == 3 and E2:
            fh = fh[:-2]
            if envs("CMP", "1") == "1":
                for f in fh: f.before = 26
            for tb in range(4):
                fh.append(st4(T2, tb, 26 + 8 * tb, tag=("ps", 3)))
                if envs("CMP", "1") == "1": fh[-1].before = 28 + 8 * tb
        phase(342 + 36 * p, AU, [fh, x0], pre_extra=pre)
        if p == 3: stamp(k, 35, True)
        c0 = cv(AU, T1, 0, 8)
        if p == 3 and TBM:
            p0 = 342 + 36 * p + 18
            mf = [f"{MF} v[{AG+4*tb}:{AG+4*tb+3}], v[{RING+4*((p0+ks)%36)}:{RING+4*((p0+ks)%36)+3}], {xreg(ks, tb)}, " + ("0" if ks == 0 else f"v[{AG+4*tb}:{AG+4*tb+3}]") for tb in range(4) for ks in range(18)]
            for f in c0: f.before = 24
            c1 = cv(AG, T1, 1); out = [line("s_add_u32 s38, s38, 4096")]
            for tb in range(3):
                c1[2*tb].after = 18 * (tb + 1) + 7
                out += c1[2*tb:2*tb+2] + [st4(T1, tb, 0)] + keep(T1, tb, "s44", "v11")
                for f in out[-4:]: f.before = 18 * (tb + 1) + 14
            pre = {0: lambda k: k.wait_vm(("w", 485))}
            for g, fn in pre1.items(): pre[12 * g] = fn
            interleave(k, mf, [c0, out, x1], pre=pre)
            return
        phase(342 + 36 * p + 18, AG, [c0, ([] if SCL or (p == 3 and E2) else [st4(T2, 2, 20), st4(T2, 3, 52, tag=("ps", p))]) + [line("s_add_u32 s38, s38, 4096"), line("s_sub_u32 s34, s34, 1")], x1], pre_extra=pre1)
    its = []
    for p in range(1, 3):
        m0 = k.mark(); pair(p); its.append(k.lines[m0:]); del k.lines[m0:]
    k.label("L_ffn_dn")
    k.lines += fold(its)
    k("s_cmp_lg_u32 s34, 0\ns_cbranch_scc1 L_ffn_dn")
    stamp(k, 24); stamp(k, 33, True)
    tail = [vml(f"buffer_load_dwordx4 v[{RESID+4*i}:{RESID+4*i+3}], v9, s[8:11], s{30+i} offen{LD}", after=14, cost=8) for i in (0, 2)]
    tail += [vml(f"buffer_load_dwordx2 v[{RESID+4+2*h}:{RESID+5+2*h}], v10, s[8:11], s31 offen offset:{512*h}{LD}", after=14, cost=8) for h in range(2)]
    def early(k):
        k.wait_vm(("ps", 2)); k("s_barrier\nv_mov_b32 v2, s100\nv_mov_b32 v3, s101")
        k.vm("buffer_store_dwordx2 v[2:3], v13, s[8:11], s46 offen sc1")
    def early2(k):
        k.wait_vm(("ps", 3)); k(f"s_barrier\ns_sub_u32 s46, s46, {FE1 - FE2}")
        k.vm("buffer_store_dwordx2 v[2:3], v13, s[8:11], s46 offen sc1")
    pair(3, tail, [vml("buffer_load_dwordx2 v[2:3], v4, s[8:11], s48 offen sc1", "e1", after=int(envs("E1AT", "62")), cost=8)], {int(envs("EAT", "5")): early}, {int(envs("E2AT", "5")): early2} if E2 else None)
    stamp(k, 36, True)
    k("s_nop 7" if TBM else "s_nop 5")
    c = cv(AG, T1, 1)
    for tb in range(3 if TBM else 0, 4):
        c[2 * tb].fn(k); c[2 * tb + 1].fn(k); st4(T1, tb, 0).fn(k)
    for tb in range(3 if TBM else 0, 4):
        for f in keep(T1, tb, "s44", "v11"): f.fn(k)
    stamp(k, 25); stamp(k, 34, True)
    k.wait_vm("e1")
    k(f"v_cmp_eq_u64 vcc, s[100:101], v[2:3]\ns_add_u32 s56, s56, s51\ns_cmp_eq_u32 s20, 0\ns_cselect_b32 s56, s56, {BIG}")
    k(f"s_cmp_eq_u64 vcc, {-1 if not envs('NOE1', '') else 5}\ns_cselect_b32 s49, 1, 0\ns_cbranch_scc0 L_ffn_noe")
    for src in range(7): k(f"buffer_load_dwordx4 v[{P5R[0]+4*src}:{P5R[0]+4*src+3}], v9, s[8:11], s{72+src} offen{LD}")
    k("s_waitcnt vmcnt(7) lgkmcnt(0)\ns_branch L_ffn_sig")
    k.label("L_ffn_noe")
    k("s_waitcnt vmcnt(0) lgkmcnt(0)")
    k.label("L_ffn_sig")
    k("s_barrier")
    publish(k)
    stamp(k, 26)

P5R = (48, 76, 16)
def p5_reduce(k, nlayers):
    k(f"v_mov_b32 v8, v9\nv_add_u32 v10, 0x2000, v9\ns_cmp_eq_u32 s20, 0\ns_cselect_b32 s35, 16384, {BIG}\nv_add_u32 v9, s35, v9")
    def ld(i):
        for src in range(7): k.vm(f"buffer_load_dwordx4 v[{P5R[i]+4*src}:{P5R[i]+4*src+3}], v{8+i}, s[8:11], s{72+src} offen{LD}", (src, i))
    k("s_cmp_eq_u32 s49, 1\ns_cbranch_scc1 L_p5_e1\ns_mov_b32 s56, s48\nv_mov_b32 v2, v4")
    poll(k, "e1", wg=False, layer=False)
    ld(0)
    k.label("L_p5_e1")
    k("s_cmp_lg_u32 s20, 0\ns_cbranch_scc1 L_p5_n1")
    ld(1)
    k.label("L_p5_n1")
    k("v_bfe_u32 v4, v0, 4, 2\nv_bfe_u32 v5, v0, 3, 1\nv_and_b32 v6, 7, v0")
    ln_consts(k)
    k("s_mov_b32 s26, 0x00003f80\ns_mov_b32 s27, 0x3f800000")
    D = 136; ACC = 112
    k(f"v_min_u32 v12, 0x4800, v9\nv_add_u32 v11, {130*KBY}, v8\nv_add_u32 v12, {130*KBY}, v12\ns_waitcnt lgkmcnt(0)")
    k(f"ds_read_b128 v[{D}:{D+3}], v11\nds_read_b128 v[{D+4}:{D+7}], v12\nds_read_b128 v[{D+8}:{D+11}], v11 offset:8192")
    k(f"s_lshl_b32 s56, s42, 7\ns_add_u32 s56, s56, {FE}\nv_lshlrev_b32 v2, 3, v6")
    for j in range(12): k(f"v_lshlrev_b32 v{ACC+2*j}, 16, v{RESID+j}\nv_and_b32 v{ACC+2*j+1}, s32, v{RESID+j}")
    k("s_waitcnt lgkmcnt(0)")
    for j in range(12): k(f"v_dot2c_f32_bf16 v{ACC+2*j}, s26, v{D+j}\nv_dot2c_f32_bf16 v{ACC+2*j+1}, s27, v{D+j}")
    if envs("E2", "1") == "1":
        k(f"s_cmp_lt_u32 s20, 2\ns_cselect_b32 s23, {FE - FE2}, 0\ns_sub_u32 s56, s56, s23")
        spoll(k, "e", 8, wg=False)
    elif "e" in SP: spoll(k, "e", 8)
    else: poll(k, "e")
    stamp(k, 27)
    fresh(k)
    ld(2)
    def add(src, i):
        for j in range(4):
            r = P5R[i] + 4 * src + j; a = ACC + 8 * i + 2 * j
            k(f"v_dot2c_f32_bf16 v{a}, s26, v{r}\nv_dot2c_f32_bf16 v{a+1}, s27, v{r}")
    k("s_waitcnt vmcnt(7)")
    for src in range(7): add(src, 0)
    k("s_cmp_lg_u32 s20, 0\ns_cbranch_scc1 L_p5_n2")
    for src in range(7): add(src, 1)
    k.label("L_p5_n2")
    T = D + 16; O = T + 8
    k("s_nop 1")
    for j in range(8): k(f"v_cvt_pk_bf16_f32 v{D+j}, v{ACC+2*j}, v{ACC+2*j+1}")
    k(f"s_add_u32 s25, s24, {OFF_XF}\ns_cmp_eq_u32 s50, 1\ns_cbranch_scc1 L_p5_final")
    saved = (list(k.vmq), k.vm_done)
    for i in range(2): k.vm(f"buffer_store_dwordx4 v[{D+4*i}:{D+4*i+3}], v{8+i}, s[8:11], s25 offen sc1")
    k("s_cmp_eq_u32 s20, 0\ns_cbranch_scc1 L_p5_w0")
    for j in range(4): k(f"v_mov_b32 v{D+4+j}, 0")
    k.label("L_p5_w0")
    for i in range(4): k(f"v_mov_b32 v{T+i}, 0")
    for j in range(8): k(f"v_dot2c_f32_bf16 v{T+(j&1)}, s30, v{D+j}\nv_dot2c_f32_bf16 v{T+2+(j&1)}, v{D+j}, v{D+j}")
    for src in range(7): k.wait_vm((src, 2)); add(src, 2)
    stamp(k, 28)
    k("s_nop 2")
    for j in range(8, 12): k(f"v_cvt_pk_bf16_f32 v{D+j}, v{ACC+2*j}, v{ACC+2*j+1}")
    k(f"buffer_store_dwordx4 v[{D+8}:{D+11}], v10, s[8:11], s25 offen sc1")
    for j in range(8, 12): k(f"v_dot2c_f32_bf16 v{T+(j&1)}, s30, v{D+j}\nv_dot2c_f32_bf16 v{T+2+(j&1)}, v{D+j}, v{D+j}")
    k(f"s_nop 2\nv_add_f32 v{T}, v{T}, v{T+1}\nv_add_f32 v{T+1}, v{T+2}, v{T+3}\ns_nop 1")
    k(f"v_add_f32_dpp v{T}, v{T}, v{T} row_ror:8 row_mask:0xf bank_mask:0xf\nv_add_f32_dpp v{T+1}, v{T+1}, v{T+1} row_ror:8 row_mask:0xf bank_mask:0xf")
    for sw in ("v_permlane16_swap_b32", "v_permlane32_swap_b32"):
        k(f"v_mov_b32 v{T+2}, v{T}\nv_mov_b32 v{T+3}, v{T+1}\ns_nop 0\n{sw} v{T}, v{T+2}\n{sw} v{T+1}, v{T+3}\nv_pk_add_f32 v[{T}:{T+1}], v[{T}:{T+1}], v[{T+2}:{T+3}]")
    k(f"v_lshlrev_b32 v11, 3, v6\nv_add_u32 v11, {150*KBY}, v11\ns_lshl_b32 s23, s20, 6\nv_add_u32 v12, s23, v11")
    k(f"ds_write_b64 v12, v[{T}:{T+1}]\ns_waitcnt lgkmcnt(0)\ns_barrier")
    for w in range(4): k(f"ds_read_b64 v[{T+2*w}:{T+2*w+1}], v11 offset:{64*w}")
    k(f"s_add_u32 s23, s24, {OFF_XN}\ns_waitcnt lgkmcnt(0)")
    k(f"v_pk_add_f32 v[{T}:{T+1}], v[{T}:{T+1}], v[{T+2}:{T+3}]\nv_pk_add_f32 v[{T+4}:{T+5}], v[{T+4}:{T+5}], v[{T+6}:{T+7}]\nv_pk_add_f32 v[{T}:{T+1}], v[{T}:{T+1}], v[{T+4}:{T+5}]")
    ln_stats_finish(k, T, T + 1)
    for i in range(3):
        for j in range(4): ln_norm(k, D + 4 * i + j, O + 4 * i + j, T, T + 1, T + 2 + 2 * (j & 1))
        k(f"buffer_store_dwordx4 v[{O+4*i}:{O+4*i+3}], v{8+i}, s[8:11], s23 offen sc1")
    flag_a_addr(k)
    stamp(k, 29)
    k(f"s_add_u32 s50, s50, 1\ns_add_u32 s51, s51, 32768\ns_mov_b32 s53, {OFF_QKV2}")
    signal(k)
    if STAMP: k("v_mov_b32 v14, v15")
    k("s_branch L_p0_fetch" if nlayers == 2 else "s_branch L_main_fin")
    k.label("L_p5_final")
    srd(k, 12, 6, 2048 * 1152)
    rowmajor(k, 28, 7)
    k(f"s_add_u32 s35, s33, 1024\ns_cmp_eq_u32 s20, 0\ns_cselect_b32 s35, s35, {BIG}\ns_lshl_b32 s25, s20, 7\ns_add_u32 s34, s33, s25\ns_add_u32 s36, s34, 512")
    k.vmq, k.vm_done = saved
    for i in range(3):
        if i == 2:
            for src in range(7): k.wait_vm((src, 2)); add(src, 2)
            stamp(k, 28)
            k("s_nop 2")
            for j in range(8, 12): k(f"v_cvt_pk_bf16_f32 v{D+j}, v{ACC+2*j}, v{ACC+2*j+1}")
            k("s_nop 0")
        k(f"v_permlane16_swap_b32 v{D+4*i}, v{D+4*i+2}\nv_permlane16_swap_b32 v{D+4*i+1}, v{D+4*i+3}")
        k.vm(f"buffer_store_dwordx4 v[{D+4*i}:{D+4*i+3}], v7, s[12:15], s{34+i} offen{FL[envs('OUTST', 's')]}")
    k.label("L_main_fin")
    if DIAG:
        k("s_waitcnt vmcnt(0)"); stamp(k, 50)
        k("s_cmp_lg_u32 s20, 0\ns_cbranch_scc1 L_end\ns_cmp_lg_u32 s2, 100\ns_cbranch_scc1 L_end\ns_sub_u32 s90, s90, s88\ns_mul_i32 s90, s90, 3\ns_min_u32 s90, s90, 100000\ns_memrealtime s[88:89]\ns_waitcnt lgkmcnt(0)")
        k.label("L_dgs")
        k("s_memrealtime s[94:95]\ns_waitcnt lgkmcnt(0)\ns_sub_u32 s94, s94, s88\ns_cmp_lt_u32 s94, s90\ns_cbranch_scc1 L_dgs")
    if STAMP:
        k.wait_vm_all(); stamp(k, 29)
        k(f"s_add_u32 s84, s4, {OFF_STAMP}\ns_addc_u32 s85, s5, 0\ns_mov_b32 s86, 0x2000000\ns_mov_b32 s87, 0x00020000")
        k("s_lshl_b32 s88, s2, 2\ns_add_u32 s88, s88, s20\ns_lshl_b32 s88, s88, 9\nv_lshrrev_b32 v2, 2, v1")
        k("buffer_store_dword v14, v2, s[84:87], s88 offen\nbuffer_store_dword v15, v2, s[84:87], s88 offen offset:256")

def main_k(name, nlayers=2):
    k = KB()
    k.raw(f".globl {name}\n.p2align 8\n.type {name},@function")
    k.label(name)
    k("s_cmp_ge_u32 s2, 256\ns_cbranch_scc1 L_end")
    if STAMP: k("v_mov_b32 v14, 0\nv_mov_b32 v15, 0"); stamp(k, 40)
    if DIAG: k("s_memrealtime s[88:89]\ns_waitcnt lgkmcnt(0)\ns_mov_b32 s90, s88")
    k("s_load_dwordx4 s[36:39], s[0:1], 0\ns_load_dwordx2 s[46:47], s[0:1], 16\ns_load_dwordx4 s[40:43], s[0:1], 32")
    k("s_load_dwordx2 s[44:45], s[0:1], 48\ns_load_dwordx2 s[6:7], s[0:1], 56\ns_load_dwordx2 s[84:85], s[0:1], 64\ns_load_dwordx2 s[4:5], s[0:1], 72")
    k("v_lshrrev_b32 v2, 6, v0\nv_and_b32 v1, 63, v0\nv_readfirstlane_b32 s20, v2\nv_cmp_eq_u32 vcc, 0, v1\nv_lshlrev_b32 v1, 4, v1")
    k("s_and_b32 s16, s2, 7\ns_lshr_b32 s17, s2, 3\ns_bfe_u32 s18, s2, 0x10002\ns_and_b32 s19, s2, 3")
    k(f"v_mov_b32 v13, {BIG}\ns_mov_b32 s50, 0\ns_mov_b32 s51, 0\ns_mov_b32 s53, {OFF_QKV}\ns_mov_b32 s67, 0\nv_cndmask_b32 v13, v13, 0, vcc")
    p0(k)
    k.label("L_layer")
    fresh(k)
    p1_qkv(k); p2_attn(k); p3_wo(k); p4_ffn(k); p5_reduce(k, nlayers)
    k.label("L_end")
    k("s_endpgm")
    return k

def desc(n, vgpr, accum):
    return f""".p2align 6
.amdhsa_kernel {n}
  .amdhsa_next_free_vgpr {vgpr}
  .amdhsa_next_free_sgpr 102
  .amdhsa_accum_offset {accum}
  .amdhsa_group_segment_fixed_size 0
  .amdhsa_kernarg_size 80
  .amdhsa_user_sgpr_count 2
  .amdhsa_user_sgpr_kernarg_segment_ptr 1
  .amdhsa_system_sgpr_workgroup_id_x 1
  .amdhsa_float_denorm_mode_32 3
.end_amdhsa_kernel"""
def build(nlayers=2):
    name = "interleave_layers__sliding_block__swiglu_ffn__prompt_kernel"
    out = ["; x += attn(LN x); x += swiglu(LN x); twice. One persistent kernel, 256 workgroups. Generated by my own script (work/genq.py)."]
    if STAMP:
        if not envs("NOSLEEP", ""): out.append("; @launch kernel=sleep_kernel grid=(1,1,1) block=(64,1,1) lds=0")
        out.append(f"; @launch kernel={name} grid=(256,1,1) block=(256,1,1) lds=163840")
    else: out.append("; @launch grid=(256,1,1) block=(256,1,1) lds=163840")
    out.append('.amdgcn_target "amdgcn-amd-amdhsa--gfx950"\n.text')
    out.append(main_k(name, nlayers).text())
    if STAMP:
        out.append(""".globl sleep_kernel
.p2align 8
.type sleep_kernel,@function
sleep_kernel:
    s_mov_b32 s4, 2000
L_sleep:
    s_sleep 8
    s_sub_u32 s4, s4, 1
    s_cmp_lg_u32 s4, 0
    s_cbranch_scc1 L_sleep
    s_endpgm""")
    out.append('.section .rodata,"a"')
    out.append(desc(name, 512, 256))
    if STAMP: out.append(desc("sleep_kernel", 8, 8))
    return "\n".join(out) + "\n"

if __name__ == "__main__":
    STAMP = "stamp" in sys.argv[2:]
    open(sys.argv[1], "w").write(build(1 if "one" in sys.argv[2:] else 2))
```
